```python
import torch

def _softmax(x, axis=-1):
    return torch.softmax(x, dim=axis)
def _gelu(x):
    return torch.nn.functional.gelu(x, approximate="tanh")
def _silu(x):
    return torch.nn.functional.silu(x)
def _sigmoid(x):
    return torch.sigmoid(x)
def _layernorm(x, axis=-1, eps=1e-5):
    m = x.mean(dim=axis, keepdim=True)
    v = x.var(dim=axis, keepdim=True, unbiased=False)
    return (x - m) / torch.sqrt(v + eps)
def _scatter_add(tgt, idx, src, axis=0):
    return tgt.clone().index_add_(axis, idx, src)
def _segment_sum(src, seg, n):
    out = torch.zeros((n,) + src.shape[1:], dtype=src.dtype)
    return out.index_add_(0, seg, src)
def _pad(x, pw):
    flat = tuple(v for pair in reversed(pw) for v in pair)
    return torch.nn.functional.pad(x, flat)

kernel_name = 'interleave_layers__sliding_local_dilated__sliding_local_dilated__prompt'

def setup_inputs():

    _w = (lambda a: (lambda t: t.to(torch.bfloat16) if t.is_floating_point() else t)(torch.as_tensor(a)))
    def _A_setup():
        B, S, D = 1, 2048, 576
        return {
            "x": _w((lambda *s: torch.randn(*s, dtype=torch.bfloat16) * 0.05)(B, S, D)),
            "wqkv": _w((lambda *s: torch.randn(*s, dtype=torch.bfloat16) * 0.05)(D, 3 * D)),
            "wo": _w((lambda *s: torch.randn(*s, dtype=torch.bfloat16) * 0.05)(D, D)),
        }
    _A_in = _A_setup()

    def _B_setup():
        B, S, D = 1, 2048, 576
        return {
            "x": _w((lambda *s: torch.randn(*s, dtype=torch.bfloat16) * 0.05)(B, S, D)),
            "wqkv": _w((lambda *s: torch.randn(*s, dtype=torch.bfloat16) * 0.05)(D, 3 * D)),
            "wo": _w((lambda *s: torch.randn(*s, dtype=torch.bfloat16) * 0.05)(D, D)),
        }
    _B_in = _B_setup()

    return {
        "A_x": _A_in["x"],
        "A_wqkv": _A_in["wqkv"],
        "A_wo": _A_in["wo"],
        "B_x": _B_in["x"],
        "B_wqkv": _B_in["wqkv"],
        "B_wo": _B_in["wo"],
    }

def reference(A_x, A_wqkv, A_wo, B_x, B_wqkv, B_wo):
    def _A_ref(x, wqkv, wo):
        B, S, D = x.shape
        H = 32; Dh = D // H
        W, dil = 8, 2
        qkv = (lambda x, *d: x.permute(*d))((x @ wqkv).reshape(B, S, 3, H, Dh), 2, 0, 3, 1, 4)
        q, k, v = qkv[0], qkv[1], qkv[2]
        scale = Dh ** -0.5
        pos = torch.arange(S)
        off = torch.arange(W) * dil
        idx = pos[:, None] - off[None, :]
        mask = idx >= 0
        idx_c = torch.where(mask, idx, 0).reshape(-1)
        kg = k[:, :, idx_c, :].reshape(B, H, S, W, Dh)
        vg = v[:, :, idx_c, :].reshape(B, H, S, W, Dh)
        logits = torch.einsum("bhsd,bhswd->bhsw", q, kg) * scale
        logits = torch.where(mask[None, None, :, :], logits, -1e9)
        attn = _softmax(logits, axis=-1)
        o = torch.einsum("bhsw,bhswd->bhsd", attn, vg)
        return (lambda x, *d: x.permute(*d))(o, 0, 2, 1, 3).reshape(B, S, D) @ wo

    def _B_ref(x, wqkv, wo):
        B, S, D = x.shape
        H = 32; Dh = D // H
        W, dil = 8, 2
        qkv = (lambda x, *d: x.permute(*d))((x @ wqkv).reshape(B, S, 3, H, Dh), 2, 0, 3, 1, 4)
        q, k, v = qkv[0], qkv[1], qkv[2]
        scale = Dh ** -0.5
        pos = torch.arange(S)
        off = torch.arange(W) * dil
        idx = pos[:, None] - off[None, :]
        mask = idx >= 0
        idx_c = torch.where(mask, idx, 0).reshape(-1)
        kg = k[:, :, idx_c, :].reshape(B, H, S, W, Dh)
        vg = v[:, :, idx_c, :].reshape(B, H, S, W, Dh)
        logits = torch.einsum("bhsd,bhswd->bhsw", q, kg) * scale
        logits = torch.where(mask[None, None, :, :], logits, -1e9)
        attn = _softmax(logits, axis=-1)
        o = torch.einsum("bhsw,bhswd->bhsd", attn, vg)
        return (lambda x, *d: x.permute(*d))(o, 0, 2, 1, 3).reshape(B, S, D) @ wo

    x = A_x
    x = x + _A_ref(_layernorm(x, axis=-1), A_wqkv, A_wo)
    x = x + _B_ref(_layernorm(x, axis=-1), B_wqkv, B_wo)
    x = x + _A_ref(_layernorm(x, axis=-1), A_wqkv, A_wo)
    x = x + _B_ref(_layernorm(x, axis=-1), B_wqkv, B_wo)
    return x
```

```python
import re

TRANS = ('v_exp_f32', 'v_log_f32', 'v_rcp_f32', 'v_rsq_f32', 'v_sqrt_f32', 'v_sin_f32', 'v_cos_f32')

_reg_re = re.compile(r'\b([vs])(\d+)\b|\b([vs])\[(\d+):(\d+)\]|\b(vcc|exec|scc|m0)\b')


def regs_of(op):
    out = set()
    for m in _reg_re.finditer(op):
        if m.group(1):
            out.add((m.group(1), int(m.group(2))))
        elif m.group(3):
            for i in range(int(m.group(4)), int(m.group(5)) + 1):
                out.add((m.group(3), i))
        else:
            out.add((m.group(6), 0))
    return out


def split_ops(s):
    ops, depth, cur = [], 0, ''
    for ch in s:
        if ch == '[':
            depth += 1
        elif ch == ']':
            depth -= 1
        if ch == ',' and depth == 0:
            ops.append(cur.strip())
            cur = ''
        else:
            cur += ch
    if cur.strip():
        ops.append(cur.strip())
    return ops


class Ins:
    __slots__ = ('text', 'mn', 'defs', 'uses', 'kind', 'srcc', 'ab', 'dpp', 'nop', 'wide_store_data')

    def __init__(self, text):
        self.text = text
        t = text.split(';')[0].strip()
        parts = t.split(None, 1)
        mn = parts[0]
        self.mn = mn
        ops = split_ops(parts[1]) if len(parts) > 1 else []
        self.defs, self.uses = set(), set()
        self.srcc, self.ab = set(), set()
        self.dpp = ('quad_perm' in t) or ('row_' in t and 'row_mask' in t)
        self.nop = 0
        self.wide_store_data = set()
        if mn == 's_nop':
            self.kind = 'nop'
            self.nop = int(ops[0], 0) + 1
            return
        if mn.startswith('v_mfma'):
            self.kind = 'mfma'
            self.defs = regs_of(ops[0])
            self.ab = regs_of(ops[1]) | regs_of(ops[2])
            self.srcc = regs_of(ops[3])
            self.uses = self.ab | self.srcc
            return
        if mn.startswith('v_'):
            self.kind = 'valu'
            if mn.startswith('v_dot'):
                self.kind = 'dot'
            if mn.startswith('v_cmp'):
                self.defs = regs_of(ops[0])
                for o in ops[1:]:
                    self.uses |= regs_of(o)
            elif mn.startswith('v_permlane'):
                self.defs = regs_of(ops[0]) | regs_of(ops[1])
                self.uses = set(self.defs)
            else:
                self.defs = regs_of(ops[0])
                for o in ops[1:]:
                    self.uses |= regs_of(o.split(' ')[0] if not o.startswith('abs') else o)
                if mn.startswith('v_fmac') or mn.startswith('v_dot2c'):
                    self.uses |= self.defs
                if mn.startswith('v_cndmask') and len(ops) == 3:
                    self.uses.add(('vcc', 0))
                if mn.startswith('v_add_co') or mn.startswith('v_addc_co') or mn.startswith('v_sub_co'):
                    self.defs |= regs_of(ops[1])
            return
        if mn.startswith('ds_'):
            self.kind = 'ds'
            if mn.startswith('ds_read') or mn.startswith('ds_bpermute') or mn.startswith('ds_swizzle'):
                self.defs = regs_of(ops[0])
                for o in ops[1:]:
                    self.uses |= regs_of(o.split(' ')[0])
            else:
                for o in ops:
                    self.uses |= regs_of(o.split(' ')[0])
            return
        if mn.startswith('buffer_') or mn.startswith('global_'):
            self.kind = 'vmem'
            if 'load' in mn:
                self.defs = regs_of(ops[0])
                for o in ops[1:]:
                    self.uses |= regs_of(o.split(' ')[0])
            else:
                for o in ops:
                    self.uses |= regs_of(o.split(' ')[0])
                if 'x3' in mn or 'x4' in mn:
                    self.wide_store_data = regs_of(ops[0])
            return
        if mn.startswith('s_'):
            self.kind = 'salu'
            if mn.startswith('s_cbranch') or mn == 's_branch' or mn == 's_endpgm':
                self.kind = 'branch'
                return
            if mn.startswith('s_cmp') or mn in ('s_waitcnt', 's_barrier', 's_sleep', 's_setprio'):
                for o in ops:
                    self.uses |= regs_of(o)
                return
            if ops:
                self.defs = regs_of(ops[0])
                for o in ops[1:]:
                    self.uses |= regs_of(o)
            return
        raise ValueError('unknown instruction ' + text)


def required(prod, cons):
    need = 0
    pk, ck = prod.kind, cons.kind
    pv = {r for r in prod.defs if r[0] == 'v'}
    ps = {r for r in prod.defs if r[0] != 'v'}
    is_valu_p = pk in ('valu', 'dot')
    is_valu_c = ck in ('valu', 'dot')
    if is_valu_p:
        if ck == 'mfma' and pv & cons.uses:
            need = max(need, 2 if pk == 'valu' else 3)
        if is_valu_c:
            if prod.mn in TRANS and cons.mn not in TRANS and pv & cons.uses:
                need = max(need, 1)
            if cons.dpp and pv & cons.uses:
                need = max(need, 2)
            if cons.mn.startswith('v_permlane') and pv & cons.uses:
                need = max(need, 2)
            if cons.mn.startswith(('v_readfirstlane', 'v_readlane')) and pv & cons.uses:
                need = max(need, 1)
            if ps & cons.uses:
                need = max(need, 4 if cons.mn.startswith(('v_readlane', 'v_writelane')) else 2)
            if pk == 'dot':
                if pv & (cons.uses | cons.defs):
                    if cons.mn == prod.mn:
                        ops = split_ops(cons.text.split(';')[0].strip().split(None, 1)[1])
                        ab = regs_of(ops[1]) | regs_of(ops[2])
                        if pv & ab:
                            need = max(need, 3)
                    else:
                        need = max(need, 3)
        if ck == 'vmem' and ps & cons.uses:
            need = max(need, 5)
        if pk == 'dot' and ck in ('vmem', 'ds') and pv & cons.uses:
            need = max(need, 3)
    if pk == 'mfma':
        if ck == 'mfma':
            if pv & cons.ab:
                need = max(need, 8)
            if pv & cons.srcc and cons.srcc != pv:
                need = max(need, 6)
        elif is_valu_c:
            if pv & (cons.uses | cons.defs):
                need = max(need, 8)
            if prod.srcc & cons.defs:
                need = max(need, 3)
        elif ck in ('vmem', 'ds'):
            if pv & (cons.uses | cons.defs):
                need = max(need, 8)
    if pk == 'vmem' and prod.wide_store_data:
        if prod.wide_store_data & cons.defs:
            need = max(need, 2 if is_valu_c else 1)
    return need


class Asm:
    def __init__(self):
        self.lines = []
        self._uid = 0

    def __call__(self, text):
        for ln in text.strip().split('\n'):
            ln = ln.strip()
            if not ln or ln.startswith(';'):
                continue
            self.lines.append(('i', Ins(ln)))

    def label(self, name, noflush=False):
        self.lines.append(('n' if noflush else 'l', name))

    def softbranch(self, text):
        self.lines.append(('r', '    ' + text))

    def raw(self, text):
        self.lines.append(('r', text))

    def uid(self, base='L'):
        self._uid += 1
        return '%s_%d' % (base, self._uid)

    def render(self):
        out = []
        window = []
        MAXW = 10

        def states(ins):
            return ins.nop if ins.kind == 'nop' else 1

        def flush():
            need = 0
            dist = 0
            for p in reversed(window):
                worst = 0
                if p.kind == 'mfma':
                    worst = 8
                elif p.kind in ('valu', 'dot'):
                    worst = 5 if any(r[0] != 'v' for r in p.defs) else 3
                elif p.kind == 'vmem' and p.wide_store_data:
                    worst = 2
                need = max(need, worst - dist)
                dist += states(p)
            if need > 0:
                out.append('    s_nop %d' % (need - 1))
            window.clear()

        for kind, x in self.lines:
            if kind == 'r':
                out.append(x)
                continue
            if kind == 'l':
                flush()
                out.append(x + ':')
                continue
            if kind == 'n':
                out.append(x + ':')
                continue
            ins = x
            if ins.kind == 'branch':
                flush()
                out.append('    ' + ins.text)
                continue
            need, dist = 0, 0
            for p in reversed(window):
                need = max(need, required(p, ins) - dist)
                dist += states(p)
                if dist >= MAXW:
                    break
            if need > 0:
                n = Ins('s_nop %d' % (need - 1))
                out.append('    ' + n.text)
                window.append(n)
            out.append('    ' + ins.text)
            window.append(ins)
            if len(window) > 24:
                del window[:-24]
        return '\n'.join(out) + '\n'
```

```python
import sys, os
sys.path.insert(0, os.path.dirname(os.path.abspath(__file__)))
from asmlib import Asm

NAME = 'interleave_layers__sliding_local_dilated__sliding_local_dilated__prompt'

XBYTES = 2048 * 576 * 2
TILE = 73728
MT = 18432
WS_O = 0
WS_X = 4 * XBYTES
WS_FLG = 8 * XBYTES
WS_SIZE = 32 << 20
OOB = 0x7F000000

L_X = 0
L_QKV = 92160
QP = 272
L_WO = L_QKV + 80 * QP
L_ST = L_WO + 18 * 2304
L_FLG = L_ST + 320
LDS_BYTES = 157440
F_XR, F_XF, F_QR, F_QF, F_WR, F_WF = 0, 16, 32, 48, 64, 80

sIN, sWQ, sWO, sOUT, sWS, sDBG = 24, 28, 32, 36, 40, 44
sWave, sWv, sSet, sTG, sHG, sLayer, sP, sN, sBud = 48, 49, 50, 51, 52, 53, 54, 55, 56
sG = 57
sNon = 58
sT = 60
sEx = 70
sSelLo, sSelHi = 72, 73
sM1, sM2, sM3, sMD = 74, 76, 78, 80
sRet = 82
sBase = 83
sBase2 = 84
sInitDone = 85

vFlag, vLane = 102, 103
vCS = 104
vW = 112


def srd(n):
    return 's[%d:%d]' % (n, n + 3)


def vr(b, n=4):
    return 'v[%d:%d]' % (b, b + n - 1)


def W(t, ks):
    return vW + (ks * 2 + t) * 4


class Gen:
    def __init__(self, nlayers=4, debug=False):
        self.a = Asm()
        self.nlayers = nlayers
        self.debug = debug

    def budget_check(self, code):
        a = self.a
        a('s_sub_u32 s%d, s%d, 1' % (sBud, sBud))
        a('s_cmp_eq_u32 s%d, 0' % sBud)
        a('s_mov_b32 s%d, %d' % (sT + 9, code))
        a('s_cbranch_scc1 L_ABORT')

    def wait_flag(self, off, tgt, tmp, code, add=0):
        a = self.a
        L, Ld = a.uid('Lwf'), a.uid('Lwfd')
        a.label(L)
        a('ds_read_b128 %s, v%d offset:%d' % (vr(tmp), vFlag, off))
        a('s_waitcnt lgkmcnt(0)')
        a('v_min3_u32 v%d, v%d, v%d, v%d' % (tmp, tmp, tmp + 1, tmp + 2))
        a('v_min_u32 v%d, v%d, v%d' % (tmp, tmp, tmp + 3))
        a('v_readfirstlane_b32 s%d, v%d' % (sT + 8, tmp))
        a('s_nop 1')
        if add:
            a('s_add_u32 s%d, s%d, %d' % (sT + 8, sT + 8, add))
        a('s_cmp_ge_u32 s%d, s%d' % (sT + 8, tgt))
        a('s_cbranch_scc1 %s' % Ld)
        self.budget_check(code)
        a('s_sleep 1')
        a('s_branch %s' % L)
        a.label(Ld)

    def set_flag(self, off, val_sreg, tmpv, add=0):
        a = self.a
        a('s_lshl_b32 s%d, s%d, 2' % (sT + 8, sWv))
        a('v_add_u32 v%d, s%d, v%d' % (tmpv, sT + 8, vFlag))
        if add:
            a('s_add_u32 s%d, s%d, %d' % (sT + 8, val_sreg, add))
            a('v_mov_b32 v%d, s%d' % (tmpv + 1, sT + 8))
        else:
            a('v_mov_b32 v%d, s%d' % (tmpv + 1, val_sreg))
        a('ds_write_b32 v%d, v%d offset:%d' % (tmpv, tmpv + 1, off))

    def swz(self, dst, q, r, tmp):
        a = self.a
        a('v_and_b32 v%d, 1, v%d' % (tmp, q))
        a('v_lshlrev_b32 v%d, 1, v%d' % (tmp, tmp))
        a('v_lshrrev_b32 v%d, 1, v%d' % (dst, q))
        a('v_mul_u32_u24 v%d, 12, v%d' % (dst, dst))
        a('v_add_u32 v%d, v%d, v%d' % (tmp, tmp, dst))
        a('v_xor_b32 v%d, v%d, v%d' % (tmp, tmp, r))
        a('v_lshlrev_b32 v%d, 4, v%d' % (tmp, tmp))
        a('v_lshl_add_u32 v%d, v%d, 8, v%d' % (dst, q, tmp))

    def validate(self, regs, tmp, fail_label):
        a = self.a
        regs = list(regs)
        a('v_max3_u32 v%d, v%d, v%d, v%d' % (tmp, regs[0], regs[1], regs[2]))
        i = 3
        while i + 1 < len(regs):
            a('v_max3_u32 v%d, v%d, v%d, v%d' % (tmp, tmp, regs[i], regs[i + 1]))
            i += 2
        if i < len(regs):
            a('v_max_u32 v%d, v%d, v%d' % (tmp, tmp, regs[i]))
        a('v_cmp_eq_u32 vcc, -1, v%d' % tmp)
        a('s_nop 1')
        a('s_cmp_lg_u64 vcc, 0')
        a('s_cbranch_scc1 %s' % fail_label)

    def prologue(self):
        a = self.a
        a('s_cmp_ge_u32 s2, 256')
        a('s_cbranch_scc1 L_END')
        a('s_load_dwordx16 s[4:19], s[0:1], 0')
        a('s_load_dwordx2 s[20:21], s[0:1], 64')
        a('v_and_b32 v%d, 63, v0' % vLane)
        a('v_lshrrev_b32 v1, 6, v0')
        a('v_readfirstlane_b32 s%d, v1' % sWave)
        a('s_nop 1')
        a('s_and_b32 s%d, s%d, 3' % (sWv, sWave))
        a('s_lshr_b32 s%d, s%d, 2' % (sSet, sWave))
        a('s_and_b32 s%d, s2, 7' % sT)
        a('s_lshr_b32 s%d, s2, 3' % (sT + 1))
        a('s_and_b32 s%d, s%d, 15' % (sHG, sT + 1))
        a('s_lshr_b32 s%d, s%d, 4' % (sT + 1, sT + 1))
        a('s_lshl_b32 s%d, s%d, 1' % (sTG, sT))
        a('s_add_u32 s%d, s%d, s%d' % (sTG, sTG, sT + 1))
        a('s_mov_b32 s%d, 0x%x' % (sBud, 400000))
        a('s_mov_b32 s%d, 0x05040100' % sSelLo)
        a('s_mov_b32 s%d, 0x07060302' % sSelHi)
        a('s_mov_b32 s%d, 0' % sLayer)
        a('s_mov_b32 s%d, 0' % sInitDone)
        a('v_mov_b32 v%d, 0x%x' % (vFlag, L_FLG))
        a('v_and_b32 v1, 3, v%d' % vLane)
        a('v_cmp_eq_u32 s[%d:%d], 1, v1' % (sM1, sM1 + 1))
        a('v_cmp_eq_u32 s[%d:%d], 2, v1' % (sM2, sM2 + 1))
        a('v_cmp_eq_u32 s[%d:%d], 3, v1' % (sM3, sM3 + 1))
        a('v_lshrrev_b32 v1, 4, v%d' % vLane)
        a('v_bfe_u32 v2, v%d, 2, 2' % vLane)
        a('v_cmp_eq_u32 s[%d:%d], v1, v2' % (sMD, sMD + 1))
        a('v_mov_b32 v1, 0')
        a('v_lshl_add_u32 v2, v%d, 2, v%d' % (vLane, vFlag))
        a('ds_write_b32 v2, v1')
        a('s_waitcnt lgkmcnt(0)')

        def mk(n, lo, hi, size):
            a('s_mov_b32 s%d, s%d' % (n, lo))
            a('s_and_b32 s%d, s%d, 0xffff' % (n + 1, hi))
            a('s_mov_b32 s%d, 0x%x' % (n + 2, size))
            a('s_mov_b32 s%d, 0x00020000' % (n + 3))
        mk(sIN, 4, 5, XBYTES)
        mk(sOUT, 16, 17, XBYTES)
        mk(sDBG, 18, 19, 256)
        mk(sWS, 20, 21, WS_SIZE)
        a('s_cmp_eq_u32 s%d, 0' % sSet)
        a('s_cbranch_scc0 L_SETB_SRD')
        mk(sWQ, 6, 7, 576 * 1728 * 2)
        mk(sWO, 14, 15, 576 * 576 * 2)
        a('s_branch L_SRD_DONE')
        a.label('L_SETB_SRD')
        mk(sWQ, 12, 13, 576 * 1728 * 2)
        mk(sWO, 8, 9, 576 * 576 * 2)
        a.label('L_SRD_DONE')
        a('s_barrier')

    def wload_addr(self, v1, v2, tmp):
        a = self.a
        i, q, oa, rr, t4, t5 = tmp, tmp + 1, tmp + 2, tmp + 3, tmp + 4, tmp + 5
        a('v_and_b32 v%d, 15, v%d' % (i, vLane))
        a('v_lshrrev_b32 v%d, 4, v%d' % (q, vLane))
        a('v_lshrrev_b32 v%d, 2, v%d' % (oa, i))
        a('v_and_b32 v%d, 3, v%d' % (rr, i))
        a('s_mul_i32 s%d, s%d, 3' % (sT, sWv))
        a('v_add_u32 v%d, s%d, v%d' % (t4, sT, oa))
        a('v_lshrrev_b32 v%d, 2, v%d' % (v1, t4))
        a('v_mul_u32_u24 v%d, 576, v%d' % (v1, v1))
        a('v_bfe_u32 v%d, v%d, 1, 1' % (t5, t4))
        a('v_mul_u32_u24 v%d, 18, v%d' % (t5, t5))
        a('v_add_u32 v%d, v%d, v%d' % (v1, v1, t5))
        a('v_and_b32 v%d, 1, v%d' % (t5, t4))
        a('v_lshl_add_u32 v%d, v%d, 3, v%d' % (v1, t5, v1))
        a('v_lshl_add_u32 v%d, v%d, 1, v%d' % (v1, rr, v1))
        a('s_mul_i32 s%d, s%d, 576' % (sT, sWv))
        a('s_add_u32 s%d, s%d, 16' % (sT, sT))
        a('v_mul_u32_u24 v%d, 18, v%d' % (t5, rr))
        a('v_add_u32 v%d, s%d, v%d' % (t5, sT, t5))
        a('v_cmp_eq_u32 vcc, 3, v%d' % oa)
        a('v_cndmask_b32 v%d, v%d, v%d, vcc' % (v1, v1, t5))
        a('s_mul_i32 s%d, s%d, 36' % (sT, sHG))
        a('v_add_u32 v%d, s%d, v%d' % (v1, sT, v1))
        a('v_lshlrev_b32 v%d, 1, v%d' % (v1, v1))
        a('s_cmp_eq_u32 s%d, 3' % sWv)
        a('s_cselect_b32 s%d, 12, 14' % sT)
        a('v_cmp_le_u32 vcc, s%d, v%d' % (sT, i))
        a('v_mov_b32 v%d, 0x%x' % (t5, OOB))
        a('v_cndmask_b32 v%d, v%d, v%d, vcc' % (v1, v1, t5))
        a('s_mov_b32 s%d, %d' % (sT, 72 * 3456))
        a('v_mul_lo_u32 v%d, v%d, s%d' % (t5, q, sT))
        a('v_add_u32 v%d, v%d, v%d' % (v2, v1, t5))
        a('v_mul_u32_u24 v%d, %d, v%d' % (t5, 8 * 3456, q))
        a('v_add_u32 v%d, v%d, v%d' % (v1, v1, t5))

    def wload_issue(self, ks_list, v1, v2):
        a = self.a
        for ks in ks_list:
            for e in range(0, 8, 2):
                if ks < 16:
                    row, vo = 36 * ks + e, v1
                else:
                    row, vo = 288 * (ks - 16) + 36 * (e >> 2) + 32 + (e & 3), v2
                st = sT + (e >> 1) % 2
                a('s_mov_b32 s%d, %d' % (st, row * 3456))
                m = e >> 1
                a('buffer_load_dword v%d, v%d, %s, s%d offen' % (W(0, ks) + m, vo, srd(sWQ), st))
                a('buffer_load_dword v%d, v%d, %s, s%d offen offset:3456' % (W(1, ks) + m, vo, srd(sWQ), st))

    def wload_perm(self, ks_list, ones, tmp):
        a = self.a
        for ks in ks_list:
            for m in range(4):
                r0, r1 = W(0, ks) + m, W(1, ks) + m
                t = tmp + (m & 1)
                a('v_perm_b32 v%d, v%d, v%d, s%d' % (t, r1, r0, sSelLo))
                a('v_perm_b32 v%d, v%d, v%d, s%d' % (r1, r1, r0, sSelHi))
                a('v_or_b32 v%d, v%d, v%d' % (r0, ones, t))

    def ones_mask(self, dst, tmp):
        a = self.a
        a('v_and_b32 v%d, 15, v%d' % (tmp, vLane))
        a('v_cmp_eq_u32 vcc, 14, v%d' % tmp)
        a('v_mov_b32 v%d, 0x3f803f80' % tmp)
        a('v_cndmask_b32 v%d, 0, v%d, vcc' % (dst, tmp))

    def colsum(self, tmp):
        a = self.a
        for i in range(4):
            a('v_mov_b32 v%d, 0x3f803f80' % (tmp + i))
        for ks in range(18):
            for t in range(2):
                c = '0' if ks == 0 else vr(vCS + 4 * t)
                a('v_mfma_f32_16x16x32_bf16 %s, %s, %s, %s' % (vr(vCS + 4 * t), vr(W(t, ks)), vr(tmp), c))

    def m_role(self):
        a = self.a
        ACC = lambda s, t: (s * 2 + t) * 4
        G0, GH = 40, 44
        BUF = [48, 68]
        XA = 88
        TMP = 94
        a.label('L_M_ROLE')
        a('s_mov_b32 s%d, 0' % sP)
        a.label('L_M_TASK')
        a('s_lshl_b32 s%d, s%d, 1' % (sN, sLayer))
        a('s_add_u32 s%d, s%d, s%d' % (sN, sN, sP))
        a('s_mul_i32 s%d, s%d, 3' % (sG, sN))
        a('v_lshrrev_b32 v%d, 4, v%d' % (TMP, vLane))
        a('v_and_b32 v%d, 15, v%d' % (TMP + 1, vLane))
        self.swz(XA + 4, TMP, TMP + 1, TMP + 2)
        for s in range(4):
            a('s_add_u32 s%d, s%d, %d' % (sT, sWv, s))
            a('s_and_b32 s%d, s%d, 3' % (sT, sT))
            a('s_add_u32 s%d, s%d, 1' % (sT, sT))
            a('s_mul_i32 s%d, s%d, %d' % (sT, sT, MT))
            a('v_add_u32 v%d, s%d, v%d' % (XA + s, sT, XA + 4))
        a('s_add_u32 s%d, s%d, 1' % (sT + 7, sG))
        self.wait_flag(F_XR, sT + 7, TMP, 1)

        def reads(ks):
            for s in range(5):
                a('ds_read_b128 %s, v%d offset:%d' % (vr(BUF[ks & 1] + 4 * s), XA + s, ks * 1024))
        reads(0)
        after = 0
        for ks in range(18):
            seg = ks // 6
            if ks % 6 == 5 and ks < 17:
                Lok = a.uid('Lxr')
                a('v_min3_u32 v%d, v%d, v%d, v%d' % (TMP, TMP, TMP + 1, TMP + 2))
                a('v_min_u32 v%d, v%d, v%d' % (TMP, TMP, TMP + 3))
                a('v_readfirstlane_b32 s%d, v%d' % (sT + 8, TMP))
                a('s_add_u32 s%d, s%d, %d' % (sT + 7, sG, seg + 2))
                a('s_nop 0')
                a('s_cmp_ge_u32 s%d, s%d' % (sT + 8, sT + 7))
                a.softbranch('s_cbranch_scc1 %s' % Lok)
                self.wait_flag(F_XR, sT + 7, TMP, 2)
                a.label(Lok, noflush=True)
            nxt = 0
            if ks % 6 == 4 and ks < 16:
                a('ds_read_b128 %s, v%d offset:%d' % (vr(TMP), vFlag, F_XR))
                after += 1
            if ks + 1 < 18:
                reads(ks + 1)
                nxt = 5
            if ks % 6 == 4 and ks < 16:
                a('s_waitcnt lgkmcnt(%d)' % nxt)
            else:
                a('s_waitcnt lgkmcnt(%d)' % (after + nxt))
            after = 0
            if ks % 6 == 5:
                self.set_flag(F_XF, sG, TMP + 4, add=seg + 1)
                after += 1
            a('s_cmp_eq_u32 s%d, 0' % sWv)
            F = lambda s: vr(BUF[ks & 1] + 4 * s)
            for s in range(4):
                for t in range(2):
                    c = '0' if ks == 0 else vr(ACC(s, t))
                    a('v_mfma_f32_16x16x32_bf16 %s, %s, %s, %s' % (vr(ACC(s, t)), vr(W(t, ks)), F(s), c))
            c = '0' if ks == 0 else vr(G0)
            a('v_mfma_f32_16x16x32_bf16 %s, %s, %s, %s' % (vr(G0), F(0), F(0), c))
            c = '0' if ks == 0 else vr(ACC(4, 0))
            a('v_mfma_f32_16x16x32_bf16 %s, %s, %s, %s' % (vr(ACC(4, 0)), vr(W(0, ks)), F(4), c))
            L0, L1 = a.uid('Lw0'), a.uid('Lw1')
            a.softbranch('s_cbranch_scc1 %s' % L0)
            c = '0' if ks == 0 else vr(ACC(4, 1))
            a('v_mfma_f32_16x16x32_bf16 %s, %s, %s, %s' % (vr(ACC(4, 1)), vr(W(1, ks)), F(4), c))
            a.softbranch('s_branch %s' % L1)
            a.label(L0, noflush=True)
            c = '0' if ks == 0 else vr(GH)
            a('v_mfma_f32_16x16x32_bf16 %s, %s, %s, %s' % (vr(GH), F(4), F(4), c))
            a.label(L1, noflush=True)
        self.wait_flag(F_QF, sN, TMP, 3)
        a('s_nop 4')
        NM = 48
        QA = 56
        PK = 64
        T2 = 84
        a('v_and_b32 v%d, 15, v%d' % (T2, vLane))
        a('v_add_u32 v%d, 48, v%d' % (T2 + 1, T2))
        a('v_lshlrev_b32 v%d, 2, v%d' % (T2 + 1, T2 + 1))
        for s in range(5):
            a('ds_bpermute_b32 v%d, v%d, v%d' % (NM + s, T2 + 1, ACC(s, 0) + 2))
        a('v_lshrrev_b32 v%d, 4, v%d' % (T2 + 2, vLane))
        a('s_mul_i32 s%d, s%d, 3' % (sT, sWv))
        a('v_add_u32 v%d, s%d, v%d' % (T2 + 3, sT, T2 + 2))
        a('s_add_u32 s%d, s%d, 12' % (sT, sWv))
        a('v_mov_b32 v%d, s%d' % (T2 + 1, sT))
        a('v_cmp_eq_u32 vcc, 3, v%d' % (T2 + 2))
        a('v_cndmask_b32 v%d, v%d, v%d, vcc' % (T2 + 3, T2 + 3, T2 + 1))
        a('v_lshlrev_b32 v%d, 4, v%d' % (T2 + 3, T2 + 3))
        a('v_mul_u32_u24 v%d, %d, v%d' % (T2 + 1, QP, T2))
        a('v_add_u32 v%d, v%d, v%d' % (QA + 4, T2 + 1, T2 + 3))
        a('v_add_u32 v%d, 0x%x, v%d' % (QA + 4, L_QKV, QA + 4))
        for s in range(4):
            a('s_add_u32 s%d, s%d, %d' % (sT, sWv, s))
            a('s_and_b32 s%d, s%d, 3' % (sT, sT))
            a('s_add_u32 s%d, s%d, 1' % (sT, sT))
            a('s_mul_i32 s%d, s%d, %d' % (sT, sT, 16 * QP))
            a('v_add_u32 v%d, s%d, v%d' % (QA + s, sT, QA + 4))
        a('s_waitcnt lgkmcnt(0)')
        for s in range(5):
            a('v_mul_f32 v%d, 0xbae38e39, v%d' % (NM + s, NM + s))
        for s in range(5):
            for t in range(2):
                for r in range(4):
                    a('v_fma_f32 v%d, v%d, v%d, v%d' % (ACC(s, t) + r, NM + s, vCS + 4 * t + r, ACC(s, t) + r))
            for r in range(4):
                a('v_cvt_pk_bf16_f32 v%d, v%d, v%d' % (PK + 4 * s + r, ACC(s, 0) + r, ACC(s, 1) + r))
            a('ds_write_b128 v%d, %s' % (QA + s, vr(PK + 4 * s)))

        def rstd(G, nm, mt_sreg_expr):
            a('v_cndmask_b32 v%d, v%d, v%d, s[%d:%d]' % (G, G, G + 1, sM1, sM1 + 1))
            a('v_cndmask_b32 v%d, v%d, v%d, s[%d:%d]' % (G, G, G + 2, sM2, sM2 + 1))
            a('v_cndmask_b32 v%d, v%d, v%d, s[%d:%d]' % (G, G, G + 3, sM3, sM3 + 1))
            a('v_mul_f32 v%d, v%d, v%d' % (G + 1, nm, nm))
            a('v_mul_f32 v%d, 0x3ae38e39, v%d' % (G, G))
            a('v_sub_f32 v%d, v%d, v%d' % (G, G, G + 1))
            a('v_max_f32 v%d, 0, v%d' % (G, G))
            a('v_add_f32 v%d, 0x3727c5ac, v%d' % (G, G))
            a('v_rsq_f32 v%d, v%d' % (G, G))
            a('v_lshlrev_b32 v%d, 2, v%d' % (G + 1, T2))
            a('v_add_u32 v%d, s%d, v%d' % (G + 1, mt_sreg_expr, G + 1))
            a('s_mov_b64 exec, s[%d:%d]' % (sMD, sMD + 1))
            a('ds_write_b32 v%d, v%d' % (G + 1, G))
            a('s_mov_b64 exec, -1')
        a('s_add_u32 s%d, s%d, 1' % (sT, sWv))
        a('s_lshl_b32 s%d, s%d, 6' % (sT, sT))
        a('s_add_u32 s%d, s%d, 0x%x' % (sT, sT, L_ST))
        rstd(G0, NM + 0, sT)
        Lsk = a.uid('Lnoh')
        a('s_cmp_lg_u32 s%d, 0' % sWv)
        a('s_cbranch_scc1 %s' % Lsk)
        a('s_mov_b32 s%d, 0x%x' % (sT, L_ST))
        rstd(GH, NM + 4, sT)
        a.label(Lsk)
        a('s_waitcnt lgkmcnt(0)')
        self.set_flag(F_QR, sN, TMP + 4, add=1)
        a('s_add_u32 s%d, s%d, 1' % (sT + 7, sN))
        self.wait_flag(F_QR, sT + 7, TMP, 4)
        self.attention()
        a('s_add_u32 s%d, s%d, 1' % (sP, sP))
        a('s_cmp_lt_u32 s%d, 2' % sP)
        a('s_cbranch_scc1 L_M_TASK')
        a('s_add_u32 s%d, s%d, 1' % (sLayer, sLayer))
        a('s_cmp_ge_u32 s%d, %d' % (sLayer, self.nlayers))
        a('s_cbranch_scc1 L_END')
        a('s_branch L_H_ROLE')

    def attention(self):
        a = self.a
        Q = 0
        K = 12
        RK = 60
        RO = 64
        S = 65
        AD = 70
        T = 76
        il, hh, j, R = 84, 85, 86, 87
        a('v_lshrrev_b32 v%d, 2, v%d' % (il, vLane))
        a('v_bfe_u32 v%d, v%d, 1, 1' % (hh, vLane))
        a('v_and_b32 v%d, 1, v%d' % (j, vLane))
        a('s_lshl_b32 s%d, s%d, 4' % (sT, sWv))
        a('s_add_u32 s%d, s%d, 16' % (sT, sT))
        a('v_add_u32 v%d, s%d, v%d' % (R, sT, il))
        a('v_mul_u32_u24 v%d, %d, v%d' % (T, QP, R))
        a('v_add_u32 v%d, 0x%x, v%d' % (T, L_QKV, T))
        a('v_lshl_add_u32 v%d, v%d, 5, v%d' % (AD, hh, T))
        a('v_lshl_add_u32 v%d, v%d, 2, v%d' % (AD + 1, hh, T))
        a('ds_read_b128 %s, v%d' % (vr(Q), AD))
        a('ds_read_b128 %s, v%d offset:16' % (vr(Q + 4), AD))
        a('ds_read_b32 v%d, v%d offset:192' % (Q + 8, AD + 1))
        a('v_mul_u32_u24 v%d, %d, v%d' % (T + 1, 4 * QP, j))
        a('v_add_u32 v%d, %d, v%d' % (T + 1, 3 * QP, T + 1))
        a('v_sub_u32 v%d, v%d, v%d' % (AD + 2, AD, T + 1))
        a('v_sub_u32 v%d, v%d, v%d' % (AD + 3, AD + 1, T + 1))
        for w in range(4):
            o = (3 - w) * QP
            a('ds_read_b128 %s, v%d offset:%d' % (vr(K + 12 * w), AD + 2, o + 64))
            a('ds_read_b128 %s, v%d offset:%d' % (vr(K + 12 * w + 4), AD + 2, o + 80))
            a('ds_read_b32 v%d, v%d offset:%d' % (K + 12 * w + 8, AD + 3, o + 208))
        a('v_lshlrev_b32 v%d, 2, v%d' % (T + 2, R))
        a('v_add_u32 v%d, 0x%x, v%d' % (T + 2, L_ST, T + 2))
        a('ds_read_b32 v%d, v%d' % (RO, T + 2))
        a('v_lshlrev_b32 v%d, 4, v%d' % (T + 3, j))
        a('v_add_u32 v%d, 12, v%d' % (T + 3, T + 3))
        a('v_sub_u32 v%d, v%d, v%d' % (T + 2, T + 2, T + 3))
        a('ds_read2_b32 %s, v%d offset0:0 offset1:1' % (vr(RK, 2), T + 2))
        a('ds_read2_b32 %s, v%d offset0:2 offset1:3' % (vr(RK + 2, 2), T + 2))
        a('v_lshl_add_u32 v%d, v%d, 4, v%d' % (AD + 4, j, AD))
        a('v_subrev_u32 v%d, %d, v%d' % (AD + 4, 7 * QP, AD + 4))
        a('v_subrev_u32 v%d, %d, v%d' % (AD + 5, 7 * QP, AD + 1))
        pend = 3 * 4 + 3
        for w in range(4):
            pend -= 3
            a('s_waitcnt lgkmcnt(%d)' % pend)
            for d in range(9):
                c = '0' if d == 0 else 'v%d' % (S + w)
                a('v_dot2_f32_bf16 v%d, v%d, v%d, %s' % (S + w, Q + d, K + 12 * w + d, c))
        a('s_waitcnt lgkmcnt(0)')
        V = 12
        for w in range(8):
            o = (7 - w) * QP
            a('ds_read_b128 %s, v%d offset:%d' % (vr(V + 6 * w), AD + 4, o + 128))
            a('ds_read_b32 v%d, v%d offset:%d' % (V + 6 * w + 4, AD + 5, o + 224))
        import struct
        c = struct.unpack('<I', struct.pack('<f', (18 ** -0.5) * 1.4426950408889634))[0]
        a('v_mul_f32 v%d, 0x%x, v%d' % (RO, c, RO))
        for w in range(4):
            a('v_mul_f32 v%d, v%d, v%d' % (S + w, S + w, RO))
        for w in range(4):
            a('v_mul_f32 v%d, v%d, v%d' % (S + w, S + w, RK + 3 - w))
        Lnm = a.uid('Lnomask')
        a('s_or_b32 s%d, s%d, s%d' % (sT, sTG, sWv))
        a('s_cmp_lg_u32 s%d, 0' % sT)
        a('s_cbranch_scc1 %s' % Lnm)
        a('v_lshlrev_b32 v%d, 2, v%d' % (T, j))
        a('v_mov_b32 v%d, 0xf149f2ca' % (T + 2))
        for w in range(4):
            a('v_add_u32 v%d, %d, v%d' % (T + 1, w, T))
            a('v_cmp_lt_u32 vcc, v%d, v%d' % (il, T + 1))
            a('v_cndmask_b32 v%d, v%d, v%d, vcc' % (S + w, S + w, T + 2))
        a.label(Lnm)
        a('v_max3_f32 v%d, v%d, v%d, v%d' % (T, S, S + 1, S + 2))
        a('v_max_f32 v%d, v%d, v%d' % (T, T, S + 3))
        a('v_max_f32_dpp v%d, v%d, v%d quad_perm:[1,0,3,2] row_mask:0xf bank_mask:0xf' % (T + 1, T, T))
        for w in range(4):
            a('v_sub_f32 v%d, v%d, v%d' % (S + w, S + w, T + 1))
        for w in range(4):
            a('v_exp_f32 v%d, v%d' % (S + w, S + w))
        a('v_add_f32 v%d, v%d, v%d' % (T, S, S + 1))
        a('v_add_f32 v%d, v%d, v%d' % (T + 1, S + 2, S + 3))
        a('v_add_f32 v%d, v%d, v%d' % (T, T, T + 1))
        a('v_add_f32_dpp v%d, v%d, v%d quad_perm:[1,0,3,2] row_mask:0xf bank_mask:0xf' % (T + 1, T, T))
        a('v_rcp_f32 v%d, v%d' % (T + 1, T + 1))
        for w in range(4):
            a('v_mul_f32 v%d, v%d, v%d' % (S + w, S + w, RK + 3 - w))
        for w in range(4):
            a('v_mul_f32 v%d, v%d, v%d' % (S + w, S + w, T + 1))
        a('v_cvt_pk_bf16_f32 v%d, v%d, v%d' % (T, S, S + 1))
        a('v_cvt_pk_bf16_f32 v%d, v%d, v%d' % (T + 1, S + 2, S + 3))
        a('v_mov_b32_dpp v%d, v%d quad_perm:[1,0,3,2] row_mask:0xf bank_mask:0xf' % (T + 2, T))
        a('v_mov_b32_dpp v%d, v%d quad_perm:[1,0,3,2] row_mask:0xf bank_mask:0xf' % (T + 3, T + 1))
        a('v_cmp_eq_u32 vcc, 1, v%d' % j)
        PP = 60
        a('v_cndmask_b32 v%d, v%d, v%d, vcc' % (PP, T, T + 2))
        a('v_cndmask_b32 v%d, v%d, v%d, vcc' % (PP + 1, T + 1, T + 3))
        a('v_cndmask_b32 v%d, v%d, v%d, vcc' % (PP + 2, T + 2, T))
        a('v_cndmask_b32 v%d, v%d, v%d, vcc' % (PP + 3, T + 3, T + 1))
        PL = 86
        SA = 64
        a('v_lshl_add_u32 v%d, v%d, 1, v%d' % (T, hh, j))
        a('v_lshlrev_b32 v%d, 8, v%d' % (T, T))
        a('v_lshl_add_u32 v%d, v%d, 4, v%d' % (SA, il, T))
        a('s_lshl_b32 s%d, s%d, 10' % (sT, sHG))
        a('v_add_u32 v%d, s%d, v%d' % (SA, sT, SA))
        a('s_lshr_b32 s%d, s%d, 3' % (sT, sHG))
        a('s_add_u32 s%d, s%d, 16' % (sT, sT))
        a('s_lshl_b32 s%d, s%d, 10' % (sT, sT))
        a('s_bfe_u32 s%d, s%d, 0x20001' % (sT + 1, sHG))
        a('s_lshl_b32 s%d, s%d, 8' % (sT + 1, sT + 1))
        a('s_add_u32 s%d, s%d, s%d' % (sT, sT, sT + 1))
        a('s_and_b32 s%d, s%d, 1' % (sT + 1, sHG))
        a('s_lshl_b32 s%d, s%d, 3' % (sT + 1, sT + 1))
        a('s_add_u32 s%d, s%d, s%d' % (sT, sT, sT + 1))
        a('v_lshlrev_b32 v%d, 4, v%d' % (T, il))
        a('v_lshl_add_u32 v%d, v%d, 2, v%d' % (T, hh, T))
        a('v_add_u32 v%d, s%d, v%d' % (SA + 1, sT, T))
        for pr in range(4):
            a('v_and_b32 v%d, 0xffff, v%d' % (PL + 4 * pr, PP + pr))
            a('v_lshlrev_b32 v%d, 16, v%d' % (PL + 4 * pr + 1, PP + pr))
            a('v_lshrrev_b32 v%d, 16, v%d' % (PL + 4 * pr + 2, PP + pr))
            a('v_and_b32 v%d, 0xffff0000, v%d' % (PL + 4 * pr + 3, PP + pr))
        O = 0
        for w in range(8):
            a('s_waitcnt lgkmcnt(%d)' % (2 * (7 - w)))
            for m in range(5):
                for h in range(2):
                    c = '0' if w == 0 else 'v%d' % (O + 2 * m + h)
                    a('v_dot2_f32_bf16 v%d, v%d, v%d, %s' % (O + 2 * m + h, V + 6 * w + m, PL + 2 * w + h, c))
        self.set_flag(F_QF, sN, T, add=1)
        for m in range(5):
            a('v_cvt_pk_bf16_f32 v%d, v%d, v%d' % (12 + m, O + 2 * m, O + 2 * m + 1))
        a('s_mul_i32 s%d, s%d, %d' % (sT, sLayer, XBYTES))
        a('s_lshl_b32 s%d, s%d, 1' % (sT + 1, sTG))
        a('s_add_u32 s%d, s%d, s%d' % (sT + 1, sT + 1, sP))
        a('s_mul_i32 s%d, s%d, %d' % (sT + 1, sT + 1, TILE))
        a('s_add_u32 s%d, s%d, s%d' % (sT, sT, sT + 1))
        a('s_mul_i32 s%d, s%d, %d' % (sT + 1, sWv, MT))
        a('s_add_u32 s%d, s%d, s%d' % (sT, sT, sT + 1))
        a('buffer_store_dwordx4 %s, v%d, %s, s%d offen sc1' % (vr(12), SA, srd(sWS), sT))
        a('buffer_store_dword v16, v%d, %s, s%d offen sc1' % (SA + 1, srd(sWS), sT))

    def stage_generic(self):
        a = self.a
        AV, AH, LV, LH = 84, 85, 86, 87
        TMP = 88
        a('s_lshl_b32 s%d, s%d, 1' % (sN, sLayer))
        a('s_add_u32 s%d, s%d, s%d' % (sN, sN, sP))
        a('s_mul_i32 s%d, s%d, 3' % (sG, sN))
        a('v_lshlrev_b32 v%d, 4, v%d' % (AV, vLane))
        a('s_add_u32 s%d, s%d, 1' % (sT, sWv))
        a('s_mul_i32 s%d, s%d, %d' % (sT, sT, MT))
        a('v_add_u32 v%d, s%d, v%d' % (LV, sT, AV))
        a('v_bfe_u32 v%d, v%d, 3, 2' % (TMP, vLane))
        a('v_and_b32 v%d, 7, v%d' % (TMP + 1, vLane))
        a('v_add_u32 v%d, 8, v%d' % (TMP + 1, TMP + 1))
        self.swz(LH, TMP, TMP + 1, TMP + 2)
        a('v_lshrrev_b32 v%d, 5, v%d' % (TMP, vLane))
        a('v_lshl_add_u32 v%d, v%d, 10, v%d' % (LH, TMP, LH))
        a('s_min_u32 s%d, s%d, 2' % (sT, sWv))
        a('s_lshl_b32 s%d, s%d, 11' % (sT, sT))
        a('v_add_u32 v%d, s%d, v%d' % (LH, sT, LH))
        a('v_mov_b32 v%d, 0x%x' % (TMP, OOB))
        a('s_cmp_eq_u32 s%d, 0' % sTG)
        a('s_cselect_b64 vcc, -1, 0')
        a('v_cndmask_b32 v%d, v%d, v%d, vcc' % (AH, LH, TMP))
        a('s_sub_u32 s%d, s%d, 1' % (sT, sLayer))
        a('s_mul_i32 s%d, s%d, %d' % (sT, sT, XBYTES))
        a('s_add_u32 s%d, s%d, %d' % (sT, sT, WS_X))
        a('s_lshl_b32 s%d, s%d, 1' % (sT + 1, sTG))
        a('s_add_u32 s%d, s%d, s%d' % (sT + 1, sT + 1, sP))
        a('s_mul_i32 s%d, s%d, %d' % (sT + 1, sT + 1, TILE))
        a('s_add_u32 s%d, s%d, s%d' % (sT, sT, sT + 1))
        a('s_sub_u32 s%d, s%d, %d' % (sBase2, sT, 2 * TILE - 3 * MT))
        a('s_mul_i32 s%d, s%d, %d' % (sT + 1, sWv, MT))
        a('s_add_u32 s%d, s%d, s%d' % (sBase, sT, sT + 1))

        def loads(seg):
            a('s_add_u32 s%d, s%d, %d' % (sT, sBase, seg * 6144))
            a('s_add_u32 s%d, s%d, %d' % (sT + 1, sBase, seg * 6144 + 3072))
            a('s_add_u32 s%d, s%d, %d' % (sT + 2, sBase2, seg * 6144))
            for k in range(6):
                a('buffer_load_dwordx4 %s, v%d, %s, s%d offen offset:%d sc1' %
                  (vr(28 * seg + 4 * k), AV, srd(sWS), sT + k // 3, (k % 3) * 1024))
            a('buffer_load_dwordx4 %s, v%d, %s, s%d offen sc1' % (vr(28 * seg + 24), AH, srd(sWS), sT + 2))
        for seg in range(3):
            loads(seg)
        self.stage_segs(loads, LV, LH, TMP, validate=True)

    def stage_segs(self, loads, LV, LH, TMP, validate, nload=7):
        a = self.a
        for seg in range(3):
            a('s_waitcnt vmcnt(%d)' % (nload * (2 - seg) if not callable(nload) else nload(seg)))
            if validate:
                Lr, Lv, Lk = a.uid('Lret'), a.uid('Lval'), a.uid('Lok')
                a('s_mov_b32 s%d, 0' % sRet)
                a.label(Lv)
                self.validate(range(28 * seg, 28 * seg + 28), TMP, Lr)
                a('s_cmp_eq_u32 s%d, 0' % sRet)
                a('s_cbranch_scc1 %s' % Lk)
                for s2 in range(seg + 1, 3):
                    loads(s2)
                a('s_branch %s' % Lk)
                a.label(Lr)
                self.budget_check(5)
                a('s_mov_b32 s%d, 1' % sRet)
                a('s_waitcnt vmcnt(0)')
                loads(seg)
                a('s_waitcnt vmcnt(0)')
                a('s_branch %s' % Lv)
                a.label(Lk)
            a('s_add_u32 s%d, s%d, %d' % (sT + 7, sG, seg + 1))
            self.wait_flag(F_XF, sT + 7, TMP, 6, add=3)
            for k in range(6):
                a('ds_write_b128 v%d, %s offset:%d' % (LV, vr(28 * seg + 4 * k), (6 * seg + k) * 1024))
            a('ds_write_b128 v%d, %s offset:%d' % (LH, vr(28 * seg + 24), seg * 6144))
            a('s_waitcnt lgkmcnt(0)')
            self.set_flag(F_XR, sG, TMP, add=seg + 1)

    def stage_input_issue(self):
        a = self.a
        AV, AH, LV, LH = 84, 85, 86, 87
        AT, AH2 = 96, 97
        TMP = 88
        a('s_mov_b32 s%d, s%d' % (sN, sP))
        a('s_mul_i32 s%d, s%d, 3' % (sG, sN))
        a('v_lshrrev_b32 v%d, 2, v%d' % (TMP + 1, vLane))
        a('v_and_b32 v%d, 3, v%d' % (TMP, vLane))
        self.swz(LV, TMP, TMP + 1, TMP + 2)
        a('s_add_u32 s%d, s%d, 1' % (sT, sWv))
        a('s_mul_i32 s%d, s%d, %d' % (sT, sT, MT))
        a('v_add_u32 v%d, s%d, v%d' % (LV, sT, LV))
        a('s_lshl_b32 s%d, s%d, 7' % (sT, sTG))
        a('s_add_u32 s%d, s%d, s%d' % (sT, sT, sP))
        a('s_lshl_b32 s%d, s%d, 5' % (sT + 1, sWv))
        a('s_add_u32 s%d, s%d, s%d' % (sT + 1, sT + 1, sT))
        a('s_mul_i32 s%d, s%d, 1152' % (sT + 1, sT + 1))
        a('v_mul_u32_u24 v%d, 2304, v%d' % (TMP + 2, TMP + 1))
        a('v_add_u32 v%d, s%d, v%d' % (TMP + 2, sT + 1, TMP + 2))
        a('v_lshl_add_u32 v%d, v%d, 4, v%d' % (AV, TMP, TMP + 2))
        a('v_mul_u32_u24 v%d, 144, v%d' % (AT, TMP))
        a('v_add_u32 v%d, v%d, v%d' % (AT, AT, TMP + 2))
        a('v_bfe_u32 v%d, v%d, 2, 3' % (TMP + 1, vLane))
        a('v_add_u32 v%d, 8, v%d' % (TMP + 1, TMP + 1))
        self.swz(LH, TMP, TMP + 1, TMP + 2)
        a('v_lshrrev_b32 v%d, 5, v%d' % (TMP + 3, vLane))
        a('v_lshl_add_u32 v%d, v%d, 10, v%d' % (LH, TMP + 3, LH))
        a('s_min_u32 s%d, s%d, 2' % (sT + 2, sWv))
        a('s_lshl_b32 s%d, s%d, 11' % (sT + 1, sT + 2))
        a('v_add_u32 v%d, s%d, v%d' % (LH, sT + 1, LH))
        a('s_sub_u32 s%d, s%d, 32' % (sT, sT))
        a('s_mul_i32 s%d, s%d, 1152' % (sT, sT))
        a('v_mul_u32_u24 v%d, 2304, v%d' % (TMP + 2, TMP + 1))
        a('v_add_u32 v%d, s%d, v%d' % (TMP + 2, sT, TMP + 2))
        a('s_mul_i32 s%d, s%d, 144' % (sT + 1, sT + 2))
        a('v_mul_u32_u24 v%d, 72, v%d' % (TMP + 4, TMP + 3))
        a('v_add_u32 v%d, s%d, v%d' % (TMP + 4, sT + 1, TMP + 4))
        a('v_lshl_add_u32 v%d, v%d, 4, v%d' % (TMP + 4, TMP, TMP + 4))
        a('v_add_u32 v%d, v%d, v%d' % (AH, TMP + 2, TMP + 4))
        a('v_lshl_add_u32 v%d, v%d, 2, v%d' % (TMP + 4, TMP + 3, TMP))
        a('v_mul_u32_u24 v%d, 144, v%d' % (TMP + 4, TMP + 4))
        a('v_add_u32 v%d, v%d, v%d' % (TMP + 4, TMP + 4, TMP + 2))
        a('v_add_u32 v%d, 64, v%d' % (TMP + 4, TMP + 4))
        a('v_add_u32 v%d, 72, v%d' % (TMP + 5, TMP + 4))
        a('v_add_u32 v%d, 864, v%d' % (TMP + 6, AH))
        a('v_add_u32 v%d, 872, v%d' % (TMP + 7, AH))
        a('s_cmp_eq_u32 s%d, 2' % (sT + 2))
        a('s_cselect_b64 vcc, -1, 0')
        a('v_cndmask_b32 v%d, v%d, v%d, vcc' % (98, TMP + 6, TMP + 4))
        a('v_cndmask_b32 v%d, v%d, v%d, vcc' % (AH2, TMP + 7, TMP + 5))
        cnt = []
        for seg in range(3):
            n = 0
            for k in range(6):
                ks = 6 * seg + k
                d = 28 * seg + 4 * k
                if ks < 16:
                    a('buffer_load_dwordx4 %s, v%d, %s, 0 offen offset:%d' % (vr(d), AV, srd(sIN), 72 * ks))
                    n += 1
                else:
                    o = 576 * (ks - 16)
                    a('buffer_load_dwordx2 %s, v%d, %s, 0 offen offset:%d' % (vr(d, 2), AT, srd(sIN), o + 64))
                    a('buffer_load_dwordx2 %s, v%d, %s, 0 offen offset:%d' % (vr(d + 2, 2), AT, srd(sIN), o + 136))
                    n += 2
            d = 28 * seg + 24
            if seg < 2:
                a('buffer_load_dwordx4 %s, v%d, %s, 0 offen offset:%d' % (vr(d), AH, srd(sIN), 432 * seg))
                n += 1
            else:
                a('buffer_load_dwordx2 %s, v%d, %s, 0 offen' % (vr(d, 2), 98, srd(sIN)))
                a('buffer_load_dwordx2 %s, v%d, %s, 0 offen' % (vr(d + 2, 2), AH2, srd(sIN)))
                n += 2
            cnt.append(n)
        return cnt

    def stage_input_finish(self, cnt, extra_after=0):
        LV, LH, TMP = 86, 87, 88
        self.stage_segs(None, LV, LH, TMP, validate=False,
                        nload=lambda seg: sum(cnt[seg + 1:]) + extra_after)

    def prefill_addr(self, v, tmp):
        a = self.a
        a('v_lshlrev_b32 v%d, 4, v%d' % (v, vLane))
        a('s_lshl_b32 s%d, s%d, 10' % (sT, sHG))
        a('v_add_u32 v%d, s%d, v%d' % (v, sT, v))
        a('s_lshr_b32 s%d, s%d, 3' % (sT, sHG))
        a('s_add_u32 s%d, s%d, 16' % (sT, sT))
        a('s_lshl_b32 s%d, s%d, 10' % (sT, sT))
        a('s_bfe_u32 s%d, s%d, 0x20001' % (sT + 1, sHG))
        a('s_lshl_b32 s%d, s%d, 8' % (sT + 1, sT + 1))
        a('s_add_u32 s%d, s%d, s%d' % (sT, sT, sT + 1))
        a('s_and_b32 s%d, s%d, 1' % (sT + 1, sHG))
        a('s_lshl_b32 s%d, s%d, 3' % (sT + 1, sT + 1))
        a('s_add_u32 s%d, s%d, s%d' % (sT, sT, sT + 1))
        a('v_and_b32 v%d, 15, v%d' % (tmp, vLane))
        a('v_lshlrev_b32 v%d, 4, v%d' % (tmp, tmp))
        a('v_add_u32 v%d, s%d, v%d' % (v + 1, sT, tmp))

    def prefill_store(self, v, ones, soff):
        a = self.a
        a('buffer_store_dwordx4 %s, v%d, %s, s%d offen sc1' % (vr(ones), v, srd(sWS), soff))
        a('buffer_store_dwordx2 %s, v%d, %s, s%d offen sc1' % (vr(ones, 2), v + 1, srd(sWS), soff))

    def get_nonce(self, tmp):
        a = self.a
        L, Ld = a.uid('Lnon'), a.uid('Lnond')
        a('v_mov_b32 v%d, 0' % (tmp + 2))
        a.label(L)
        a('buffer_load_dwordx2 %s, v%d, %s, 0 offen sc1' % (vr(tmp, 2), tmp + 2, srd(sDBG)))
        a('s_waitcnt vmcnt(0)')
        a('v_readfirstlane_b32 s%d, v%d' % (sNon, tmp))
        a('v_readfirstlane_b32 s%d, v%d' % (sNon + 1, tmp + 1))
        a('s_nop 1')
        a('s_min_u32 s%d, s%d, s%d' % (sT + 8, sNon, sNon + 1))
        a('s_cmp_lg_u32 s%d, 0' % (sT + 8))
        a('s_cbranch_scc1 %s' % Ld)
        self.budget_check(7)
        a('s_sleep 2')
        a('s_branch %s' % L)
        a.label(Ld)

    def init_check(self, tmp):
        a = self.a
        L, Ld = a.uid('Lini'), a.uid('Linid')
        a('v_lshrrev_b32 v%d, 2, v%d' % (tmp + 4, vLane))
        a('v_lshlrev_b32 v%d, 7, v%d' % (tmp + 4, tmp + 4))
        a('v_and_b32 v%d, 3, v%d' % (tmp + 5, vLane))
        a('v_lshl_add_u32 v%d, v%d, 3, v%d' % (tmp + 4, tmp + 5, tmp + 4))
        a('v_and_b32 v%d, 15, v%d' % (tmp + 5, vLane))
        a('v_lshlrev_b32 v%d, 7, v%d' % (tmp + 5, tmp + 5))
        a('v_add_u32 v%d, 24, v%d' % (tmp + 5, tmp + 5))
        a('s_lshl_b32 s%d, s%d, 11' % (sT, sTG))
        a('s_add_u32 s%d, s%d, %d' % (sT, sT, WS_FLG))
        a('s_sub_u32 s%d, s%d, 2048' % (sT + 1, sT))
        a('s_cmp_eq_u32 s%d, 0' % sTG)
        a('s_cselect_b32 s%d, s%d, s%d' % (sT + 1, sT, sT + 1))
        a.label(L)
        a('buffer_load_dwordx2 %s, v%d, %s, s%d offen sc1' % (vr(tmp, 2), tmp + 4, srd(sWS), sT))
        a('buffer_load_dwordx2 %s, v%d, %s, s%d offen sc1' % (vr(tmp + 2, 2), tmp + 5, srd(sWS), sT + 1))
        a('s_waitcnt vmcnt(0)')
        a('v_xor_b32 v%d, s%d, v%d' % (tmp, sNon, tmp))
        a('v_xor_b32 v%d, s%d, v%d' % (tmp + 1, sNon + 1, tmp + 1))
        a('v_xor_b32 v%d, s%d, v%d' % (tmp + 2, sNon, tmp + 2))
        a('v_xor_b32 v%d, s%d, v%d' % (tmp + 3, sNon + 1, tmp + 3))
        a('v_or3_b32 v%d, v%d, v%d, v%d' % (tmp, tmp, tmp + 1, tmp + 2))
        a('v_or_b32 v%d, v%d, v%d' % (tmp, tmp, tmp + 3))
        a('v_cmp_ne_u32 vcc, 0, v%d' % tmp)
        a('s_nop 1')
        a('s_cmp_eq_u64 vcc, 0')
        a('s_cbranch_scc1 %s' % Ld)
        self.budget_check(8)
        a('s_sleep 2')
        a('s_branch %s' % L)
        a.label(Ld)

    def wo_stage(self):
        a = self.a
        TMP = 88
        V1, V2, V3, V4, SEL, LA, LB = 60, 61, 62, 63, 64, 65, 66
        i, q = 70, 71
        a('v_and_b32 v%d, 15, v%d' % (i, vLane))
        a('v_lshrrev_b32 v%d, 4, v%d' % (q, vLane))
        a('v_lshrrev_b32 v%d, 1, v%d' % (72, q))
        a('v_mul_u32_u24 v%d, 18, v%d' % (72, 72))
        a('v_and_b32 v%d, 1, v%d' % (73, q))
        a('v_lshl_add_u32 v%d, v%d, 3, v%d' % (72, 73, 72))
        a('v_mul_u32_u24 v%d, 1152, v%d' % (72, 72))
        a('s_mov_b32 s%d, %d' % (sT, 72 * 1152))
        a('v_mul_lo_u32 v%d, v%d, s%d' % (73, q, sT))
        a('s_mul_i32 s%d, s%d, 72' % (sT, sHG))
        a('v_lshlrev_b32 v%d, 2, v%d' % (74, i))
        a('v_add_u32 v%d, s%d, v%d' % (74, sT, 74))
        a('v_and_b32 v%d, 2, v%d' % (75, i))
        a('v_lshlrev_b32 v%d, 1, v%d' % (75, 75))
        a('s_add_u32 s%d, s%d, 64' % (sT, sT))
        a('v_add_u32 v%d, s%d, v%d' % (75, sT, 75))
        a('v_add_u32 v%d, v%d, v%d' % (V1, 72, 74))
        a('v_add_u32 v%d, v%d, v%d' % (V3, 73, 74))
        a('v_add_u32 v%d, v%d, v%d' % (V4, 73, 75))
        a('v_lshrrev_b32 v%d, 2, v%d' % (76, i))
        a('s_mov_b32 s%d, %d' % (sT, 4 * 36 * 1152))
        a('v_mul_lo_u32 v%d, v%d, s%d' % (77, 76, sT))
        a('v_add3_u32 v%d, v%d, v%d, v%d' % (V2, 72, 75, 77))
        a('v_and_b32 v%d, 1, v%d' % (77, i))
        a('v_cmp_eq_u32 vcc, 1, v%d' % 77)
        a('v_mov_b32 v%d, s%d' % (77, sSelLo))
        a('v_mov_b32 v%d, s%d' % (78, sSelHi))
        a('v_cndmask_b32 v%d, v%d, v%d, vcc' % (SEL, 77, 78))
        a('s_mul_i32 s%d, s%d, %d' % (sBase, sWv, 36 * 1152))
        a('s_and_b32 s%d, s%d, 1' % (sBase2, sWv))
        a('s_mul_i32 s%d, s%d, %d' % (sBase2, sBase2, 288 * 1152))

        def dst(base, e):
            return base + (e >> 1) + 4 * (e & 1)
        for g in range(4):
            for half in range(2):
                a('s_add_u32 s%d, s%d, %d' % (sT + half, sBase, (144 * g + 4 * half) * 1152))
                for e2 in range(4):
                    e = 4 * half + e2
                    a('buffer_load_dword v%d, v%d, %s, s%d offen offset:%d' % (dst(8 * g, e), V1, srd(sWO), sT + half, e2 * 1152))
        for half in range(2):
            a('s_add_u32 s%d, s%d, %d' % (sT + half, sBase, 4 * half * 1152))
            for e2 in range(4):
                e = 4 * half + e2
                a('buffer_load_dword v%d, v%d, %s, s%d offen offset:%d' % (dst(32, e), V2, srd(sWO), sT + half, e2 * 1152))
        for (base, vo) in ((40, V3), (48, V4)):
            for e in range(0, 8, 2):
                row = 36 * (e >> 2) + 18 * ((e >> 1) & 1) + 16
                a('s_add_u32 s%d, s%d, %d' % (sT + (e >> 1) % 2, sBase2, row * 1152))
                a('buffer_load_dword v%d, v%d, %s, s%d offen' % (dst(base, e), vo, srd(sWO), sT + (e >> 1) % 2))
                a('buffer_load_dword v%d, v%d, %s, s%d offen offset:1152' % (dst(base, e + 1), vo, srd(sWO), sT + (e >> 1) % 2))
        a('s_mul_i32 s%d, s%d, 2304' % (sT, sWv))
        a('s_add_u32 s%d, s%d, 0x%x' % (sT, sT, L_WO))
        a('v_lshlrev_b32 v%d, 4, v%d' % (LA, vLane))
        a('v_add_u32 v%d, s%d, v%d' % (LA, sT, LA))
        a('v_and_b32 v%d, 3, v%d' % (77, i))
        a('v_lshlrev_b32 v%d, 4, v%d' % (77, 77))
        a('v_lshl_add_u32 v%d, v%d, 6, v%d' % (77, q, 77))
        a('v_mul_u32_u24 v%d, %d, v%d' % (78, 4 * 2304, 76))
        a('v_add3_u32 v%d, v%d, v%d, s%d' % (LB, 77, 78, sT))
        a('s_and_b32 s%d, s%d, 1' % (sT + 1, sWv))
        a('s_add_u32 s%d, s%d, 16' % (sT + 1, sT + 1))
        a('s_mul_i32 s%d, s%d, 2304' % (sT + 1, sT + 1))
        a('s_add_u32 s%d, s%d, 0x%x' % (sT + 1, sT + 1, L_WO))
        a('v_lshlrev_b32 v%d, 4, v%d' % (79, vLane))
        a('v_add_u32 v%d, s%d, v%d' % (79, sT + 1, 79))
        a('v_add_u32 v%d, s%d, v%d' % (80, sT + 1, 77))
        self.wait_flag(F_WF, sLayer, TMP, 9)
        a('s_waitcnt vmcnt(0)')

        def perm2(base):
            for m in range(4):
                r0, r1 = base + m, base + 4 + m
                t = TMP + (m & 1)
                a('v_perm_b32 v%d, v%d, v%d, s%d' % (t, r1, r0, sSelLo))
                a('v_perm_b32 v%d, v%d, v%d, s%d' % (r1, r1, r0, sSelHi))
                a('v_mov_b32 v%d, v%d' % (r0, t))

        def perm1(base):
            for m in range(4):
                a('v_perm_b32 v%d, v%d, v%d, v%d' % (base + m, base + 4 + m, base + m, SEL))
        for g in range(4):
            perm2(8 * g)
            a('ds_write_b128 v%d, %s offset:%d' % (LA, vr(8 * g), g * 9216))
            a('ds_write_b128 v%d, %s offset:%d' % (LA, vr(8 * g + 4), g * 9216 + 1024))
        perm1(32)
        a('ds_write_b128 v%d, %s offset:2048' % (LB, vr(32)))
        perm2(40)
        a('ds_write_b128 v79, %s' % vr(40))
        a('ds_write_b128 v79, %s offset:1024' % vr(44))
        perm1(48)
        a('ds_write_b128 v80, %s offset:2048' % vr(48))
        a('s_waitcnt lgkmcnt(0)')
        self.set_flag(F_WR, sLayer, TMP, add=1)

    def bphase(self):
        a = self.a
        ACC = 56
        WB = [68, 80]
        RES = 92
        AV, LA, LB, TMP1 = 98, 99, 100, 101
        slot = lambda ks: 4 * (ks if ks < 14 else ks - 14)
        batches = [range(0, 5), range(5, 10), range(10, 14), range(14, 18)]
        a('s_lshl_b32 s%d, s%d, 1' % (sT + 3, sTG))
        a('s_add_u32 s%d, s%d, s%d' % (sT + 3, sT + 3, sP))
        a('s_mul_i32 s%d, s%d, %d' % (sT + 3, sT + 3, TILE))
        a('s_mul_i32 s%d, s%d, %d' % (sT + 4, sWv, MT))
        a('s_add_u32 s%d, s%d, s%d' % (sT + 3, sT + 3, sT + 4))
        a('s_mul_i32 s%d, s%d, %d' % (sT + 4, sLayer, XBYTES))
        a('s_add_u32 s%d, s%d, s%d' % (sBase, sT + 3, sT + 4))
        a('v_lshlrev_b32 v%d, 4, v%d' % (AV, vLane))

        def oloads(b):
            ks0 = batches[b][0]
            a('s_add_u32 s%d, s%d, %d' % (sT, sBase, ks0 * 1024))
            a('s_add_u32 s%d, s%d, %d' % (sT + 1, sBase, ks0 * 1024 + 4096))
            for ks in batches[b]:
                k = ks - ks0
                a('buffer_load_dwordx4 %s, v%d, %s, s%d offen offset:%d sc1' %
                  (vr(slot(ks)), AV, srd(sWS), sT + k // 4, (k % 4) * 1024))
        for b in range(3):
            oloads(b)
        Lnp = a.uid('Lnopf')
        a('s_cmp_ge_u32 s%d, %d' % (sLayer, self.nlayers - 1))
        a('s_cbranch_scc1 %s' % Lnp)
        self.prefill_addr(WB[0], WB[0] + 2)
        for i in range(4):
            a('v_mov_b32 v%d, -1' % (WB[1] + i))
        a('s_add_u32 s%d, s%d, %d' % (sT + 2, sBase, XBYTES))
        self.prefill_store(WB[0], WB[1], sT + 2)
        a('s_cmp_ge_u32 s%d, %d' % (sLayer, self.nlayers - 2))
        a('s_cbranch_scc1 %s' % Lnp)
        a('s_add_u32 s%d, s%d, %d' % (sT + 2, sBase, WS_X + XBYTES))
        self.prefill_store(WB[0], WB[1], sT + 2)
        a.label(Lnp)
        self.xaddr_frag(ACC, ACC + 4)
        self.xaddr_nat(ACC + 2, ACC + 4)
        L0, L1 = a.uid('Lres0'), a.uid('Lres1')
        a('s_cmp_eq_u32 s%d, 0' % sLayer)
        a('s_cbranch_scc1 %s' % L0)
        a('s_add_u32 s%d, s%d, %d' % (sT + 2, sBase, WS_X - XBYTES))
        a('buffer_load_dwordx4 %s, v%d, %s, s%d offen sc1' % (vr(RES), ACC, srd(sWS), sT + 2))
        a('buffer_load_dwordx2 %s, v%d, %s, s%d offen sc1' % (vr(RES + 4, 2), ACC + 1, srd(sWS), sT + 2))
        a('s_branch %s' % L1)
        a.label(L0)
        a('buffer_load_dwordx4 %s, v%d, %s, 0 offen' % (vr(RES), ACC + 2, srd(sIN)))
        a('buffer_load_dwordx2 %s, v%d, %s, 0 offen' % (vr(RES + 4, 2), ACC + 3, srd(sIN)))
        a.label(L1)
        a('v_add_u32 v%d, 0x%x, v%d' % (LA, L_WO, AV))
        a('v_and_b32 v%d, 3, v%d' % (LB, vLane))
        a('v_lshlrev_b32 v%d, 4, v%d' % (LB, LB))
        a('v_lshrrev_b32 v%d, 4, v%d' % (TMP1, vLane))
        a('v_lshl_add_u32 v%d, v%d, 6, v%d' % (LB, TMP1, LB))
        a('v_add_u32 v%d, 0x%x, v%d' % (LB, L_WO + 2048, LB))
        a('s_add_u32 s%d, s%d, 1' % (sT + 7, sLayer))
        self.wait_flag(F_WR, sT + 7, WB[0], 10)

        def wreads(ks):
            b = WB[ks & 1]
            a('ds_read_b128 %s, v%d offset:%d' % (vr(b), LA, ks * 2304))
            a('ds_read_b128 %s, v%d offset:%d' % (vr(b + 4), LA, ks * 2304 + 1024))
            a('ds_read_b128 %s, v%d offset:%d' % (vr(b + 8), LB, ks * 2304))
        wreads(0)
        for b in range(4):
            if b == 0:
                a('s_waitcnt vmcnt(%d)' % (5 + 4 + 2))
            elif b == 1:
                a('s_waitcnt vmcnt(%d)' % 8)
            else:
                a('s_waitcnt vmcnt(0)')
            Lr, Lv, Lk = a.uid('Lbret'), a.uid('Lbval'), a.uid('Lbok')
            a('s_mov_b32 s%d, 0' % sRet)
            a.label(Lv)
            regs = [slot(ks) + i for ks in batches[b] for i in range(4)]
            self.validate(regs, TMP1, Lr)
            a('s_cmp_eq_u32 s%d, 0' % sRet)
            a('s_cbranch_scc1 %s' % Lk)
            for b2 in range(b + 1, 3):
                oloads(b2)
            a('s_branch %s' % Lk)
            a.label(Lr)
            self.budget_check(11)
            a('s_mov_b32 s%d, 1' % sRet)
            a('s_waitcnt vmcnt(0)')
            oloads(b)
            a('s_waitcnt vmcnt(0)')
            a('s_branch %s' % Lv)
            a.label(Lk)
            for ks in batches[b]:
                if ks + 1 < 18:
                    wreads(ks + 1)
                    a('s_waitcnt lgkmcnt(3)')
                else:
                    a('s_waitcnt lgkmcnt(0)')
                for t in range(3):
                    c = '0' if ks == 0 else vr(ACC + 4 * t)
                    a('v_mfma_f32_16x16x32_bf16 %s, %s, %s, %s' %
                      (vr(ACC + 4 * t), vr(WB[ks & 1] + 4 * t), vr(slot(ks)), c))
                if ks == 3:
                    oloads(3)
        Lnw = a.uid('Lnowf')
        a('s_cmp_eq_u32 s%d, 0' % sP)
        a('s_cbranch_scc1 %s' % Lnw)
        self.set_flag(F_WF, sLayer, WB[0], add=1)
        a.label(Lnw)
        E = 0
        pairs = [(ACC + r, ACC + 4 + r) for r in range(4)] + [(ACC + 8, ACC + 9), (ACC + 10, ACC + 11)]
        for m, (x0, x1) in enumerate(pairs):
            a('v_cvt_pk_bf16_f32 v%d, v%d, v%d' % (E + m, x0, x1))
        for m in range(6):
            a('v_lshlrev_b32 v%d, 16, v%d' % (8 + 2 * m, E + m))
            a('v_and_b32 v%d, 0xffff0000, v%d' % (9 + 2 * m, E + m))
            a('v_lshlrev_b32 v%d, 16, v%d' % (20 + 2 * m, RES + m))
            a('v_and_b32 v%d, 0xffff0000, v%d' % (21 + 2 * m, RES + m))
        for m in range(12):
            a('v_add_f32 v%d, v%d, v%d' % (8 + m, 8 + m, 20 + m))
        for m in range(6):
            a('v_cvt_pk_bf16_f32 v%d, v%d, v%d' % (E + m, 8 + 2 * m, 9 + 2 * m))
        L0, L1 = a.uid('Lst0'), a.uid('Lst1')
        a('s_cmp_eq_u32 s%d, %d' % (sLayer, self.nlayers - 1))
        a('s_cbranch_scc1 %s' % L0)
        self.xaddr_frag(32, 36)
        a('s_add_u32 s%d, s%d, %d' % (sT + 2, sBase, WS_X))
        a('buffer_store_dwordx4 %s, v32, %s, s%d offen sc1' % (vr(E), srd(sWS), sT + 2))
        a('s_mov_b64 exec, 0xffff')
        a('buffer_store_dwordx2 %s, v33, %s, s%d offen sc1' % (vr(E + 4, 2), srd(sWS), sT + 2))
        a('s_mov_b64 exec, -1')
        a('s_branch %s' % L1)
        a.label(L0)
        self.xaddr_nat(32, 36)
        a('buffer_store_dwordx4 %s, v32, %s, 0 offen' % (vr(E), srd(sOUT)))
        a('s_mov_b64 exec, 0xffff')
        a('buffer_store_dwordx2 %s, v33, %s, 0 offen' % (vr(E + 4, 2), srd(sOUT)))
        a('s_mov_b64 exec, -1')
        a.label(L1)

    def xaddr_frag(self, d, tmp):
        a = self.a
        a('v_lshrrev_b32 v%d, 4, v%d' % (tmp, vLane))
        a('v_and_b32 v%d, 15, v%d' % (tmp + 1, vLane))
        self.swz(d, tmp, tmp + 1, tmp + 2)
        a('s_lshl_b32 s%d, s%d, 10' % (sT, sHG))
        a('v_add_u32 v%d, s%d, v%d' % (d, sT, d))
        a('s_bfe_u32 s%d, s%d, 0x20001' % (sT + 1, sHG))
        a('v_mov_b32 v%d, s%d' % (tmp, sT + 1))
        self.swz(d + 1, tmp, tmp + 1, tmp + 2)
        a('s_lshr_b32 s%d, s%d, 3' % (sT, sHG))
        a('s_add_u32 s%d, s%d, 16' % (sT, sT))
        a('s_lshl_b32 s%d, s%d, 10' % (sT, sT))
        a('s_and_b32 s%d, s%d, 1' % (sT + 1, sHG))
        a('s_lshl_b32 s%d, s%d, 3' % (sT + 1, sT + 1))
        a('s_add_u32 s%d, s%d, s%d' % (sT, sT, sT + 1))
        a('v_add_u32 v%d, s%d, v%d' % (d + 1, sT, d + 1))

    def xaddr_nat(self, d, tmp):
        a = self.a
        a('s_lshl_b32 s%d, s%d, 7' % (sT, sTG))
        a('s_add_u32 s%d, s%d, s%d' % (sT, sT, sP))
        a('s_lshl_b32 s%d, s%d, 5' % (sT + 1, sWv))
        a('s_add_u32 s%d, s%d, s%d' % (sT, sT, sT + 1))
        a('s_mul_i32 s%d, s%d, 1152' % (sT, sT))
        a('s_mul_i32 s%d, s%d, 72' % (sT + 1, sHG))
        a('s_add_u32 s%d, s%d, s%d' % (sT, sT, sT + 1))
        a('v_and_b32 v%d, 15, v%d' % (tmp, vLane))
        a('v_mul_u32_u24 v%d, 2304, v%d' % (tmp, tmp))
        a('v_add_u32 v%d, s%d, v%d' % (tmp, sT, tmp))
        a('v_add_u32 v%d, 64, v%d' % (d + 1, tmp))
        a('v_lshrrev_b32 v%d, 4, v%d' % (tmp + 1, vLane))
        a('v_lshl_add_u32 v%d, v%d, 4, v%d' % (d, tmp + 1, tmp))

    def build(self):
        a = self.a
        self.prologue()
        a('s_cmp_eq_u32 s%d, 0' % sSet)
        a('s_cbranch_scc0 L_H0')
        self.wload_addr(0, 1, 2)
        self.wload_issue(range(18), 0, 1)
        self.ones_mask(2, 3)
        a('s_waitcnt vmcnt(0)')
        self.wload_perm(range(18), 2, 4)
        self.colsum(8)
        a('s_branch L_M_ROLE')
        a.label('L_H0')
        a('s_mov_b32 s%d, 0' % sP)
        cnt = self.stage_input_issue()
        self.stage_input_finish(cnt)
        Ln = a.uid('Lnn')
        a('s_cmp_lg_u32 s2, 0')
        a('s_cbranch_scc1 %s' % Ln)
        a('s_cmp_lg_u32 s%d, 0' % sWv)
        a('s_cbranch_scc1 %s' % Ln)
        a('s_memrealtime s[%d:%d]' % (sNon, sNon + 1))
        a('s_waitcnt lgkmcnt(0)')
        a('s_or_b32 s%d, s%d, 1' % (sNon, sNon))
        a('s_or_b32 s%d, s%d, 1' % (sNon + 1, sNon + 1))
        a('v_mov_b32 v0, s%d' % sNon)
        a('v_mov_b32 v1, s%d' % (sNon + 1))
        a('v_mov_b32 v2, 0')
        a('buffer_store_dwordx2 v[0:1], v2, %s, 0 offen sc1' % srd(sDBG))
        a.label(Ln)
        self.prefill_addr(4, 6)
        for i in range(4):
            a('v_mov_b32 v%d, -1' % (8 + i))
        a('s_mul_i32 s%d, s%d, %d' % (sT + 2, sTG, 2 * TILE))
        a('s_mul_i32 s%d, s%d, %d' % (sT + 3, sWv, MT))
        a('s_add_u32 s%d, s%d, s%d' % (sT + 2, sT + 2, sT + 3))
        self.prefill_store(4, 8, sT + 2)
        a('s_add_u32 s%d, s%d, %d' % (sT + 3, sT + 2, TILE))
        self.prefill_store(4, 8, sT + 3)
        if self.nlayers > 1:
            a('s_add_u32 s%d, s%d, %d' % (sT + 2, sT + 2, WS_X))
            self.prefill_store(4, 8, sT + 2)
            a('s_add_u32 s%d, s%d, %d' % (sT + 3, sT + 3, WS_X))
            self.prefill_store(4, 8, sT + 3)
        self.get_nonce(12)
        a('s_lshl_b32 s%d, s%d, 4' % (sT, sTG))
        a('s_add_u32 s%d, s%d, s%d' % (sT, sT, sHG))
        a('s_lshl_b32 s%d, s%d, 7' % (sT, sT))
        a('s_lshl_b32 s%d, s%d, 3' % (sT + 1, sWv))
        a('s_add_u32 s%d, s%d, s%d' % (sT, sT, sT + 1))
        a('s_add_u32 s%d, s%d, %d' % (sT, sT, WS_FLG))
        a('v_mov_b32 v0, s%d' % sNon)
        a('v_mov_b32 v1, s%d' % (sNon + 1))
        a('v_mov_b32 v2, 0')
        a('buffer_store_dwordx2 v[0:1], v2, %s, s%d offen sc1' % (srd(sWS), sT))
        a('s_mov_b32 s%d, 1' % sP)
        cnt = self.stage_input_issue()
        self.stage_input_finish(cnt)
        self.wo_stage()
        self.wload_addr(0, 1, 2)
        self.wload_issue(range(18), 0, 1)
        self.ones_mask(2, 3)
        a('s_waitcnt vmcnt(0)')
        self.wload_perm(range(18), 2, 4)
        self.colsum(8)
        self.init_check(0)
        a('s_mov_b32 s%d, 1' % sInitDone)
        a('s_branch L_H_B')
        self.m_role()
        a.label('L_H_ROLE')
        Li = a.uid('Linitok')
        a('s_cmp_lg_u32 s%d, 0' % sInitDone)
        a('s_cbranch_scc1 %s' % Li)
        self.get_nonce(0)
        self.init_check(0)
        a('s_mov_b32 s%d, 1' % sInitDone)
        a.label(Li)
        a('s_mov_b32 s%d, 0' % sP)
        a.label('L_H_STAGE')
        self.stage_generic()
        a('s_add_u32 s%d, s%d, 1' % (sP, sP))
        a('s_cmp_lt_u32 s%d, 2' % sP)
        a('s_cbranch_scc1 L_H_STAGE')
        self.wo_stage()
        a.label('L_H_B')
        a('s_mov_b32 s%d, 0' % sP)
        a.label('L_H_BLOOP')
        self.bphase()
        a('s_add_u32 s%d, s%d, 1' % (sP, sP))
        a('s_cmp_lt_u32 s%d, 2' % sP)
        a('s_cbranch_scc1 L_H_BLOOP')
        a('s_add_u32 s%d, s%d, 1' % (sLayer, sLayer))
        a('s_cmp_ge_u32 s%d, %d' % (sLayer, self.nlayers))
        a('s_cbranch_scc1 L_END')
        a('s_branch L_M_ROLE')
        a.label('L_ABORT')
        a('s_mov_b64 exec, -1')
        a('s_lshl_b32 s%d, s%d, 2' % (sT, sT + 9))
        a('s_add_u32 s%d, s%d, 64' % (sT, sT))
        a('v_mov_b32 v0, s2')
        a('v_add_u32 v0, 0x1000, v0')
        a('v_mov_b32 v1, s%d' % sT)
        a('buffer_store_dword v0, v1, %s, 0 offen sc1' % srd(sDBG))
        a.label('L_END')
        a('s_endpgm')

    def text(self):
        hdr = open(os.path.join(os.path.dirname(os.path.abspath(__file__)), '..', 'cdna_kernels', NAME + '.s.ref')).read()
        head = hdr.split('; Override launch geometry')[0]
        out = head
        out += '; @launch grid=(256,1,1) block=(512,1,1) lds=%d\n' % LDS_BYTES
        out += '.amdgcn_target "amdgcn-amd-amdhsa--gfx950"\n.text\n'
        out += '.globl %s_kernel\n.p2align 8\n.type %s_kernel,@function\n%s_kernel:\n' % (NAME, NAME, NAME)
        out += self.a.render()
        out += '''.section .rodata,"a"
.p2align 6
.amdhsa_kernel %s_kernel
  .amdhsa_next_free_vgpr 256
  .amdhsa_next_free_sgpr 96
  .amdhsa_accum_offset 256
  .amdhsa_group_segment_fixed_size 0
  .amdhsa_kernarg_size 72
  .amdhsa_user_sgpr_count 2
  .amdhsa_user_sgpr_kernarg_segment_ptr 1
  .amdhsa_system_sgpr_workgroup_id_x 1
.end_amdhsa_kernel
''' % NAME
        return out


if __name__ == '__main__':
    nl = int(sys.argv[2]) if len(sys.argv) > 2 else 4
    g = Gen(nlayers=nl)
    g.build()
    path = sys.argv[1] if len(sys.argv) > 1 else os.path.join(os.path.dirname(os.path.abspath(__file__)), '..', 'cdna_kernels', NAME + '.s')
    open(path, 'w').write(g.text())
    print('wrote', path)
```

```python
import re

TRANS = ('v_exp_f32', 'v_log_f32', 'v_rcp_f32', 'v_rsq_f32', 'v_sqrt_f32', 'v_sin_f32', 'v_cos_f32')

_reg_re = re.compile(r'\b([vs])(\d+)\b|\b([vs])\[(\d+):(\d+)\]|\b(vcc|exec|scc|m0)\b')


def regs_of(op):
    out = set()
    for m in _reg_re.finditer(op):
        if m.group(1):
            out.add((m.group(1), int(m.group(2))))
        elif m.group(3):
            for i in range(int(m.group(4)), int(m.group(5)) + 1):
                out.add((m.group(3), i))
        else:
            out.add((m.group(6), 0))
    return out


def split_ops(s):
    ops, depth, cur = [], 0, ''
    for ch in s:
        if ch == '[':
            depth += 1
        elif ch == ']':
            depth -= 1
        if ch == ',' and depth == 0:
            ops.append(cur.strip())
            cur = ''
        else:
            cur += ch
    if cur.strip():
        ops.append(cur.strip())
    return ops


class Ins:
    __slots__ = ('text', 'mn', 'defs', 'uses', 'kind', 'srcc', 'ab', 'dpp', 'nop', 'wide_store_data')

    def __init__(self, text):
        self.text = text
        t = text.split(';')[0].strip()
        parts = t.split(None, 1)
        mn = parts[0]
        self.mn = mn
        ops = split_ops(parts[1]) if len(parts) > 1 else []
        self.defs, self.uses = set(), set()
        self.srcc, self.ab = set(), set()
        self.dpp = ('quad_perm' in t) or ('row_' in t and 'row_mask' in t)
        self.nop = 0
        self.wide_store_data = set()
        if mn == 's_nop':
            self.kind = 'nop'
            self.nop = int(ops[0], 0) + 1
            return
        if mn.startswith('v_mfma'):
            self.kind = 'mfma'
            self.defs = regs_of(ops[0])
            self.ab = regs_of(ops[1]) | regs_of(ops[2])
            self.srcc = regs_of(ops[3])
            self.uses = self.ab | self.srcc
            return
        if mn.startswith('v_'):
            self.kind = 'valu'
            if mn.startswith('v_dot'):
                self.kind = 'dot'
            if mn.startswith('v_cmp'):
                self.defs = regs_of(ops[0])
                for o in ops[1:]:
                    self.uses |= regs_of(o)
            elif mn.startswith('v_permlane'):
                self.defs = regs_of(ops[0]) | regs_of(ops[1])
                self.uses = set(self.defs)
            else:
                self.defs = regs_of(ops[0])
                for o in ops[1:]:
                    self.uses |= regs_of(o.split(' ')[0] if not o.startswith('abs') else o)
                if mn.startswith('v_fmac') or mn.startswith('v_dot2c'):
                    self.uses |= self.defs
                if mn.startswith('v_cndmask') and len(ops) == 3:
                    self.uses.add(('vcc', 0))
                if mn.startswith('v_add_co') or mn.startswith('v_addc_co') or mn.startswith('v_sub_co'):
                    self.defs |= regs_of(ops[1])
            return
        if mn.startswith('ds_'):
            self.kind = 'ds'
            if mn.startswith('ds_read') or mn.startswith('ds_bpermute') or mn.startswith('ds_swizzle'):
                self.defs = regs_of(ops[0])
                for o in ops[1:]:
                    self.uses |= regs_of(o.split(' ')[0])
            else:
                for o in ops:
                    self.uses |= regs_of(o.split(' ')[0])
            return
        if mn.startswith('buffer_') or mn.startswith('global_'):
            self.kind = 'vmem'
            if t.endswith(' lds'):
                for o in ops:
                    self.uses |= regs_of(o.split(' ')[0])
                self.uses.add(('m0', 0))
            elif 'load' in mn and 'atomic' not in mn:
                self.defs = regs_of(ops[0])
                for o in ops[1:]:
                    self.uses |= regs_of(o.split(' ')[0])
            else:
                for o in ops:
                    self.uses |= regs_of(o.split(' ')[0])
                if 'x3' in mn or 'x4' in mn:
                    self.wide_store_data = regs_of(ops[0])
            return
        if mn.startswith('s_'):
            self.kind = 'salu'
            if mn.startswith('s_cbranch') or mn == 's_branch' or mn == 's_endpgm':
                self.kind = 'branch'
                return
            if mn.startswith('s_cmp') or mn.startswith('s_bitcmp') or mn in ('s_waitcnt', 's_barrier', 's_sleep', 's_setprio'):
                for o in ops:
                    self.uses |= regs_of(o)
                return
            if ops:
                self.defs = regs_of(ops[0])
                for o in ops[1:]:
                    self.uses |= regs_of(o)
            return
        raise ValueError('unknown instruction ' + text)


def required(prod, cons):
    need = 0
    pk, ck = prod.kind, cons.kind
    pv = {r for r in prod.defs if r[0] == 'v'}
    ps = {r for r in prod.defs if r[0] != 'v'}
    is_valu_p = pk in ('valu', 'dot')
    is_valu_c = ck in ('valu', 'dot')
    if is_valu_p:
        if ck == 'mfma' and pv & cons.uses:
            need = max(need, 2 if pk == 'valu' else 3)
        if is_valu_c:
            if prod.mn in TRANS and cons.mn not in TRANS and pv & cons.uses:
                need = max(need, 1)
            if cons.dpp and pv & cons.uses:
                need = max(need, 2)
            if cons.mn.startswith('v_permlane') and pv & cons.uses:
                need = max(need, 2)
            if cons.mn.startswith(('v_readfirstlane', 'v_readlane')) and pv & cons.uses:
                need = max(need, 1)
            if ps & cons.uses:
                need = max(need, 4 if cons.mn.startswith(('v_readlane', 'v_writelane')) else 2)
            if pk == 'dot':
                if pv & (cons.uses | cons.defs):
                    if cons.mn == prod.mn:
                        ops = split_ops(cons.text.split(';')[0].strip().split(None, 1)[1])
                        ab = regs_of(ops[1]) | regs_of(ops[2])
                        if pv & ab:
                            need = max(need, 3)
                    else:
                        need = max(need, 3)
        if ck == 'vmem' and ps & cons.uses:
            need = max(need, 5)
        if pk == 'dot' and ck in ('vmem', 'ds') and pv & cons.uses:
            need = max(need, 3)
    if pk == 'mfma':
        if ck == 'mfma':
            if pv & cons.ab:
                need = max(need, 8)
            if pv & cons.srcc and cons.srcc != pv:
                need = max(need, 6)
        elif is_valu_c:
            if pv & (cons.uses | cons.defs):
                need = max(need, 8)
            if prod.srcc & cons.defs:
                need = max(need, 3)
        elif ck in ('vmem', 'ds'):
            if pv & (cons.uses | cons.defs):
                need = max(need, 8)
    if pk == 'salu' and ('m0', 0) in prod.defs and ('m0', 0) in cons.uses and ck in ('vmem', 'valu'):
        need = max(need, 1)
    if pk == 'vmem' and prod.wide_store_data:
        if prod.wide_store_data & cons.defs:
            need = max(need, 2 if is_valu_c else 1)
    return need


class Asm:
    def __init__(self):
        self.lines = []
        self._uid = 0

    def __call__(self, text):
        for ln in text.strip().split('\n'):
            ln = ln.strip()
            if not ln or ln.startswith(';'):
                continue
            self.lines.append(('i', Ins(ln)))

    def label(self, name, noflush=False):
        self.lines.append(('n' if noflush else 'l', name))

    def softbranch(self, text):
        self.lines.append(('r', '    ' + text))

    def raw(self, text):
        self.lines.append(('r', text))

    def uid(self, base='L'):
        self._uid += 1
        return '%s_%d' % (base, self._uid)

    def render(self):
        out = []
        window = []
        MAXW = 10

        def states(ins):
            return ins.nop if ins.kind == 'nop' else 1

        def flush():
            need = 0
            dist = 0
            for p in reversed(window):
                worst = 0
                if p.kind == 'mfma':
                    worst = 8
                elif p.kind in ('valu', 'dot'):
                    worst = 5 if any(r[0] != 'v' for r in p.defs) else 3
                elif p.kind == 'vmem' and p.wide_store_data:
                    worst = 2
                need = max(need, worst - dist)
                dist += states(p)
            if need > 0:
                out.append('    s_nop %d' % (need - 1))
            window.clear()

        for kind, x in self.lines:
            if kind == 'r':
                out.append(x)
                continue
            if kind == 'l':
                flush()
                out.append(x + ':')
                continue
            if kind == 'n':
                out.append(x + ':')
                continue
            ins = x
            if ins.kind == 'branch':
                flush()
                out.append('    ' + ins.text)
                continue
            need, dist = 0, 0
            for p in reversed(window):
                need = max(need, required(p, ins) - dist)
                dist += states(p)
                if dist >= MAXW:
                    break
            if need > 0:
                n = Ins('s_nop %d' % (need - 1))
                out.append('    ' + n.text)
                window.append(n)
            out.append('    ' + ins.text)
            window.append(ins)
            if len(window) > 24:
                del window[:-24]
        return '\n'.join(out) + '\n'
```

```python
import sys, os, struct
sys.path.insert(0, os.path.dirname(os.path.abspath(__file__)))
from asmlib import Asm

NAME = 'interleave_layers__sliding_local_dilated__sliding_local_dilated__prompt'

XBYTES = 2048 * 576 * 2
TILE = 73728
MT = 18432
WS_X = 4 * XBYTES
WS_HB = 8 * XBYTES
HBT = 9216
WS_FL = 9 * XBYTES
WS_INI = WS_FL + 65536
WS_CFLG = WS_FL + 131072
WS_WFLG = WS_FL + 262144
WS_TRC = 10 * XBYTES
WS_CIMG = 11 * XBYTES
WS_WIMG = 13 * XBYTES
WIS = 41984
WS_SIZE = 40 << 20
WS_PAD = 1 << 20
OOB = 0x7F000000

L_QKV = 92160
QP = 272
L_WO = L_QKV + 80 * QP
L_ST = L_WO + 18 * 2304
L_FLG = L_ST + 320
LDS_BYTES = 157440
F_XR, F_XF, F_QR, F_QF, F_WR, F_WF, F_WG, F_XH = 0, 16, 32, 48, 64, 80, 96, 112

sIN, sWQ, sWO, sOUT, sWS, sDBG = 24, 28, 32, 36, 40, 44
sWave, sWv, sSet, sTG, sHG, sLayer, sP, sN, sBud = 48, 49, 50, 51, 52, 53, 54, 55, 56
sG = 57
sNon = 58
sT = 60
sSelLo, sSelHi = 72, 73
sM1, sM2, sM3, sMD = 74, 76, 78, 80
sPend = 82
sBase = 83
sBase2 = 84
sFast = 85
sTm = 86
sWS2 = 88
sTi = 92
sXcc = 93
sWoOk = 94
sTileW = 95
sMt = 4
sQo = 8
sFlW = 12
sOwn = 13
sCs = 14
vTr = 101
vFlag, vLane = 102, 103
vCS = 104
vW = 112


def srd(n):
    return 's[%d:%d]' % (n, n + 3)


def vr(b, n=4):
    return 'v[%d:%d]' % (b, b + n - 1)


def W(t, ks):
    return vW + (ks * 2 + t) * 4


def mfma(d, a_, b_, first):
    return 'v_mfma_f32_16x16x32_bf16 %s, %s, %s, %s' % (vr(d), vr(a_), vr(b_), '0' if first else vr(d))


class Gen:
    def __init__(self, nlayers=4, debug=False):
        self.a = Asm()
        self.nlayers = nlayers
        self.debug = debug

    def budget_check(self, code):
        a = self.a
        a('s_sub_u32 s%d, s%d, 1' % (sBud, sBud))
        a('s_cmp_eq_u32 s%d, 0' % sBud)
        a('s_mov_b32 s%d, %d' % (sT + 9, code))
        a('s_cbranch_scc1 L_ABORT')

    def tr(self, ident):
        if not self.debug:
            return
        if os.environ.get('FINE') and ident in (20, 25, 24, 30, 40, 44, 41, 42, 43, 21, 3):
            return
        a = self.a
        a('s_memrealtime s[%d:%d]' % (sTm, sTm + 1))
        a('s_waitcnt lgkmcnt(0)')
        a('s_lshl_b32 s%d, s%d, 6' % (sTm, sTm))
        a('s_or_b32 s%d, s%d, %d' % (sTm, sTm, ident))
        a('s_mov_b32 m0, s%d' % sTi)
        a('s_nop 0')
        a('v_writelane_b32 v%d, s%d, m0' % (vTr, sTm))
        a('s_add_u32 s%d, s%d, 1' % (sTi, sTi))

    def flag_min(self, tmp):
        a = self.a
        a('v_min3_u32 v%d, v%d, v%d, v%d' % (tmp, tmp, tmp + 1, tmp + 2))
        a('v_min_u32 v%d, v%d, v%d' % (tmp, tmp, tmp + 3))
        a('v_readfirstlane_b32 s%d, v%d' % (sT + 8, tmp))

    def wait_flag(self, off, tgt, tmp, code, add=0):
        a = self.a
        L, Ld = a.uid('Lwf'), a.uid('Lwfd')
        a.label(L)
        a('ds_read_b128 %s, v%d offset:%d' % (vr(tmp), vFlag, off))
        a('s_waitcnt lgkmcnt(0)')
        self.flag_min(tmp)
        a('s_nop 1')
        if add:
            a('s_add_u32 s%d, s%d, %d' % (sT + 8, sT + 8, add))
        a('s_cmp_ge_u32 s%d, s%d' % (sT + 8, tgt))
        a('s_cbranch_scc1 %s' % Ld)
        self.budget_check(code)
        a('s_branch %s' % L)
        a.label(Ld)

    def set_flag(self, off, val_sreg, tmpv, add=0):
        a = self.a
        a('s_lshl_b32 s%d, s%d, 2' % (sT + 8, sWv))
        a('v_add_u32 v%d, s%d, v%d' % (tmpv, sT + 8, vFlag))
        if add:
            a('s_add_u32 s%d, s%d, %d' % (sT + 8, val_sreg, add))
            a('v_mov_b32 v%d, s%d' % (tmpv + 1, sT + 8))
        else:
            a('v_mov_b32 v%d, s%d' % (tmpv + 1, val_sreg))
        a('ds_write_b32 v%d, v%d offset:%d' % (tmpv, tmpv + 1, off))

    def swz(self, dst, q, r, tmp):
        a = self.a
        a('v_and_b32 v%d, 1, v%d' % (tmp, q))
        a('v_lshlrev_b32 v%d, 1, v%d' % (tmp, tmp))
        a('v_lshrrev_b32 v%d, 1, v%d' % (dst, q))
        a('v_mul_u32_u24 v%d, 12, v%d' % (dst, dst))
        a('v_add_u32 v%d, v%d, v%d' % (tmp, tmp, dst))
        a('v_xor_b32 v%d, v%d, v%d' % (tmp, tmp, r))
        a('v_lshlrev_b32 v%d, 4, v%d' % (tmp, tmp))
        a('v_lshl_add_u32 v%d, v%d, 8, v%d' % (dst, q, tmp))

    def sentinel_vcc(self, regs, tmp):
        a = self.a
        regs = list(regs)
        a('v_max3_u32 v%d, v%d, v%d, v%d' % (tmp, regs[0], regs[1], regs[2]))
        i = 3
        while i + 1 < len(regs):
            a('v_max3_u32 v%d, v%d, v%d, v%d' % (tmp, tmp, regs[i], regs[i + 1]))
            i += 2
        if i < len(regs):
            a('v_max_u32 v%d, v%d, v%d' % (tmp, tmp, regs[i]))
        a('v_cmp_eq_u32 vcc, -1, v%d' % tmp)

    def poll_event(self, kind_expr, layer_add, tmp, code):
        a = self.a
        a('v_and_b32 v%d, 15, v%d' % (tmp + 2, vLane))
        a('v_lshlrev_b32 v%d, 3, v%d' % (tmp + 2, tmp + 2))
        a('s_lshl_b32 s%d, s%d, 9' % (sT, sP))
        a('s_add_u32 s%d, s%d, s%d' % (sT, sT, sFlW))
        if kind_expr:
            a('s_add_u32 s%d, s%d, %d' % (sT, sT, kind_expr * 512))
        a('s_add_u32 s%d, s%d, s%d' % (sT + 1, sNon, sLayer))
        a('s_add_u32 s%d, s%d, %d' % (sT + 1, sT + 1, 1 + layer_add))
        L, Ld = a.uid('Lpoll'), a.uid('Lpolld')
        a.label(L)
        a('buffer_load_dwordx2 %s, v%d, %s, s%d offen sc1' % (vr(tmp, 2), tmp + 2, srd(sWS), sT))
        a('s_waitcnt vmcnt(0)')
        a('v_subrev_u32 v%d, s%d, v%d' % (tmp, sT + 1, tmp))
        a('v_xor_b32 v%d, s%d, v%d' % (tmp + 1, sNon + 1, tmp + 1))
        a('v_lshrrev_b32 v%d, 3, v%d' % (tmp, tmp))
        a('v_or_b32 v%d, v%d, v%d' % (tmp, tmp, tmp + 1))
        a('v_cmp_ne_u32 vcc, 0, v%d' % tmp)
        a('s_nop 1')
        a('s_cmp_eq_u64 vcc, 0')
        a('s_cbranch_scc1 %s' % Ld)
        self.budget_check(code)
        a('s_branch %s' % L)
        a.label(Ld)

    def publish_event(self, kind, tmp, sc):
        a = self.a
        a('s_lshl_b32 s%d, s%d, 9' % (sT, sP))
        a('s_add_u32 s%d, s%d, s%d' % (sT, sT, sFlW))
        a('s_lshl_b32 s%d, s%d, 3' % (sT + 1, sHG))
        a('s_add_u32 s%d, s%d, s%d' % (sT, sT, sT + 1))
        if kind:
            a('s_add_u32 s%d, s%d, %d' % (sT, sT, kind * 512))
        a('s_add_u32 s%d, s%d, s%d' % (sT + 1, sNon, sLayer))
        a('s_add_u32 s%d, s%d, 1' % (sT + 1, sT + 1))
        a('v_mov_b32 v%d, s%d' % (tmp, sT + 1))
        a('v_mov_b32 v%d, s%d' % (tmp + 1, sNon + 1))
        a('v_mov_b32 v%d, 0' % (tmp + 2))
        a('s_mov_b64 exec, 1')
        a('s_waitcnt vmcnt(0)')
        a('buffer_store_dwordx2 %s, v%d, %s, s%d offen%s' % (vr(tmp, 2), tmp + 2, srd(sWS), sT, sc))
        a('s_mov_b64 exec, -1')

    def both_modes(self, fn):
        a = self.a
        L0, L1 = a.uid('Lslow'), a.uid('Lmend')
        a('s_cmp_eq_u32 s%d, 0' % sFast)
        a('s_cbranch_scc1 %s' % L0)
        fn('')
        a('s_branch %s' % L1)
        a.label(L0)
        fn(' sc1')
        a.label(L1)

    def store_nonce_flag(self, soff, tmp):
        a = self.a
        a('v_mov_b32 v%d, s%d' % (tmp, sNon))
        a('v_mov_b32 v%d, s%d' % (tmp + 1, sNon + 1))
        a('v_mov_b32 v%d, 0' % (tmp + 2))
        a('s_mov_b64 exec, 1')
        a('buffer_store_dwordx2 %s, v%d, %s, s%d offen sc1' % (vr(tmp, 2), tmp + 2, srd(sWS), soff))
        a('s_mov_b64 exec, -1')

    def poll_nonce_flags(self, soff, vaddr, tmp, code):
        a = self.a
        L, Ld = a.uid('Lpn'), a.uid('Lpnd')
        a.label(L)
        a('buffer_load_dwordx2 %s, v%d, %s, s%d offen sc1' % (vr(tmp, 2), vaddr, srd(sWS), soff))
        a('s_waitcnt vmcnt(0)')
        a('v_xor_b32 v%d, s%d, v%d' % (tmp, sNon, tmp))
        a('v_xor_b32 v%d, s%d, v%d' % (tmp + 1, sNon + 1, tmp + 1))
        a('v_or_b32 v%d, v%d, v%d' % (tmp, tmp, tmp + 1))
        a('v_cmp_ne_u32 vcc, 0, v%d' % tmp)
        a('s_nop 1')
        a('s_cmp_eq_u64 vcc, 0')
        a('s_cbranch_scc1 %s' % Ld)
        self.budget_check(code)
        a('s_sleep 2')
        a('s_branch %s' % L)
        a.label(Ld)

    def get_nonce(self, tmp):
        a = self.a
        L, Ld = a.uid('Lnon'), a.uid('Lnond')
        a('v_mov_b32 v%d, 0' % (tmp + 2))
        a.label(L)
        a('buffer_load_dwordx2 %s, v%d, %s, 0 offen sc1' % (vr(tmp, 2), tmp + 2, srd(sDBG)))
        a('s_waitcnt vmcnt(0)')
        a('v_readfirstlane_b32 s%d, v%d' % (sNon, tmp))
        a('v_readfirstlane_b32 s%d, v%d' % (sNon + 1, tmp + 1))
        a('s_nop 1')
        a('s_min_u32 s%d, s%d, s%d' % (sT + 8, sNon, sNon + 1))
        a('s_cmp_lg_u32 s%d, 0' % (sT + 8))
        a('s_cbranch_scc1 %s' % Ld)
        self.budget_check(7)
        a('s_sleep 2')
        a('s_branch %s' % L)
        a.label(Ld)

    def init_check(self, tmp):
        a = self.a
        L, Ld = a.uid('Lini'), a.uid('Linid')
        a('v_and_b32 v%d, 15, v%d' % (tmp + 4, vLane))
        a('v_lshlrev_b32 v%d, 4, v%d' % (tmp + 4, tmp + 4))
        a('v_add_u32 v%d, 256, v%d' % (tmp + 5, tmp + 4))
        a('v_and_b32 v%d, 16, v%d' % (tmp + 6, vLane))
        a('s_cmp_eq_u32 s%d, 0' % sTG)
        a('s_cselect_b32 s%d, 0, 16' % sT)
        a('v_and_b32 v%d, s%d, v%d' % (tmp + 6, sT, tmp + 6))
        a('v_cmp_eq_u32 s[%d:%d], 0, v%d' % (sT + 2, sT + 3, tmp + 6))
        a('v_cndmask_b32 v%d, v%d, v%d, s[%d:%d]' % (tmp + 4, tmp + 4, tmp + 5, sT + 2, sT + 3))
        a('s_lshl_b32 s%d, s%d, 8' % (sT, sTG))
        a('s_add_u32 s%d, s%d, %d' % (sT, sT, WS_INI - 256))
        a.label(L)
        a('buffer_load_dwordx4 %s, v%d, %s, s%d offen sc1' % (vr(tmp), tmp + 4, srd(sWS), sT))
        a('s_waitcnt vmcnt(0)')
        a('v_xor_b32 v%d, s%d, v%d' % (tmp, sNon, tmp))
        a('v_xor_b32 v%d, s%d, v%d' % (tmp + 1, sNon + 1, tmp + 1))
        a('v_xor_b32 v%d, s%d, v%d' % (tmp + 3, sNon, tmp + 3))
        a('v_or3_b32 v%d, v%d, v%d, v%d' % (tmp, tmp, tmp + 1, tmp + 3))
        a('v_cmp_ne_u32 vcc, 0, v%d' % tmp)
        a('s_nop 1')
        a('s_cmp_eq_u64 vcc, 0')
        a('s_cbranch_scc1 %s' % Ld)
        self.budget_check(8)
        a('s_sleep 2')
        a('s_branch %s' % L)
        a.label(Ld)
        a('v_cmp_ne_u32 vcc, s%d, v%d' % (sXcc, tmp + 2))
        a('s_nop 1')
        a('s_and_b64 vcc, vcc, s[%d:%d]' % (sT + 2, sT + 3))
        a('s_cmp_eq_u64 vcc, 0')
        a('s_cselect_b32 s%d, 1, 0' % sFast)
        if os.environ.get('FORCE_SLOW'):
            a('s_mov_b32 s%d, 0' % sFast)

    def prologue(self):
        a = self.a
        a('s_cmp_ge_u32 s2, 256')
        a('s_cbranch_scc1 L_END')
        a('s_load_dwordx16 s[4:19], s[0:1], 0')
        a('s_load_dwordx2 s[20:21], s[0:1], 64')
        a('v_and_b32 v%d, 63, v0' % vLane)
        a('v_lshrrev_b32 v1, 6, v0')
        a('v_readfirstlane_b32 s%d, v1' % sWave)
        a('s_getreg_b32 s%d, hwreg(HW_REG_XCC_ID)' % sXcc)
        a('s_and_b32 s%d, s%d, 15' % (sXcc, sXcc))
        a('s_and_b32 s%d, s%d, 3' % (sWv, sWave))
        a('s_lshr_b32 s%d, s%d, 2' % (sSet, sWave))
        a('s_and_b32 s%d, s2, 7' % sT)
        a('s_lshr_b32 s%d, s2, 3' % (sT + 1))
        a('s_and_b32 s%d, s%d, 15' % (sHG, sT + 1))
        a('s_lshr_b32 s%d, s%d, 4' % (sT + 1, sT + 1))
        a('s_lshl_b32 s%d, s%d, 1' % (sTG, sT))
        a('s_add_u32 s%d, s%d, s%d' % (sTG, sTG, sT + 1))
        a('s_mov_b32 s%d, 0x%x' % (sBud, 2000000))
        a('s_mov_b32 s%d, 0x05040100' % sSelLo)
        a('s_mov_b32 s%d, 0x07060302' % sSelHi)
        a('s_mov_b32 s%d, 0' % sLayer)
        a('s_mov_b32 s%d, 0' % sWoOk)
        a('s_mov_b32 s%d, 0' % sFast)
        a('v_mov_b32 v%d, 0x%x' % (vFlag, L_FLG))
        a('v_and_b32 v1, 3, v%d' % vLane)
        a('v_cmp_eq_u32 s[%d:%d], 1, v1' % (sM1, sM1 + 1))
        a('v_cmp_eq_u32 s[%d:%d], 2, v1' % (sM2, sM2 + 1))
        a('v_cmp_eq_u32 s[%d:%d], 3, v1' % (sM3, sM3 + 1))
        a('v_lshrrev_b32 v1, 4, v%d' % vLane)
        a('v_bfe_u32 v2, v%d, 2, 2' % vLane)
        a('v_cmp_eq_u32 s[%d:%d], v1, v2' % (sMD, sMD + 1))
        a('v_mov_b32 v1, 0')
        a('v_lshl_add_u32 v2, v%d, 2, v%d' % (vLane, vFlag))
        a('ds_write_b32 v2, v1')
        a('s_waitcnt lgkmcnt(0)')

        def mk(n, lo, hi, size):
            a('s_mov_b32 s%d, s%d' % (n, lo))
            a('s_and_b32 s%d, s%d, 0xffff' % (n + 1, hi))
            a('s_mov_b32 s%d, 0x%x' % (n + 2, size))
            a('s_mov_b32 s%d, 0x00020000' % (n + 3))
        mk(sIN, 4, 5, XBYTES)
        mk(sOUT, 16, 17, XBYTES)
        mk(sDBG, 18, 19, 256)
        mk(sWS2, 20, 21, WS_SIZE)
        a('s_add_u32 s20, s20, 0x%x' % WS_PAD)
        a('s_addc_u32 s21, s21, 0')
        mk(sWS, 20, 21, WS_SIZE)
        a('s_mov_b32 s%d, 0' % sTi)
        a('s_cmp_eq_u32 s%d, 0' % sSet)
        a('s_cbranch_scc0 L_SETB_SRD')
        mk(sWQ, 6, 7, 576 * 1728 * 2)
        mk(sWO, 14, 15, 576 * 576 * 2)
        a('s_branch L_SRD_DONE')
        a.label('L_SETB_SRD')
        mk(sWQ, 12, 13, 576 * 1728 * 2)
        mk(sWO, 8, 9, 576 * 576 * 2)
        a.label('L_SRD_DONE')
        for s in range(4):
            a('s_add_u32 s%d, s%d, %d' % (sT, sWv, s))
            a('s_and_b32 s%d, s%d, 3' % (sT, sT))
            a('s_add_u32 s%d, s%d, 1' % (sT, sT))
            a('s_mul_i32 s%d, s%d, %d' % (sMt + s, sT, MT))
            a('s_mul_i32 s%d, s%d, %d' % (sQo + s, sT, 16 * QP))
        a('s_mul_i32 s%d, s%d, %d' % (sTileW, sTG, 2 * TILE))
        a('s_mul_i32 s%d, s%d, %d' % (sT, sWv, MT))
        a('s_add_u32 s%d, s%d, s%d' % (sTileW, sTileW, sT))
        a('s_lshl_b32 s%d, s%d, 11' % (sFlW, sTG))
        a('s_lshl_b32 s%d, s%d, 7' % (sT, sWv))
        a('s_add_u32 s%d, s%d, s%d' % (sFlW, sFlW, sT))
        a('s_add_u32 s%d, s%d, %d' % (sFlW, sFlW, WS_FL))
        a('s_mov_b32 s%d, 0' % sOwn)
        a('s_mov_b32 s%d, s%d' % (sCs, sSet))
        if os.environ.get('PRIO'):
            a('s_setprio %s' % os.environ['PRIO'])
        a('s_barrier')
        if self.debug:
            a('v_mov_b32 v%d, 0' % vTr)
        self.tr(1)

    def wload_addr(self, v1, v2, tmp):
        a = self.a
        i, q, oa, rr, t4, t5 = tmp, tmp + 1, tmp + 2, tmp + 3, tmp + 4, tmp + 5
        a('v_and_b32 v%d, 15, v%d' % (i, vLane))
        a('v_lshrrev_b32 v%d, 4, v%d' % (q, vLane))
        a('v_lshrrev_b32 v%d, 2, v%d' % (oa, i))
        a('v_and_b32 v%d, 3, v%d' % (rr, i))
        a('s_mul_i32 s%d, s%d, 3' % (sT, sWv))
        a('v_add_u32 v%d, s%d, v%d' % (t4, sT, oa))
        a('v_lshrrev_b32 v%d, 2, v%d' % (v1, t4))
        a('v_mul_u32_u24 v%d, 576, v%d' % (v1, v1))
        a('v_bfe_u32 v%d, v%d, 1, 1' % (t5, t4))
        a('v_mul_u32_u24 v%d, 18, v%d' % (t5, t5))
        a('v_add_u32 v%d, v%d, v%d' % (v1, v1, t5))
        a('v_and_b32 v%d, 1, v%d' % (t5, t4))
        a('v_lshl_add_u32 v%d, v%d, 3, v%d' % (v1, t5, v1))
        a('v_lshl_add_u32 v%d, v%d, 1, v%d' % (v1, rr, v1))
        a('s_mul_i32 s%d, s%d, 576' % (sT, sWv))
        a('s_add_u32 s%d, s%d, 16' % (sT, sT))
        a('v_mul_u32_u24 v%d, 18, v%d' % (t5, rr))
        a('v_add_u32 v%d, s%d, v%d' % (t5, sT, t5))
        a('v_cmp_eq_u32 vcc, 3, v%d' % oa)
        a('v_cndmask_b32 v%d, v%d, v%d, vcc' % (v1, v1, t5))
        a('s_mul_i32 s%d, s%d, 36' % (sT, sHG))
        a('v_add_u32 v%d, s%d, v%d' % (v1, sT, v1))
        a('v_lshlrev_b32 v%d, 1, v%d' % (v1, v1))
        a('s_cmp_eq_u32 s%d, 3' % sWv)
        a('s_cselect_b32 s%d, 12, 14' % sT)
        a('v_cmp_le_u32 vcc, s%d, v%d' % (sT, i))
        a('v_mov_b32 v%d, 0x%x' % (t5, OOB))
        a('v_cndmask_b32 v%d, v%d, v%d, vcc' % (v1, v1, t5))
        a('s_mov_b32 s%d, %d' % (sT, 72 * 3456))
        a('v_mul_lo_u32 v%d, v%d, s%d' % (t5, q, sT))
        a('v_add_u32 v%d, v%d, v%d' % (v2, v1, t5))
        a('v_mul_u32_u24 v%d, %d, v%d' % (t5, 8 * 3456, q))
        a('v_add_u32 v%d, v%d, v%d' % (v1, v1, t5))

    def wload_issue(self, ks_list, v1, v2):
        a = self.a
        if os.environ.get('NOW'):
            ks_list = list(ks_list)[:1]
        for ks in ks_list:
            for e in range(0, 8, 2):
                if ks < 16:
                    row, vo = 36 * ks + e, v1
                else:
                    row, vo = 288 * (ks - 16) + 36 * (e >> 2) + 32 + (e & 3), v2
                st = sT + (e >> 1) % 2
                a('s_mov_b32 s%d, %d' % (st, row * 3456))
                m = e >> 1
                a('buffer_load_dword v%d, v%d, %s, s%d offen' % (W(0, ks) + m, vo, srd(sWQ), st))
                a('buffer_load_dword v%d, v%d, %s, s%d offen offset:3456' % (W(1, ks) + m, vo, srd(sWQ), st))

    def wload_perm(self, ks_list, ones, tmp):
        a = self.a
        for ks in ks_list:
            for m in range(4):
                r0, r1 = W(0, ks) + m, W(1, ks) + m
                t = tmp + (m & 1)
                a('v_perm_b32 v%d, v%d, v%d, s%d' % (t, r1, r0, sSelLo))
                a('v_perm_b32 v%d, v%d, v%d, s%d' % (r1, r1, r0, sSelHi))
                a('v_or_b32 v%d, v%d, v%d' % (r0, ones, t))

    def ones_mask(self, dst, tmp):
        a = self.a
        a('v_and_b32 v%d, 15, v%d' % (tmp, vLane))
        a('v_cmp_eq_u32 vcc, 14, v%d' % tmp)
        a('v_mov_b32 v%d, 0x3f803f80' % tmp)
        a('v_cndmask_b32 v%d, 0, v%d, vcc' % (dst, tmp))

    def colsum(self, tmp):
        a = self.a
        for i in range(4):
            a('v_mov_b32 v%d, 0x3f803f80' % (tmp + i))
        for ks in range(18):
            for t in range(2):
                a(mfma(vCS + 4 * t, W(t, ks), tmp, ks == 0))

    def coop_issue(self, v1, v2):
        a = self.a
        a('s_mul_i32 s%d, s%d, %d' % (sT + 2, sTG, 36 * 3456))
        a('s_and_b32 s%d, s%d, 1' % (sT + 3, sTG))
        a('s_mul_i32 s%d, s%d, %d' % (sT + 3, sT + 3, 288 * 3456))
        for u in range(2):
            for e in range(0, 8, 2):
                row = e if u == 0 else 36 * (e >> 2) + 32 + (e & 3)
                st = sT + (e >> 1) % 2
                a('s_add_u32 s%d, s%d, %d' % (st, sT + 2 + u, row * 3456))
                m = e >> 1
                vo = v1 if u == 0 else v2
                a('buffer_load_dword v%d, v%d, %s, s%d offen' % (W(0, u) + m, vo, srd(sWQ), st))
                a('buffer_load_dword v%d, v%d, %s, s%d offen offset:3456' % (W(1, u) + m, vo, srd(sWQ), st))

    def coop_id(self, dst):
        a = self.a
        a('s_lshl_b32 s%d, s%d, 4' % (dst, sSet))
        a('s_add_u32 s%d, s%d, s%d' % (dst, dst, sHG))
        a('s_lshl_b32 s%d, s%d, 2' % (dst, dst))
        a('s_add_u32 s%d, s%d, s%d' % (dst, dst, sWv))

    def coop_store(self, tmp):
        a = self.a
        self.ones_mask(tmp, tmp + 1)
        self.wload_perm(range(2), tmp, tmp + 2)
        self.coop_id(sT + 2)
        a('s_mul_i32 s%d, s%d, %d' % (sT + 2, sT + 2, 36864))
        a('s_add_u32 s%d, s%d, %d' % (sT + 2, sT + 2, WS_CIMG))
        a('s_lshl_b32 s%d, s%d, 11' % (sT + 3, sTG))
        a('s_add_u32 s%d, s%d, s%d' % (sT + 3, sT + 3, sT + 2))
        a('v_lshlrev_b32 v%d, 4, v%d' % (tmp + 4, vLane))
        a('buffer_store_dwordx4 %s, v%d, %s, s%d offen sc1' % (vr(W(0, 0)), tmp + 4, srd(sWS), sT + 3))
        a('buffer_store_dwordx4 %s, v%d, %s, s%d offen offset:1024 sc1' % (vr(W(1, 0)), tmp + 4, srd(sWS), sT + 3))
        L = a.uid('Lcs')
        a('s_cmp_ge_u32 s%d, 2' % sTG)
        a('s_cbranch_scc1 %s' % L)
        a('s_add_u32 s%d, s%d, %d' % (sT + 3, sT + 3, 16 * 2048))
        a('buffer_store_dwordx4 %s, v%d, %s, s%d offen sc1' % (vr(W(0, 1)), tmp + 4, srd(sWS), sT + 3))
        a('buffer_store_dwordx4 %s, v%d, %s, s%d offen offset:1024 sc1' % (vr(W(1, 1)), tmp + 4, srd(sWS), sT + 3))
        a.label(L)

    def coop_flag(self, tmp):
        a = self.a
        self.coop_id(sT + 2)
        a('s_lshl_b32 s%d, s%d, 4' % (sT + 2, sT + 2))
        a('s_add_u32 s%d, s%d, s%d' % (sT + 2, sT + 2, sTG))
        a('s_lshl_b32 s%d, s%d, 3' % (sT + 2, sT + 2))
        a('s_add_u32 s%d, s%d, %d' % (sT + 2, sT + 2, WS_CFLG))
        self.store_nonce_flag(sT + 2, tmp)

    def coop_load(self, tmp):
        a = self.a
        self.coop_id(sT + 2)
        a('s_lshl_b32 s%d, s%d, 7' % (sT + 3, sT + 2))
        a('s_add_u32 s%d, s%d, %d' % (sT + 3, sT + 3, WS_CFLG))
        a('v_and_b32 v%d, 15, v%d' % (tmp + 2, vLane))
        a('v_lshlrev_b32 v%d, 3, v%d' % (tmp + 2, tmp + 2))
        self.poll_nonce_flags(sT + 3, tmp + 2, tmp, 15)
        a('s_mul_i32 s%d, s%d, %d' % (sT + 2, sT + 2, 36864))
        a('s_add_u32 s%d, s%d, %d' % (sT + 2, sT + 2, WS_CIMG))
        a('v_lshlrev_b32 v%d, 4, v%d' % (tmp + 2, vLane))
        for n in range(36):
            if n % 4 == 0 and n:
                a('s_add_u32 s%d, s%d, 4096' % (sT + 2, sT + 2))
            a('buffer_load_dwordx4 %s, v%d, %s, s%d offen offset:%d sc1' % (vr(vW + 4 * n), tmp + 2, srd(sWS), sT + 2, (n % 4) * 1024))

    def wou_issue(self, D, tmp):
        a = self.a
        i, q, t2, t3, vo, SEL = tmp, tmp + 1, tmp + 2, tmp + 3, tmp + 4, tmp + 5
        a('v_and_b32 v%d, 15, v%d' % (i, vLane))
        a('v_lshrrev_b32 v%d, 4, v%d' % (q, vLane))
        a('v_lshrrev_b32 v%d, 1, v%d' % (t2, q))
        a('v_mul_u32_u24 v%d, 18, v%d' % (t2, t2))
        a('v_and_b32 v%d, 1, v%d' % (t3, q))
        a('v_lshl_add_u32 v%d, v%d, 3, v%d' % (t2, t3, t2))
        a('v_mul_u32_u24 v%d, 72, v%d' % (t3, q))
        a('s_cmp_ge_u32 s%d, 2' % sWv)
        a('s_cselect_b64 vcc, -1, 0')
        a('v_cndmask_b32 v%d, v%d, v%d, vcc' % (t2, t2, t3))
        a('v_mul_u32_u24 v%d, 1152, v%d' % (vo, t2))
        a('v_lshlrev_b32 v%d, 2, v%d' % (t2, i))
        a('v_and_b32 v%d, 2, v%d' % (t3, i))
        a('v_lshlrev_b32 v%d, 1, v%d' % (t3, t3))
        a('v_add_u32 v%d, 64, v%d' % (t3, t3))
        a('s_and_b32 s%d, s%d, 1' % (sT, sWv))
        a('s_cmp_eq_u32 s%d, 1' % sT)
        a('s_cselect_b64 vcc, -1, 0')
        a('v_cndmask_b32 v%d, v%d, v%d, vcc' % (t2, t2, t3))
        a('s_mul_i32 s%d, s%d, 72' % (sT, sHG))
        a('v_add3_u32 v%d, v%d, v%d, s%d' % (vo, vo, t2, sT))
        a('v_and_b32 v%d, 1, v%d' % (t2, i))
        a('v_cmp_eq_u32 vcc, 1, v%d' % t2)
        a('v_mov_b32 v%d, s%d' % (t2, sSelLo))
        a('v_mov_b32 v%d, s%d' % (t3, sSelHi))
        a('v_cndmask_b32 v%d, v%d, v%d, vcc' % (SEL, t2, t3))
        a('s_mul_i32 s%d, s%d, %d' % (sT + 2, sTG, 36 * 1152))
        a('s_and_b32 s%d, s%d, 1' % (sT + 3, sTG))
        a('s_mul_i32 s%d, s%d, %d' % (sT + 3, sT + 3, 288 * 1152))
        a('s_cmp_ge_u32 s%d, 2' % sWv)
        for e in range(0, 8, 2):
            r0 = e * 1152
            r1 = (36 * (e >> 2) + 18 * ((e >> 1) & 1) + 16) * 1152
            a('s_cselect_b32 s%d, s%d, s%d' % (sT, sT + 3, sT + 2))
            a('s_cselect_b32 s%d, %d, %d' % (sT + 1, r1, r0)) if False else None
            a('s_mov_b32 s%d, %d' % (sT + 4, r0))
            a('s_mov_b32 s%d, %d' % (sT + 5, r1))
            a('s_cselect_b32 s%d, s%d, s%d' % (sT + 1, sT + 5, sT + 4))
            a('s_lshl_b32 s%d, s%d, 0' % (sT + 6, sT)) if False else None
            m = e >> 1
            a('s_add_u32 s%d, s%d, s%d' % (sT + 6 + (m & 1), sT, sT + 1))
            a('buffer_load_dword v%d, v%d, %s, s%d offen' % (D + m, vo, srd(sWO), sT + 6 + (m & 1)))
            a('buffer_load_dword v%d, v%d, %s, s%d offen offset:1152' % (D + 4 + m, vo, srd(sWO), sT + 6 + (m & 1)))
            a('s_cmp_ge_u32 s%d, 2' % sWv)

    def wou_ids(self):
        a = self.a
        a('s_lshl_b32 s%d, s%d, 4' % (sT + 2, sSet))
        a('s_add_u32 s%d, s%d, s%d' % (sT + 2, sT + 2, sHG))
        a('s_and_b32 s%d, s%d, 1' % (sT + 3, sTG))
        a('s_add_u32 s%d, s%d, 16' % (sT + 3, sT + 3))
        a('s_cmp_ge_u32 s%d, 2' % sWv)
        a('s_cselect_b32 s%d, s%d, s%d' % (sT + 3, sT + 3, sTG))

    def wou_store(self, D, tmp):
        a = self.a
        SEL = tmp + 5
        Lskip, Lk1 = a.uid('Lwus'), a.uid('Lwuk')
        a('s_lshr_b32 s%d, s%d, 1' % (sT, sWv))
        a('s_lshr_b32 s%d, s%d, 1' % (sT + 1, sTG))
        a('s_min_u32 s%d, s%d, s%d' % (sT, sT, sT + 1))
        a('s_cmp_lg_u32 s%d, 0' % sT)
        a('s_cbranch_scc1 %s' % Lskip)
        self.wou_ids()
        a('s_mul_i32 s%d, s%d, %d' % (sT + 2, sT + 2, WIS))
        a('s_mul_i32 s%d, s%d, 2304' % (sT + 3, sT + 3))
        a('s_add_u32 s%d, s%d, s%d' % (sT + 2, sT + 2, sT + 3))
        a('s_add_u32 s%d, s%d, %d' % (sT + 2, sT + 2, WS_WIMG))
        a('s_and_b32 s%d, s%d, 1' % (sT, sWv))
        a('s_cmp_eq_u32 s%d, 1' % sT)
        a('s_cbranch_scc1 %s' % Lk1)
        for m in range(4):
            r0, r1 = D + m, D + 4 + m
            t = tmp + (m & 1)
            a('v_perm_b32 v%d, v%d, v%d, s%d' % (t, r1, r0, sSelLo))
            a('v_perm_b32 v%d, v%d, v%d, s%d' % (r1, r1, r0, sSelHi))
            a('v_mov_b32 v%d, v%d' % (r0, t))
        a('v_lshlrev_b32 v%d, 4, v%d' % (tmp, vLane))
        a('buffer_store_dwordx4 %s, v%d, %s, s%d offen sc1' % (vr(D), tmp, srd(sWS), sT + 2))
        a('buffer_store_dwordx4 %s, v%d, %s, s%d offen offset:1024 sc1' % (vr(D + 4), tmp, srd(sWS), sT + 2))
        a('s_branch %s' % Lskip)
        a.label(Lk1)
        for m in range(4):
            a('v_perm_b32 v%d, v%d, v%d, v%d' % (D + m, D + 4 + m, D + m, SEL))
        a('v_and_b32 v%d, 15, v%d' % (tmp, vLane))
        a('v_cmp_gt_u32 vcc, 4, v%d' % tmp)
        a('v_lshlrev_b32 v%d, 4, v%d' % (tmp, tmp))
        a('v_lshrrev_b32 v%d, 4, v%d' % (tmp + 1, vLane))
        a('v_lshl_add_u32 v%d, v%d, 6, v%d' % (tmp, tmp + 1, tmp))
        a('s_mov_b64 exec, vcc')
        a('buffer_store_dwordx4 %s, v%d, %s, s%d offen offset:2048 sc1' % (vr(D), tmp, srd(sWS), sT + 2))
        a('s_mov_b64 exec, -1')
        a.label(Lskip)

    def wou_flag(self, tmp):
        a = self.a
        Lskip = a.uid('Lwuf')
        a('s_lshr_b32 s%d, s%d, 1' % (sT, sWv))
        a('s_lshr_b32 s%d, s%d, 1' % (sT + 1, sTG))
        a('s_min_u32 s%d, s%d, s%d' % (sT, sT, sT + 1))
        a('s_cmp_lg_u32 s%d, 0' % sT)
        a('s_cbranch_scc1 %s' % Lskip)
        self.wou_ids()
        a('s_lshl_b32 s%d, s%d, 9' % (sT + 2, sT + 2))
        a('s_and_b32 s%d, s%d, 1' % (sT, sWv))
        a('s_mul_i32 s%d, s%d, 18' % (sT, sT))
        a('s_add_u32 s%d, s%d, s%d' % (sT + 3, sT + 3, sT))
        a('s_lshl_b32 s%d, s%d, 3' % (sT + 3, sT + 3))
        a('s_add_u32 s%d, s%d, s%d' % (sT + 2, sT + 2, sT + 3))
        a('s_add_u32 s%d, s%d, %d' % (sT + 2, sT + 2, WS_WFLG))
        self.store_nonce_flag(sT + 2, tmp)
        a.label(Lskip)

    def wo_stage(self, async_=False):
        a = self.a
        TMP = 88
        Lok = a.uid('Lwook')
        a('s_lshl_b32 s%d, s%d, 4' % (sT + 2, sSet))
        a('s_add_u32 s%d, s%d, s%d' % (sT + 2, sT + 2, sHG))
        a('s_cmp_lg_u32 s%d, 0' % sWoOk)
        a('s_cbranch_scc1 %s' % Lok)
        a('s_lshl_b32 s%d, s%d, 9' % (sT + 3, sT + 2))
        a('s_add_u32 s%d, s%d, %d' % (sT + 3, sT + 3, WS_WFLG))
        a('v_min_u32 v%d, 35, v%d' % (TMP + 2, vLane))
        a('v_lshlrev_b32 v%d, 3, v%d' % (TMP + 2, TMP + 2))
        self.poll_nonce_flags(sT + 3, TMP + 2, TMP, 16)
        a('s_mov_b32 s%d, 1' % sWoOk)
        a.label(Lok)
        a('s_mul_i32 s%d, s%d, %d' % (sT + 2, sT + 2, WIS))
        a('s_mul_i32 s%d, s%d, 10240' % (sT + 3, sWv))
        a('s_add_u32 s%d, s%d, s%d' % (sT + 2, sT + 2, sT + 3))
        a('s_add_u32 s%d, s%d, %d' % (sBase, sT + 2, WS_WIMG))
        a('s_add_u32 s%d, s%d, %d' % (sBase2, sT + 3, L_WO))
        a('v_lshlrev_b32 v%d, 4, v%d' % (TMP + 4, vLane))
        self.wait_flag(F_WF, sLayer, TMP, 9)
        self.wait_flag(F_WG, sLayer, TMP, 14)
        for n in range(11):
            if n % 4 == 0:
                a('s_add_u32 s%d, s%d, %d' % (sT, sBase, n * 1024))
                a('s_add_u32 s%d, s%d, %d' % (sT + 1, sBase2, n * 1024))
                a('s_mov_b32 m0, s%d' % (sT + 1))
            if n == 10:
                a('s_mov_b32 exec_hi, 0')
            a('buffer_load_dwordx4 v%d, %s, s%d offen offset:%d sc1 lds' % (TMP + 4, srd(sWS), sT, (n % 4) * 1024))
        a('s_mov_b64 exec, -1')
        if not async_:
            a('s_waitcnt vmcnt(0)')
            self.set_flag(F_WR, sLayer, TMP, add=1)
        self.tr(30)

    def halo_issue(self, HD, HL, tmp):
        a = self.a
        kk, aa, r, t3, t4, t5 = tmp, tmp + 1, tmp + 2, tmp + 3, tmp + 4, tmp + 5
        a('v_lshrrev_b32 v%d, 5, v%d' % (kk, vLane))
        a('v_bfe_u32 v%d, v%d, 3, 2' % (aa, vLane))
        a('v_and_b32 v%d, 7, v%d' % (r, vLane))
        a('v_add_u32 v%d, 8, v%d' % (r, r))
        self.swz(HL, aa, r, t3)
        a('v_lshl_add_u32 v%d, v%d, 10, v%d' % (HL, kk, HL))
        a('s_lshl_b32 s%d, s%d, 12' % (sT, sWv))
        a('v_add_u32 v%d, s%d, v%d' % (HL, sT, HL))
        a('v_lshrrev_b32 v%d, 2, v%d' % (t3, vLane))
        a('v_and_b32 v%d, 3, v%d' % (t4, vLane))
        a('v_lshlrev_b32 v%d, 7, v%d' % (HL + 1, t3))
        a('v_lshl_add_u32 v%d, v%d, 4, v%d' % (HL + 1, t4, HL + 1))
        a('v_add_u32 v%d, %d, v%d' % (HL + 1, 16384 + 64, HL + 1))
        L0, L1 = a.uid('Lh0'), a.uid('Lh1')
        a('s_cmp_eq_u32 s%d, 0' % sLayer)
        a('s_cbranch_scc1 %s' % L0)
        a('s_sub_u32 s%d, s%d, 1' % (sT, sLayer))
        a('s_lshl_b32 s%d, s%d, 5' % (sT, sT))
        a('s_lshl_b32 s%d, s%d, 1' % (sT + 1, sTG))
        a('s_add_u32 s%d, s%d, s%d' % (sT, sT, sT + 1))
        a('s_add_u32 s%d, s%d, s%d' % (sT, sT, sP))
        a('s_mul_i32 s%d, s%d, %d' % (sT, sT, HBT))
        a('s_add_u32 s%d, s%d, %d' % (sBase2, sT, WS_HB - 2 * HBT))
        a('s_lshl_b32 s%d, s%d, 11' % (sT + 1, sWv))
        a('v_lshlrev_b32 v%d, 4, v%d' % (t5, vLane))
        a('v_mov_b32 v%d, 0x%x' % (t3, OOB))
        a('s_cmp_eq_u32 s%d, 0' % sTG)
        a('s_cselect_b64 vcc, -1, 0')
        a('v_cndmask_b32 v%d, v%d, v%d, vcc' % (HL + 2, t5, t3))
        a('s_add_u32 s%d, s%d, s%d' % (sBase, sBase2, sT + 1))
        a('s_add_u32 s%d, s%d, 8192' % (sBase2, sBase2))
        self.halo_loads_hb(HD, HL)
        a('s_branch %s' % L1)
        a.label(L0)
        a('s_lshl_b32 s%d, s%d, 7' % (sT, sTG))
        a('s_add_u32 s%d, s%d, s%d' % (sT, sT, sP))
        a('s_sub_u32 s%d, s%d, 32' % (sT, sT))
        a('s_mul_i32 s%d, s%d, 1152' % (sT, sT))
        a('v_mul_u32_u24 v%d, 2304, v%d' % (t5, r))
        a('v_add_u32 v%d, s%d, v%d' % (t5, sT, t5))
        a('s_mul_i32 s%d, s%d, 288' % (sT + 1, sWv))
        a('v_mul_u32_u24 v%d, 72, v%d' % (kk, kk))
        a('v_lshl_add_u32 v%d, v%d, 4, v%d' % (kk, aa, kk))
        a('v_add3_u32 v%d, v%d, v%d, s%d' % (t5, t5, kk, sT + 1))
        a('buffer_load_dwordx4 %s, v%d, %s, 0 offen' % (vr(HD), t5, srd(sIN)))
        a('buffer_load_dwordx4 %s, v%d, %s, 0 offen offset:144' % (vr(HD + 4), t5, srd(sIN)))
        a('v_lshlrev_b32 v%d, 1, v%d' % (t4, t4))
        a('v_add_u32 v%d, 8, v%d' % (t4, t4))
        a('v_mul_u32_u24 v%d, 2304, v%d' % (t4, t4))
        a('v_mul_u32_u24 v%d, 72, v%d' % (t3, t3))
        a('v_add3_u32 v%d, v%d, v%d, s%d' % (t4, t4, t3, sT))
        a('buffer_load_dwordx2 %s, v%d, %s, 0 offen offset:64' % (vr(HD + 8, 2), t4, srd(sIN)))
        a('buffer_load_dwordx2 %s, v%d, %s, 0 offen offset:%d' % (vr(HD + 10, 2), t4, srd(sIN), 2304 + 64))
        a.label(L1)

    def halo_loads_hb(self, HD, HL):
        a = self.a
        a('buffer_load_dwordx4 %s, v%d, %s, s%d offen sc1' % (vr(HD), HL + 2, srd(sWS), sBase))
        a('buffer_load_dwordx4 %s, v%d, %s, s%d offen offset:1024 sc1' % (vr(HD + 4), HL + 2, srd(sWS), sBase))
        a('buffer_load_dwordx4 %s, v%d, %s, s%d offen sc1' % (vr(HD + 8), HL + 2, srd(sWS), sBase2))

    def halo_write(self, HD, HL, tmp):
        a = self.a
        a('ds_write_b128 v%d, %s' % (HL, vr(HD)))
        a('ds_write_b128 v%d, %s offset:2048' % (HL, vr(HD + 4)))
        a('ds_write_b128 v%d, %s' % (HL + 1, vr(HD + 8)))

    def m_role(self):
        a = self.a
        ACC = lambda s, t: (s * 2 + t) * 4
        G0, GH = 40, 44
        BUF = [48, 64]
        HD, HL = 80, 92
        XA = 95
        TMP = 40
        LT = 99
        FL = GH
        lds = []

        def L(tag, text):
            a(text)
            lds.append(tag)

        def wait_for(tag):
            idx = max(i for i, t in enumerate(lds) if t == tag)
            n = len(lds) - 1 - idx
            a('s_waitcnt lgkmcnt(%d)' % min(n, 15))

        def setf(off, val, add):
            self.set_flag(off, val, LT, add=add)
            lds.append('f')

        a.label('L_M_ROLE')
        a('s_mov_b32 s%d, 0' % sP)
        a.label('L_M_TASK')
        a('s_lshl_b32 s%d, s%d, 1' % (sN, sLayer))
        a('s_add_u32 s%d, s%d, s%d' % (sN, sN, sP))
        a('s_mul_i32 s%d, s%d, 3' % (sG, sN))
        self.halo_issue(HD, HL, TMP)
        a('v_lshrrev_b32 v%d, 4, v%d' % (TMP, vLane))
        a('v_and_b32 v%d, 15, v%d' % (TMP + 1, vLane))
        self.swz(XA + 3, TMP, TMP + 1, TMP + 2)
        for s in range(4):
            a('v_add_u32 v%d, s%d, v%d' % (XA + s, sMt + s, XA + 3))
        Lns = a.uid('Lnoown')
        a('s_cmp_eq_u32 s%d, 0' % sOwn)
        a('s_cbranch_scc1 %s' % Lns)
        a('s_waitcnt vmcnt(15)')
        self.set_flag(F_XR, sG, TMP, add=1)
        a.label(Lns)
        a('s_add_u32 s%d, s%d, 1' % (sT + 7, sG))
        self.wait_flag(F_XR, sT + 7, TMP, 1)
        if os.environ.get('PRIO'):
            a('s_setprio 0')
        self.tr(11)

        def rd(ks, s):
            if ks < 16:
                L((ks, s), 'ds_read_b128 %s, v%d offset:%d' % (vr(BUF[ks & 1] + 4 * s), XA + s, ks * 1024))
            else:
                o = 128 * (ks - 16)
                L((ks, s), 'ds_read2_b64 %s, v%d offset0:%d offset1:%d' % (vr(BUF[ks & 1] + 4 * s), XA + s, o, o + 16))
        for s in range(4):
            rd(0, s)
        a('s_mov_b32 s%d, 0' % sPend)
        side = {}

        def put(ks, gap, fns, per=2):
            pos = ks * 9 + gap
            for i in range(0, len(fns), per):
                side.setdefault(pos, []).extend(fns[i:i + per])
                pos += 1
        I = lambda text: (lambda: a(text))

        def chk(off, tgt_fn, tag, code):
            def fin():
                Lok = a.uid('Lck')
                a('s_cmp_ge_u32 s%d, s%d' % (sT + 8, sT + 7))
                a.softbranch('s_cbranch_scc1 %s' % Lok)
                self.wait_flag(off, sT + 7, FL, code)
                a.label(Lok, noflush=True)
            return [lambda: (wait_for(tag), a('v_min3_u32 v%d, v%d, v%d, v%d' % (FL, FL, FL + 1, FL + 2))),
                    I('v_min_u32 v%d, v%d, v%d' % (FL, FL, FL + 3)),
                    tgt_fn,
                    I('v_readfirstlane_b32 s%d, v%d' % (sT + 8, FL)),
                    lambda: None, fin]

        def setf_items(off, val, add, cond=None, pre=None):
            def fin():
                if cond is not None:
                    Lo = a.uid('Lsf')
                    a('s_cmp_%s_u32 s%d, 0' % cond)
                    a.softbranch('s_cbranch_scc1 %s' % Lo)
                    if pre:
                        a(pre)
                    a('ds_write_b32 v%d, v%d offset:%d' % (LT, LT + 1, off))
                    a.label(Lo, noflush=True)
                else:
                    L('f', 'ds_write_b32 v%d, v%d offset:%d' % (LT, LT + 1, off))
            return [I('s_lshl_b32 s%d, s%d, 2' % (sT + 6, sWv)),
                    I('v_add_u32 v%d, s%d, v%d' % (LT, sT + 6, vFlag)),
                    I('s_add_u32 s%d, s%d, %d' % (sT + 6, val, add)),
                    I('v_mov_b32 v%d, s%d' % (LT + 1, sT + 6)),
                    fin]
        for seg in range(2):
            k5 = 6 * seg + 5
            put(k5 - 2, 0, [lambda: L('xr', 'ds_read_b128 %s, v%d offset:%d' % (vr(FL), vFlag, F_XR))])
            put(k5 - 1, 5, chk(F_XR, I('s_add_u32 s%d, s%d, %d' % (sT + 7, sG, seg + 2)), 'xr', 2))
        for seg in range(3):
            put(6 * seg + 5, 6, setf_items(F_XF, sG, seg + 1))
        put(1, 1, setf_items(F_XR, sG, 2, cond=('eq', sOwn), pre='s_waitcnt vmcnt(9)'))
        put(6, 4, setf_items(F_XR, sG, 3, cond=('eq', sOwn), pre='s_waitcnt vmcnt(3)'))
        put(12, 0, [lambda: L('qf', 'ds_read_b128 %s, v%d offset:%d' % (vr(FL), vFlag, F_QF))])
        put(13, 0, chk(F_QF, I('s_mov_b32 s%d, s%d' % (sT + 7, sN)), 'qf', 3))
        hv = [I('s_waitcnt vmcnt(0)'), I('v_max3_u32 v%d, v%d, v%d, v%d' % (FL, HD, HD + 1, HD + 2))]
        for i in range(3, 11, 2):
            hv.append(I('v_max3_u32 v%d, v%d, v%d, v%d' % (FL, FL, HD + i, HD + i + 1)))
        hv.append(I('v_max_u32 v%d, v%d, v%d' % (FL, FL, HD + 11)))
        hv.append(I('v_cmp_eq_u32 vcc, -1, v%d' % FL))
        hv.append(I('s_cmp_eq_u32 s%d, 0' % sLayer))
        hv.append(I('s_cselect_b64 s[%d:%d], 0, -1' % (sT + 2, sT + 3)))
        hv.append(I('s_and_b64 vcc, vcc, s[%d:%d]' % (sT + 2, sT + 3)))
        hv.append(I('s_cselect_b32 s%d, 1, 0' % sPend))

        def hw():
            Ld = a.uid('Lhd')
            a('s_cmp_lg_u32 s%d, 0' % sPend)
            a.softbranch('s_cbranch_scc1 %s' % Ld)
            self.halo_write(HD, HL, LT)
            a.label(Ld, noflush=True)
        hv.append(hw)
        put(13, 4, hv)
        put(15, 4, setf_items(F_XH, sN, 1, cond=('lg', sPend)))
        TA = HD
        ta = [I('v_and_b32 v%d, 15, v%d' % (FL + 1, vLane)),
              I('v_lshlrev_b32 v%d, 3, v%d' % (FL + 1, FL + 1)),
              I('v_lshrrev_b32 v%d, 4, v%d' % (FL + 2, vLane)),
              I('v_lshl_add_u32 v%d, v%d, 8, v%d' % (FL + 1, FL + 2, FL + 1)),
              I('v_add_u32 v%d, 16384, v%d' % (FL + 1, FL + 1))]
        put(14, 5, ta)
        put(16, 4, [lambda: L('xh', 'ds_read_b128 %s, v%d offset:%d' % (vr(FL), vFlag, F_XH))])
        for ks in range(18):
            F = lambda s: BUF[ks & 1] + 4 * s
            if os.environ.get('FINE') and ks in (1, 5, 7, 12, 14):
                self.tr(50 + ks // 2)
            gap = 0

            def after_mfma():
                nonlocal gap
                for fn in side.pop(ks * 9 + gap, []):
                    fn()
                gap += 1
            for s in range(4):
                wait_for((ks, s))
                a(mfma(ACC(s, 0), W(0, ks), F(s), ks == 0))
                if ks == 15:
                    a('v_add_u32 v%d, s%d, v%d' % (XA + s, sMt + s, FL + 1))
                if ks + 1 < 18:
                    rd(ks + 1, s)
                after_mfma()
                a(mfma(ACC(s, 1), W(1, ks), F(s), ks == 0))
                after_mfma()
                if s == 0:
                    a(mfma(G0, F(0), F(0), ks == 0))
                    after_mfma()
        for pos in sorted(side):
            for fn in side[pos]:
                fn()
        a('s_mov_b32 s%d, 0' % sOwn)
        Lnp, Lrt, Lgo = a.uid('Lnopend'), a.uid('Lhrt'), a.uid('Lhgo')
        a('s_cmp_eq_u32 s%d, 0' % sPend)
        a.softbranch('s_cbranch_scc1 %s' % Lnp)
        a.label(Lrt)
        self.budget_check(5)
        self.halo_loads_hb(HD, HL)
        a('s_waitcnt vmcnt(0)')
        self.sentinel_vcc(range(HD, HD + 12), LT)
        a('s_nop 1')
        a('s_cmp_lg_u64 vcc, 0')
        a('s_cbranch_scc1 %s' % Lrt)
        self.halo_write(HD, HL, LT)
        a('s_waitcnt lgkmcnt(0)')
        self.set_flag(F_XH, sN, LT, add=1)
        a.label(Lnp, noflush=True)
        self.tr(12)
        if os.environ.get('PRIO'):
            a('s_setprio %s' % os.environ['PRIO'])
        a('v_lshrrev_b32 v%d, 4, v%d' % (92, vLane))
        a('v_and_b32 v%d, 15, v%d' % (93, vLane))
        self.swz(XA, 92, 93, 94)
        a('v_lshlrev_b32 v%d, 3, v%d' % (94, 93))
        a('v_lshl_add_u32 v%d, v%d, 8, v%d' % (XA + 1, 92, 94))
        a('v_add_u32 v%d, 16384, v%d' % (XA + 1, XA + 1))
        a('s_waitcnt lgkmcnt(0)')
        del lds[:]
        self.flag_min(FL)
        a('s_add_u32 s%d, s%d, 1' % (sT + 7, sN))
        a('s_nop 0')
        a('s_cmp_ge_u32 s%d, s%d' % (sT + 8, sT + 7))
        a.softbranch('s_cbranch_scc1 %s' % Lgo)
        self.wait_flag(F_XH, sT + 7, FL, 17)
        a.label(Lgo, noflush=True)
        NB = 9
        HB_ = lambda ks: 48 + 4 * (ks % NB)
        NM = 84
        QA = 89
        QAr = [89, 90, 91, 97, 98]
        R15, BP = 93, 94

        def hrd(ks):
            if ks < 16:
                L(('h', ks), 'ds_read_b128 %s, v%d offset:%d' % (vr(HB_(ks)), XA, ks * 1024))
            else:
                o = 128 * (ks - 16)
                L(('h', ks), 'ds_read2_b64 %s, v%d offset0:%d offset1:%d' % (vr(HB_(ks)), XA + 1, o, o + 16))
        for ks in range(4):
            hrd(ks)
        a('v_add_u32 v%d, 48, v%d' % (BP, R15))
        a('v_lshlrev_b32 v%d, 2, v%d' % (BP, BP))
        for s in range(4):
            L(('m', s), 'ds_bpermute_b32 v%d, v%d, v%d' % (NM + s, BP, ACC(s, 0) + 2))
        for ks in range(4, NB):
            hrd(ks)
        a('s_mul_i32 s%d, s%d, 3' % (sT, sWv))
        a('v_add_u32 v%d, s%d, v%d' % (QAr[4], sT, 92))
        a('s_add_u32 s%d, s%d, 12' % (sT, sWv))
        a('v_mov_b32 v%d, s%d' % (LT, sT))
        a('v_cmp_eq_u32 vcc, 3, v92')
        a('v_cndmask_b32 v%d, v%d, v%d, vcc' % (QAr[4], QAr[4], LT))
        a('v_lshlrev_b32 v%d, 4, v%d' % (QAr[4], QAr[4]))
        a('v_mul_u32_u24 v%d, %d, v%d' % (LT, QP, R15))
        a('v_add_u32 v%d, v%d, v%d' % (QAr[4], LT, QAr[4]))
        a('v_add_u32 v%d, 0x%x, v%d' % (QAr[4], L_QKV, QAr[4]))
        for s in range(4):
            a('v_add_u32 v%d, s%d, v%d' % (QAr[s], sQo + s, QAr[4]))
        a('s_add_u32 s%d, s%d, 1' % (sT + 4, sWv))
        a('s_lshl_b32 s%d, s%d, 6' % (sT + 4, sT + 4))
        a('s_add_u32 s%d, s%d, 0x%x' % (sT + 4, sT + 4, L_ST))
        a('s_mov_b32 s%d, 0x%x' % (sT + 5, L_ST))
        a('s_cmp_eq_u32 s%d, 0' % sWv)
        a('s_cbranch_scc1 L_M_HALO0')
        lds_save = list(lds)

        def slot_items(s):
            it = [('w', ('m', s)), ('v', 'v_mul_f32 v%d, 0xbae38e39, v%d' % (NM + s, NM + s))]
            for t in range(2):
                for r in range(4):
                    it.append(('v', 'v_fma_f32 v%d, v%d, v%d, v%d' % (ACC(s, t) + r, NM + s, vCS + 4 * t + r, ACC(s, t) + r)))
            for r in range(4):
                it.append(('v', 'v_cvt_pk_bf16_f32 v%d, v%d, v%d' % (ACC(s, 0) + r, ACC(s, 0) + r, ACC(s, 1) + r)))
            it.append(('l', 'ds_write_b128 v%d, %s' % (QAr[s], vr(ACC(s, 0)))))
            return it

        def rstd_items(G, nm, sreg):
            return [('v', 'v_cndmask_b32 v%d, v%d, v%d, s[%d:%d]' % (G, G, G + 1, sM1, sM1 + 1)),
                    ('v', 'v_cndmask_b32 v%d, v%d, v%d, s[%d:%d]' % (G, G, G + 2, sM2, sM2 + 1)),
                    ('v', 'v_cndmask_b32 v%d, v%d, v%d, s[%d:%d]' % (G, G, G + 3, sM3, sM3 + 1)),
                    ('v', 'v_mul_f32 v%d, v%d, v%d' % (G + 1, nm, nm)),
                    ('v', 'v_mul_f32 v%d, 0x3ae38e39, v%d' % (G, G)),
                    ('v', 'v_sub_f32 v%d, v%d, v%d' % (G, G, G + 1)),
                    ('v', 'v_max_f32 v%d, 0, v%d' % (G, G)),
                    ('v', 'v_add_f32 v%d, 0x3727c5ac, v%d' % (G, G)),
                    ('v', 'v_rsq_f32 v%d, v%d' % (G, G)),
                    ('v', 'v_lshlrev_b32 v%d, 2, v%d' % (G + 1, R15)),
                    ('v', 'v_add_u32 v%d, s%d, v%d' % (G + 1, sreg, G + 1)),
                    ('x', (G + 1, G))]

        def emit(item):
            k, x = item
            if k == 'v':
                a(x)
            elif k == 'w':
                wait_for(x)
            elif k == 'l':
                L('w', x)
            elif k == 'x':
                a('s_mov_b64 exec, s[%d:%d]' % (sMD, sMD + 1))
                L('w', 'ds_write_b32 v%d, v%d' % x)
                a('s_mov_b64 exec, -1')
        for variant in (1, 0):
            if variant == 0:
                a.label('L_M_HALO0')
            lds[:] = lds_save
            items = slot_items(0) + rstd_items(G0, NM, sT + 4) + slot_items(1) + slot_items(2) + slot_items(3)
            per = (len(items) + 35) // 36
            pos = 0
            for ks in range(18):
                wait_for(('h', ks))
                a(mfma(ACC(4, 0), W(0, ks), HB_(ks), ks == 0))
                for it in items[pos:pos + per]:
                    emit(it)
                pos += per
                if variant == 1:
                    a(mfma(ACC(4, 1), W(1, ks), HB_(ks), ks == 0))
                else:
                    a(mfma(GH, HB_(ks), HB_(ks), ks == 0))
                if ks + NB < 18:
                    hrd(ks + NB)
                for it in items[pos:pos + per]:
                    emit(it)
                pos += per
            for it in items[pos:]:
                emit(it)
            L(('m', 4), 'ds_bpermute_b32 v%d, v%d, v%d' % (NM + 4, BP, ACC(4, 0) + 2))
            for it in slot_items(4):
                emit(it)
            if variant == 0:
                for it in rstd_items(GH, NM + 4, sT + 5):
                    emit(it)
            else:
                a('s_branch L_M_EPI')
        a.label('L_M_EPI')
        a('s_waitcnt lgkmcnt(0)')
        self.set_flag(F_QR, sN, LT, add=1)
        Lik = a.uid('Linik')
        a('s_cmp_lg_u32 s%d, 0' % sN)
        a('s_cbranch_scc1 %s' % Lik)
        self.init_check(0)
        a.label(Lik)
        self.attention()
        self.tr(15)
        a('s_add_u32 s%d, s%d, 1' % (sP, sP))
        a('s_cmp_lt_u32 s%d, 2' % sP)
        a('s_cbranch_scc1 L_M_TASK')
        a('s_mov_b32 s%d, 1' % sP)
        a('s_branch L_BPHASE')

    def attention(self):
        a = self.a
        Q = 0
        K = 12
        RK = 60
        RO = 64
        S = 65
        AD = 70
        T = 76
        il, hh, j, R = 84, 85, 86, 87
        SA = 88
        a('v_lshrrev_b32 v%d, 2, v%d' % (il, vLane))
        a('v_bfe_u32 v%d, v%d, 1, 1' % (hh, vLane))
        a('v_and_b32 v%d, 1, v%d' % (j, vLane))
        a('s_lshl_b32 s%d, s%d, 4' % (sT, sWv))
        a('s_add_u32 s%d, s%d, 16' % (sT, sT))
        a('v_add_u32 v%d, s%d, v%d' % (R, sT, il))
        a('v_mul_u32_u24 v%d, %d, v%d' % (T, QP, R))
        a('v_add_u32 v%d, 0x%x, v%d' % (T, L_QKV, T))
        a('v_lshl_add_u32 v%d, v%d, 5, v%d' % (AD, hh, T))
        a('v_lshl_add_u32 v%d, v%d, 2, v%d' % (AD + 1, hh, T))
        a('v_mul_u32_u24 v%d, %d, v%d' % (T + 1, 4 * QP, j))
        a('v_add_u32 v%d, %d, v%d' % (T + 1, 3 * QP, T + 1))
        a('v_sub_u32 v%d, v%d, v%d' % (AD + 2, AD, T + 1))
        a('v_sub_u32 v%d, v%d, v%d' % (AD + 3, AD + 1, T + 1))
        a('v_lshlrev_b32 v%d, 2, v%d' % (T + 2, R))
        a('v_add_u32 v%d, 0x%x, v%d' % (T + 2, L_ST, T + 2))
        a('v_lshlrev_b32 v%d, 4, v%d' % (T + 3, j))
        a('v_add_u32 v%d, 12, v%d' % (T + 3, T + 3))
        a('v_sub_u32 v%d, v%d, v%d' % (T + 3, T + 2, T + 3))
        a('v_lshl_add_u32 v%d, v%d, 4, v%d' % (AD + 4, j, AD))
        a('v_subrev_u32 v%d, %d, v%d' % (AD + 4, 7 * QP, AD + 4))
        a('v_subrev_u32 v%d, %d, v%d' % (AD + 5, 7 * QP, AD + 1))
        a('v_lshl_add_u32 v%d, v%d, 1, v%d' % (T + 4, hh, j))
        a('v_lshlrev_b32 v%d, 8, v%d' % (T + 4, T + 4))
        a('v_lshl_add_u32 v%d, v%d, 4, v%d' % (SA, il, T + 4))
        a('s_lshl_b32 s%d, s%d, 10' % (sT, sHG))
        a('v_add_u32 v%d, s%d, v%d' % (SA, sT, SA))
        a('s_lshl_b32 s%d, s%d, 7' % (sT, sHG))
        a('s_add_u32 s%d, s%d, 16384' % (sT, sT))
        a('v_lshlrev_b32 v%d, 3, v%d' % (T + 4, il))
        a('v_lshl_add_u32 v%d, v%d, 2, v%d' % (T + 4, hh, T + 4))
        a('v_add_u32 v%d, s%d, v%d' % (SA + 1, sT, T + 4))
        a('s_mul_i32 s%d, s%d, %d' % (sBase, sLayer, XBYTES))
        a('s_mul_i32 s%d, s%d, %d' % (sT, sP, TILE))
        a('s_add_u32 s%d, s%d, s%d' % (sBase, sBase, sT))
        a('s_add_u32 s%d, s%d, s%d' % (sBase, sBase, sTileW))
        a('s_add_u32 s%d, s%d, 1' % (sT + 7, sN))
        self.wait_flag(F_QR, sT + 7, 92, 4)
        self.tr(14)
        a('ds_read_b128 %s, v%d' % (vr(Q), AD))
        a('ds_read_b128 %s, v%d offset:16' % (vr(Q + 4), AD))
        a('ds_read_b32 v%d, v%d offset:192' % (Q + 8, AD + 1))
        for w in range(4):
            o = (3 - w) * QP
            a('ds_read_b128 %s, v%d offset:%d' % (vr(K + 12 * w), AD + 2, o + 64))
        for w in range(4):
            o = (3 - w) * QP
            a('ds_read_b128 %s, v%d offset:%d' % (vr(K + 12 * w + 4), AD + 2, o + 80))
        for w in range(4):
            o = (3 - w) * QP
            a('ds_read_b32 v%d, v%d offset:%d' % (K + 12 * w + 8, AD + 3, o + 208))
        a('ds_read_b32 v%d, v%d' % (RO, T + 2))
        a('ds_read2_b32 %s, v%d offset0:0 offset1:1' % (vr(RK, 2), T + 3))
        a('ds_read2_b32 %s, v%d offset0:2 offset1:3' % (vr(RK + 2, 2), T + 3))
        a('s_waitcnt lgkmcnt(11)')
        for d in range(9):
            if d == 4:
                a('s_waitcnt lgkmcnt(7)')
            if d == 8:
                a('s_waitcnt lgkmcnt(3)')
            for w in range(4):
                c = '0' if d == 0 else 'v%d' % (S + w)
                a('v_dot2_f32_bf16 v%d, v%d, v%d, %s' % (S + w, Q + d, K + 12 * w + d, c))
        a('s_waitcnt lgkmcnt(0)')
        V = 12
        for w in range(8):
            o = (7 - w) * QP
            a('ds_read_b128 %s, v%d offset:%d' % (vr(V + 6 * w), AD + 4, o + 128))
            a('ds_read_b32 v%d, v%d offset:%d' % (V + 6 * w + 4, AD + 5, o + 224))
        c = struct.unpack('<I', struct.pack('<f', (18 ** -0.5) * 1.4426950408889634))[0]
        a('v_mul_f32 v%d, 0x%x, v%d' % (RO, c, RO))
        for w in range(4):
            a('v_mul_f32 v%d, v%d, v%d' % (S + w, S + w, RK + 3 - w))
        for w in range(4):
            a('v_mul_f32 v%d, v%d, v%d' % (S + w, S + w, RO))
        Lnm = a.uid('Lnomask')
        a('s_or_b32 s%d, s%d, s%d' % (sT, sTG, sWv))
        a('s_cmp_lg_u32 s%d, 0' % sT)
        a('s_cbranch_scc1 %s' % Lnm)
        a('v_lshlrev_b32 v%d, 2, v%d' % (T, j))
        a('v_mov_b32 v%d, 0xf149f2ca' % (T + 2))
        for w in range(4):
            a('v_add_u32 v%d, %d, v%d' % (T + 1, w, T))
            a('v_cmp_lt_u32 vcc, v%d, v%d' % (il, T + 1))
            a('v_cndmask_b32 v%d, v%d, v%d, vcc' % (S + w, S + w, T + 2))
        a.label(Lnm)
        a('v_max3_f32 v%d, v%d, v%d, v%d' % (T, S, S + 1, S + 2))
        a('v_max_f32 v%d, v%d, v%d' % (T, T, S + 3))
        a('v_cmp_eq_u32 vcc, 1, v%d' % j)
        a('v_max_f32_dpp v%d, v%d, v%d quad_perm:[1,0,3,2] row_mask:0xf bank_mask:0xf' % (T + 1, T, T))
        for w in range(4):
            a('v_sub_f32 v%d, v%d, v%d' % (S + w, S + w, T + 1))
        for w in range(4):
            a('v_exp_f32 v%d, v%d' % (S + w, S + w))
        a('v_add_f32 v%d, v%d, v%d' % (T, S, S + 1))
        a('v_add_f32 v%d, v%d, v%d' % (T + 1, S + 2, S + 3))
        a('v_add_f32 v%d, v%d, v%d' % (T, T, T + 1))
        for w in range(4):
            a('v_mul_f32 v%d, v%d, v%d' % (S + w, S + w, RK + 3 - w))
        a('v_add_f32_dpp v%d, v%d, v%d quad_perm:[1,0,3,2] row_mask:0xf bank_mask:0xf' % (T + 1, T, T))
        a('v_rcp_f32 v%d, v%d' % (T + 1, T + 1))
        for w in range(4):
            a('v_mul_f32 v%d, v%d, v%d' % (S + w, S + w, T + 1))
        a('v_cvt_pk_bf16_f32 v%d, v%d, v%d' % (T, S, S + 1))
        a('v_cvt_pk_bf16_f32 v%d, v%d, v%d' % (T + 1, S + 2, S + 3))
        a('v_mov_b32_dpp v%d, v%d quad_perm:[1,0,3,2] row_mask:0xf bank_mask:0xf' % (T + 2, T))
        a('v_mov_b32_dpp v%d, v%d quad_perm:[1,0,3,2] row_mask:0xf bank_mask:0xf' % (T + 3, T + 1))
        PP = 60
        a('v_cndmask_b32 v%d, v%d, v%d, vcc' % (PP, T, T + 2))
        a('v_cndmask_b32 v%d, v%d, v%d, vcc' % (PP + 1, T + 1, T + 3))
        a('v_cndmask_b32 v%d, v%d, v%d, vcc' % (PP + 2, T + 2, T))
        a('v_cndmask_b32 v%d, v%d, v%d, vcc' % (PP + 3, T + 3, T + 1))
        PL = 64
        for pr in range(4):
            a('v_and_b32 v%d, 0xffff, v%d' % (PL + 4 * pr, PP + pr))
            a('v_lshlrev_b32 v%d, 16, v%d' % (PL + 4 * pr + 1, PP + pr))
            a('v_lshrrev_b32 v%d, 16, v%d' % (PL + 4 * pr + 2, PP + pr))
            a('v_and_b32 v%d, 0xffff0000, v%d' % (PL + 4 * pr + 3, PP + pr))
        O = 0
        for w in range(8):
            a('s_waitcnt lgkmcnt(%d)' % (2 * (7 - w)))
            for m in range(5):
                for h in range(2):
                    c = '0' if w == 0 else 'v%d' % (O + 2 * m + h)
                    a('v_dot2_f32_bf16 v%d, v%d, v%d, %s' % (O + 2 * m + h, V + 6 * w + m, PL + 2 * w + h, c))
        for m in range(5):
            a('v_cvt_pk_bf16_f32 v%d, v%d, v%d' % (12 + m, O + 2 * m, O + 2 * m + 1))
        a('s_mov_b32 s%d, 0x55555555' % (sT + 2))
        a('s_mov_b32 s%d, 0x55555555' % (sT + 3))

        def st(sc):
            a('buffer_store_dwordx4 %s, v%d, %s, s%d offen%s' % (vr(12), SA, srd(sWS), sBase, sc))
            a('s_mov_b64 exec, s[%d:%d]' % (sT + 2, sT + 3))
            a('buffer_store_dword v16, v%d, %s, s%d offen%s' % (SA + 1, srd(sWS), sBase, sc))
            a('s_mov_b64 exec, -1')
            self.set_flag(F_QF, sN, 20, add=1)
            self.publish_event(0, 24, sc)
        self.both_modes(st)

    def stage_generic(self):
        a = self.a
        TMP = 88
        AV = 84
        a('s_lshl_b32 s%d, s%d, 1' % (sN, sLayer))
        a('s_add_u32 s%d, s%d, s%d' % (sN, sN, sP))
        a('s_mul_i32 s%d, s%d, 3' % (sG, sN))
        a('v_lshlrev_b32 v%d, 4, v%d' % (AV, vLane))
        a('s_sub_u32 s%d, s%d, 1' % (sT, sLayer))
        a('s_mul_i32 s%d, s%d, %d' % (sT, sT, XBYTES))
        a('s_add_u32 s%d, s%d, %d' % (sT, sT, WS_X))
        a('s_mul_i32 s%d, s%d, %d' % (sT + 1, sP, TILE))
        a('s_add_u32 s%d, s%d, s%d' % (sT, sT, sT + 1))
        a('s_add_u32 s%d, s%d, s%d' % (sBase, sT, sTileW))
        Lc = a.uid('Lnocs')
        a('s_cmp_eq_u32 s%d, 0' % sCs)
        a('s_cbranch_scc1 %s' % Lc)
        a('s_waitcnt vmcnt(0)')
        self.colsum(8)
        a('s_mov_b32 s%d, 0' % sCs)
        a.label(Lc)
        self.tr(20)
        self.poll_event(2, -1, TMP, 12)
        self.tr(25)
        Lw = a.uid('Lnowr')
        a('s_cmp_eq_u32 s%d, 0' % sP)
        a('s_cbranch_scc1 %s' % Lw)
        self.set_flag(F_WR, sLayer, TMP, add=1)
        a.label(Lw)
        for seg in range(3):
            a('s_add_u32 s%d, s%d, %d' % (sT + 7, sG, seg + 1))
            self.wait_flag(F_XF, sT + 7, TMP, 6, add=3)
            for h in range(2):
                a('s_add_u32 s%d, s%d, %d' % (sT, sBase, seg * 6144 + h * 3072))
                a('s_add_u32 s%d, s%d, %d' % (sT + 1, sMt, seg * 6144 + h * 3072))
                a('s_mov_b32 m0, s%d' % (sT + 1))
                for k in range(3):
                    a('buffer_load_dwordx4 v%d, %s, s%d offen offset:%d sc1 lds' % (AV, srd(sWS), sT, k * 1024))
        a('s_mov_b32 s%d, 1' % sOwn)
        a('s_cmp_eq_u32 s%d, 0' % sP)
        a('s_cbranch_scc1 L_M_ROLE')
        a('s_mov_b32 s%d, 0' % sOwn)
        for seg in range(3):
            a('s_waitcnt vmcnt(%d)' % (6 * (2 - seg)))
            self.set_flag(F_XR, sG, TMP, add=seg + 1)
        self.tr(24)

    def stage_input_issue(self):
        a = self.a
        AV, LV, AT, LT_ = 84, 85, 86, 87
        TMP = 88
        a('s_mov_b32 s%d, s%d' % (sN, sP))
        a('s_mul_i32 s%d, s%d, 3' % (sG, sN))
        a('v_lshrrev_b32 v%d, 2, v%d' % (TMP + 1, vLane))
        a('v_and_b32 v%d, 3, v%d' % (TMP, vLane))
        self.swz(LV, TMP, TMP + 1, TMP + 2)
        a('v_add_u32 v%d, s%d, v%d' % (LV, sMt, LV))
        a('s_lshl_b32 s%d, s%d, 7' % (sT, sTG))
        a('s_add_u32 s%d, s%d, s%d' % (sT, sT, sP))
        a('s_lshl_b32 s%d, s%d, 5' % (sT + 1, sWv))
        a('s_add_u32 s%d, s%d, s%d' % (sT + 1, sT + 1, sT))
        a('s_mul_i32 s%d, s%d, 1152' % (sT + 1, sT + 1))
        a('v_mul_u32_u24 v%d, 2304, v%d' % (TMP + 2, TMP + 1))
        a('v_add_u32 v%d, s%d, v%d' % (TMP + 2, sT + 1, TMP + 2))
        a('v_lshl_add_u32 v%d, v%d, 4, v%d' % (AV, TMP, TMP + 2))
        a('v_mul_u32_u24 v%d, 72, v%d' % (AT, TMP))
        a('v_add_u32 v%d, v%d, v%d' % (AT, AT, TMP + 2))
        a('v_lshlrev_b32 v%d, 7, v%d' % (LT_, TMP))
        a('v_lshl_add_u32 v%d, v%d, 3, v%d' % (LT_, TMP + 1, LT_))
        a('v_add_u32 v%d, s%d, v%d' % (LT_, sMt, LT_))
        for ks in range(16):
            a('buffer_load_dwordx4 %s, v%d, %s, 0 offen offset:%d' % (vr(4 * ks), AV, srd(sIN), 72 * ks))
        for c in range(4):
            a('buffer_load_dwordx2 %s, v%d, %s, 0 offen offset:%d' % (vr(64 + 2 * c, 2), AT, srd(sIN), 288 * c + 64))

    def stage_input_finish(self, extra_after=0, last_extra=0):
        a = self.a
        AV, LV, AT, LT_ = 84, 85, 86, 87
        TMP = 88
        rem = [14, 8, 0]
        for seg in range(3):
            a('s_waitcnt vmcnt(%d)' % (rem[seg] + (extra_after if seg < 2 else last_extra)))
            if seg == 0:
                self.tr(21)
            a('s_add_u32 s%d, s%d, %d' % (sT + 7, sG, seg + 1))
            self.wait_flag(F_XF, sT + 7, TMP, 6, add=3)
            for ks in range(6 * seg, min(6 * seg + 6, 16)):
                a('ds_write_b128 v%d, %s offset:%d' % (LV, vr(4 * ks), ks * 1024))
            if seg == 2:
                for c in range(4):
                    a('ds_write_b64 v%d, %s offset:%d' % (LT_, vr(64 + 2 * c, 2), 16384 + 512 * c))
            a('s_waitcnt lgkmcnt(0)')
            self.set_flag(F_XR, sG, TMP, add=seg + 1)
        self.tr(24)

    def hb_addr(self, d, tmp):
        a = self.a
        a('v_and_b32 v%d, 7, v%d' % (tmp, vLane))
        a('v_lshrrev_b32 v%d, 4, v%d' % (tmp + 1, vLane))
        a('v_lshlrev_b32 v%d, 4, v%d' % (d, tmp))
        a('v_lshl_add_u32 v%d, v%d, 7, v%d' % (d, tmp + 1, d))
        a('s_lshl_b32 s%d, s%d, 9' % (sT, sHG))
        a('v_add_u32 v%d, s%d, v%d' % (d, sT, d))
        a('s_lshl_b32 s%d, s%d, 6' % (sT, sHG))
        a('s_add_u32 s%d, s%d, 8192' % (sT, sT))
        a('v_lshlrev_b32 v%d, 3, v%d' % (d + 1, tmp))
        a('v_add_u32 v%d, s%d, v%d' % (d + 1, sT, d + 1))

    def hb_store(self, d, data, soff):
        a = self.a
        a('s_mov_b32 s%d, 0xff00ff00' % (sT + 4))
        a('s_mov_b32 s%d, 0xff00ff00' % (sT + 5))
        a('s_mov_b64 exec, s[%d:%d]' % (sT + 4, sT + 5))
        a('buffer_store_dwordx4 %s, v%d, %s, s%d offen sc1' % (vr(data), d, srd(sWS), soff))
        a('s_mov_b64 exec, 0xff00')
        a('buffer_store_dwordx2 %s, v%d, %s, s%d offen sc1' % (vr(data + 4, 2), d + 1, srd(sWS), soff))
        a('s_mov_b64 exec, -1')

    def hb_base(self, dst, layer_add):
        a = self.a
        a('s_add_u32 s%d, s%d, %d' % (dst, sLayer, layer_add))
        a('s_lshl_b32 s%d, s%d, 5' % (dst, dst))
        a('s_lshl_b32 s%d, s%d, 1' % (sT + 1, sTG))
        a('s_add_u32 s%d, s%d, s%d' % (dst, dst, sT + 1))
        a('s_add_u32 s%d, s%d, s%d' % (dst, dst, sP))
        a('s_mul_i32 s%d, s%d, %d' % (dst, dst, HBT))
        a('s_add_u32 s%d, s%d, %d' % (dst, dst, WS_HB))

    def bphase(self):
        a = self.a
        NS = 12
        ACC = 48
        WB = [60, 72, 84]
        LA, LB, VT, TMP1 = 96, 97, 98, 99
        slot = lambda ks: 4 * (ks % NS)
        a('s_mul_i32 s%d, s%d, %d' % (sBase, sLayer, XBYTES))
        a('s_mul_i32 s%d, s%d, %d' % (sT, sP, TILE))
        a('s_add_u32 s%d, s%d, s%d' % (sBase, sBase, sT))
        a('s_add_u32 s%d, s%d, s%d' % (sBase, sBase, sTileW))
        Lnp = a.uid('Lnopf')
        a('s_cmp_ge_u32 s%d, %d' % (sLayer, self.nlayers - 2))
        a('s_cbranch_scc1 %s' % Lnp)
        a('s_cmp_lg_u32 s%d, 3' % sWv)
        a('s_cbranch_scc1 %s' % Lnp)
        self.hb_addr(0, 2)
        for i in range(6):
            a('v_mov_b32 v%d, -1' % (4 + i))
        self.hb_base(sT + 2, 1)
        self.hb_store(0, 4, sT + 2)
        a.label(Lnp)
        a('v_lshlrev_b32 v%d, 4, v%d' % (LA, vLane))
        a('v_add_u32 v%d, 0x%x, v%d' % (LA, L_WO, LA))
        a('v_and_b32 v%d, 3, v%d' % (LB, vLane))
        a('v_lshlrev_b32 v%d, 4, v%d' % (LB, LB))
        a('v_lshrrev_b32 v%d, 4, v%d' % (TMP1, vLane))
        a('v_lshl_add_u32 v%d, v%d, 6, v%d' % (LB, TMP1, LB))
        a('v_add_u32 v%d, 0x%x, v%d' % (LB, L_WO + 2048, LB))
        a('v_and_b32 v%d, 15, v%d' % (VT, vLane))
        a('v_lshlrev_b32 v%d, 3, v%d' % (VT, VT))
        a('v_lshl_add_u32 v%d, v%d, 8, v%d' % (VT, TMP1, VT))
        a('s_add_u32 s%d, s%d, 1' % (sT + 7, sLayer))
        self.wait_flag(F_WR, sT + 7, WB[0], 10)

        def wreads(ks):
            b = WB[ks % 3]
            a('ds_read_b128 %s, v%d offset:%d' % (vr(b), LA, ks * 2304))
            a('ds_read_b128 %s, v%d offset:%d' % (vr(b + 4), LA, ks * 2304 + 1024))
            a('ds_read_b128 %s, v%d offset:%d' % (vr(b + 8), LB, ks * 2304))
        for ks in range(3):
            wreads(ks)
        self.tr(40)
        self.poll_event(0, 0, ACC, 13)
        self.tr(44)
        issued = []

        def oload(ks):
            if ks < 16:
                if ks % 4 == 0:
                    a('s_add_u32 s%d, s%d, %d' % (sT + 2, sBase, WS_PAD + ks * 1024 - L_WO))
                a('buffer_load_dwordx4 %s, v%d, %s, s%d offen offset:%d sc1' %
                  (vr(slot(ks)), LA, srd(sWS2), sT + 2, (ks % 4) * 1024))
                issued.append(ks)
            else:
                a('s_add_u32 s%d, s%d, 16384' % (sT + 3, sBase))
                a('buffer_load_dwordx2 %s, v%d, %s, s%d offen offset:%d sc1' %
                  (vr(slot(ks), 2), VT, srd(sWS), sT + 3, (ks - 16) * 1024))
                a('buffer_load_dwordx2 %s, v%d, %s, s%d offen offset:%d sc1' %
                  (vr(slot(ks) + 2, 2), VT, srd(sWS), sT + 3, (ks - 16) * 1024 + 128))
                issued.extend([ks, ks])
        for ks in range(NS):
            oload(ks)
        RES = 24
        RA = 32
        for ks in range(18):
            last = max(i for i, t in enumerate(issued) if t == ks)
            a('s_waitcnt vmcnt(%d) lgkmcnt(%d)' % (len(issued) - 1 - last, 3 * min(2, 17 - ks)))
            if ks == 0:
                self.tr(41)
            for t in range(3):
                a(mfma(ACC + 4 * t, WB[ks % 3] + 4 * t, slot(ks), ks == 0))
            if ks + 3 < 18:
                wreads(ks + 3)
            if ks + NS < 18:
                oload(ks + NS)
            if ks == 10:
                L0, L1 = a.uid('Lres0'), a.uid('Lres1')
                a('s_cmp_eq_u32 s%d, 0' % sLayer)
                a('s_cbranch_scc1 %s' % L0)
                self.xaddr_frag(RA, RA + 2)
                a('s_add_u32 s%d, s%d, %d' % (sT + 2, sBase, WS_X - XBYTES))
                a('buffer_load_dwordx4 %s, v%d, %s, s%d offen sc1' % (vr(RES), RA, srd(sWS), sT + 2))
                a('buffer_load_dwordx2 %s, v%d, %s, s%d offen sc1' % (vr(RES + 4, 2), RA + 1, srd(sWS), sT + 2))
                a('s_branch %s' % L1)
                a.label(L0)
                self.xaddr_nat(RA, RA + 2)
                a('buffer_load_dwordx4 %s, v%d, %s, 0 offen' % (vr(RES), RA, srd(sIN)))
                a('buffer_load_dwordx2 %s, v%d, %s, 0 offen' % (vr(RES + 4, 2), RA + 1, srd(sIN)))
                a.label(L1)
                issued.extend(['r', 'r'])
        self.tr(42)
        Lnw, Lnx = a.uid('Lnowf'), a.uid('Lnowx')
        a('s_cmp_eq_u32 s%d, 0' % sP)
        a('s_cbranch_scc1 %s' % Lnw)
        self.set_flag(F_WF, sLayer, WB[0], add=1)
        a('s_branch %s' % Lnx)
        a.label(Lnw)
        self.set_flag(F_WG, sLayer, WB[0], add=1)
        a.label(Lnx)
        E = 0
        U = 60
        pairs = [(ACC + r, ACC + 4 + r) for r in range(4)] + [(ACC + 8, ACC + 9), (ACC + 10, ACC + 11)]
        for m, (x0, x1) in enumerate(pairs):
            a('v_cvt_pk_bf16_f32 v%d, v%d, v%d' % (E + m, x0, x1))
        a('s_waitcnt vmcnt(0)')
        for m in range(6):
            a('v_lshlrev_b32 v%d, 16, v%d' % (U + 2 * m, E + m))
            a('v_and_b32 v%d, 0xffff0000, v%d' % (U + 1 + 2 * m, E + m))
            a('v_lshlrev_b32 v%d, 16, v%d' % (U + 12 + 2 * m, RES + m))
            a('v_and_b32 v%d, 0xffff0000, v%d' % (U + 13 + 2 * m, RES + m))
        for m in range(12):
            a('v_add_f32 v%d, v%d, v%d' % (U + m, U + m, U + 12 + m))
        for m in range(6):
            a('v_cvt_pk_bf16_f32 v%d, v%d, v%d' % (E + m, U + 2 * m, U + 1 + 2 * m))
        L0, L1 = a.uid('Lst0'), a.uid('Lst1')
        a('s_cmp_eq_u32 s%d, %d' % (sLayer, self.nlayers - 1))
        a('s_cbranch_scc1 %s' % L0)
        self.xaddr_frag(32, 36)
        a('s_add_u32 s%d, s%d, %d' % (sBase2, sBase, WS_X))

        def st(sc):
            a('buffer_store_dwordx4 %s, v32, %s, s%d offen%s' % (vr(E), srd(sWS), sBase2, sc))
            a('s_mov_b64 exec, 0xffff')
            a('buffer_store_dwordx2 %s, v33, %s, s%d offen%s' % (vr(E + 4, 2), srd(sWS), sBase2, sc))
            a('s_mov_b64 exec, -1')
            self.publish_event(2, 44, sc)
        self.both_modes(st)
        Lnh = a.uid('Lnohb')
        a('s_cmp_lg_u32 s%d, 3' % sWv)
        a('s_cbranch_scc1 %s' % Lnh)
        self.hb_addr(40, 42)
        self.hb_base(sT + 2, 0)
        self.hb_store(40, E, sT + 2)
        a.label(Lnh)
        a('s_branch %s' % L1)
        a.label(L0)
        self.xaddr_nat(32, 36)
        a('buffer_store_dwordx4 %s, v32, %s, 0 offen' % (vr(E), srd(sOUT)))
        a('s_mov_b64 exec, 0xffff')
        a('buffer_store_dwordx2 %s, v33, %s, 0 offen' % (vr(E + 4, 2), srd(sOUT)))
        a('s_mov_b64 exec, -1')
        a.label(L1)
        self.tr(43)

    def xaddr_frag(self, d, tmp):
        a = self.a
        a('v_lshrrev_b32 v%d, 4, v%d' % (tmp, vLane))
        a('v_and_b32 v%d, 15, v%d' % (tmp + 1, vLane))
        self.swz(d, tmp, tmp + 1, tmp + 2)
        a('s_lshl_b32 s%d, s%d, 10' % (sT, sHG))
        a('v_add_u32 v%d, s%d, v%d' % (d, sT, d))
        a('s_lshl_b32 s%d, s%d, 7' % (sT, sHG))
        a('s_add_u32 s%d, s%d, 16384' % (sT, sT))
        a('v_lshlrev_b32 v%d, 3, v%d' % (tmp + 1, tmp + 1))
        a('v_add_u32 v%d, s%d, v%d' % (d + 1, sT, tmp + 1))

    def xaddr_nat(self, d, tmp):
        a = self.a
        a('s_lshl_b32 s%d, s%d, 7' % (sT, sTG))
        a('s_add_u32 s%d, s%d, s%d' % (sT, sT, sP))
        a('s_lshl_b32 s%d, s%d, 5' % (sT + 1, sWv))
        a('s_add_u32 s%d, s%d, s%d' % (sT, sT, sT + 1))
        a('s_mul_i32 s%d, s%d, 1152' % (sT, sT))
        a('s_mul_i32 s%d, s%d, 72' % (sT + 1, sHG))
        a('s_add_u32 s%d, s%d, s%d' % (sT, sT, sT + 1))
        a('v_and_b32 v%d, 15, v%d' % (tmp, vLane))
        a('v_mul_u32_u24 v%d, 2304, v%d' % (tmp, tmp))
        a('v_add_u32 v%d, s%d, v%d' % (tmp, sT, tmp))
        a('v_add_u32 v%d, 64, v%d' % (d + 1, tmp))
        a('v_lshrrev_b32 v%d, 4, v%d' % (tmp + 1, vLane))
        a('v_lshl_add_u32 v%d, v%d, 4, v%d' % (d, tmp + 1, tmp))

    def build(self):
        a = self.a
        self.prologue()
        a('s_cmp_eq_u32 s%d, 0' % sSet)
        a('s_cbranch_scc0 L_H0')
        self.wload_addr(0, 1, 2)
        self.coop_issue(0, 1)
        self.wou_issue(16, 24)
        a('s_waitcnt vmcnt(8)')
        self.tr(5)
        self.coop_store(2)
        a('s_waitcnt vmcnt(2)')
        self.wou_store(16, 24)
        self.get_nonce(8)
        self.coop_flag(12)
        self.wou_flag(8)
        self.tr(6)
        self.coop_load(0)
        a('s_waitcnt vmcnt(0)')
        self.tr(2)
        self.colsum(8)
        a('s_branch L_M_ROLE')
        a.label('L_H0')
        Ln, Lp = a.uid('Lnn'), a.uid('Lpf0')
        a('s_cmp_lg_u32 s2, 0')
        a('s_cbranch_scc1 %s' % Ln)
        a('s_cmp_lg_u32 s%d, 0' % sWv)
        a('s_cbranch_scc1 %s' % Ln)
        a('s_memrealtime s[%d:%d]' % (sNon, sNon + 1))
        a('s_waitcnt lgkmcnt(0)')
        a('s_or_b32 s%d, s%d, 1' % (sNon, sNon))
        a('s_or_b32 s%d, s%d, 1' % (sNon + 1, sNon + 1))
        a('v_mov_b32 v72, s%d' % sNon)
        a('v_mov_b32 v73, s%d' % (sNon + 1))
        a('v_mov_b32 v74, 0')
        a('buffer_store_dwordx2 v[72:73], v74, %s, 0 offen sc1' % srd(sDBG))
        a.label(Ln)
        a('s_mov_b32 s%d, 0' % sP)
        if self.nlayers > 1:
            a('s_cmp_lg_u32 s%d, 3' % sWv)
            a('s_cbranch_scc1 %s' % Lp)
            self.hb_addr(72, 74)
            for i in range(6):
                a('v_mov_b32 v%d, -1' % (76 + i))
            self.hb_base(sT + 2, 0)
            self.hb_store(72, 76, sT + 2)
            a('s_add_u32 s%d, s%d, %d' % (sT + 2, sT + 2, HBT))
            self.hb_store(72, 76, sT + 2)
            a.label(Lp)
        self.wload_addr(99, 100, 92)
        self.coop_issue(99, 100)
        self.wou_issue(72, 92)
        self.stage_input_issue()
        a('s_waitcnt vmcnt(20)')
        self.tr(5)
        self.coop_store(vCS)
        self.wou_store(72, 92)
        self.stage_input_finish(extra_after=2, last_extra=2)
        self.get_nonce(72)
        Lf = a.uid('Lif')
        a('s_cmp_lg_u32 s%d, 3' % sWv)
        a('s_cbranch_scc1 %s' % Lf)
        a('s_lshl_b32 s%d, s%d, 4' % (sT, sTG))
        a('s_add_u32 s%d, s%d, s%d' % (sT, sT, sHG))
        a('s_lshl_b32 s%d, s%d, 4' % (sT, sT))
        a('s_add_u32 s%d, s%d, %d' % (sT, sT, WS_INI))
        a('v_mov_b32 v72, s%d' % sNon)
        a('v_mov_b32 v73, s%d' % (sNon + 1))
        a('v_mov_b32 v74, s%d' % sXcc)
        a('v_mov_b32 v75, s%d' % sNon)
        a('v_mov_b32 v76, 0')
        a('s_mov_b64 exec, 1')
        a('buffer_store_dwordx4 v[72:75], v76, %s, s%d offen sc1' % (srd(sWS), sT))
        a('s_mov_b64 exec, -1')
        a.label(Lf)
        self.coop_flag(78)
        self.wou_flag(92)
        self.tr(6)
        a('s_mov_b32 s%d, 1' % sP)
        self.stage_input_issue()
        self.wo_stage()
        self.init_check(72)
        self.coop_load(72)
        self.stage_input_finish(extra_after=36, last_extra=36)
        self.tr(3)
        a('s_mov_b32 s%d, 0' % sP)
        a('s_branch L_BPHASE')
        self.m_role()
        a.label('L_BPHASE')
        self.bphase()
        a('s_add_u32 s%d, s%d, 1' % (sLayer, sLayer))
        a('s_cmp_ge_u32 s%d, %d' % (sLayer, self.nlayers))
        a('s_cbranch_scc1 L_END')
        a('s_cmp_eq_u32 s%d, 0' % sP)
        a('s_cbranch_scc1 L_STAGE')
        self.wo_stage(async_=True)
        a.label('L_STAGE')
        self.stage_generic()
        a('s_cmp_eq_u32 s%d, 0' % sP)
        a('s_cbranch_scc1 L_M_ROLE')
        a('s_mov_b32 s%d, 0' % sP)
        a('s_branch L_BPHASE')
        a.label('L_ABORT')
        a('s_mov_b64 exec, -1')
        a('s_lshl_b32 s%d, s%d, 2' % (sT, sT + 9))
        a('s_add_u32 s%d, s%d, 64' % (sT, sT))
        a('v_mov_b32 v0, s2')
        a('v_add_u32 v0, 0x1000, v0')
        a('v_mov_b32 v1, s%d' % sT)
        a('buffer_store_dword v0, v1, %s, 0 offen sc1' % srd(sDBG))
        a.label('L_END')
        if self.debug:
            a('s_cmp_ge_u32 s2, 256')
            a('s_cbranch_scc1 L_END2')
            self.tr(63)
            a('s_lshl_b32 s%d, s2, 3' % sT)
            a('s_add_u32 s%d, s%d, s%d' % (sT, sT, sWave))
            a('s_lshl_b32 s%d, s%d, 8' % (sT, sT))
            a('s_add_u32 s%d, s%d, %d' % (sT, sT, WS_TRC))
            a('v_lshlrev_b32 v0, 2, v%d' % vLane)
            a('buffer_store_dword v%d, v0, %s, s%d offen' % (vTr, srd(sWS), sT))
            a.label('L_END2')
        a('s_endpgm')

    def text(self):
        hdr = open(os.path.join(os.path.dirname(os.path.abspath(__file__)), '..', 'cdna_kernels', NAME + '.s.ref')).read()
        out = hdr.split('; Override launch geometry')[0]
        out += '; @launch grid=(256,1,1) block=(512,1,1) lds=%d\n' % LDS_BYTES
        out += '.amdgcn_target "amdgcn-amd-amdhsa--gfx950"\n.text\n'
        out += '.globl %s_kernel\n.p2align 8\n.type %s_kernel,@function\n%s_kernel:\n' % (NAME, NAME, NAME)
        out += self.a.render()
        out += '''.section .rodata,"a"
.p2align 6
.amdhsa_kernel %s_kernel
  .amdhsa_next_free_vgpr 256
  .amdhsa_next_free_sgpr 96
  .amdhsa_accum_offset 256
  .amdhsa_group_segment_fixed_size 0
  .amdhsa_kernarg_size 72
  .amdhsa_user_sgpr_count 2
  .amdhsa_user_sgpr_kernarg_segment_ptr 1
  .amdhsa_system_sgpr_workgroup_id_x 1
.end_amdhsa_kernel
''' % NAME
        return out


if __name__ == '__main__':
    nl = int(sys.argv[2]) if len(sys.argv) > 2 else 4
    g = Gen(nlayers=nl, debug=(len(sys.argv) > 3 and sys.argv[3] == 'trace'))
    g.build()
    path = sys.argv[1] if len(sys.argv) > 1 else os.path.join(os.path.dirname(os.path.abspath(__file__)), '..', 'cdna_kernels', NAME + '.s')
    open(path, 'w').write(g.text())
    print('wrote', path)
```

```python
import sys, os, struct
sys.path.insert(0, os.path.dirname(os.path.abspath(__file__)))
from asmlib import Asm

NAME = 'interleave_layers__sliding_local_dilated__sliding_local_dilated__prompt'

XBYTES = 2048 * 576 * 2
TILE = 73728
MT = 18432
WS_X = 4 * XBYTES
LSTR = 0
WS_KV = 6 * XBYTES
KVT = 2304
WS_FL = 9 * XBYTES
WS_INI = WS_FL + 65536
WS_CFLG = WS_FL + 131072
WS_WFLG = WS_FL + 262144
WS_TRC = 10 * XBYTES
WS_CIMG = 11 * XBYTES
WS_PIMG = 14 * XBYTES
WS_PFLG = WS_FL + 393216
WS_WIMG = 13 * XBYTES
WIS = 41984
WS_SIZE = 80 << 20
WS_PAD = 1 << 20
OOB = 0x7F000000

L_QKV = 73728
QP = 272
L_WO = L_QKV + 80 * QP
L_ST = L_WO + 18 * 2304
L_FLG = L_ST + 320
LDS_BYTES = 139520
F_XR, F_XF, F_QR, F_QF, F_WR, F_WF, F_WG, F_XH = 0, 16, 32, 48, 64, 80, 96, 112

sIN, sWQ, sWO, sOUT, sWS, sDBG = 24, 28, 32, 36, 40, 44
sWave, sWv, sSet, sTG, sHG, sLayer, sP, sN, sBud = 48, 49, 50, 51, 52, 53, 54, 55, 56
sG = 57
sNon = 58
sT = 60
sSelLo, sSelHi = 72, 73
sM1, sM2, sM3, sMD = 74, 76, 78, 80
sPend = 82
sBase = 83
sBase2 = 84
sFast = 85
sTm = 86
sWS2 = 88
sTi = 92
sXcc = 93
sWoOk = 94
sTileW = 95
sMt = 4
sQo = 8
sFlW = 12
sOwn = 13
sCs = 14
sQu = 16
sSt = 18
sKm = 20
sH = 22
sPass = 23
sWoP = 15
vTr = 101
vFlag, vLane = 102, 103
vCS = 104
vW = 112


def srd(n):
    return 's[%d:%d]' % (n, n + 3)


def vr(b, n=4):
    return 'v[%d:%d]' % (b, b + n - 1)


def W(t, ks):
    return vW + (ks * 2 + t) * 4


def mfma(d, a_, b_, first):
    return 'v_mfma_f32_16x16x32_bf16 %s, %s, %s, %s' % (vr(d), vr(a_), vr(b_), '0' if first else vr(d))


class Gen:
    def __init__(self, nlayers=4, debug=False):
        self.a = Asm()
        self.nlayers = nlayers
        self.debug = debug

    def budget_check(self, code):
        a = self.a
        a('s_sub_u32 s%d, s%d, 1' % (sBud, sBud))
        a('s_cmp_eq_u32 s%d, 0' % sBud)
        a('s_mov_b32 s%d, %d' % (sT + 9, code))
        a('s_cbranch_scc1 L_ABORT')

    def tr(self, ident):
        if not self.debug:
            return
        if os.environ.get('FINE') and ident in (20, 25, 24, 30, 40, 44, 41, 42, 43, 21, 3):
            return
        a = self.a
        a('%s s[%d:%d]' % ('s_memtime' if os.environ.get('CYC') else 's_memrealtime', sTm, sTm + 1))
        a('s_waitcnt lgkmcnt(0)')
        a('s_lshl_b32 s%d, s%d, 6' % (sTm, sTm))
        a('s_or_b32 s%d, s%d, %d' % (sTm, sTm, ident))
        a('s_mov_b32 m0, s%d' % sTi)
        a('s_nop 0')
        a('v_writelane_b32 v%d, s%d, m0' % (vTr, sTm))
        a('s_add_u32 s%d, s%d, 1' % (sTi, sTi))

    def flag_min(self, tmp):
        a = self.a
        a('v_min3_u32 v%d, v%d, v%d, v%d' % (tmp, tmp, tmp + 1, tmp + 2))
        a('v_min_u32 v%d, v%d, v%d' % (tmp, tmp, tmp + 3))
        a('v_readfirstlane_b32 s%d, v%d' % (sT + 8, tmp))

    def wait_flag(self, off, tgt, tmp, code, add=0):
        a = self.a
        L, Ld = a.uid('Lwf'), a.uid('Lwfd')
        a.label(L)
        a('ds_read_b128 %s, v%d offset:%d' % (vr(tmp), vFlag, off))
        a('s_waitcnt lgkmcnt(0)')
        self.flag_min(tmp)
        a('s_nop 1')
        if add:
            a('s_add_u32 s%d, s%d, %d' % (sT + 8, sT + 8, add))
        a('s_cmp_ge_u32 s%d, s%d' % (sT + 8, tgt))
        a('s_cbranch_scc1 %s' % Ld)
        self.budget_check(code)
        a('s_branch %s' % L)
        a.label(Ld)

    def set_flag(self, off, val_sreg, tmpv, add=0):
        a = self.a
        a('s_lshl_b32 s%d, s%d, 2' % (sT + 8, sWv))
        a('v_add_u32 v%d, s%d, v%d' % (tmpv, sT + 8, vFlag))
        if add:
            a('s_add_u32 s%d, s%d, %d' % (sT + 8, val_sreg, add))
            a('v_mov_b32 v%d, s%d' % (tmpv + 1, sT + 8))
        else:
            a('v_mov_b32 v%d, s%d' % (tmpv + 1, val_sreg))
        a('ds_write_b32 v%d, v%d offset:%d' % (tmpv, tmpv + 1, off))

    def swz(self, dst, q, r, tmp):
        a = self.a
        a('v_and_b32 v%d, 1, v%d' % (tmp, q))
        a('v_lshlrev_b32 v%d, 1, v%d' % (tmp, tmp))
        a('v_lshrrev_b32 v%d, 1, v%d' % (dst, q))
        a('v_mul_u32_u24 v%d, 12, v%d' % (dst, dst))
        a('v_add_u32 v%d, v%d, v%d' % (tmp, tmp, dst))
        a('v_xor_b32 v%d, v%d, v%d' % (tmp, tmp, r))
        a('v_lshlrev_b32 v%d, 4, v%d' % (tmp, tmp))
        a('v_lshl_add_u32 v%d, v%d, 8, v%d' % (dst, q, tmp))

    def sentinel_vcc(self, regs, tmp):
        a = self.a
        regs = list(regs)
        a('v_max3_u32 v%d, v%d, v%d, v%d' % (tmp, regs[0], regs[1], regs[2]))
        i = 3
        while i + 1 < len(regs):
            a('v_max3_u32 v%d, v%d, v%d, v%d' % (tmp, tmp, regs[i], regs[i + 1]))
            i += 2
        if i < len(regs):
            a('v_max_u32 v%d, v%d, v%d' % (tmp, tmp, regs[i]))
        a('v_cmp_eq_u32 vcc, -1, v%d' % tmp)

    def poll_event(self, kind_expr, layer_add, tmp, code, all64=False, hook=None):
        a = self.a
        if all64:
            a('v_lshlrev_b32 v%d, 3, v%d' % (tmp + 2, vLane))
        else:
            a('v_and_b32 v%d, 15, v%d' % (tmp + 2, vLane))
            a('v_lshlrev_b32 v%d, 3, v%d' % (tmp + 2, tmp + 2))
        a('s_lshl_b32 s%d, s%d, 9' % (sT, sP))
        a('s_add_u32 s%d, s%d, s%d' % (sT, sT, sFlW))
        if all64:
            a('s_lshl_b32 s%d, s%d, 7' % (sT + 1, sWv))
            a('s_sub_u32 s%d, s%d, s%d' % (sT, sT, sT + 1))
        if kind_expr:
            a('s_add_u32 s%d, s%d, %d' % (sT, sT, kind_expr * 512))
        a('s_add_u32 s%d, s%d, s%d' % (sT + 1, sNon, sLayer))
        a('s_add_u32 s%d, s%d, %d' % (sT + 1, sT + 1, 1 + layer_add))
        L, Ld = a.uid('Lpoll'), a.uid('Lpolld')
        a.label(L)
        a('buffer_load_dwordx2 %s, v%d, %s, s%d offen sc1' % (vr(tmp, 2), tmp + 2, srd(sWS), sT))
        a('s_waitcnt vmcnt(0)')
        if hook:
            hook()
        a('v_subrev_u32 v%d, s%d, v%d' % (tmp, sT + 1, tmp))
        a('v_xor_b32 v%d, s%d, v%d' % (tmp + 1, sNon + 1, tmp + 1))
        a('v_lshrrev_b32 v%d, 3, v%d' % (tmp, tmp))
        a('v_or_b32 v%d, v%d, v%d' % (tmp, tmp, tmp + 1))
        a('v_cmp_ne_u32 vcc, 0, v%d' % tmp)
        a('s_nop 1')
        a('s_cmp_eq_u64 vcc, 0')
        a('s_cbranch_scc1 %s' % Ld)
        self.budget_check(code)
        a('s_branch %s' % L)
        a.label(Ld)

    def publish_event(self, kind, tmp, sc):
        a = self.a
        a('s_lshl_b32 s%d, s%d, 9' % (sT, sP))
        a('s_add_u32 s%d, s%d, s%d' % (sT, sT, sFlW))
        a('s_lshl_b32 s%d, s%d, 3' % (sT + 1, sHG))
        a('s_add_u32 s%d, s%d, s%d' % (sT, sT, sT + 1))
        if kind:
            a('s_add_u32 s%d, s%d, %d' % (sT, sT, kind * 512))
        a('s_add_u32 s%d, s%d, s%d' % (sT + 1, sNon, sLayer))
        a('s_add_u32 s%d, s%d, 1' % (sT + 1, sT + 1))
        a('v_mov_b32 v%d, s%d' % (tmp, sT + 1))
        a('v_mov_b32 v%d, s%d' % (tmp + 1, sNon + 1))
        a('v_mov_b32 v%d, 0' % (tmp + 2))
        a('s_mov_b64 exec, 1')
        a('s_waitcnt vmcnt(0)')
        a('buffer_store_dwordx2 %s, v%d, %s, s%d offen%s' % (vr(tmp, 2), tmp + 2, srd(sWS), sT, sc))
        a('s_mov_b64 exec, -1')

    def both_modes(self, fn):
        a = self.a
        L0, L1 = a.uid('Lslow'), a.uid('Lmend')
        a('s_cmp_eq_u32 s%d, 0' % sFast)
        a('s_cbranch_scc1 %s' % L0)
        fn('')
        a('s_branch %s' % L1)
        a.label(L0)
        fn(' sc1')
        a.label(L1)

    def store_nonce_flag(self, soff, tmp):
        a = self.a
        a('v_mov_b32 v%d, s%d' % (tmp, sNon))
        a('v_mov_b32 v%d, s%d' % (tmp + 1, sNon + 1))
        a('v_mov_b32 v%d, 0' % (tmp + 2))
        a('s_mov_b64 exec, 1')
        a('buffer_store_dwordx2 %s, v%d, %s, s%d offen sc1' % (vr(tmp, 2), tmp + 2, srd(sWS), soff))
        a('s_mov_b64 exec, -1')

    def poll_nonce_flags(self, soff, vaddr, tmp, code):
        a = self.a
        L, Ld = a.uid('Lpn'), a.uid('Lpnd')
        a.label(L)
        a('buffer_load_dwordx2 %s, v%d, %s, s%d offen sc1' % (vr(tmp, 2), vaddr, srd(sWS), soff))
        a('s_waitcnt vmcnt(0)')
        a('v_xor_b32 v%d, s%d, v%d' % (tmp, sNon, tmp))
        a('v_xor_b32 v%d, s%d, v%d' % (tmp + 1, sNon + 1, tmp + 1))
        a('v_or_b32 v%d, v%d, v%d' % (tmp, tmp, tmp + 1))
        a('v_cmp_ne_u32 vcc, 0, v%d' % tmp)
        a('s_nop 1')
        a('s_cmp_eq_u64 vcc, 0')
        a('s_cbranch_scc1 %s' % Ld)
        self.budget_check(code)
        a('s_sleep 2')
        a('s_branch %s' % L)
        a.label(Ld)

    def get_nonce(self, tmp):
        a = self.a
        L, Ld = a.uid('Lnon'), a.uid('Lnond')
        a('v_mov_b32 v%d, 0' % (tmp + 2))
        a.label(L)
        a('buffer_load_dwordx2 %s, v%d, %s, 0 offen sc1' % (vr(tmp, 2), tmp + 2, srd(sDBG)))
        a('s_waitcnt vmcnt(0)')
        a('v_readfirstlane_b32 s%d, v%d' % (sNon, tmp))
        a('v_readfirstlane_b32 s%d, v%d' % (sNon + 1, tmp + 1))
        a('s_nop 1')
        a('s_min_u32 s%d, s%d, s%d' % (sT + 8, sNon, sNon + 1))
        a('s_cmp_lg_u32 s%d, 0' % (sT + 8))
        a('s_cbranch_scc1 %s' % Ld)
        self.budget_check(7)
        a('s_sleep 2')
        a('s_branch %s' % L)
        a.label(Ld)

    def init_check(self, tmp):
        a = self.a
        L, Ld = a.uid('Lini'), a.uid('Linid')
        a('v_and_b32 v%d, 15, v%d' % (tmp + 4, vLane))
        a('v_lshlrev_b32 v%d, 4, v%d' % (tmp + 4, tmp + 4))
        a('v_add_u32 v%d, 256, v%d' % (tmp + 5, tmp + 4))
        a('v_and_b32 v%d, 16, v%d' % (tmp + 6, vLane))
        a('s_cmp_eq_u32 s%d, 0' % sTG)
        a('s_cselect_b32 s%d, 0, 16' % sT)
        a('v_and_b32 v%d, s%d, v%d' % (tmp + 6, sT, tmp + 6))
        a('v_cmp_eq_u32 s[%d:%d], 0, v%d' % (sT + 2, sT + 3, tmp + 6))
        a('v_cndmask_b32 v%d, v%d, v%d, s[%d:%d]' % (tmp + 4, tmp + 4, tmp + 5, sT + 2, sT + 3))
        a('s_lshl_b32 s%d, s%d, 8' % (sT, sTG))
        a('s_add_u32 s%d, s%d, %d' % (sT, sT, WS_INI - 256))
        a.label(L)
        a('buffer_load_dwordx4 %s, v%d, %s, s%d offen sc1' % (vr(tmp), tmp + 4, srd(sWS), sT))
        a('s_waitcnt vmcnt(0)')
        a('v_xor_b32 v%d, s%d, v%d' % (tmp, sNon, tmp))
        a('v_xor_b32 v%d, s%d, v%d' % (tmp + 1, sNon + 1, tmp + 1))
        a('v_xor_b32 v%d, s%d, v%d' % (tmp + 3, sNon, tmp + 3))
        a('v_or3_b32 v%d, v%d, v%d, v%d' % (tmp, tmp, tmp + 1, tmp + 3))
        a('v_cmp_ne_u32 vcc, 0, v%d' % tmp)
        a('s_nop 1')
        a('s_cmp_eq_u64 vcc, 0')
        a('s_cbranch_scc1 %s' % Ld)
        self.budget_check(8)
        a('s_sleep 2')
        a('s_branch %s' % L)
        a.label(Ld)
        a('v_cmp_ne_u32 vcc, s%d, v%d' % (sXcc, tmp + 2))
        a('s_nop 1')
        a('s_and_b64 vcc, vcc, s[%d:%d]' % (sT + 2, sT + 3))
        a('s_cmp_eq_u64 vcc, 0')
        a('s_cselect_b32 s%d, 1, 0' % sFast)
        if os.environ.get('FORCE_SLOW'):
            a('s_mov_b32 s%d, 0' % sFast)

    def prologue(self):
        a = self.a
        a('s_cmp_ge_u32 s2, 256')
        a('s_cbranch_scc1 L_END')
        a('s_load_dwordx16 s[4:19], s[0:1], 0')
        a('s_load_dwordx2 s[20:21], s[0:1], 64')
        a('v_and_b32 v%d, 63, v0' % vLane)
        a('v_lshrrev_b32 v1, 6, v0')
        a('v_readfirstlane_b32 s%d, v1' % sWave)
        a('s_getreg_b32 s%d, hwreg(HW_REG_XCC_ID)' % sXcc)
        a('s_and_b32 s%d, s%d, 15' % (sXcc, sXcc))
        a('s_and_b32 s%d, s%d, 3' % (sWv, sWave))
        a('s_lshr_b32 s%d, s%d, 2' % (sSet, sWave))
        a('s_and_b32 s%d, s2, 7' % sT)
        a('s_lshr_b32 s%d, s2, 3' % (sT + 1))
        a('s_and_b32 s%d, s%d, 15' % (sHG, sT + 1))
        a('s_lshr_b32 s%d, s%d, 4' % (sT + 1, sT + 1))
        a('s_lshl_b32 s%d, s%d, 1' % (sTG, sT))
        a('s_add_u32 s%d, s%d, s%d' % (sTG, sTG, sT + 1))
        a('s_mov_b32 s%d, 0x%x' % (sBud, 2000000))
        a('s_mov_b32 s%d, 0x05040100' % sSelLo)
        a('s_mov_b32 s%d, 0x07060302' % sSelHi)
        a('s_mov_b32 s%d, 0' % sLayer)
        a('s_mov_b32 s%d, 0' % sWoOk)
        a('s_mov_b32 s%d, 0' % sFast)
        a('v_mov_b32 v%d, 0x%x' % (vFlag, L_FLG))
        a('v_and_b32 v1, 3, v%d' % vLane)
        a('v_cmp_eq_u32 s[%d:%d], 1, v1' % (sM1, sM1 + 1))
        a('v_cmp_eq_u32 s[%d:%d], 2, v1' % (sM2, sM2 + 1))
        a('v_cmp_eq_u32 s[%d:%d], 3, v1' % (sM3, sM3 + 1))
        a('v_lshrrev_b32 v1, 4, v%d' % vLane)
        a('v_bfe_u32 v2, v%d, 2, 2' % vLane)
        a('v_cmp_eq_u32 s[%d:%d], v1, v2' % (sMD, sMD + 1))
        a('v_mov_b32 v1, 0')
        a('v_lshl_add_u32 v2, v%d, 2, v%d' % (vLane, vFlag))
        a('ds_write_b32 v2, v1')
        a('s_waitcnt lgkmcnt(0)')

        def mk(n, lo, hi, size):
            a('s_mov_b32 s%d, s%d' % (n, lo))
            a('s_and_b32 s%d, s%d, 0xffff' % (n + 1, hi))
            a('s_mov_b32 s%d, 0x%x' % (n + 2, size))
            a('s_mov_b32 s%d, 0x00020000' % (n + 3))
        mk(sIN, 4, 5, XBYTES)
        mk(sOUT, 16, 17, XBYTES)
        mk(sDBG, 18, 19, 256)
        mk(sWS2, 20, 21, WS_SIZE)
        a('s_add_u32 s20, s20, 0x%x' % WS_PAD)
        a('s_addc_u32 s21, s21, 0')
        mk(sWS, 20, 21, WS_SIZE)
        a('s_mov_b32 s%d, 0' % sTi)
        a('s_cmp_eq_u32 s%d, 0' % sSet)
        a('s_cbranch_scc0 L_SETB_SRD')
        mk(sWQ, 6, 7, 576 * 1728 * 2)
        mk(sWO, 14, 15, 576 * 576 * 2)
        a('s_branch L_SRD_DONE')
        a.label('L_SETB_SRD')
        mk(sWQ, 12, 13, 576 * 1728 * 2)
        mk(sWO, 8, 9, 576 * 576 * 2)
        a.label('L_SRD_DONE')
        a('s_mul_i32 s%d, s%d, %d' % (sMt, sWv, MT))
        a('s_mul_i32 s%d, s%d, %d' % (sTileW, sTG, 2 * TILE))
        a('s_mul_i32 s%d, s%d, %d' % (sT, sWv, MT))
        a('s_add_u32 s%d, s%d, s%d' % (sTileW, sTileW, sT))
        a('s_lshl_b32 s%d, s%d, 11' % (sFlW, sTG))
        a('s_lshl_b32 s%d, s%d, 7' % (sT, sWv))
        a('s_add_u32 s%d, s%d, s%d' % (sFlW, sFlW, sT))
        a('s_add_u32 s%d, s%d, %d' % (sFlW, sFlW, WS_FL))
        a('s_mov_b32 s%d, 0' % sOwn)
        a('s_mov_b32 s%d, 0' % sWoP)
        a('s_mov_b32 s%d, s%d' % (sCs, sSet))
        a('s_mul_i32 s%d, s%d, 48' % (sQu, sWv))
        a('s_add_u32 s%d, s%d, 0x%x' % (sQu, sQu, L_QKV))
        a('s_lshl_b32 s%d, s%d, 4' % (sQu + 1, sWv))
        a('s_add_u32 s%d, s%d, 0x%x' % (sQu + 1, sQu + 1, L_QKV + 192 - 48))
        a('s_lshl_b32 s%d, s%d, 6' % (sSt, sWv))
        a('s_add_u32 s%d, s%d, 0x%x' % (sSt, sSt, L_ST + 64 - 192))
        a('s_mov_b32 s%d, 0x%x' % (sSt + 1, L_ST - 192))
        a('s_and_b32 s%d, s%d, 1' % (sH, sTG))
        a('s_mov_b32 s%d, 0xeff8eff8' % sKm)
        a('s_mov_b32 s%d, 0xeff8eff8' % (sKm + 1))
        if os.environ.get('PRIO'):
            a('s_setprio %s' % os.environ['PRIO'])
        a('s_barrier')
        if self.debug:
            a('v_mov_b32 v%d, 0' % vTr)
        self.tr(1)

    def wload_addr(self, v1, v2, tmp):
        a = self.a
        i, q, oa, rr, t4, t5 = tmp, tmp + 1, tmp + 2, tmp + 3, tmp + 4, tmp + 5
        a('v_and_b32 v%d, 15, v%d' % (i, vLane))
        a('v_lshrrev_b32 v%d, 4, v%d' % (q, vLane))
        a('v_lshrrev_b32 v%d, 2, v%d' % (oa, i))
        a('v_and_b32 v%d, 3, v%d' % (rr, i))
        a('s_mul_i32 s%d, s%d, 3' % (sT, sWv))
        a('v_add_u32 v%d, s%d, v%d' % (t4, sT, oa))
        a('v_lshrrev_b32 v%d, 2, v%d' % (v1, t4))
        a('v_mul_u32_u24 v%d, 576, v%d' % (v1, v1))
        a('v_bfe_u32 v%d, v%d, 1, 1' % (t5, t4))
        a('v_mul_u32_u24 v%d, 18, v%d' % (t5, t5))
        a('v_add_u32 v%d, v%d, v%d' % (v1, v1, t5))
        a('v_and_b32 v%d, 1, v%d' % (t5, t4))
        a('v_lshl_add_u32 v%d, v%d, 3, v%d' % (v1, t5, v1))
        a('v_lshl_add_u32 v%d, v%d, 1, v%d' % (v1, rr, v1))
        a('s_mul_i32 s%d, s%d, 576' % (sT, sWv))
        a('s_add_u32 s%d, s%d, 16' % (sT, sT))
        a('v_mul_u32_u24 v%d, 18, v%d' % (t5, rr))
        a('v_add_u32 v%d, s%d, v%d' % (t5, sT, t5))
        a('v_cmp_eq_u32 vcc, 3, v%d' % oa)
        a('v_cndmask_b32 v%d, v%d, v%d, vcc' % (v1, v1, t5))
        a('s_mul_i32 s%d, s%d, 36' % (sT, sHG))
        a('v_add_u32 v%d, s%d, v%d' % (v1, sT, v1))
        a('v_lshlrev_b32 v%d, 1, v%d' % (v1, v1))
        a('s_cmp_eq_u32 s%d, 3' % sWv)
        a('s_cselect_b32 s%d, 12, 14' % sT)
        a('v_cmp_le_u32 vcc, s%d, v%d' % (sT, i))
        a('v_mov_b32 v%d, 0x%x' % (t5, OOB))
        a('v_cndmask_b32 v%d, v%d, v%d, vcc' % (v1, v1, t5))
        a('s_mov_b32 s%d, %d' % (sT, 72 * 3456))
        a('v_mul_lo_u32 v%d, v%d, s%d' % (t5, q, sT))
        a('v_add_u32 v%d, v%d, v%d' % (v2, v1, t5))
        a('v_mul_u32_u24 v%d, %d, v%d' % (t5, 8 * 3456, q))
        a('v_add_u32 v%d, v%d, v%d' % (v1, v1, t5))

    def wload_issue(self, ks_list, v1, v2):
        a = self.a
        if os.environ.get('NOW'):
            ks_list = list(ks_list)[:1]
        for ks in ks_list:
            for e in range(0, 8, 2):
                if ks < 16:
                    row, vo = 36 * ks + e, v1
                else:
                    row, vo = 288 * (ks - 16) + 36 * (e >> 2) + 32 + (e & 3), v2
                st = sT + (e >> 1) % 2
                a('s_mov_b32 s%d, %d' % (st, row * 3456))
                m = e >> 1
                a('buffer_load_dword v%d, v%d, %s, s%d offen' % (W(0, ks) + m, vo, srd(sWQ), st))
                a('buffer_load_dword v%d, v%d, %s, s%d offen offset:3456' % (W(1, ks) + m, vo, srd(sWQ), st))

    def wload_perm(self, ks_list, ones, tmp):
        a = self.a
        for ks in ks_list:
            for m in range(4):
                r0, r1 = W(0, ks) + m, W(1, ks) + m
                t = tmp + (m & 1)
                a('v_perm_b32 v%d, v%d, v%d, s%d' % (t, r1, r0, sSelLo))
                a('v_perm_b32 v%d, v%d, v%d, s%d' % (r1, r1, r0, sSelHi))
                a('v_or_b32 v%d, v%d, v%d' % (r0, ones, t))

    def pw_issue(self, v1, v2):
        a = self.a
        L1, L2 = a.uid('Lpi'), a.uid('Lpie')
        a('s_cmp_lg_u32 s%d, 0' % sH)
        a('s_cbranch_scc1 %s' % L1)
        self.wload_issue(range(0, 9), v1, v2)
        a('s_branch %s' % L2)
        a.label(L1)
        self.wload_issue(range(9, 18), v1, v2)
        a.label(L2)

    def pw_finish(self, v1, v2, tmp):
        a = self.a
        Ltop, L1, L2, Ldone, Lfb = a.uid('Lpt'), a.uid('Lp1'), a.uid('Lp2'), a.uid('Lpd'), a.uid('Lpfb')
        a('s_mov_b32 s%d, 0' % sPass)
        a.label(Ltop)
        self.ones_mask(tmp, tmp + 1)
        a('v_lshlrev_b32 v%d, 4, v%d' % (tmp + 4, vLane))
        a('s_lshl_b32 s%d, s2, 3' % (sT + 2))
        a('s_add_u32 s%d, s%d, s%d' % (sT + 2, sT + 2, sWave))
        a('s_mul_i32 s%d, s%d, 18432' % (sT + 3, sT + 2))
        a('s_add_u32 s%d, s%d, %d' % (sT + 3, sT + 3, WS_PIMG))
        a('s_waitcnt vmcnt(0)')
        a('s_cmp_lg_u32 s%d, 0' % sH)
        a('s_cbranch_scc1 %s' % L1)
        for h, lab in ((0, None), (1, L1)):
            if lab:
                a.label(lab)
            self.wload_perm(range(9 * h, 9 * h + 9), tmp, tmp + 2)
            a('s_cmp_lg_u32 s%d, 0' % sPass)
            a('s_cbranch_scc1 %s' % Ldone)
            for n in range(18):
                if n % 4 == 0 and n:
                    a('s_add_u32 s%d, s%d, 4096' % (sT + 3, sT + 3))
                a('buffer_store_dwordx4 %s, v%d, %s, s%d offen offset:%d' % (vr(vW + 72 * h + 4 * n), tmp + 4, srd(sWS), sT + 3, (n % 4) * 1024))
            if h == 0:
                a('s_branch %s' % L2)
        a.label(L2)
        a('s_lshl_b32 s%d, s%d, 4' % (sT + 3, sT + 2))
        a('s_add_u32 s%d, s%d, %d' % (sT + 3, sT + 3, WS_PFLG))
        a('v_mov_b32 v%d, s%d' % (tmp, sNon))
        a('v_mov_b32 v%d, s%d' % (tmp + 1, sNon + 1))
        a('v_mov_b32 v%d, s%d' % (tmp + 2, sXcc))
        a('v_mov_b32 v%d, s%d' % (tmp + 3, sNon))
        a('v_mov_b32 v%d, 0' % (tmp + 5))
        a('s_mov_b64 exec, 1')
        a('s_waitcnt vmcnt(0)')
        a('buffer_store_dwordx4 %s, v%d, %s, s%d offen' % (vr(tmp), tmp + 5, srd(sWS), sT + 3))
        a('s_mov_b64 exec, -1')
        a('s_xor_b32 s%d, s%d, 1024' % (sT + 2, sT + 2))
        a('s_lshl_b32 s%d, s%d, 4' % (sT + 3, sT + 2))
        a('s_add_u32 s%d, s%d, %d' % (sT + 3, sT + 3, WS_PFLG))
        a('s_mov_b32 s%d, %d' % (sT + 4, 1 if os.environ.get('FORCE_SLOW') else 200))
        Lp, Lg = a.uid('Lpp'), a.uid('Lpg')
        a.label(Lp)
        a('buffer_load_dwordx4 %s, v%d, %s, s%d offen sc1' % (vr(tmp), tmp + 5, srd(sWS), sT + 3))
        a('s_waitcnt vmcnt(0)')
        a('v_xor_b32 v%d, s%d, v%d' % (tmp, sNon, tmp))
        a('v_xor_b32 v%d, s%d, v%d' % (tmp + 1, sNon + 1, tmp + 1))
        a('v_xor_b32 v%d, s%d, v%d' % (tmp + 2, sXcc, tmp + 2))
        a('v_xor_b32 v%d, s%d, v%d' % (tmp + 3, sNon, tmp + 3))
        a('v_or3_b32 v%d, v%d, v%d, v%d' % (tmp, tmp, tmp + 1, tmp + 2))
        a('v_or_b32 v%d, v%d, v%d' % (tmp, tmp, tmp + 3))
        a('v_cmp_ne_u32 vcc, 0, v%d' % tmp)
        a('s_nop 1')
        a('s_cmp_eq_u64 vcc, 0')
        if not os.environ.get('FORCE_SLOW'):
            a('s_cbranch_scc1 %s' % Lg)
        a('s_sub_u32 s%d, s%d, 1' % (sT + 4, sT + 4))
        a('s_cmp_eq_u32 s%d, 0' % (sT + 4))
        a('s_cbranch_scc1 %s' % Lfb)
        a('s_sleep 1')
        a('s_branch %s' % Lp)
        a.label(Lfb)
        a('s_mov_b32 s%d, 1' % sPass)
        a('s_xor_b32 s%d, s%d, 1' % (sH, sH))
        self.pw_issue(v1, v2)
        a('s_branch %s' % Ltop)
        a.label(Lg)
        a('s_mul_i32 s%d, s%d, 18432' % (sT + 3, sT + 2))
        a('s_add_u32 s%d, s%d, %d' % (sT + 3, sT + 3, WS_PIMG))
        L3 = a.uid('Lp3')
        a('s_cmp_eq_u32 s%d, 0' % sH)
        a('s_cbranch_scc1 %s' % L3)
        for h, lab in ((0, None), (1, L3)):
            if lab:
                a.label(lab)
            for n in range(18):
                if n % 4 == 0 and n:
                    a('s_add_u32 s%d, s%d, 4096' % (sT + 3, sT + 3))
                a('buffer_load_dwordx4 %s, v%d, %s, s%d offen offset:%d sc1' % (vr(vW + 72 * h + 4 * n), tmp + 4, srd(sWS), sT + 3, (n % 4) * 1024))
            if h == 0:
                a('s_branch %s' % Ldone)
        a.label(Ldone)

    def ones_mask(self, dst, tmp):
        a = self.a
        a('v_and_b32 v%d, 15, v%d' % (tmp, vLane))
        a('v_cmp_eq_u32 vcc, 14, v%d' % tmp)
        a('v_mov_b32 v%d, 0x3f803f80' % tmp)
        a('v_cndmask_b32 v%d, 0, v%d, vcc' % (dst, tmp))

    def colsum(self, tmp):
        a = self.a
        for i in range(4):
            a('v_mov_b32 v%d, 0x3f803f80' % (tmp + i))
        for ks in range(18):
            for t in range(2):
                a(mfma(vCS + 4 * t, W(t, ks), tmp, ks == 0))

    def coop_issue(self, v1, v2):
        a = self.a
        a('s_mul_i32 s%d, s%d, %d' % (sT + 2, sTG, 36 * 3456))
        a('s_and_b32 s%d, s%d, 1' % (sT + 3, sTG))
        a('s_mul_i32 s%d, s%d, %d' % (sT + 3, sT + 3, 288 * 3456))
        for u in range(2):
            for e in range(0, 8, 2):
                row = e if u == 0 else 36 * (e >> 2) + 32 + (e & 3)
                st = sT + (e >> 1) % 2
                a('s_add_u32 s%d, s%d, %d' % (st, sT + 2 + u, row * 3456))
                m = e >> 1
                vo = v1 if u == 0 else v2
                a('buffer_load_dword v%d, v%d, %s, s%d offen' % (W(0, u) + m, vo, srd(sWQ), st))
                a('buffer_load_dword v%d, v%d, %s, s%d offen offset:3456' % (W(1, u) + m, vo, srd(sWQ), st))

    def coop_id(self, dst):
        a = self.a
        a('s_lshl_b32 s%d, s%d, 4' % (dst, sSet))
        a('s_add_u32 s%d, s%d, s%d' % (dst, dst, sHG))
        a('s_lshl_b32 s%d, s%d, 2' % (dst, dst))
        a('s_add_u32 s%d, s%d, s%d' % (dst, dst, sWv))

    def coop_store(self, tmp):
        a = self.a
        self.ones_mask(tmp, tmp + 1)
        self.wload_perm(range(2), tmp, tmp + 2)
        self.coop_id(sT + 2)
        a('s_mul_i32 s%d, s%d, %d' % (sT + 2, sT + 2, 36864))
        a('s_add_u32 s%d, s%d, %d' % (sT + 2, sT + 2, WS_CIMG))
        a('s_lshl_b32 s%d, s%d, 11' % (sT + 3, sTG))
        a('s_add_u32 s%d, s%d, s%d' % (sT + 3, sT + 3, sT + 2))
        a('v_lshlrev_b32 v%d, 4, v%d' % (tmp + 4, vLane))
        a('buffer_store_dwordx4 %s, v%d, %s, s%d offen sc1' % (vr(W(0, 0)), tmp + 4, srd(sWS), sT + 3))
        a('buffer_store_dwordx4 %s, v%d, %s, s%d offen offset:1024 sc1' % (vr(W(1, 0)), tmp + 4, srd(sWS), sT + 3))
        L = a.uid('Lcs')
        a('s_cmp_ge_u32 s%d, 2' % sTG)
        a('s_cbranch_scc1 %s' % L)
        a('s_add_u32 s%d, s%d, %d' % (sT + 3, sT + 3, 16 * 2048))
        a('buffer_store_dwordx4 %s, v%d, %s, s%d offen sc1' % (vr(W(0, 1)), tmp + 4, srd(sWS), sT + 3))
        a('buffer_store_dwordx4 %s, v%d, %s, s%d offen offset:1024 sc1' % (vr(W(1, 1)), tmp + 4, srd(sWS), sT + 3))
        a.label(L)

    def coop_flag(self, tmp):
        a = self.a
        self.coop_id(sT + 2)
        a('s_lshl_b32 s%d, s%d, 4' % (sT + 2, sT + 2))
        a('s_add_u32 s%d, s%d, s%d' % (sT + 2, sT + 2, sTG))
        a('s_lshl_b32 s%d, s%d, 3' % (sT + 2, sT + 2))
        a('s_add_u32 s%d, s%d, %d' % (sT + 2, sT + 2, WS_CFLG))
        self.store_nonce_flag(sT + 2, tmp)

    def coop_load(self, tmp):
        a = self.a
        self.coop_id(sT + 2)
        a('s_lshl_b32 s%d, s%d, 7' % (sT + 3, sT + 2))
        a('s_add_u32 s%d, s%d, %d' % (sT + 3, sT + 3, WS_CFLG))
        a('v_and_b32 v%d, 15, v%d' % (tmp + 2, vLane))
        a('v_lshlrev_b32 v%d, 3, v%d' % (tmp + 2, tmp + 2))
        self.poll_nonce_flags(sT + 3, tmp + 2, tmp, 15)
        a('s_mul_i32 s%d, s%d, %d' % (sT + 2, sT + 2, 36864))
        a('s_add_u32 s%d, s%d, %d' % (sT + 2, sT + 2, WS_CIMG))
        a('v_lshlrev_b32 v%d, 4, v%d' % (tmp + 2, vLane))
        for n in range(36):
            if n % 4 == 0 and n:
                a('s_add_u32 s%d, s%d, 4096' % (sT + 2, sT + 2))
            a('buffer_load_dwordx4 %s, v%d, %s, s%d offen offset:%d sc1' % (vr(vW + 4 * n), tmp + 2, srd(sWS), sT + 2, (n % 4) * 1024))

    def wou_issue(self, D, tmp):
        a = self.a
        i, q, t2, t3, vo, SEL = tmp, tmp + 1, tmp + 2, tmp + 3, tmp + 4, tmp + 5
        a('v_and_b32 v%d, 15, v%d' % (i, vLane))
        a('v_lshrrev_b32 v%d, 4, v%d' % (q, vLane))
        a('v_lshrrev_b32 v%d, 1, v%d' % (t2, q))
        a('v_mul_u32_u24 v%d, 18, v%d' % (t2, t2))
        a('v_and_b32 v%d, 1, v%d' % (t3, q))
        a('v_lshl_add_u32 v%d, v%d, 3, v%d' % (t2, t3, t2))
        a('v_mul_u32_u24 v%d, 72, v%d' % (t3, q))
        a('s_cmp_ge_u32 s%d, 2' % sWv)
        a('s_cselect_b64 vcc, -1, 0')
        a('v_cndmask_b32 v%d, v%d, v%d, vcc' % (t2, t2, t3))
        a('v_mul_u32_u24 v%d, 1152, v%d' % (vo, t2))
        a('v_lshlrev_b32 v%d, 2, v%d' % (t2, i))
        a('v_and_b32 v%d, 2, v%d' % (t3, i))
        a('v_lshlrev_b32 v%d, 1, v%d' % (t3, t3))
        a('v_add_u32 v%d, 64, v%d' % (t3, t3))
        a('s_and_b32 s%d, s%d, 1' % (sT, sWv))
        a('s_cmp_eq_u32 s%d, 1' % sT)
        a('s_cselect_b64 vcc, -1, 0')
        a('v_cndmask_b32 v%d, v%d, v%d, vcc' % (t2, t2, t3))
        a('s_mul_i32 s%d, s%d, 72' % (sT, sHG))
        a('v_add3_u32 v%d, v%d, v%d, s%d' % (vo, vo, t2, sT))
        a('v_and_b32 v%d, 1, v%d' % (t2, i))
        a('v_cmp_eq_u32 vcc, 1, v%d' % t2)
        a('v_mov_b32 v%d, s%d' % (t2, sSelLo))
        a('v_mov_b32 v%d, s%d' % (t3, sSelHi))
        a('v_cndmask_b32 v%d, v%d, v%d, vcc' % (SEL, t2, t3))
        a('s_mul_i32 s%d, s%d, %d' % (sT + 2, sTG, 36 * 1152))
        a('s_and_b32 s%d, s%d, 1' % (sT + 3, sTG))
        a('s_mul_i32 s%d, s%d, %d' % (sT + 3, sT + 3, 288 * 1152))
        a('s_cmp_ge_u32 s%d, 2' % sWv)
        for e in range(0, 8, 2):
            r0 = e * 1152
            r1 = (36 * (e >> 2) + 18 * ((e >> 1) & 1) + 16) * 1152
            a('s_cselect_b32 s%d, s%d, s%d' % (sT, sT + 3, sT + 2))
            a('s_cselect_b32 s%d, %d, %d' % (sT + 1, r1, r0)) if False else None
            a('s_mov_b32 s%d, %d' % (sT + 4, r0))
            a('s_mov_b32 s%d, %d' % (sT + 5, r1))
            a('s_cselect_b32 s%d, s%d, s%d' % (sT + 1, sT + 5, sT + 4))
            a('s_lshl_b32 s%d, s%d, 0' % (sT + 6, sT)) if False else None
            m = e >> 1
            a('s_add_u32 s%d, s%d, s%d' % (sT + 6 + (m & 1), sT, sT + 1))
            a('buffer_load_dword v%d, v%d, %s, s%d offen' % (D + m, vo, srd(sWO), sT + 6 + (m & 1)))
            a('buffer_load_dword v%d, v%d, %s, s%d offen offset:1152' % (D + 4 + m, vo, srd(sWO), sT + 6 + (m & 1)))
            a('s_cmp_ge_u32 s%d, 2' % sWv)

    def wou_ids(self):
        a = self.a
        a('s_lshl_b32 s%d, s%d, 4' % (sT + 2, sSet))
        a('s_add_u32 s%d, s%d, s%d' % (sT + 2, sT + 2, sHG))
        a('s_and_b32 s%d, s%d, 1' % (sT + 3, sTG))
        a('s_add_u32 s%d, s%d, 16' % (sT + 3, sT + 3))
        a('s_cmp_ge_u32 s%d, 2' % sWv)
        a('s_cselect_b32 s%d, s%d, s%d' % (sT + 3, sT + 3, sTG))

    def wou_store(self, D, tmp):
        a = self.a
        SEL = tmp + 5
        Lskip, Lk1 = a.uid('Lwus'), a.uid('Lwuk')
        a('s_lshr_b32 s%d, s%d, 1' % (sT, sWv))
        a('s_lshr_b32 s%d, s%d, 1' % (sT + 1, sTG))
        a('s_min_u32 s%d, s%d, s%d' % (sT, sT, sT + 1))
        a('s_cmp_lg_u32 s%d, 0' % sT)
        a('s_cbranch_scc1 %s' % Lskip)
        self.wou_ids()
        a('s_mul_i32 s%d, s%d, %d' % (sT + 2, sT + 2, WIS))
        a('s_mul_i32 s%d, s%d, 2304' % (sT + 3, sT + 3))
        a('s_add_u32 s%d, s%d, s%d' % (sT + 2, sT + 2, sT + 3))
        a('s_add_u32 s%d, s%d, %d' % (sT + 2, sT + 2, WS_WIMG))
        a('s_and_b32 s%d, s%d, 1' % (sT, sWv))
        a('s_cmp_eq_u32 s%d, 1' % sT)
        a('s_cbranch_scc1 %s' % Lk1)
        for m in range(4):
            r0, r1 = D + m, D + 4 + m
            t = tmp + (m & 1)
            a('v_perm_b32 v%d, v%d, v%d, s%d' % (t, r1, r0, sSelLo))
            a('v_perm_b32 v%d, v%d, v%d, s%d' % (r1, r1, r0, sSelHi))
            a('v_mov_b32 v%d, v%d' % (r0, t))
        a('v_lshlrev_b32 v%d, 4, v%d' % (tmp, vLane))
        a('buffer_store_dwordx4 %s, v%d, %s, s%d offen sc1' % (vr(D), tmp, srd(sWS), sT + 2))
        a('buffer_store_dwordx4 %s, v%d, %s, s%d offen offset:1024 sc1' % (vr(D + 4), tmp, srd(sWS), sT + 2))
        a('s_branch %s' % Lskip)
        a.label(Lk1)
        for m in range(4):
            a('v_perm_b32 v%d, v%d, v%d, v%d' % (D + m, D + 4 + m, D + m, SEL))
        a('v_and_b32 v%d, 15, v%d' % (tmp, vLane))
        a('v_cmp_gt_u32 vcc, 4, v%d' % tmp)
        a('v_lshlrev_b32 v%d, 4, v%d' % (tmp, tmp))
        a('v_lshrrev_b32 v%d, 4, v%d' % (tmp + 1, vLane))
        a('v_lshl_add_u32 v%d, v%d, 6, v%d' % (tmp, tmp + 1, tmp))
        a('s_mov_b64 exec, vcc')
        a('buffer_store_dwordx4 %s, v%d, %s, s%d offen offset:2048 sc1' % (vr(D), tmp, srd(sWS), sT + 2))
        a('s_mov_b64 exec, -1')
        a.label(Lskip)

    def wou_flag(self, tmp):
        a = self.a
        Lskip = a.uid('Lwuf')
        a('s_lshr_b32 s%d, s%d, 1' % (sT, sWv))
        a('s_lshr_b32 s%d, s%d, 1' % (sT + 1, sTG))
        a('s_min_u32 s%d, s%d, s%d' % (sT, sT, sT + 1))
        a('s_cmp_lg_u32 s%d, 0' % sT)
        a('s_cbranch_scc1 %s' % Lskip)
        self.wou_ids()
        a('s_lshl_b32 s%d, s%d, 9' % (sT + 2, sT + 2))
        a('s_and_b32 s%d, s%d, 1' % (sT, sWv))
        a('s_mul_i32 s%d, s%d, 18' % (sT, sT))
        a('s_add_u32 s%d, s%d, s%d' % (sT + 3, sT + 3, sT))
        a('s_lshl_b32 s%d, s%d, 3' % (sT + 3, sT + 3))
        a('s_add_u32 s%d, s%d, s%d' % (sT + 2, sT + 2, sT + 3))
        a('s_add_u32 s%d, s%d, %d' % (sT + 2, sT + 2, WS_WFLG))
        self.store_nonce_flag(sT + 2, tmp)
        a.label(Lskip)

    def wo_stage(self, async_=False):
        a = self.a
        TMP = 88
        Lok = a.uid('Lwook')
        a('s_lshl_b32 s%d, s%d, 4' % (sT + 2, sSet))
        a('s_add_u32 s%d, s%d, s%d' % (sT + 2, sT + 2, sHG))
        a('s_cmp_lg_u32 s%d, 0' % sWoOk)
        a('s_cbranch_scc1 %s' % Lok)
        a('s_lshl_b32 s%d, s%d, 9' % (sT + 3, sT + 2))
        a('s_add_u32 s%d, s%d, %d' % (sT + 3, sT + 3, WS_WFLG))
        a('v_min_u32 v%d, 35, v%d' % (TMP + 2, vLane))
        a('v_lshlrev_b32 v%d, 3, v%d' % (TMP + 2, TMP + 2))
        self.poll_nonce_flags(sT + 3, TMP + 2, TMP, 16)
        a('s_mov_b32 s%d, 1' % sWoOk)
        a.label(Lok)
        a('s_mul_i32 s%d, s%d, %d' % (sT + 2, sT + 2, WIS))
        a('s_mul_i32 s%d, s%d, 10240' % (sT + 3, sWv))
        a('s_add_u32 s%d, s%d, s%d' % (sT + 2, sT + 2, sT + 3))
        a('s_add_u32 s%d, s%d, %d' % (sBase, sT + 2, WS_WIMG))
        a('s_add_u32 s%d, s%d, %d' % (sBase2, sT + 3, L_WO))
        a('v_lshlrev_b32 v%d, 4, v%d' % (TMP + 4, vLane))
        self.wait_flag(F_WF, sLayer, TMP, 9)
        self.wait_flag(F_WG, sLayer, TMP, 14)
        for n in range(11):
            if n % 4 == 0:
                a('s_add_u32 s%d, s%d, %d' % (sT, sBase, n * 1024))
                a('s_add_u32 s%d, s%d, %d' % (sT + 1, sBase2, n * 1024))
                a('s_mov_b32 m0, s%d' % (sT + 1))
            if n == 10:
                a('s_mov_b32 exec_hi, 0')
            a('buffer_load_dwordx4 v%d, %s, s%d offen offset:%d sc1 lds' % (TMP + 4, srd(sWS), sT, (n % 4) * 1024))
        a('s_mov_b64 exec, -1')
        if not async_:
            a('s_waitcnt vmcnt(0)')
            self.set_flag(F_WR, sLayer, TMP, add=1)
        self.tr(30)

    ORDER = [3, 0, 1, 2]

    def kv_base(self, dst, layer_sreg_or_const, tg_add):
        a = self.a
        if isinstance(layer_sreg_or_const, str):
            a('s_lshl_b32 s%d, %s, 5' % (dst, layer_sreg_or_const))
        else:
            a('s_mov_b32 s%d, %d' % (dst, layer_sreg_or_const * 32))
        a('s_lshl_b32 s%d, s%d, 1' % (sT + 1, sTG))
        a('s_add_u32 s%d, s%d, s%d' % (dst, dst, sT + 1))
        a('s_add_u32 s%d, s%d, s%d' % (dst, dst, sP))
        a('s_lshl_b32 s%d, s%d, 4' % (dst, dst))
        a('s_add_u32 s%d, s%d, s%d' % (dst, dst, sHG))
        a('s_mul_i32 s%d, s%d, %d' % (dst, dst, KVT))
        a('s_add_u32 s%d, s%d, %d' % (dst, dst, WS_KV + tg_add * 32 * KVT))

    def kv_prefill(self, tmp):
        a = self.a
        a('v_lshlrev_b32 v%d, 4, v%d' % (tmp, vLane))
        a('s_mul_i32 s%d, s%d, 576' % (sT, sWv))
        a('v_add_u32 v%d, s%d, v%d' % (tmp, sT, tmp))
        for i in range(4):
            a('v_mov_b32 v%d, -1' % (tmp + 2 + i))
        a('s_mov_b32 s%d, 0' % sP)
        self.kv_base(sT + 2, 's%d' % sSet, 0)
        a('s_mov_b32 exec_lo, -1')
        a('s_mov_b32 exec_hi, 15')
        for l2 in range(2):
            for p_ in range(2):
                a('s_add_u32 s%d, s%d, %d' % (sT + 3, sT + 2, (l2 * 64 + p_) * 16 * KVT))
                a('buffer_store_dwordx4 %s, v%d, %s, s%d offen sc1' % (vr(tmp + 2), tmp, srd(sWS), sT + 3))
        a('s_mov_b64 exec, -1')

    def m_prep(self):
        a = self.a
        XA, TMP = 95, 40
        a('s_lshl_b32 s%d, s%d, 1' % (sN, sLayer))
        a('s_add_u32 s%d, s%d, s%d' % (sN, sN, sP))
        a('s_lshl_b32 s%d, s%d, 2' % (sG, sN))
        a('v_lshrrev_b32 v%d, 4, v%d' % (TMP, vLane))
        a('v_and_b32 v%d, 15, v%d' % (TMP + 1, vLane))
        self.swz(XA, TMP, TMP + 1, TMP + 2)
        a('v_add_u32 v%d, %d, v%d' % (XA + 1, 2 * MT, XA))
        a('v_lshlrev_b32 v%d, 3, v%d' % (TMP + 1, TMP + 1))
        a('v_lshl_add_u32 v%d, v%d, 8, v%d' % (XA + 2, TMP, TMP + 1))
        a('v_add_u32 v%d, 16384, v%d' % (XA + 2, XA + 2))

    def m_role(self):
        a = self.a
        a.label('L_M_ROLE')
        a('s_mov_b32 s%d, 0' % sP)
        a.label('L_M_TASK')
        self.m_prep()
        a.label('L_M_GO')
        Lown = a.uid('Lown')
        a('s_cmp_eq_u32 s%d, 0' % sOwn)
        a('s_cbranch_scc1 %s' % Lown)
        a('s_waitcnt vmcnt(15)')
        self.set_flag(F_XR, sG, 40, add=1)
        a.label(Lown)
        self.kv_base(sBase, 's%d' % sLayer, 0)
        a('s_sub_u32 s%d, s%d, %d' % (sBase2, sBase, 32 * KVT))
        a('s_add_u32 s%d, s%d, 1' % (sT + 7, sG))
        self.wait_flag(F_XR, sT + 7, 40, 1)
        self.tr(11)
        for w in range(1, 4):
            a('s_cmp_eq_u32 s%d, %d' % (sWv, w))
            a('s_cbranch_scc1 L_A_W%d' % w)
        for w in range(4):
            a.label('L_A_W%d' % w)
            self.a_phase(w)
            if w < 3:
                a('s_branch L_M_EPI')
        a.label('L_M_EPI')
        self.tr(12)
        a('s_waitcnt lgkmcnt(0)')
        self.set_flag(F_QR, sN, 99, add=1)
        self.attention()
        self.tr(15)
        a('s_add_u32 s%d, s%d, 1' % (sP, sP))
        a('s_cmp_lt_u32 s%d, 2' % sP)
        a('s_cbranch_scc1 L_M_TASK')
        a('s_mov_b32 s%d, 1' % sP)
        a('s_branch L_BPHASE')

    def a_phase(self, w):
        a = self.a
        ORDER = self.ORDER
        ACC = lambda s, t: (s * 2 + t) * 4
        G0, FL = 32, 36
        NB = 8
        RB = lambda i: 40 + 4 * (i % NB)
        QB, BPA, T3 = 72, 73, 74
        KD, KA = 76, 88
        XA = 95
        XT = 98
        LT = 99
        lds = []

        def L(tag, text):
            a(text)
            lds.append(tag)

        def wait_for(tag):
            idx = max(i for i, t in enumerate(lds) if t == tag)
            a('s_waitcnt lgkmcnt(%d)' % min(len(lds) - 1 - idx, 15))
        I = lambda text: (lambda: a(text))
        seq = [(u, ks) for u in range(4) for ks in range(18)]

        def rd(i):
            u, ks = seq[i]
            mt = ORDER[u]
            if ks < 16:
                L(('r', i), 'ds_read_b128 %s, v%d offset:%d' % (vr(RB(i)), XA + (mt >> 1), (mt & 1) * MT + ks * 1024))
            else:
                o = 128 * (ks - 16)
                L(('r', i), 'ds_read2_b64 %s, v%d offset0:%d offset1:%d' % (vr(RB(i)), XT, o, o + 16))
        PF = NB - 1
        chains = []

        def put(step, fns, deadline=10 ** 9):
            chains.append([step, deadline, list(fns)])

        def chk(off, tgt_fn, tag, code):
            def fin():
                Lok = a.uid('Lck')
                a('s_cmp_ge_u32 s%d, s%d' % (sT + 8, sT + 7))
                a.softbranch('s_cbranch_scc1 %s' % Lok)
                self.wait_flag(off, sT + 7, FL, code)
                a.label(Lok, noflush=True)
            return [lambda: L(tag, 'ds_read_b128 %s, v%d offset:%d' % (vr(FL), vFlag, off)),
                    I('s_nop 0'), I('s_nop 0'), I('s_nop 0'), tgt_fn,
                    lambda: (wait_for(tag), a('v_min3_u32 v%d, v%d, v%d, v%d' % (FL, FL, FL + 1, FL + 2))),
                    I('v_min_u32 v%d, v%d, v%d' % (FL, FL, FL + 3)),
                    I('s_nop 0'),
                    I('v_readfirstlane_b32 s%d, v%d' % (sT + 8, FL)),
                    I('s_nop 0'), fin]

        def setf_items(off, val, add, own_vm=None):
            def fin():
                if own_vm is None:
                    L('f', 'ds_write_b32 v%d, v%d offset:%d' % (vFlag, LT, off + 4 * w))
                else:
                    Lo = a.uid('Lop')
                    a('s_cmp_eq_u32 s%d, 0' % sOwn)
                    a.softbranch('s_cbranch_scc1 %s' % Lo)
                    a('s_waitcnt vmcnt(%d)' % own_vm)
                    a('ds_write_b32 v%d, v%d offset:%d' % (vFlag, LT, off + 4 * w))
                    a.label(Lo, noflush=True)
            return [I('s_add_u32 s%d, s%d, %d' % (sT + 6, val, add)),
                    I('v_mov_b32 v%d, s%d' % (LT, sT + 6)), fin]

        def epi_items(s):
            mt = ORDER[s]
            nm = T3
            it = [lambda: L(('m', s), 'ds_bpermute_b32 v%d, v%d, v%d' % (nm, BPA, ACC(s, 0) + 2))]
            G = G0
            if s == w:
                it += [I('v_cndmask_b32 v%d, v%d, v%d, s[%d:%d]' % (G, G, G + 1, sM1, sM1 + 1)),
                       I('v_cndmask_b32 v%d, v%d, v%d, s[%d:%d]' % (G, G, G + 2, sM2, sM2 + 1)),
                       I('v_cndmask_b32 v%d, v%d, v%d, s[%d:%d]' % (G, G, G + 3, sM3, sM3 + 1)),
                       I('v_mul_f32 v%d, 0x3ae38e39, v%d' % (G, G)),
                       I('v_add_u32 v%d, 0x%x, v%d' % (G + 2, L_ST + 64 * (mt + 1) - 192, BPA))]
            it.append(lambda: (wait_for(('m', s)), a('v_mul_f32 v%d, 0xbae38e39, v%d' % (nm, nm))))
            for t in range(2):
                for r in range(4):
                    it.append(I('v_fma_f32 v%d, v%d, v%d, v%d' % (ACC(s, t) + r, nm, vCS + 4 * t + r, ACC(s, t) + r)))
            for r in range(4):
                it.append(I('v_cvt_pk_bf16_f32 v%d, v%d, v%d' % (ACC(s, 0) + r, ACC(s, 0) + r, ACC(s, 1) + r)))
            if s == 0 and w > 0:
                def kvst():
                    a('s_mov_b32 exec_lo, 0xff00ff00')
                    a('s_mov_b32 exec_hi, 0xff00ff00')
                    a('buffer_store_dwordx4 %s, v%d, %s, s%d offen sc1' % (vr(ACC(0, 0)), KA, srd(sWS), sBase))
                    a('s_mov_b64 exec, -1')
                it.append(kvst)
            it.append(lambda: L('w', 'ds_write_b128 v%d, %s offset:%d' % (QB, vr(ACC(s, 0)), 16 * (mt + 1) * QP)))
            if s == w:
                def wr():
                    a('s_mov_b64 exec, s[%d:%d]' % (sMD, sMD + 1))
                    L('w', 'ds_write_b32 v%d, v%d' % (G + 2, G))
                    if w == 0:
                        a('s_mov_b32 exec_lo, 0')
                        a('buffer_store_dword v%d, v%d, %s, s%d offen offset:%d sc1' % (G, BPA, srd(sWS), sBase, 2048 - 192 - 32))
                    a('s_mov_b64 exec, -1')
                it += [I('v_fma_f32 v%d, -v%d, v%d, v%d' % (G, nm, nm, G)),
                       I('v_max_f32 v%d, 0, v%d' % (G, G)),
                       I('v_add_f32 v%d, 0x3727c5ac, v%d' % (G, G)),
                       I('v_rsq_f32 v%d, v%d' % (G, G)),
                       wr]
            return it
        pre = [I('v_and_b32 v%d, 15, v%d' % (T3, vLane)),
               I('v_add_u32 v%d, 48, v%d' % (BPA, T3)),
               I('v_lshlrev_b32 v%d, 2, v%d' % (BPA, BPA)),
               I('v_lshrrev_b32 v%d, 4, v%d' % (T3 + 1, vLane)),
               I('v_cmp_eq_u32 vcc, 3, v%d' % (T3 + 1)),
               I('v_lshlrev_b32 v%d, 4, v%d' % (QB, T3 + 1)),
               I('v_add_u32 v%d, %d, v%d' % (QB, 48 * w, QB)),
               I('v_mov_b32 v%d, %d' % (T3 + 1, 192 + 16 * w)),
               I('v_cndmask_b32 v%d, v%d, v%d, vcc' % (QB, QB, T3 + 1))]
        if w > 0:
            pre += [I('v_and_b32 v%d, 7, v%d' % (KA, vLane)),
                    I('v_lshl_add_u32 v%d, v%d, 8, v%d' % (KA, KA, QB))]
        pre += [I('v_mul_u32_u24 v%d, %d, v%d' % (T3, QP, T3)),
                I('v_add_u32 v%d, 0x%x, v%d' % (T3, L_QKV, T3)),
                I('v_add_u32 v%d, v%d, v%d' % (QB, QB, T3))]
        put(0, pre, 10)
        for k in range(1, 4):
            st = 18 * k - PF - 1
            put(6 * k - 5, setf_items(F_XR, sG, k + 1, own_vm=15 - 5 * k), 6 * k - 2)
            put(st - 7 if k > 1 else 5,
                chk(F_XR, I('s_add_u32 s%d, s%d, %d' % (sT + 7, sG, k + 1)), ('xr', k), 2), st)
        put(11, chk(F_QF, I('s_mov_b32 s%d, s%d' % (sT + 7, sN)), 'qf', 3), 17)
        for s_ in range(3):
            put(18 * (s_ + 1) + 3, epi_items(s_), 18 * (s_ + 2) + 2 if s_ < 2 else 71)
        if w == 0:
            def kvld():
                a('buffer_load_dwordx4 %s, v%d, %s, s%d offen sc1' % (vr(KD), KA, srd(sWS), sBase2))
                a('buffer_load_dwordx4 %s, v%d, %s, s%d offen offset:1024 sc1' % (vr(KD + 4), KA, srd(sWS), sBase2))
                a('buffer_load_dword v%d, v%d, %s, s%d offen offset:2048 sc1' % (KD + 8, KA + 1, srd(sWS), sBase2))

            def kvaddr2():
                a('s_cmp_eq_u32 s%d, 0' % sTG)
                a('s_cselect_b64 vcc, -1, 0')
                a('v_cndmask_b32 v%d, v%d, v%d, vcc' % (KA, KA, KA + 2))
                a('v_cndmask_b32 v%d, v%d, v%d, vcc' % (KA + 1, KA + 1, KA + 2))

            def kvchk():
                Lrt, Lok, Lnf = a.uid('Lkrt'), a.uid('Lkok'), a.uid('Lknf')
                a('s_cmp_lg_u32 s%d, 0' % sN)
                a.softbranch('s_cbranch_scc1 %s' % Lnf)
                self.init_check(40)
                a('s_branch %s' % Lrt)
                a.label(Lnf, noflush=True)
                a('s_and_b64 vcc, vcc, s[%d:%d]' % (sKm, sKm + 1))
                a.softbranch('s_cbranch_scc0 %s' % Lok)
                a.label(Lrt)
                self.budget_check(5)
                kvld()
                a('s_waitcnt vmcnt(0)')
                self.sentinel_vcc(range(KD, KD + 9), FL)
                a('s_nop 1')
                a('s_and_b64 vcc, vcc, s[%d:%d]' % (sKm, sKm + 1))
                a('s_cbranch_scc1 %s' % Lrt)
                a.label(Lok, noflush=True)
            kv = [I('v_lshlrev_b32 v%d, 4, v%d' % (KA, vLane)),
                  I('v_and_b32 v%d, 7, v%d' % (KA + 1, vLane)),
                  I('v_lshlrev_b32 v%d, 2, v%d' % (KA + 1, KA + 1)),
                  I('v_add_u32 v%d, 0x%x, v%d' % (KA + 3, L_ST + 32, KA + 1)),
                  I('v_mov_b32 v%d, 0x%x' % (KA + 2, OOB)),
                  kvaddr2]
            put(30, kv, 46)
            put(50, [kvld], 51)
            kv2 = [I('v_lshrrev_b32 v%d, 4, v%d' % (KA + 2, vLane)),
                   I('v_mul_u32_u24 v%d, %d, v%d' % (KA + 2, QP, KA + 2)),
                   I('v_and_b32 v%d, 15, v%d' % (KD + 9, vLane)),
                   I('v_lshl_add_u32 v%d, v%d, 4, v%d' % (KA + 2, KD + 9, KA + 2)),
                   I('v_add_u32 v%d, 0x%x, v%d' % (KA + 2, L_QKV + 8 * QP, KA + 2))]
            put(52, kv2, 62)
            kv3 = [I('s_waitcnt vmcnt(0)'),
                   I('v_max3_u32 v%d, v%d, v%d, v%d' % (FL, KD, KD + 1, KD + 2)),
                   I('v_max3_u32 v%d, v%d, v%d, v%d' % (FL, FL, KD + 3, KD + 4)),
                   I('v_max3_u32 v%d, v%d, v%d, v%d' % (FL, FL, KD + 5, KD + 6)),
                   I('v_max3_u32 v%d, v%d, v%d, v%d' % (FL, FL, KD + 7, KD + 8)),
                   I('v_cmp_eq_u32 vcc, -1, v%d' % FL),
                   I('s_nop 0'), I('s_nop 0')]
            put(64, kv3, 71)
            post = [kvchk,
                    lambda: L('w', 'ds_write_b128 v%d, %s' % (KA + 2, vr(KD))),
                    lambda: L('w', 'ds_write_b128 v%d, %s offset:%d' % (KA + 2, vr(KD + 4), 4 * QP)),
                    lambda: L('w', 'ds_write_b32 v%d, v%d' % (KA + 3, KD + 8))]
        else:
            def ini():
                Lnf = a.uid('Lknf')
                a('s_cmp_lg_u32 s%d, 0' % sN)
                a('s_cbranch_scc1 %s' % Lnf)
                self.init_check(40)
                a.label(Lnf)
            post = [ini]
        a('v_add_u32 v%d, %d, v%d' % (XT, ORDER[0] * MT, XA + 2))
        for i in range(PF):
            rd(i)
        done_upto = [-1]

        def need(i):
            idx = max(k for k, t in enumerate(lds) if t == ('r', i))
            if idx <= done_upto[0]:
                return
            tgt = ('r', i + 1) if ('r', i + 1) in lds else ('r', i)
            idx2 = max(k for k, t in enumerate(lds) if t == tgt)
            a('s_waitcnt lgkmcnt(%d)' % min(len(lds) - 1 - idx2, 15))
            done_upto[0] = idx2

        def fill(step, n):
            cnt = 0
            while True:
                cand = [c for c in chains if c[2] and c[0] <= step]
                if not cand:
                    return
                c = min(cand, key=lambda c: (c[1] - step) * 3 - len(c[2]))
                if cnt >= n and (c[1] - step) * 3 >= len(c[2]):
                    return
                c[2].pop(0)()
                cnt += 1
        for i in range(72):
            u, ks = seq[i]
            need(i)
            a(mfma(ACC(u, 0), W(0, ks), RB(i), ks == 0))
            fill(i, 2)
            if u == w:
                a(mfma(G0, RB(i), RB(i), ks == 0))
                fill(i, 2)
            a(mfma(ACC(u, 1), W(1, ks), RB(i), ks == 0))
            used = 0
            j = i + PF
            if j < 72:
                if seq[j][1] == 16 and seq[j][0] > 0:
                    a('v_add_u32 v%d, %d, v%d' % (XT, ORDER[seq[j][0]] * MT, XA + 2))
                    used += 1
                rd(j)
                used += 1
            nxt = 0
            if i + 1 < 72:
                idx = max(k for k, t in enumerate(lds) if t == ('r', i + 1))
                nxt = 1 if idx > done_upto[0] else 0
            fill(i, max(0, 2 - used - nxt))
        for c in chains:
            for fn in c[2]:
                fn()
        a('s_mov_b32 s%d, 0' % sOwn)
        for fn in setf_items(F_XF, sN, 1) + epi_items(3) + post:
            fn()

    def attention(self):
        a = self.a
        Q = 0
        K = 12
        RK = 60
        RO = 64
        S = 65
        AD = 70
        T = 76
        il, hh, j, R = 84, 85, 86, 87
        SA = 88
        a('v_lshrrev_b32 v%d, 2, v%d' % (il, vLane))
        a('v_bfe_u32 v%d, v%d, 1, 1' % (hh, vLane))
        a('v_and_b32 v%d, 1, v%d' % (j, vLane))
        a('s_lshl_b32 s%d, s%d, 4' % (sT, sWv))
        a('s_add_u32 s%d, s%d, 16' % (sT, sT))
        a('v_add_u32 v%d, s%d, v%d' % (R, sT, il))
        a('v_mul_u32_u24 v%d, %d, v%d' % (T, QP, R))
        a('v_add_u32 v%d, 0x%x, v%d' % (T, L_QKV, T))
        a('v_lshl_add_u32 v%d, v%d, 5, v%d' % (AD, hh, T))
        a('v_lshl_add_u32 v%d, v%d, 2, v%d' % (AD + 1, hh, T))
        a('v_mul_u32_u24 v%d, %d, v%d' % (T + 1, 4 * QP, j))
        a('v_add_u32 v%d, %d, v%d' % (T + 1, 3 * QP, T + 1))
        a('v_sub_u32 v%d, v%d, v%d' % (AD + 2, AD, T + 1))
        a('v_sub_u32 v%d, v%d, v%d' % (AD + 3, AD + 1, T + 1))
        a('v_lshlrev_b32 v%d, 2, v%d' % (T + 2, R))
        a('v_add_u32 v%d, 0x%x, v%d' % (T + 2, L_ST, T + 2))
        a('v_lshlrev_b32 v%d, 4, v%d' % (T + 3, j))
        a('v_add_u32 v%d, 12, v%d' % (T + 3, T + 3))
        a('v_sub_u32 v%d, v%d, v%d' % (T + 3, T + 2, T + 3))
        a('v_lshl_add_u32 v%d, v%d, 4, v%d' % (AD + 4, j, AD))
        a('v_subrev_u32 v%d, %d, v%d' % (AD + 4, 7 * QP, AD + 4))
        a('v_subrev_u32 v%d, %d, v%d' % (AD + 5, 7 * QP, AD + 1))
        a('v_lshl_add_u32 v%d, v%d, 1, v%d' % (T + 4, hh, j))
        a('v_lshlrev_b32 v%d, 8, v%d' % (T + 4, T + 4))
        a('v_lshl_add_u32 v%d, v%d, 4, v%d' % (SA, il, T + 4))
        a('s_lshl_b32 s%d, s%d, 10' % (sT, sHG))
        a('v_add_u32 v%d, s%d, v%d' % (SA, sT, SA))
        a('s_lshl_b32 s%d, s%d, 7' % (sT, sHG))
        a('s_add_u32 s%d, s%d, 16384' % (sT, sT))
        a('v_lshlrev_b32 v%d, 3, v%d' % (T + 4, il))
        a('v_lshl_add_u32 v%d, v%d, 2, v%d' % (T + 4, hh, T + 4))
        a('v_add_u32 v%d, s%d, v%d' % (SA + 1, sT, T + 4))
        a('s_mul_i32 s%d, s%d, %d' % (sBase, sLayer, LSTR))
        a('s_mul_i32 s%d, s%d, %d' % (sT, sP, TILE))
        a('s_add_u32 s%d, s%d, s%d' % (sBase, sBase, sT))
        a('s_add_u32 s%d, s%d, s%d' % (sBase, sBase, sTileW))
        a('s_add_u32 s%d, s%d, 1' % (sT + 7, sN))
        self.wait_flag(F_QR, sT + 7, 92, 4)
        self.tr(14)
        a('ds_read_b128 %s, v%d' % (vr(Q), AD))
        a('ds_read_b128 %s, v%d offset:16' % (vr(Q + 4), AD))
        a('ds_read_b32 v%d, v%d offset:192' % (Q + 8, AD + 1))
        for w in range(4):
            o = (3 - w) * QP
            a('ds_read_b128 %s, v%d offset:%d' % (vr(K + 12 * w), AD + 2, o + 64))
        for w in range(4):
            o = (3 - w) * QP
            a('ds_read_b128 %s, v%d offset:%d' % (vr(K + 12 * w + 4), AD + 2, o + 80))
        for w in range(4):
            o = (3 - w) * QP
            a('ds_read_b32 v%d, v%d offset:%d' % (K + 12 * w + 8, AD + 3, o + 208))
        a('ds_read_b32 v%d, v%d' % (RO, T + 2))
        a('ds_read2_b32 %s, v%d offset0:0 offset1:1' % (vr(RK, 2), T + 3))
        a('ds_read2_b32 %s, v%d offset0:2 offset1:3' % (vr(RK + 2, 2), T + 3))
        a('s_waitcnt lgkmcnt(11)')
        for d in range(9):
            if d == 4:
                a('s_waitcnt lgkmcnt(7)')
            if d == 8:
                a('s_waitcnt lgkmcnt(3)')
            for w in range(4):
                c = '0' if d == 0 else 'v%d' % (S + w)
                a('v_dot2_f32_bf16 v%d, v%d, v%d, %s' % (S + w, Q + d, K + 12 * w + d, c))
        a('s_waitcnt lgkmcnt(0)')
        V = 12
        for w in range(8):
            o = (7 - w) * QP
            a('ds_read_b128 %s, v%d offset:%d' % (vr(V + 6 * w), AD + 4, o + 128))
            a('ds_read_b32 v%d, v%d offset:%d' % (V + 6 * w + 4, AD + 5, o + 224))
        c = struct.unpack('<I', struct.pack('<f', (18 ** -0.5) * 1.4426950408889634))[0]
        a('v_mul_f32 v%d, 0x%x, v%d' % (RO, c, RO))
        for w in range(4):
            a('v_mul_f32 v%d, v%d, v%d' % (S + w, S + w, RK + 3 - w))
        for w in range(4):
            a('v_mul_f32 v%d, v%d, v%d' % (S + w, S + w, RO))
        Lnm = a.uid('Lnomask')
        a('s_or_b32 s%d, s%d, s%d' % (sT, sTG, sWv))
        a('s_cmp_lg_u32 s%d, 0' % sT)
        a('s_cbranch_scc1 %s' % Lnm)
        a('v_lshlrev_b32 v%d, 2, v%d' % (T, j))
        a('v_mov_b32 v%d, 0xf149f2ca' % (T + 2))
        for w in range(4):
            a('v_add_u32 v%d, %d, v%d' % (T + 1, w, T))
            a('v_cmp_lt_u32 vcc, v%d, v%d' % (il, T + 1))
            a('v_cndmask_b32 v%d, v%d, v%d, vcc' % (S + w, S + w, T + 2))
        a.label(Lnm)
        a('v_max3_f32 v%d, v%d, v%d, v%d' % (T, S, S + 1, S + 2))
        a('v_max_f32 v%d, v%d, v%d' % (T, T, S + 3))
        a('v_cmp_eq_u32 vcc, 1, v%d' % j)
        a('v_max_f32_dpp v%d, v%d, v%d quad_perm:[1,0,3,2] row_mask:0xf bank_mask:0xf' % (T + 1, T, T))
        for w in range(4):
            a('v_sub_f32 v%d, v%d, v%d' % (S + w, S + w, T + 1))
        for w in range(4):
            a('v_exp_f32 v%d, v%d' % (S + w, S + w))
        a('v_add_f32 v%d, v%d, v%d' % (T, S, S + 1))
        a('v_add_f32 v%d, v%d, v%d' % (T + 1, S + 2, S + 3))
        a('v_add_f32 v%d, v%d, v%d' % (T, T, T + 1))
        for w in range(4):
            a('v_mul_f32 v%d, v%d, v%d' % (S + w, S + w, RK + 3 - w))
        a('v_add_f32_dpp v%d, v%d, v%d quad_perm:[1,0,3,2] row_mask:0xf bank_mask:0xf' % (T + 1, T, T))
        a('v_rcp_f32 v%d, v%d' % (T + 1, T + 1))
        for w in range(4):
            a('v_mul_f32 v%d, v%d, v%d' % (S + w, S + w, T + 1))
        a('v_cvt_pk_bf16_f32 v%d, v%d, v%d' % (T, S, S + 1))
        a('v_cvt_pk_bf16_f32 v%d, v%d, v%d' % (T + 1, S + 2, S + 3))
        a('v_mov_b32_dpp v%d, v%d quad_perm:[1,0,3,2] row_mask:0xf bank_mask:0xf' % (T + 2, T))
        a('v_mov_b32_dpp v%d, v%d quad_perm:[1,0,3,2] row_mask:0xf bank_mask:0xf' % (T + 3, T + 1))
        PP = 60
        a('v_cndmask_b32 v%d, v%d, v%d, vcc' % (PP, T, T + 2))
        a('v_cndmask_b32 v%d, v%d, v%d, vcc' % (PP + 1, T + 1, T + 3))
        a('v_cndmask_b32 v%d, v%d, v%d, vcc' % (PP + 2, T + 2, T))
        a('v_cndmask_b32 v%d, v%d, v%d, vcc' % (PP + 3, T + 3, T + 1))
        PL = 64
        for pr in range(4):
            a('v_and_b32 v%d, 0xffff, v%d' % (PL + 4 * pr, PP + pr))
            a('v_lshlrev_b32 v%d, 16, v%d' % (PL + 4 * pr + 1, PP + pr))
            a('v_lshrrev_b32 v%d, 16, v%d' % (PL + 4 * pr + 2, PP + pr))
            a('v_and_b32 v%d, 0xffff0000, v%d' % (PL + 4 * pr + 3, PP + pr))
        O = 0
        for w in range(8):
            a('s_waitcnt lgkmcnt(%d)' % (2 * (7 - w)))
            for m in range(5):
                for h in range(2):
                    c = '0' if w == 0 else 'v%d' % (O + 2 * m + h)
                    a('v_dot2_f32_bf16 v%d, v%d, v%d, %s' % (O + 2 * m + h, V + 6 * w + m, PL + 2 * w + h, c))
        for m in range(5):
            a('v_cvt_pk_bf16_f32 v%d, v%d, v%d' % (12 + m, O + 2 * m, O + 2 * m + 1))
        a('s_mov_b32 s%d, 0x55555555' % (sT + 2))
        a('s_mov_b32 s%d, 0x55555555' % (sT + 3))

        def st(sc):
            a('buffer_store_dwordx4 %s, v%d, %s, s%d offen%s' % (vr(12), SA, srd(sWS), sBase, sc))
            a('s_mov_b64 exec, s[%d:%d]' % (sT + 2, sT + 3))
            a('buffer_store_dword v16, v%d, %s, s%d offen%s' % (SA + 1, srd(sWS), sBase, sc))
            a('s_mov_b64 exec, -1')
            self.set_flag(F_QF, sN, 20, add=1)
            self.publish_event(0, 24, sc)
        self.both_modes(st)

    def stage_generic(self):
        a = self.a
        TMP = 88
        AV = 84
        Lc = a.uid('Lnocs')
        a('s_cmp_eq_u32 s%d, 0' % sCs)
        a('s_cbranch_scc1 %s' % Lc)
        a('s_waitcnt vmcnt(0)')
        self.colsum(8)
        a('s_mov_b32 s%d, 0' % sCs)
        a.label(Lc)
        self.m_prep()
        a('v_lshlrev_b32 v%d, 4, v%d' % (AV, vLane))
        a('s_sub_u32 s%d, s%d, 1' % (sT, sLayer))
        a('s_mul_i32 s%d, s%d, %d' % (sT, sT, LSTR))
        a('s_add_u32 s%d, s%d, %d' % (sT, sT, WS_X))
        a('s_mul_i32 s%d, s%d, %d' % (sT + 1, sP, TILE))
        a('s_add_u32 s%d, s%d, s%d' % (sT, sT, sT + 1))
        a('s_add_u32 s%d, s%d, s%d' % (sBase, sT, sTileW))
        a('s_sub_u32 s%d, s%d, s%d' % (sBase, sBase, sMt))
        a('s_mul_i32 s%d, s%d, 4608' % (sBase2, sWv))
        a('s_add_u32 s%d, s%d, s%d' % (sBase, sBase, sBase2))
        self.wait_flag(F_XF, sN, TMP, 6)
        self.tr(20)
        a('v_lshlrev_b32 v%d, 3, v%d' % (TMP + 2, vLane))
        a('s_lshl_b32 s%d, s%d, 9' % (sT + 2, sP))
        a('s_add_u32 s%d, s%d, s%d' % (sT + 2, sT + 2, sFlW))
        a('s_lshl_b32 s%d, s%d, 7' % (sT + 3, sWv))
        a('s_sub_u32 s%d, s%d, s%d' % (sT + 2, sT + 2, sT + 3))
        a('s_add_u32 s%d, s%d, 1024' % (sT + 2, sT + 2))
        a('s_add_u32 s%d, s%d, s%d' % (sT + 3, sNon, sLayer))
        a('s_mov_b64 vcc, -1')
        for k, mt in enumerate(self.ORDER):
            Lp, Lg = a.uid('Lsp'), a.uid('Lsg')
            half = 'vcc_lo' if mt < 2 else 'vcc_hi'
            msk = 0xffff << (16 * (mt & 1))
            a.label(Lp)
            a('s_and_b32 s%d, %s, 0x%x' % (sT, half, msk))
            a('s_cbranch_scc0 %s' % Lg)
            a('buffer_load_dwordx2 %s, v%d, %s, s%d offen sc1' % (vr(TMP, 2), TMP + 2, srd(sWS), sT + 2))
            self.budget_check(12)
            a('s_waitcnt vmcnt(0)')
            a('v_subrev_u32 v%d, s%d, v%d' % (TMP, sT + 3, TMP))
            a('v_xor_b32 v%d, s%d, v%d' % (TMP + 1, sNon + 1, TMP + 1))
            a('v_lshrrev_b32 v%d, 3, v%d' % (TMP, TMP))
            a('v_or_b32 v%d, v%d, v%d' % (TMP, TMP, TMP + 1))
            a('v_cmp_ne_u32 vcc, 0, v%d' % TMP)
            a('s_branch %s' % Lp)
            a.label(Lg)
            if k == 0:
                self.tr(25)
            a('s_add_u32 s%d, s%d, %d' % (sT, sBase, mt * MT))
            a('s_add_u32 s%d, s%d, %d' % (sT + 1, sBase2, mt * MT))
            a('s_mov_b32 m0, s%d' % (sT + 1))
            for k2 in range(4):
                a('buffer_load_dwordx4 v%d, %s, s%d offen offset:%d sc1 lds' % (AV, srd(sWS), sT, k2 * 1024))
            a('s_add_u32 s%d, s%d, 4096' % (sT, sT))
            a('s_add_u32 s%d, s%d, 4096' % (sT + 1, sT + 1))
            a('s_mov_b32 m0, s%d' % (sT + 1))
            a('s_mov_b32 exec_hi, 0')
            a('buffer_load_dwordx4 v%d, %s, s%d offen sc1 lds' % (AV, srd(sWS), sT))
            a('s_mov_b32 exec_hi, -1')
        a('s_mov_b32 s%d, 1' % sOwn)
        a('s_cmp_eq_u32 s%d, 0' % sP)
        a('s_cbranch_scc1 L_M_GO')
        a('s_mov_b32 s%d, 0' % sOwn)
        a('s_waitcnt vmcnt(10)')
        self.set_flag(F_XR, sG, TMP, add=2)
        self.wo_stage(async_=True)
        a('s_waitcnt vmcnt(11)')
        self.set_flag(F_XR, sG, TMP, add=4)
        a('s_mov_b32 s%d, 1' % sWoP)
        self.tr(24)

    def stage_input_issue(self):
        a = self.a
        AV, LV, AT, LT_ = 84, 85, 86, 87
        TMP = 88
        a('s_mov_b32 s%d, s%d' % (sN, sP))
        a('s_lshl_b32 s%d, s%d, 2' % (sG, sN))
        a('v_lshrrev_b32 v%d, 2, v%d' % (TMP + 1, vLane))
        a('v_and_b32 v%d, 3, v%d' % (TMP, vLane))
        self.swz(LV, TMP, TMP + 1, TMP + 2)
        a('v_add_u32 v%d, s%d, v%d' % (LV, sMt, LV))
        a('s_lshl_b32 s%d, s%d, 7' % (sT, sTG))
        a('s_add_u32 s%d, s%d, s%d' % (sT, sT, sP))
        a('s_lshl_b32 s%d, s%d, 5' % (sT + 1, sWv))
        a('s_add_u32 s%d, s%d, s%d' % (sT + 1, sT + 1, sT))
        a('s_mul_i32 s%d, s%d, 1152' % (sT + 1, sT + 1))
        a('v_mul_u32_u24 v%d, 2304, v%d' % (TMP + 2, TMP + 1))
        a('v_add_u32 v%d, s%d, v%d' % (TMP + 2, sT + 1, TMP + 2))
        a('v_lshl_add_u32 v%d, v%d, 4, v%d' % (AV, TMP, TMP + 2))
        a('v_mul_u32_u24 v%d, 72, v%d' % (AT, TMP))
        a('v_add_u32 v%d, v%d, v%d' % (AT, AT, TMP + 2))
        a('v_lshlrev_b32 v%d, 7, v%d' % (LT_, TMP))
        a('v_lshl_add_u32 v%d, v%d, 3, v%d' % (LT_, TMP + 1, LT_))
        a('v_add_u32 v%d, s%d, v%d' % (LT_, sMt, LT_))
        for ks in range(16):
            a('buffer_load_dwordx4 %s, v%d, %s, 0 offen offset:%d' % (vr(4 * ks), AV, srd(sIN), 72 * ks))
        for c in range(4):
            a('buffer_load_dwordx2 %s, v%d, %s, 0 offen offset:%d' % (vr(64 + 2 * c, 2), AT, srd(sIN), 288 * c + 64))

    def stage_input_finish(self, extra_after=0, last_extra=0):
        a = self.a
        AV, LV, AT, LT_ = 84, 85, 86, 87
        TMP = 88
        self.wait_flag(F_XF, sN, TMP, 6)
        rem = [14, 8, 0]
        for seg in range(3):
            a('s_waitcnt vmcnt(%d)' % (rem[seg] + (extra_after if seg < 2 else last_extra)))
            if seg == 0:
                self.tr(21)
            for ks in range(6 * seg, min(6 * seg + 6, 16)):
                a('ds_write_b128 v%d, %s offset:%d' % (LV, vr(4 * ks), ks * 1024))
            if seg == 2:
                for c in range(4):
                    a('ds_write_b64 v%d, %s offset:%d' % (LT_, vr(64 + 2 * c, 2), 16384 + 512 * c))
        a('s_waitcnt lgkmcnt(0)')
        self.set_flag(F_XR, sG, TMP, add=4)
        self.tr(24)

    def hb_addr(self, d, tmp):
        a = self.a
        a('v_and_b32 v%d, 7, v%d' % (tmp, vLane))
        a('v_lshrrev_b32 v%d, 4, v%d' % (tmp + 1, vLane))
        a('v_lshlrev_b32 v%d, 4, v%d' % (d, tmp))
        a('v_lshl_add_u32 v%d, v%d, 7, v%d' % (d, tmp + 1, d))
        a('s_lshl_b32 s%d, s%d, 9' % (sT, sHG))
        a('v_add_u32 v%d, s%d, v%d' % (d, sT, d))
        a('s_lshl_b32 s%d, s%d, 6' % (sT, sHG))
        a('s_add_u32 s%d, s%d, 8192' % (sT, sT))
        a('v_lshlrev_b32 v%d, 3, v%d' % (d + 1, tmp))
        a('v_add_u32 v%d, s%d, v%d' % (d + 1, sT, d + 1))

    def hb_store(self, d, data, soff):
        a = self.a
        a('s_mov_b32 s%d, 0xff00ff00' % (sT + 4))
        a('s_mov_b32 s%d, 0xff00ff00' % (sT + 5))
        a('s_mov_b64 exec, s[%d:%d]' % (sT + 4, sT + 5))
        a('buffer_store_dwordx4 %s, v%d, %s, s%d offen sc1' % (vr(data), d, srd(sWS), soff))
        a('s_mov_b64 exec, 0xff00')
        a('buffer_store_dwordx2 %s, v%d, %s, s%d offen sc1' % (vr(data + 4, 2), d + 1, srd(sWS), soff))
        a('s_mov_b64 exec, -1')

    def hb_base(self, dst, layer_add):
        a = self.a
        a('s_add_u32 s%d, s%d, %d' % (dst, sLayer, layer_add))
        a('s_lshl_b32 s%d, s%d, 5' % (dst, dst))
        a('s_lshl_b32 s%d, s%d, 1' % (sT + 1, sTG))
        a('s_add_u32 s%d, s%d, s%d' % (dst, dst, sT + 1))
        a('s_add_u32 s%d, s%d, s%d' % (dst, dst, sP))
        a('s_mul_i32 s%d, s%d, %d' % (dst, dst, HBT))
        a('s_add_u32 s%d, s%d, %d' % (dst, dst, WS_HB))

    def bphase(self):
        a = self.a
        NS = 12
        ACC = 48
        WB = [60, 72, 84]
        LA, LB, VT, TMP1 = 96, 97, 98, 99
        slot = lambda ks: 4 * (ks % NS)
        a('s_mul_i32 s%d, s%d, %d' % (sBase, sLayer, LSTR))
        a('s_mul_i32 s%d, s%d, %d' % (sT, sP, TILE))
        a('s_add_u32 s%d, s%d, s%d' % (sBase, sBase, sT))
        a('s_add_u32 s%d, s%d, s%d' % (sBase, sBase, sTileW))
        a('v_lshlrev_b32 v%d, 4, v%d' % (LA, vLane))
        a('v_add_u32 v%d, 0x%x, v%d' % (LA, L_WO, LA))
        a('v_and_b32 v%d, 3, v%d' % (LB, vLane))
        a('v_lshlrev_b32 v%d, 4, v%d' % (LB, LB))
        a('v_lshrrev_b32 v%d, 4, v%d' % (TMP1, vLane))
        a('v_lshl_add_u32 v%d, v%d, 6, v%d' % (LB, TMP1, LB))
        a('v_add_u32 v%d, 0x%x, v%d' % (LB, L_WO + 2048, LB))
        a('v_and_b32 v%d, 15, v%d' % (VT, vLane))
        a('v_lshlrev_b32 v%d, 3, v%d' % (VT, VT))
        a('v_lshl_add_u32 v%d, v%d, 8, v%d' % (VT, TMP1, VT))

        def wreads(ks):
            b = WB[ks % 3]
            a('ds_read_b128 %s, v%d offset:%d' % (vr(b), LA, ks * 2304))
            a('ds_read_b128 %s, v%d offset:%d' % (vr(b + 4), LA, ks * 2304 + 1024))
            a('ds_read_b128 %s, v%d offset:%d' % (vr(b + 8), LB, ks * 2304))
        def wread1(ks, t):
            b = WB[ks % 3]
            if t < 2:
                a('ds_read_b128 %s, v%d offset:%d' % (vr(b + 4 * t), LA, ks * 2304 + 1024 * t))
            else:
                a('ds_read_b128 %s, v%d offset:%d' % (vr(b + 8), LB, ks * 2304))
        self.tr(40)
        def hook():
            Lwp = a.uid('Lwop')
            a('s_cmp_eq_u32 s%d, 0' % sWoP)
            a('s_cbranch_scc1 %s' % Lwp)
            self.set_flag(F_WR, sLayer, WB[0], add=1)
            a('s_mov_b32 s%d, 0' % sWoP)
            a.label(Lwp)
        self.poll_event(0, 0, ACC, 13, hook=hook)
        self.tr(44)
        issued = []

        def oload(ks):
            if ks < 16:
                if ks % 4 == 0:
                    a('s_add_u32 s%d, s%d, %d' % (sT + 2, sBase, WS_PAD + ks * 1024 - L_WO))
                a('buffer_load_dwordx4 %s, v%d, %s, s%d offen offset:%d sc1' %
                  (vr(slot(ks)), LA, srd(sWS2), sT + 2, (ks % 4) * 1024))
                issued.append(ks)
            else:
                a('s_add_u32 s%d, s%d, 16384' % (sT + 3, sBase))
                a('buffer_load_dwordx2 %s, v%d, %s, s%d offen offset:%d sc1' %
                  (vr(slot(ks), 2), VT, srd(sWS), sT + 3, (ks - 16) * 1024))
                a('buffer_load_dwordx2 %s, v%d, %s, s%d offen offset:%d sc1' %
                  (vr(slot(ks) + 2, 2), VT, srd(sWS), sT + 3, (ks - 16) * 1024 + 128))
                issued.extend([ks, ks])
        for ks in range(NS):
            oload(ks)
        a('s_add_u32 s%d, s%d, 1' % (sT + 7, sLayer))
        self.wait_flag(F_WR, sT + 7, WB[0], 10)
        for ks in range(3):
            wreads(ks)
        RES = 24
        RA = 32
        for ks in range(18):
            last = max(i for i, t in enumerate(issued) if t == ks)
            a('s_waitcnt vmcnt(%d) lgkmcnt(%d)' % (len(issued) - 1 - last, 3 * min(2, 17 - ks)))
            if ks == 0:
                self.tr(41)
            for t in range(3):
                a(mfma(ACC + 4 * t, WB[ks % 3] + 4 * t, slot(ks), ks == 0))
                if ks + 3 < 18:
                    wread1(ks + 3, t)
            if ks + NS < 18:
                oload(ks + NS)
            if ks == 10:
                L0, L1 = a.uid('Lres0'), a.uid('Lres1')
                self.xaddr_frag(RA, RA + 4)
                self.xaddr_nat(RA + 2, RA + 4)
                a('s_add_u32 s%d, s%d, %d' % (sBase2, sBase, WS_X))
                a('s_cmp_eq_u32 s%d, 0' % sLayer)
                a('s_cbranch_scc1 %s' % L0)
                a('buffer_load_dwordx4 %s, v%d, %s, s%d offen sc1' % (vr(RES), RA, srd(sWS), sBase2))
                a('buffer_load_dwordx2 %s, v%d, %s, s%d offen sc1' % (vr(RES + 4, 2), RA + 1, srd(sWS), sBase2))
                a('s_branch %s' % L1)
                a.label(L0)
                a('buffer_load_dwordx4 %s, v%d, %s, 0 offen' % (vr(RES), RA + 2, srd(sIN)))
                a('buffer_load_dwordx2 %s, v%d, %s, 0 offen' % (vr(RES + 4, 2), RA + 3, srd(sIN)))
                a.label(L1)
                issued.extend(['r', 'r'])
        self.tr(42)
        E = 0
        U = 60
        pairs = [(ACC + r, ACC + 4 + r) for r in range(4)] + [(ACC + 8, ACC + 9), (ACC + 10, ACC + 11)]
        for m, (x0, x1) in enumerate(pairs):
            a('v_cvt_pk_bf16_f32 v%d, v%d, v%d' % (E + m, x0, x1))
        a('s_waitcnt vmcnt(0)')
        for m in range(6):
            a('v_lshlrev_b32 v%d, 16, v%d' % (U + 2 * m, E + m))
            a('v_and_b32 v%d, 0xffff0000, v%d' % (U + 1 + 2 * m, E + m))
            a('v_lshlrev_b32 v%d, 16, v%d' % (U + 12 + 2 * m, RES + m))
            a('v_and_b32 v%d, 0xffff0000, v%d' % (U + 13 + 2 * m, RES + m))
        for m in range(12):
            a('v_add_f32 v%d, v%d, v%d' % (U + m, U + m, U + 12 + m))
        for m in range(6):
            a('v_cvt_pk_bf16_f32 v%d, v%d, v%d' % (E + m, U + 2 * m, U + 1 + 2 * m))
        L0, L1 = a.uid('Lst0'), a.uid('Lst1')
        a('s_cmp_eq_u32 s%d, %d' % (sLayer, self.nlayers - 1))
        a('s_cbranch_scc1 %s' % L0)

        def st(sc):
            a('buffer_store_dwordx4 %s, v32, %s, s%d offen%s' % (vr(E), srd(sWS), sBase2, sc))
            a('s_mov_b64 exec, 0xffff')
            a('buffer_store_dwordx2 %s, v33, %s, s%d offen%s' % (vr(E + 4, 2), srd(sWS), sBase2, sc))
            a('s_mov_b64 exec, -1')
            self.publish_event(2, 44, sc)
        self.both_modes(st)
        a('s_branch %s' % L1)
        a.label(L0)
        a('buffer_store_dwordx4 %s, v34, %s, 0 offen' % (vr(E), srd(sOUT)))
        a('s_mov_b64 exec, 0xffff')
        a('buffer_store_dwordx2 %s, v35, %s, 0 offen' % (vr(E + 4, 2), srd(sOUT)))
        a('s_mov_b64 exec, -1')
        a.label(L1)
        a('s_lshl_b32 s%d, s%d, 4' % (sT, sP))
        a('s_lshl_b32 s%d, s%d, 2' % (sT + 1, sWv))
        a('s_sub_u32 s%d, s%d, s%d' % (sT, sT + 1, sT))
        a('v_add_u32 v60, s%d, v%d' % (sT, vFlag))
        a('s_add_u32 s%d, s%d, 1' % (sT, sLayer))
        a('v_mov_b32 v61, s%d' % sT)
        a('ds_write_b32 v60, v61 offset:%d' % F_WG)
        self.tr(43)

    def xaddr_frag(self, d, tmp):
        a = self.a
        a('v_lshrrev_b32 v%d, 4, v%d' % (tmp, vLane))
        a('v_and_b32 v%d, 15, v%d' % (tmp + 1, vLane))
        self.swz(d, tmp, tmp + 1, tmp + 2)
        a('s_lshl_b32 s%d, s%d, 10' % (sT, sHG))
        a('v_add_u32 v%d, s%d, v%d' % (d, sT, d))
        a('s_lshl_b32 s%d, s%d, 7' % (sT, sHG))
        a('s_add_u32 s%d, s%d, 16384' % (sT, sT))
        a('v_lshlrev_b32 v%d, 3, v%d' % (tmp + 1, tmp + 1))
        a('v_add_u32 v%d, s%d, v%d' % (d + 1, sT, tmp + 1))

    def xaddr_nat(self, d, tmp):
        a = self.a
        a('s_lshl_b32 s%d, s%d, 7' % (sT, sTG))
        a('s_add_u32 s%d, s%d, s%d' % (sT, sT, sP))
        a('s_lshl_b32 s%d, s%d, 5' % (sT + 1, sWv))
        a('s_add_u32 s%d, s%d, s%d' % (sT, sT, sT + 1))
        a('s_mul_i32 s%d, s%d, 1152' % (sT, sT))
        a('s_mul_i32 s%d, s%d, 72' % (sT + 1, sHG))
        a('s_add_u32 s%d, s%d, s%d' % (sT, sT, sT + 1))
        a('v_and_b32 v%d, 15, v%d' % (tmp, vLane))
        a('v_mul_u32_u24 v%d, 2304, v%d' % (tmp, tmp))
        a('v_add_u32 v%d, s%d, v%d' % (tmp, sT, tmp))
        a('v_add_u32 v%d, 64, v%d' % (d + 1, tmp))
        a('v_lshrrev_b32 v%d, 4, v%d' % (tmp + 1, vLane))
        a('v_lshl_add_u32 v%d, v%d, 4, v%d' % (d, tmp + 1, tmp))

    def build(self):
        a = self.a
        self.prologue()
        a('s_cmp_eq_u32 s%d, 0' % sSet)
        a('s_cbranch_scc0 L_H0')
        self.wload_addr(0, 1, 2)
        self.coop_issue(0, 1)
        self.wou_issue(16, 24)
        self.kv_prefill(32)
        a('s_waitcnt vmcnt(12)')
        self.tr(5)
        self.coop_store(2)
        a('s_waitcnt vmcnt(2)')
        self.wou_store(16, 24)
        self.get_nonce(8)
        self.coop_flag(12)
        self.wou_flag(8)
        a('s_mov_b32 s%d, 1' % (sT + 7))
        self.set_flag(F_XH, sT + 7, 12)
        self.tr(6)
        self.coop_load(0)
        a('s_waitcnt vmcnt(0)')
        self.tr(2)
        self.colsum(8)
        a('s_branch L_M_ROLE')
        a.label('L_H0')
        Ln, Lp = a.uid('Lnn'), a.uid('Lpf0')
        a('s_cmp_lg_u32 s2, 0')
        a('s_cbranch_scc1 %s' % Ln)
        a('s_cmp_lg_u32 s%d, 0' % sWv)
        a('s_cbranch_scc1 %s' % Ln)
        a('s_memrealtime s[%d:%d]' % (sNon, sNon + 1))
        a('s_waitcnt lgkmcnt(0)')
        a('s_or_b32 s%d, s%d, 1' % (sNon, sNon))
        a('s_or_b32 s%d, s%d, 1' % (sNon + 1, sNon + 1))
        a('v_mov_b32 v72, s%d' % sNon)
        a('v_mov_b32 v73, s%d' % (sNon + 1))
        a('v_mov_b32 v74, 0')
        a('buffer_store_dwordx2 v[72:73], v74, %s, 0 offen sc1' % srd(sDBG))
        a.label(Ln)
        self.wload_addr(99, 100, 92)
        self.coop_issue(99, 100)
        self.wou_issue(72, 92)
        self.kv_prefill(80)
        a('s_waitcnt vmcnt(4)')
        self.tr(5)
        self.coop_store(vCS)
        self.wou_store(72, 92)
        self.get_nonce(72)
        a('s_mov_b32 s%d, 1' % (sT + 7))
        self.set_flag(F_XH + 16, sT + 7, 72)
        Lf = a.uid('Lif')
        a('s_cmp_lg_u32 s%d, 3' % sWv)
        a('s_cbranch_scc1 %s' % Lf)
        self.wait_flag(F_XH, sT + 7, 72, 18)
        self.wait_flag(F_XH + 16, sT + 7, 72, 19)
        a('s_lshl_b32 s%d, s%d, 4' % (sT, sTG))
        a('s_add_u32 s%d, s%d, s%d' % (sT, sT, sHG))
        a('s_lshl_b32 s%d, s%d, 4' % (sT, sT))
        a('s_add_u32 s%d, s%d, %d' % (sT, sT, WS_INI))
        a('v_mov_b32 v72, s%d' % sNon)
        a('v_mov_b32 v73, s%d' % (sNon + 1))
        a('v_mov_b32 v74, s%d' % sXcc)
        a('v_mov_b32 v75, s%d' % sNon)
        a('v_mov_b32 v76, 0')
        a('s_mov_b64 exec, 1')
        a('buffer_store_dwordx4 v[72:75], v76, %s, s%d offen sc1' % (srd(sWS), sT))
        a('s_mov_b64 exec, -1')
        a.label(Lf)
        self.coop_flag(78)
        self.wou_flag(92)
        self.tr(6)
        self.stage_input_issue()
        self.stage_input_finish()
        a('s_mov_b32 s%d, 1' % sP)
        self.stage_input_issue()
        self.wo_stage()
        self.init_check(72)
        self.stage_input_finish()
        self.coop_load(72)
        self.tr(3)
        a('s_mov_b32 s%d, 0' % sP)
        a('s_branch L_BPHASE')
        self.m_role()
        a.label('L_BPHASE')
        self.bphase()
        a('s_add_u32 s%d, s%d, 1' % (sLayer, sLayer))
        a('s_cmp_ge_u32 s%d, %d' % (sLayer, self.nlayers))
        a('s_cbranch_scc1 L_END')
        a.label('L_STAGE')
        self.stage_generic()
        a('s_cmp_eq_u32 s%d, 0' % sP)
        a('s_cbranch_scc1 L_M_ROLE')
        a('s_mov_b32 s%d, 0' % sP)
        a('s_branch L_BPHASE')
        a.label('L_ABORT')
        a('s_mov_b64 exec, -1')
        a('s_lshl_b32 s%d, s%d, 2' % (sT, sT + 9))
        a('s_add_u32 s%d, s%d, 64' % (sT, sT))
        a('v_mov_b32 v0, s2')
        a('v_add_u32 v0, 0x1000, v0')
        a('v_mov_b32 v1, s%d' % sT)
        a('buffer_store_dword v0, v1, %s, 0 offen sc1' % srd(sDBG))
        a.label('L_END')
        if self.debug:
            a('s_cmp_ge_u32 s2, 256')
            a('s_cbranch_scc1 L_END2')
            self.tr(63)
            a('s_lshl_b32 s%d, s2, 3' % sT)
            a('s_add_u32 s%d, s%d, s%d' % (sT, sT, sWave))
            a('s_lshl_b32 s%d, s%d, 8' % (sT, sT))
            a('s_add_u32 s%d, s%d, %d' % (sT, sT, WS_TRC))
            a('v_lshlrev_b32 v0, 2, v%d' % vLane)
            a('buffer_store_dword v%d, v0, %s, s%d offen' % (vTr, srd(sWS), sT))
            a.label('L_END2')
        a('s_endpgm')

    def text(self):
        hdr = open(os.path.join(os.path.dirname(os.path.abspath(__file__)), '..', 'cdna_kernels', NAME + '.s.ref')).read()
        out = hdr.split('; Override launch geometry')[0]
        out += '; @launch grid=(256,1,1) block=(512,1,1) lds=%d\n' % LDS_BYTES
        out += '.amdgcn_target "amdgcn-amd-amdhsa--gfx950"\n.text\n'
        out += '.globl %s_kernel\n.p2align 8\n.type %s_kernel,@function\n%s_kernel:\n' % (NAME, NAME, NAME)
        out += self.a.render()
        out += '''.section .rodata,"a"
.p2align 6
.amdhsa_kernel %s_kernel
  .amdhsa_next_free_vgpr 256
  .amdhsa_next_free_sgpr 96
  .amdhsa_accum_offset 256
  .amdhsa_group_segment_fixed_size 0
  .amdhsa_kernarg_size 72
  .amdhsa_user_sgpr_count 2
  .amdhsa_user_sgpr_kernarg_segment_ptr 1
  .amdhsa_system_sgpr_workgroup_id_x 1
.end_amdhsa_kernel
''' % NAME
        return out


if __name__ == '__main__':
    nl = int(sys.argv[2]) if len(sys.argv) > 2 else 4
    g = Gen(nlayers=nl, debug=(len(sys.argv) > 3 and sys.argv[3] == 'trace'))
    g.build()
    path = sys.argv[1] if len(sys.argv) > 1 else os.path.join(os.path.dirname(os.path.abspath(__file__)), '..', 'cdna_kernels', NAME + '.s')
    open(path, 'w').write(g.text())
    print('wrote', path)
```

```python
import sys, os, struct
sys.path.insert(0, os.path.dirname(os.path.abspath(__file__)))
from asmlib import Asm

NAME = 'interleave_layers__sliding_local_dilated__sliding_local_dilated__prompt'

XBYTES = 2048 * 576 * 2
MT = 19456
TILE = 4 * MT
WS_X = 4 * XBYTES
LSTR = 0
WS_KV = 6 * XBYTES
KVT = 2304
WS_FL = 9 * XBYTES
WS_INI = WS_FL + 65536
WS_CFLG = WS_FL + 131072
WS_WFLG = WS_FL + 262144
WS_TRC = 10 * XBYTES
WS_CIMG = 11 * XBYTES
WS_PIMG = 14 * XBYTES
WS_PFLG = WS_FL + 393216
WS_WIMG = 13 * XBYTES
WIS = 41984
WS_SIZE = 80 << 20
WS_PAD = 1 << 20
OOB = 0x7F000000

L_QKV = 4 * MT
QP = 272
L_WO = L_QKV + 80 * QP
L_ST = L_WO + 18 * 2304
L_FLG = L_ST + 320
LDS_BYTES = 143360
F_XR, F_XF, F_QR, F_QF, F_WR, F_WF, F_WG, F_XH = 0, 16, 32, 48, 64, 80, 96, 112

sIN, sWQ, sWO, sOUT, sWS, sDBG = 24, 28, 32, 36, 40, 44
sWave, sWv, sSet, sTG, sHG, sLayer, sP, sN, sBud = 48, 49, 50, 51, 52, 53, 54, 55, 56
sG = 57
sNon = 58
sT = 60
sSelLo, sSelHi = 72, 73
sM1, sM2, sM3, sMD = 74, 76, 78, 80
sPend = 82
sBase = 83
sBase2 = 84
sFast = 85
sTm = 86
sWS2 = 88
sTi = 92
sXcc = 93
sWoOk = 94
sTileW = 95
sMt = 4
sQo = 8
sFlW = 12
sOwn = 13
sCs = 14
sQu = 16
sSt = 18
sKm = 20
sH = 22
sPass = 23
sWoP = 15
sPub = 7
vTr = 101
vFlag, vLane = 102, 103
vCS = 104
vW = 112


def srd(n):
    return 's[%d:%d]' % (n, n + 3)


def vr(b, n=4):
    return 'v[%d:%d]' % (b, b + n - 1)


def W(t, ks):
    return vW + (ks * 2 + t) * 4


def mfma(d, a_, b_, first):
    return 'v_mfma_f32_16x16x32_bf16 %s, %s, %s, %s' % (vr(d), vr(a_), vr(b_), '0' if first else vr(d))


class Gen:
    def __init__(self, nlayers=4, debug=False):
        self.a = Asm()
        self.nlayers = nlayers
        self.debug = debug

    def budget_check(self, code):
        a = self.a
        a('s_sub_u32 s%d, s%d, 1' % (sBud, sBud))
        a('s_cmp_eq_u32 s%d, 0' % sBud)
        a('s_mov_b32 s%d, %d' % (sT + 9, code))
        a('s_cbranch_scc1 L_ABORT')

    def tr(self, ident):
        if not self.debug:
            return
        if os.environ.get('FINE') and ident in (20, 25, 24, 30, 40, 44, 41, 42, 43, 21, 3):
            return
        a = self.a
        a('%s s[%d:%d]' % ('s_memtime' if os.environ.get('CYC') else 's_memrealtime', sTm, sTm + 1))
        a('s_waitcnt lgkmcnt(0)')
        a('s_lshl_b32 s%d, s%d, 6' % (sTm, sTm))
        a('s_or_b32 s%d, s%d, %d' % (sTm, sTm, ident))
        a('s_mov_b32 m0, s%d' % sTi)
        a('s_nop 0')
        a('v_writelane_b32 v%d, s%d, m0' % (vTr, sTm))
        a('s_add_u32 s%d, s%d, 1' % (sTi, sTi))

    def flag_min(self, tmp):
        a = self.a
        a('v_min3_u32 v%d, v%d, v%d, v%d' % (tmp, tmp, tmp + 1, tmp + 2))
        a('v_min_u32 v%d, v%d, v%d' % (tmp, tmp, tmp + 3))
        a('v_readfirstlane_b32 s%d, v%d' % (sT + 8, tmp))

    def wait_flag(self, off, tgt, tmp, code, add=0, sleep=0):
        a = self.a
        L, Ld = a.uid('Lwf'), a.uid('Lwfd')
        a.label(L)
        a('ds_read_b128 %s, v%d offset:%d' % (vr(tmp), vFlag, off))
        a('s_waitcnt lgkmcnt(0)')
        self.flag_min(tmp)
        a('s_nop 1')
        if add:
            a('s_add_u32 s%d, s%d, %d' % (sT + 8, sT + 8, add))
        a('s_cmp_ge_u32 s%d, s%d' % (sT + 8, tgt))
        a('s_cbranch_scc1 %s' % Ld)
        self.budget_check(code)
        if sleep:
            a('s_sleep %d' % sleep)
        a('s_branch %s' % L)
        a.label(Ld)

    def set_flag(self, off, val_sreg, tmpv, add=0):
        a = self.a
        a('s_lshl_b32 s%d, s%d, 2' % (sT + 8, sWv))
        a('v_add_u32 v%d, s%d, v%d' % (tmpv, sT + 8, vFlag))
        if add:
            a('s_add_u32 s%d, s%d, %d' % (sT + 8, val_sreg, add))
            a('v_mov_b32 v%d, s%d' % (tmpv + 1, sT + 8))
        else:
            a('v_mov_b32 v%d, s%d' % (tmpv + 1, val_sreg))
        a('ds_write_b32 v%d, v%d offset:%d' % (tmpv, tmpv + 1, off))

    def swz(self, dst, q, r, tmp):
        a = self.a
        a('v_and_b32 v%d, 1, v%d' % (tmp, q))
        a('v_lshlrev_b32 v%d, 1, v%d' % (tmp, tmp))
        a('v_lshrrev_b32 v%d, 1, v%d' % (dst, q))
        a('v_mul_u32_u24 v%d, 12, v%d' % (dst, dst))
        a('v_add_u32 v%d, v%d, v%d' % (tmp, tmp, dst))
        a('v_xor_b32 v%d, v%d, v%d' % (tmp, tmp, r))
        a('v_lshlrev_b32 v%d, 4, v%d' % (tmp, tmp))
        a('v_lshl_add_u32 v%d, v%d, 8, v%d' % (dst, q, tmp))

    def sentinel_vcc(self, regs, tmp):
        a = self.a
        regs = list(regs)
        a('v_max3_u32 v%d, v%d, v%d, v%d' % (tmp, regs[0], regs[1], regs[2]))
        i = 3
        while i + 1 < len(regs):
            a('v_max3_u32 v%d, v%d, v%d, v%d' % (tmp, tmp, regs[i], regs[i + 1]))
            i += 2
        if i < len(regs):
            a('v_max_u32 v%d, v%d, v%d' % (tmp, tmp, regs[i]))
        a('v_cmp_eq_u32 vcc, -1, v%d' % tmp)

    def poll_event(self, kind_expr, layer_add, tmp, code, all64=False, hook=None):
        a = self.a
        if all64:
            a('v_lshlrev_b32 v%d, 3, v%d' % (tmp + 2, vLane))
        else:
            a('v_and_b32 v%d, 15, v%d' % (tmp + 2, vLane))
            a('v_lshlrev_b32 v%d, 3, v%d' % (tmp + 2, tmp + 2))
        a('s_lshl_b32 s%d, s%d, 9' % (sT, sP))
        a('s_add_u32 s%d, s%d, s%d' % (sT, sT, sFlW))
        if all64:
            a('s_lshl_b32 s%d, s%d, 7' % (sT + 1, sWv))
            a('s_sub_u32 s%d, s%d, s%d' % (sT, sT, sT + 1))
        if kind_expr:
            a('s_add_u32 s%d, s%d, %d' % (sT, sT, kind_expr * 512))
        a('s_add_u32 s%d, s%d, s%d' % (sT + 1, sNon, sLayer))
        a('s_add_u32 s%d, s%d, %d' % (sT + 1, sT + 1, 1 + layer_add))
        L, Ld = a.uid('Lpoll'), a.uid('Lpolld')
        a('s_setprio 0')
        a.label(L)
        a('buffer_load_dwordx2 %s, v%d, %s, s%d offen sc1' % (vr(tmp, 2), tmp + 2, srd(sWS), sT))
        a('s_waitcnt vmcnt(0)')
        if hook:
            hook()
        a('v_subrev_u32 v%d, s%d, v%d' % (tmp, sT + 1, tmp))
        a('v_xor_b32 v%d, s%d, v%d' % (tmp + 1, sNon + 1, tmp + 1))
        a('v_lshrrev_b32 v%d, 3, v%d' % (tmp, tmp))
        a('v_or_b32 v%d, v%d, v%d' % (tmp, tmp, tmp + 1))
        a('v_cmp_ne_u32 vcc, 0, v%d' % tmp)
        a('s_nop 1')
        a('s_cmp_eq_u64 vcc, 0')
        a('s_cbranch_scc1 %s' % Ld)
        self.budget_check(code)
        a('s_branch %s' % L)
        a.label(Ld)
        a('s_setprio 2')

    def publish_event(self, kind, tmp, sc):
        a = self.a
        a('s_lshl_b32 s%d, s%d, 9' % (sT, sP))
        a('s_add_u32 s%d, s%d, s%d' % (sT, sT, sFlW))
        a('s_lshl_b32 s%d, s%d, 3' % (sT + 1, sHG))
        a('s_add_u32 s%d, s%d, s%d' % (sT, sT, sT + 1))
        if kind:
            a('s_add_u32 s%d, s%d, %d' % (sT, sT, kind * 512))
        a('s_add_u32 s%d, s%d, s%d' % (sT + 1, sNon, sLayer))
        a('s_add_u32 s%d, s%d, 1' % (sT + 1, sT + 1))
        a('v_mov_b32 v%d, s%d' % (tmp, sT + 1))
        a('v_mov_b32 v%d, s%d' % (tmp + 1, sNon + 1))
        a('v_mov_b32 v%d, 0' % (tmp + 2))
        a('s_mov_b64 exec, 1')
        a('s_waitcnt vmcnt(0)')
        a('buffer_store_dwordx2 %s, v%d, %s, s%d offen%s' % (vr(tmp, 2), tmp + 2, srd(sWS), sT, sc))
        a('s_mov_b64 exec, -1')

    def both_modes(self, fn):
        a = self.a
        L0, L1 = a.uid('Lslow'), a.uid('Lmend')
        a('s_cmp_eq_u32 s%d, 0' % sFast)
        a('s_cbranch_scc1 %s' % L0)
        fn('')
        a('s_branch %s' % L1)
        a.label(L0)
        fn(' sc1')
        a.label(L1)

    def store_nonce_flag(self, soff, tmp):
        a = self.a
        a('v_mov_b32 v%d, s%d' % (tmp, sNon))
        a('v_mov_b32 v%d, s%d' % (tmp + 1, sNon + 1))
        a('v_mov_b32 v%d, 0' % (tmp + 2))
        a('s_mov_b64 exec, 1')
        a('buffer_store_dwordx2 %s, v%d, %s, s%d offen sc1' % (vr(tmp, 2), tmp + 2, srd(sWS), soff))
        a('s_mov_b64 exec, -1')

    def poll_nonce_flags(self, soff, vaddr, tmp, code):
        a = self.a
        L, Ld = a.uid('Lpn'), a.uid('Lpnd')
        a.label(L)
        a('buffer_load_dwordx2 %s, v%d, %s, s%d offen sc1' % (vr(tmp, 2), vaddr, srd(sWS), soff))
        a('s_waitcnt vmcnt(0)')
        a('v_xor_b32 v%d, s%d, v%d' % (tmp, sNon, tmp))
        a('v_xor_b32 v%d, s%d, v%d' % (tmp + 1, sNon + 1, tmp + 1))
        a('v_or_b32 v%d, v%d, v%d' % (tmp, tmp, tmp + 1))
        a('v_cmp_ne_u32 vcc, 0, v%d' % tmp)
        a('s_nop 1')
        a('s_cmp_eq_u64 vcc, 0')
        a('s_cbranch_scc1 %s' % Ld)
        self.budget_check(code)
        a('s_sleep 2')
        a('s_branch %s' % L)
        a.label(Ld)

    def get_nonce(self, tmp):
        a = self.a
        L, Ld = a.uid('Lnon'), a.uid('Lnond')
        a('v_mov_b32 v%d, 0' % (tmp + 2))
        a.label(L)
        a('buffer_load_dwordx2 %s, v%d, %s, 0 offen sc1' % (vr(tmp, 2), tmp + 2, srd(sDBG)))
        a('s_waitcnt vmcnt(0)')
        a('v_readfirstlane_b32 s%d, v%d' % (sNon, tmp))
        a('v_readfirstlane_b32 s%d, v%d' % (sNon + 1, tmp + 1))
        a('s_nop 1')
        a('s_min_u32 s%d, s%d, s%d' % (sT + 8, sNon, sNon + 1))
        a('s_cmp_lg_u32 s%d, 0' % (sT + 8))
        a('s_cbranch_scc1 %s' % Ld)
        self.budget_check(7)
        a('s_sleep 2')
        a('s_branch %s' % L)
        a.label(Ld)

    def init_check(self, tmp):
        a = self.a
        L, Ld = a.uid('Lini'), a.uid('Linid')
        a('v_and_b32 v%d, 15, v%d' % (tmp + 4, vLane))
        a('v_lshlrev_b32 v%d, 4, v%d' % (tmp + 4, tmp + 4))
        a('v_add_u32 v%d, 256, v%d' % (tmp + 5, tmp + 4))
        a('v_and_b32 v%d, 16, v%d' % (tmp + 6, vLane))
        a('s_cmp_eq_u32 s%d, 0' % sTG)
        a('s_cselect_b32 s%d, 0, 16' % sT)
        a('v_and_b32 v%d, s%d, v%d' % (tmp + 6, sT, tmp + 6))
        a('v_cmp_eq_u32 s[%d:%d], 0, v%d' % (sT + 2, sT + 3, tmp + 6))
        a('v_cndmask_b32 v%d, v%d, v%d, s[%d:%d]' % (tmp + 4, tmp + 4, tmp + 5, sT + 2, sT + 3))
        a('s_lshl_b32 s%d, s%d, 8' % (sT, sTG))
        a('s_add_u32 s%d, s%d, %d' % (sT, sT, WS_INI - 256))
        a.label(L)
        a('buffer_load_dwordx4 %s, v%d, %s, s%d offen sc1' % (vr(tmp), tmp + 4, srd(sWS), sT))
        a('s_waitcnt vmcnt(0)')
        a('v_xor_b32 v%d, s%d, v%d' % (tmp, sNon, tmp))
        a('v_xor_b32 v%d, s%d, v%d' % (tmp + 1, sNon + 1, tmp + 1))
        a('v_xor_b32 v%d, s%d, v%d' % (tmp + 3, sNon, tmp + 3))
        a('v_or3_b32 v%d, v%d, v%d, v%d' % (tmp, tmp, tmp + 1, tmp + 3))
        a('v_cmp_ne_u32 vcc, 0, v%d' % tmp)
        a('s_nop 1')
        a('s_cmp_eq_u64 vcc, 0')
        a('s_cbranch_scc1 %s' % Ld)
        self.budget_check(8)
        a('s_sleep 2')
        a('s_branch %s' % L)
        a.label(Ld)
        a('v_cmp_ne_u32 vcc, s%d, v%d' % (sXcc, tmp + 2))
        a('s_nop 1')
        a('s_and_b64 vcc, vcc, s[%d:%d]' % (sT + 2, sT + 3))
        a('s_cmp_eq_u64 vcc, 0')
        a('s_cselect_b32 s%d, 1, 0' % sFast)
        if os.environ.get('FORCE_SLOW'):
            a('s_mov_b32 s%d, 0' % sFast)

    def prologue(self):
        a = self.a
        a('s_cmp_ge_u32 s2, 256')
        a('s_cbranch_scc1 L_END')
        a('s_load_dwordx16 s[4:19], s[0:1], 0')
        a('s_load_dwordx2 s[20:21], s[0:1], 64')
        a('v_and_b32 v%d, 63, v0' % vLane)
        a('v_lshrrev_b32 v1, 6, v0')
        a('v_readfirstlane_b32 s%d, v1' % sWave)
        a('s_getreg_b32 s%d, hwreg(HW_REG_XCC_ID)' % sXcc)
        a('s_and_b32 s%d, s%d, 15' % (sXcc, sXcc))
        a('s_and_b32 s%d, s%d, 3' % (sWv, sWave))
        a('s_lshr_b32 s%d, s%d, 2' % (sSet, sWave))
        a('s_and_b32 s%d, s2, 7' % sT)
        a('s_lshr_b32 s%d, s2, 3' % (sT + 1))
        a('s_and_b32 s%d, s%d, 15' % (sHG, sT + 1))
        a('s_lshr_b32 s%d, s%d, 4' % (sT + 1, sT + 1))
        a('s_lshl_b32 s%d, s%d, 1' % (sTG, sT))
        a('s_add_u32 s%d, s%d, s%d' % (sTG, sTG, sT + 1))
        a('s_mov_b32 s%d, 0x%x' % (sBud, 2000000))
        a('s_mov_b32 s%d, 0x05040100' % sSelLo)
        a('s_mov_b32 s%d, 0x07060302' % sSelHi)
        a('s_mov_b32 s%d, 0' % sLayer)
        a('s_mov_b32 s%d, 0' % sWoOk)
        a('s_mov_b32 s%d, 0' % sFast)
        a('v_mov_b32 v%d, 0x%x' % (vFlag, L_FLG))
        a('v_and_b32 v1, 3, v%d' % vLane)
        a('v_cmp_eq_u32 s[%d:%d], 1, v1' % (sM1, sM1 + 1))
        a('v_cmp_eq_u32 s[%d:%d], 2, v1' % (sM2, sM2 + 1))
        a('v_cmp_eq_u32 s[%d:%d], 3, v1' % (sM3, sM3 + 1))
        a('v_lshrrev_b32 v1, 4, v%d' % vLane)
        a('v_bfe_u32 v2, v%d, 2, 2' % vLane)
        a('v_cmp_eq_u32 s[%d:%d], v1, v2' % (sMD, sMD + 1))
        a('v_mov_b32 v1, 0')
        a('v_lshl_add_u32 v2, v%d, 2, v%d' % (vLane, vFlag))
        a('ds_write_b32 v2, v1')
        a('s_waitcnt lgkmcnt(0)')

        def mk(n, lo, hi, size):
            a('s_mov_b32 s%d, s%d' % (n, lo))
            a('s_and_b32 s%d, s%d, 0xffff' % (n + 1, hi))
            a('s_mov_b32 s%d, 0x%x' % (n + 2, size))
            a('s_mov_b32 s%d, 0x00020000' % (n + 3))
        mk(sIN, 4, 5, XBYTES)
        mk(sOUT, 16, 17, XBYTES)
        mk(sDBG, 18, 19, 256)
        mk(sWS2, 20, 21, WS_SIZE)
        a('s_add_u32 s20, s20, 0x%x' % WS_PAD)
        a('s_addc_u32 s21, s21, 0')
        mk(sWS, 20, 21, WS_SIZE)
        a('s_mov_b32 s%d, 0' % sTi)
        a('s_cmp_eq_u32 s%d, 0' % sSet)
        a('s_cbranch_scc0 L_SETB_SRD')
        mk(sWQ, 6, 7, 576 * 1728 * 2)
        mk(sWO, 14, 15, 576 * 576 * 2)
        a('s_branch L_SRD_DONE')
        a.label('L_SETB_SRD')
        mk(sWQ, 12, 13, 576 * 1728 * 2)
        mk(sWO, 8, 9, 576 * 576 * 2)
        a.label('L_SRD_DONE')
        a('s_mul_i32 s%d, s%d, %d' % (sMt, sWv, MT))
        a('s_mul_i32 s%d, s%d, %d' % (sTileW, sTG, 2 * TILE))
        a('s_mul_i32 s%d, s%d, %d' % (sT, sWv, MT))
        a('s_add_u32 s%d, s%d, s%d' % (sTileW, sTileW, sT))
        a('s_lshl_b32 s%d, s%d, 11' % (sFlW, sTG))
        a('s_lshl_b32 s%d, s%d, 7' % (sT, sWv))
        a('s_add_u32 s%d, s%d, s%d' % (sFlW, sFlW, sT))
        a('s_add_u32 s%d, s%d, %d' % (sFlW, sFlW, WS_FL))
        a('s_mov_b32 s%d, 0' % sOwn)
        a('s_mov_b32 s%d, 0' % sWoP)
        a('s_mov_b32 s%d, 0' % sPub)
        a('s_mov_b32 s%d, s%d' % (sCs, sSet))
        a('s_mul_i32 s%d, s%d, 48' % (sQu, sWv))
        a('s_add_u32 s%d, s%d, 0x%x' % (sQu, sQu, L_QKV))
        a('s_lshl_b32 s%d, s%d, 4' % (sQu + 1, sWv))
        a('s_add_u32 s%d, s%d, 0x%x' % (sQu + 1, sQu + 1, L_QKV + 192 - 48))
        a('s_lshl_b32 s%d, s%d, 6' % (sSt, sWv))
        a('s_add_u32 s%d, s%d, 0x%x' % (sSt, sSt, L_ST + 64 - 192))
        a('s_mov_b32 s%d, 0x%x' % (sSt + 1, L_ST - 192))
        a('s_and_b32 s%d, s%d, 1' % (sH, sTG))
        km = 0xffff & ~sum(1 << self.UNIT[i] for i in (0, 1, 2, 12))
        a('s_mov_b32 s%d, 0x%x' % (sKm, km | (km << 16)))
        a('s_mov_b32 s%d, 0x%x' % (sKm + 1, km | (km << 16)))
        if True:
            a('s_setprio %s' % '2')
        a('s_barrier')
        if self.debug:
            a('v_mov_b32 v%d, 0' % vTr)
        self.tr(1)

    def wload_addr(self, v1, v2, tmp):
        a = self.a
        i, q, oa, rr, t4, t5 = tmp, tmp + 1, tmp + 2, tmp + 3, tmp + 4, tmp + 5
        a('v_and_b32 v%d, 15, v%d' % (i, vLane))
        a('v_lshrrev_b32 v%d, 4, v%d' % (q, vLane))
        a('v_lshrrev_b32 v%d, 2, v%d' % (oa, i))
        a('v_and_b32 v%d, 3, v%d' % (rr, i))
        a('s_mul_i32 s%d, s%d, 3' % (sT, sWv))
        a('v_add_u32 v%d, s%d, v%d' % (t4, sT, oa))
        a('v_lshrrev_b32 v%d, 2, v%d' % (v1, t4))
        a('v_mul_u32_u24 v%d, 576, v%d' % (v1, v1))
        a('v_bfe_u32 v%d, v%d, 1, 1' % (t5, t4))
        a('v_mul_u32_u24 v%d, 18, v%d' % (t5, t5))
        a('v_add_u32 v%d, v%d, v%d' % (v1, v1, t5))
        a('v_and_b32 v%d, 1, v%d' % (t5, t4))
        a('v_lshl_add_u32 v%d, v%d, 3, v%d' % (v1, t5, v1))
        a('v_lshl_add_u32 v%d, v%d, 1, v%d' % (v1, rr, v1))
        a('s_mul_i32 s%d, s%d, 576' % (sT, sWv))
        a('s_add_u32 s%d, s%d, 16' % (sT, sT))
        a('v_mul_u32_u24 v%d, 18, v%d' % (t5, rr))
        a('v_add_u32 v%d, s%d, v%d' % (t5, sT, t5))
        a('v_cmp_eq_u32 vcc, 3, v%d' % oa)
        a('v_cndmask_b32 v%d, v%d, v%d, vcc' % (v1, v1, t5))
        a('s_mul_i32 s%d, s%d, 36' % (sT, sHG))
        a('v_add_u32 v%d, s%d, v%d' % (v1, sT, v1))
        a('v_lshlrev_b32 v%d, 1, v%d' % (v1, v1))
        a('s_cmp_eq_u32 s%d, 3' % sWv)
        a('s_cselect_b32 s%d, 12, 14' % sT)
        a('v_cmp_le_u32 vcc, s%d, v%d' % (sT, i))
        a('v_mov_b32 v%d, 0x%x' % (t5, OOB))
        a('v_cndmask_b32 v%d, v%d, v%d, vcc' % (v1, v1, t5))
        a('s_mov_b32 s%d, %d' % (sT, 72 * 3456))
        a('v_mul_lo_u32 v%d, v%d, s%d' % (t5, q, sT))
        a('v_add_u32 v%d, v%d, v%d' % (v2, v1, t5))
        a('v_mul_u32_u24 v%d, %d, v%d' % (t5, 8 * 3456, q))
        a('v_add_u32 v%d, v%d, v%d' % (v1, v1, t5))

    def wload_issue(self, ks_list, v1, v2):
        a = self.a
        if os.environ.get('NOW'):
            ks_list = list(ks_list)[:1]
        for ks in ks_list:
            for e in range(0, 8, 2):
                if ks < 16:
                    row, vo = 36 * ks + e, v1
                else:
                    row, vo = 288 * (ks - 16) + 36 * (e >> 2) + 32 + (e & 3), v2
                st = sT + (e >> 1) % 2
                a('s_mov_b32 s%d, %d' % (st, row * 3456))
                m = e >> 1
                a('buffer_load_dword v%d, v%d, %s, s%d offen' % (W(0, ks) + m, vo, srd(sWQ), st))
                a('buffer_load_dword v%d, v%d, %s, s%d offen offset:3456' % (W(1, ks) + m, vo, srd(sWQ), st))

    def wload_perm(self, ks_list, ones, tmp):
        a = self.a
        for ks in ks_list:
            for m in range(4):
                r0, r1 = W(0, ks) + m, W(1, ks) + m
                t = tmp + (m & 1)
                a('v_perm_b32 v%d, v%d, v%d, s%d' % (t, r1, r0, sSelLo))
                a('v_perm_b32 v%d, v%d, v%d, s%d' % (r1, r1, r0, sSelHi))
                a('v_or_b32 v%d, v%d, v%d' % (r0, ones, t))

    def pw_issue(self, v1, v2):
        a = self.a
        L1, L2 = a.uid('Lpi'), a.uid('Lpie')
        a('s_cmp_lg_u32 s%d, 0' % sH)
        a('s_cbranch_scc1 %s' % L1)
        self.wload_issue(range(0, 9), v1, v2)
        a('s_branch %s' % L2)
        a.label(L1)
        self.wload_issue(range(9, 18), v1, v2)
        a.label(L2)

    def pw_finish(self, v1, v2, tmp):
        a = self.a
        Ltop, L1, L2, Ldone, Lfb = a.uid('Lpt'), a.uid('Lp1'), a.uid('Lp2'), a.uid('Lpd'), a.uid('Lpfb')
        a('s_mov_b32 s%d, 0' % sPass)
        a.label(Ltop)
        self.ones_mask(tmp, tmp + 1)
        a('v_lshlrev_b32 v%d, 4, v%d' % (tmp + 4, vLane))
        a('s_lshl_b32 s%d, s2, 3' % (sT + 2))
        a('s_add_u32 s%d, s%d, s%d' % (sT + 2, sT + 2, sWave))
        a('s_mul_i32 s%d, s%d, 18432' % (sT + 3, sT + 2))
        a('s_add_u32 s%d, s%d, %d' % (sT + 3, sT + 3, WS_PIMG))
        a('s_waitcnt vmcnt(0)')
        a('s_cmp_lg_u32 s%d, 0' % sH)
        a('s_cbranch_scc1 %s' % L1)
        for h, lab in ((0, None), (1, L1)):
            if lab:
                a.label(lab)
            self.wload_perm(range(9 * h, 9 * h + 9), tmp, tmp + 2)
            a('s_cmp_lg_u32 s%d, 0' % sPass)
            a('s_cbranch_scc1 %s' % Ldone)
            for n in range(18):
                if n % 4 == 0 and n:
                    a('s_add_u32 s%d, s%d, 4096' % (sT + 3, sT + 3))
                a('buffer_store_dwordx4 %s, v%d, %s, s%d offen offset:%d' % (vr(vW + 72 * h + 4 * n), tmp + 4, srd(sWS), sT + 3, (n % 4) * 1024))
            if h == 0:
                a('s_branch %s' % L2)
        a.label(L2)
        a('s_lshl_b32 s%d, s%d, 4' % (sT + 3, sT + 2))
        a('s_add_u32 s%d, s%d, %d' % (sT + 3, sT + 3, WS_PFLG))
        a('v_mov_b32 v%d, s%d' % (tmp, sNon))
        a('v_mov_b32 v%d, s%d' % (tmp + 1, sNon + 1))
        a('v_mov_b32 v%d, s%d' % (tmp + 2, sXcc))
        a('v_mov_b32 v%d, s%d' % (tmp + 3, sNon))
        a('v_mov_b32 v%d, 0' % (tmp + 5))
        a('s_mov_b64 exec, 1')
        a('s_waitcnt vmcnt(0)')
        a('buffer_store_dwordx4 %s, v%d, %s, s%d offen' % (vr(tmp), tmp + 5, srd(sWS), sT + 3))
        a('s_mov_b64 exec, -1')
        a('s_xor_b32 s%d, s%d, 1024' % (sT + 2, sT + 2))
        a('s_lshl_b32 s%d, s%d, 4' % (sT + 3, sT + 2))
        a('s_add_u32 s%d, s%d, %d' % (sT + 3, sT + 3, WS_PFLG))
        a('s_mov_b32 s%d, %d' % (sT + 4, 1 if os.environ.get('FORCE_SLOW') else 200))
        Lp, Lg = a.uid('Lpp'), a.uid('Lpg')
        a.label(Lp)
        a('buffer_load_dwordx4 %s, v%d, %s, s%d offen sc1' % (vr(tmp), tmp + 5, srd(sWS), sT + 3))
        a('s_waitcnt vmcnt(0)')
        a('v_xor_b32 v%d, s%d, v%d' % (tmp, sNon, tmp))
        a('v_xor_b32 v%d, s%d, v%d' % (tmp + 1, sNon + 1, tmp + 1))
        a('v_xor_b32 v%d, s%d, v%d' % (tmp + 2, sXcc, tmp + 2))
        a('v_xor_b32 v%d, s%d, v%d' % (tmp + 3, sNon, tmp + 3))
        a('v_or3_b32 v%d, v%d, v%d, v%d' % (tmp, tmp, tmp + 1, tmp + 2))
        a('v_or_b32 v%d, v%d, v%d' % (tmp, tmp, tmp + 3))
        a('v_cmp_ne_u32 vcc, 0, v%d' % tmp)
        a('s_nop 1')
        a('s_cmp_eq_u64 vcc, 0')
        if not os.environ.get('FORCE_SLOW'):
            a('s_cbranch_scc1 %s' % Lg)
        a('s_sub_u32 s%d, s%d, 1' % (sT + 4, sT + 4))
        a('s_cmp_eq_u32 s%d, 0' % (sT + 4))
        a('s_cbranch_scc1 %s' % Lfb)
        a('s_sleep 1')
        a('s_branch %s' % Lp)
        a.label(Lfb)
        a('s_mov_b32 s%d, 1' % sPass)
        a('s_xor_b32 s%d, s%d, 1' % (sH, sH))
        self.pw_issue(v1, v2)
        a('s_branch %s' % Ltop)
        a.label(Lg)
        a('s_mul_i32 s%d, s%d, 18432' % (sT + 3, sT + 2))
        a('s_add_u32 s%d, s%d, %d' % (sT + 3, sT + 3, WS_PIMG))
        L3 = a.uid('Lp3')
        a('s_cmp_eq_u32 s%d, 0' % sH)
        a('s_cbranch_scc1 %s' % L3)
        for h, lab in ((0, None), (1, L3)):
            if lab:
                a.label(lab)
            for n in range(18):
                if n % 4 == 0 and n:
                    a('s_add_u32 s%d, s%d, 4096' % (sT + 3, sT + 3))
                a('buffer_load_dwordx4 %s, v%d, %s, s%d offen offset:%d sc1' % (vr(vW + 72 * h + 4 * n), tmp + 4, srd(sWS), sT + 3, (n % 4) * 1024))
            if h == 0:
                a('s_branch %s' % Ldone)
        a.label(Ldone)

    def ones_mask(self, dst, tmp):
        a = self.a
        a('v_and_b32 v%d, 15, v%d' % (tmp, vLane))
        a('v_cmp_eq_u32 vcc, 14, v%d' % tmp)
        a('v_mov_b32 v%d, 0x3f803f80' % tmp)
        a('v_cndmask_b32 v%d, 0, v%d, vcc' % (dst, tmp))

    def colsum(self, tmp, progressive=False):
        a = self.a
        for i in range(4):
            a('v_mov_b32 v%d, 0x3f803f80' % (tmp + i))
        for ks in range(18):
            if progressive:
                a('s_waitcnt vmcnt(%d)' % (34 - 2 * ks))
            for t in range(2):
                a(mfma(vCS + 4 * t, W(t, ks), tmp, ks == 0))

    def coop_issue(self, v1, v2):
        a = self.a
        a('s_mul_i32 s%d, s%d, %d' % (sT + 2, sTG, 36 * 3456))
        a('s_and_b32 s%d, s%d, 1' % (sT + 3, sTG))
        a('s_mul_i32 s%d, s%d, %d' % (sT + 3, sT + 3, 288 * 3456))
        for u in range(2):
            for e in range(0, 8, 2):
                row = e if u == 0 else 36 * (e >> 2) + 32 + (e & 3)
                st = sT + (e >> 1) % 2
                a('s_add_u32 s%d, s%d, %d' % (st, sT + 2 + u, row * 3456))
                m = e >> 1
                vo = v1 if u == 0 else v2
                a('buffer_load_dword v%d, v%d, %s, s%d offen' % (W(0, u) + m, vo, srd(sWQ), st))
                a('buffer_load_dword v%d, v%d, %s, s%d offen offset:3456' % (W(1, u) + m, vo, srd(sWQ), st))

    def coop_id(self, dst):
        a = self.a
        a('s_lshl_b32 s%d, s%d, 4' % (dst, sSet))
        a('s_add_u32 s%d, s%d, s%d' % (dst, dst, sHG))
        a('s_lshl_b32 s%d, s%d, 2' % (dst, dst))
        a('s_add_u32 s%d, s%d, s%d' % (dst, dst, sWv))

    def coop_store(self, tmp):
        a = self.a
        self.ones_mask(tmp, tmp + 1)
        self.wload_perm(range(2), tmp, tmp + 2)
        self.coop_id(sT + 2)
        a('s_mul_i32 s%d, s%d, %d' % (sT + 2, sT + 2, 36864))
        a('s_add_u32 s%d, s%d, %d' % (sT + 2, sT + 2, WS_CIMG))
        a('s_lshl_b32 s%d, s%d, 11' % (sT + 3, sTG))
        a('s_add_u32 s%d, s%d, s%d' % (sT + 3, sT + 3, sT + 2))
        a('v_lshlrev_b32 v%d, 4, v%d' % (tmp + 4, vLane))
        a('buffer_store_dwordx4 %s, v%d, %s, s%d offen sc1' % (vr(W(0, 0)), tmp + 4, srd(sWS), sT + 3))
        a('buffer_store_dwordx4 %s, v%d, %s, s%d offen offset:1024 sc1' % (vr(W(1, 0)), tmp + 4, srd(sWS), sT + 3))
        L = a.uid('Lcs')
        a('s_cmp_ge_u32 s%d, 2' % sTG)
        a('s_cbranch_scc1 %s' % L)
        a('s_add_u32 s%d, s%d, %d' % (sT + 3, sT + 3, 16 * 2048))
        a('buffer_store_dwordx4 %s, v%d, %s, s%d offen sc1' % (vr(W(0, 1)), tmp + 4, srd(sWS), sT + 3))
        a('buffer_store_dwordx4 %s, v%d, %s, s%d offen offset:1024 sc1' % (vr(W(1, 1)), tmp + 4, srd(sWS), sT + 3))
        a.label(L)

    def coop_flag(self, tmp):
        a = self.a
        self.coop_id(sT + 2)
        a('s_lshl_b32 s%d, s%d, 4' % (sT + 2, sT + 2))
        a('s_add_u32 s%d, s%d, s%d' % (sT + 2, sT + 2, sTG))
        a('s_lshl_b32 s%d, s%d, 3' % (sT + 2, sT + 2))
        a('s_add_u32 s%d, s%d, %d' % (sT + 2, sT + 2, WS_CFLG))
        self.store_nonce_flag(sT + 2, tmp)

    def coop_load(self, tmp):
        a = self.a
        self.coop_id(sT + 2)
        a('s_lshl_b32 s%d, s%d, 7' % (sT + 3, sT + 2))
        a('s_add_u32 s%d, s%d, %d' % (sT + 3, sT + 3, WS_CFLG))
        a('v_and_b32 v%d, 15, v%d' % (tmp + 2, vLane))
        a('v_lshlrev_b32 v%d, 3, v%d' % (tmp + 2, tmp + 2))
        self.poll_nonce_flags(sT + 3, tmp + 2, tmp, 15)
        a('s_mul_i32 s%d, s%d, %d' % (sT + 2, sT + 2, 36864))
        a('s_add_u32 s%d, s%d, %d' % (sT + 2, sT + 2, WS_CIMG))
        a('v_lshlrev_b32 v%d, 4, v%d' % (tmp + 2, vLane))
        for n in range(36):
            if n % 4 == 0 and n:
                a('s_add_u32 s%d, s%d, 4096' % (sT + 2, sT + 2))
            a('buffer_load_dwordx4 %s, v%d, %s, s%d offen offset:%d sc1' % (vr(vW + 4 * n), tmp + 2, srd(sWS), sT + 2, (n % 4) * 1024))

    def wou_issue(self, D, tmp):
        a = self.a
        i, q, t2, t3, vo, SEL = tmp, tmp + 1, tmp + 2, tmp + 3, tmp + 4, tmp + 5
        a('v_and_b32 v%d, 15, v%d' % (i, vLane))
        a('v_lshrrev_b32 v%d, 4, v%d' % (q, vLane))
        a('v_lshrrev_b32 v%d, 1, v%d' % (t2, q))
        a('v_mul_u32_u24 v%d, 18, v%d' % (t2, t2))
        a('v_and_b32 v%d, 1, v%d' % (t3, q))
        a('v_lshl_add_u32 v%d, v%d, 3, v%d' % (t2, t3, t2))
        a('v_mul_u32_u24 v%d, 72, v%d' % (t3, q))
        a('s_cmp_ge_u32 s%d, 2' % sWv)
        a('s_cselect_b64 vcc, -1, 0')
        a('v_cndmask_b32 v%d, v%d, v%d, vcc' % (t2, t2, t3))
        a('v_mul_u32_u24 v%d, 1152, v%d' % (vo, t2))
        a('v_lshlrev_b32 v%d, 2, v%d' % (t2, i))
        a('v_and_b32 v%d, 2, v%d' % (t3, i))
        a('v_lshlrev_b32 v%d, 1, v%d' % (t3, t3))
        a('v_add_u32 v%d, 64, v%d' % (t3, t3))
        a('s_and_b32 s%d, s%d, 1' % (sT, sWv))
        a('s_cmp_eq_u32 s%d, 1' % sT)
        a('s_cselect_b64 vcc, -1, 0')
        a('v_cndmask_b32 v%d, v%d, v%d, vcc' % (t2, t2, t3))
        a('s_mul_i32 s%d, s%d, 72' % (sT, sHG))
        a('v_add3_u32 v%d, v%d, v%d, s%d' % (vo, vo, t2, sT))
        a('v_and_b32 v%d, 1, v%d' % (t2, i))
        a('v_cmp_eq_u32 vcc, 1, v%d' % t2)
        a('v_mov_b32 v%d, s%d' % (t2, sSelLo))
        a('v_mov_b32 v%d, s%d' % (t3, sSelHi))
        a('v_cndmask_b32 v%d, v%d, v%d, vcc' % (SEL, t2, t3))
        a('s_mul_i32 s%d, s%d, %d' % (sT + 2, sTG, 36 * 1152))
        a('s_and_b32 s%d, s%d, 1' % (sT + 3, sTG))
        a('s_mul_i32 s%d, s%d, %d' % (sT + 3, sT + 3, 288 * 1152))
        a('s_cmp_ge_u32 s%d, 2' % sWv)
        for e in range(0, 8, 2):
            r0 = e * 1152
            r1 = (36 * (e >> 2) + 18 * ((e >> 1) & 1) + 16) * 1152
            a('s_cselect_b32 s%d, s%d, s%d' % (sT, sT + 3, sT + 2))
            a('s_cselect_b32 s%d, %d, %d' % (sT + 1, r1, r0)) if False else None
            a('s_mov_b32 s%d, %d' % (sT + 4, r0))
            a('s_mov_b32 s%d, %d' % (sT + 5, r1))
            a('s_cselect_b32 s%d, s%d, s%d' % (sT + 1, sT + 5, sT + 4))
            a('s_lshl_b32 s%d, s%d, 0' % (sT + 6, sT)) if False else None
            m = e >> 1
            a('s_add_u32 s%d, s%d, s%d' % (sT + 6 + (m & 1), sT, sT + 1))
            a('buffer_load_dword v%d, v%d, %s, s%d offen' % (D + m, vo, srd(sWO), sT + 6 + (m & 1)))
            a('buffer_load_dword v%d, v%d, %s, s%d offen offset:1152' % (D + 4 + m, vo, srd(sWO), sT + 6 + (m & 1)))
            a('s_cmp_ge_u32 s%d, 2' % sWv)

    def wou_ids(self):
        a = self.a
        a('s_lshl_b32 s%d, s%d, 4' % (sT + 2, sSet))
        a('s_add_u32 s%d, s%d, s%d' % (sT + 2, sT + 2, sHG))
        a('s_and_b32 s%d, s%d, 1' % (sT + 3, sTG))
        a('s_add_u32 s%d, s%d, 16' % (sT + 3, sT + 3))
        a('s_cmp_ge_u32 s%d, 2' % sWv)
        a('s_cselect_b32 s%d, s%d, s%d' % (sT + 3, sT + 3, sTG))

    def wou_store(self, D, tmp):
        a = self.a
        SEL = tmp + 5
        Lskip, Lk1 = a.uid('Lwus'), a.uid('Lwuk')
        a('s_lshr_b32 s%d, s%d, 1' % (sT, sWv))
        a('s_lshr_b32 s%d, s%d, 1' % (sT + 1, sTG))
        a('s_min_u32 s%d, s%d, s%d' % (sT, sT, sT + 1))
        a('s_cmp_lg_u32 s%d, 0' % sT)
        a('s_cbranch_scc1 %s' % Lskip)
        self.wou_ids()
        a('s_mul_i32 s%d, s%d, %d' % (sT + 2, sT + 2, WIS))
        a('s_mul_i32 s%d, s%d, 2304' % (sT + 3, sT + 3))
        a('s_add_u32 s%d, s%d, s%d' % (sT + 2, sT + 2, sT + 3))
        a('s_add_u32 s%d, s%d, %d' % (sT + 2, sT + 2, WS_WIMG))
        a('s_and_b32 s%d, s%d, 1' % (sT, sWv))
        a('s_cmp_eq_u32 s%d, 1' % sT)
        a('s_cbranch_scc1 %s' % Lk1)
        for m in range(4):
            r0, r1 = D + m, D + 4 + m
            t = tmp + (m & 1)
            a('v_perm_b32 v%d, v%d, v%d, s%d' % (t, r1, r0, sSelLo))
            a('v_perm_b32 v%d, v%d, v%d, s%d' % (r1, r1, r0, sSelHi))
            a('v_mov_b32 v%d, v%d' % (r0, t))
        a('v_lshlrev_b32 v%d, 4, v%d' % (tmp, vLane))
        a('buffer_store_dwordx4 %s, v%d, %s, s%d offen sc1' % (vr(D), tmp, srd(sWS), sT + 2))
        a('buffer_store_dwordx4 %s, v%d, %s, s%d offen offset:1024 sc1' % (vr(D + 4), tmp, srd(sWS), sT + 2))
        a('s_branch %s' % Lskip)
        a.label(Lk1)
        for m in range(4):
            a('v_perm_b32 v%d, v%d, v%d, v%d' % (D + m, D + 4 + m, D + m, SEL))
        a('v_and_b32 v%d, 15, v%d' % (tmp, vLane))
        a('v_cmp_gt_u32 vcc, 4, v%d' % tmp)
        a('v_lshlrev_b32 v%d, 4, v%d' % (tmp, tmp))
        a('v_lshrrev_b32 v%d, 4, v%d' % (tmp + 1, vLane))
        a('v_lshl_add_u32 v%d, v%d, 6, v%d' % (tmp, tmp + 1, tmp))
        a('s_mov_b64 exec, vcc')
        a('buffer_store_dwordx4 %s, v%d, %s, s%d offen offset:2048 sc1' % (vr(D), tmp, srd(sWS), sT + 2))
        a('s_mov_b64 exec, -1')
        a.label(Lskip)

    def wou_flag(self, tmp):
        a = self.a
        Lskip = a.uid('Lwuf')
        a('s_lshr_b32 s%d, s%d, 1' % (sT, sWv))
        a('s_lshr_b32 s%d, s%d, 1' % (sT + 1, sTG))
        a('s_min_u32 s%d, s%d, s%d' % (sT, sT, sT + 1))
        a('s_cmp_lg_u32 s%d, 0' % sT)
        a('s_cbranch_scc1 %s' % Lskip)
        self.wou_ids()
        a('s_lshl_b32 s%d, s%d, 9' % (sT + 2, sT + 2))
        a('s_and_b32 s%d, s%d, 1' % (sT, sWv))
        a('s_mul_i32 s%d, s%d, 18' % (sT, sT))
        a('s_add_u32 s%d, s%d, s%d' % (sT + 3, sT + 3, sT))
        a('s_lshl_b32 s%d, s%d, 3' % (sT + 3, sT + 3))
        a('s_add_u32 s%d, s%d, s%d' % (sT + 2, sT + 2, sT + 3))
        a('s_add_u32 s%d, s%d, %d' % (sT + 2, sT + 2, WS_WFLG))
        self.store_nonce_flag(sT + 2, tmp)
        a.label(Lskip)

    def wo_stage(self, async_=False):
        a = self.a
        TMP = 88
        Lok = a.uid('Lwook')
        a('s_lshl_b32 s%d, s%d, 4' % (sT + 2, sSet))
        a('s_add_u32 s%d, s%d, s%d' % (sT + 2, sT + 2, sHG))
        a('s_cmp_lg_u32 s%d, 0' % sWoOk)
        a('s_cbranch_scc1 %s' % Lok)
        a('s_lshl_b32 s%d, s%d, 9' % (sT + 3, sT + 2))
        a('s_add_u32 s%d, s%d, %d' % (sT + 3, sT + 3, WS_WFLG))
        a('v_min_u32 v%d, 35, v%d' % (TMP + 2, vLane))
        a('v_lshlrev_b32 v%d, 3, v%d' % (TMP + 2, TMP + 2))
        self.poll_nonce_flags(sT + 3, TMP + 2, TMP, 16)
        a('s_mov_b32 s%d, 1' % sWoOk)
        a.label(Lok)
        a('s_mul_i32 s%d, s%d, %d' % (sT + 2, sT + 2, WIS))
        a('s_mul_i32 s%d, s%d, 10240' % (sT + 3, sWv))
        a('s_add_u32 s%d, s%d, s%d' % (sT + 2, sT + 2, sT + 3))
        a('s_add_u32 s%d, s%d, %d' % (sBase, sT + 2, WS_WIMG))
        a('s_add_u32 s%d, s%d, %d' % (sBase2, sT + 3, L_WO))
        a('v_lshlrev_b32 v%d, 4, v%d' % (TMP + 4, vLane))
        self.wait_flag(F_WF, sLayer, TMP, 9)
        self.wait_flag(F_WG, sLayer, TMP, 14)
        for n in range(11):
            if n % 4 == 0:
                a('s_add_u32 s%d, s%d, %d' % (sT, sBase, n * 1024))
                a('s_add_u32 s%d, s%d, %d' % (sT + 1, sBase2, n * 1024))
                a('s_mov_b32 m0, s%d' % (sT + 1))
            if n == 10:
                a('s_mov_b32 exec_hi, 0')
            a('buffer_load_dwordx4 v%d, %s, s%d offen offset:%d sc1 lds' % (TMP + 4, srd(sWS), sT, (n % 4) * 1024))
        a('s_mov_b64 exec, -1')
        if not async_:
            a('s_waitcnt vmcnt(0)')
            self.set_flag(F_WR, sLayer, TMP, add=1)
        self.tr(30)

    ORDER = [3, 1, 2, 0]
    UNIT = [0, 1, 8, 9, 3, 4, 11, 12, 2, 6, 10, 14, 5, 7, 13, 15]

    def kv_base(self, dst, layer_sreg_or_const, tg_add):
        a = self.a
        if isinstance(layer_sreg_or_const, str):
            a('s_lshl_b32 s%d, %s, 5' % (dst, layer_sreg_or_const))
        else:
            a('s_mov_b32 s%d, %d' % (dst, layer_sreg_or_const * 32))
        a('s_lshl_b32 s%d, s%d, 1' % (sT + 1, sTG))
        a('s_add_u32 s%d, s%d, s%d' % (dst, dst, sT + 1))
        a('s_add_u32 s%d, s%d, s%d' % (dst, dst, sP))
        a('s_lshl_b32 s%d, s%d, 4' % (dst, dst))
        a('s_add_u32 s%d, s%d, s%d' % (dst, dst, sHG))
        a('s_mul_i32 s%d, s%d, %d' % (dst, dst, KVT))
        a('s_add_u32 s%d, s%d, %d' % (dst, dst, WS_KV + tg_add * 32 * KVT))

    def kv_prefill(self, tmp):
        a = self.a
        a('v_lshlrev_b32 v%d, 4, v%d' % (tmp, vLane))
        a('s_mul_i32 s%d, s%d, 576' % (sT, sWv))
        a('v_add_u32 v%d, s%d, v%d' % (tmp, sT, tmp))
        for i in range(4):
            a('v_mov_b32 v%d, -1' % (tmp + 2 + i))
        a('s_mov_b32 s%d, 0' % sP)
        self.kv_base(sT + 2, 's%d' % sSet, 0)
        a('s_mov_b32 exec_lo, -1')
        a('s_mov_b32 exec_hi, 15')
        for l2 in range(2):
            for p_ in range(2):
                a('s_add_u32 s%d, s%d, %d' % (sT + 3, sT + 2, (l2 * 64 + p_) * 16 * KVT))
                a('buffer_store_dwordx4 %s, v%d, %s, s%d offen sc1' % (vr(tmp + 2), tmp, srd(sWS), sT + 3))
        a('s_mov_b64 exec, -1')

    def m_prep(self):
        a = self.a
        XA, TMP = 95, 40
        a('s_lshl_b32 s%d, s%d, 1' % (sN, sLayer))
        a('s_add_u32 s%d, s%d, s%d' % (sN, sN, sP))
        a('s_lshl_b32 s%d, s%d, 2' % (sG, sN))
        a('v_lshrrev_b32 v%d, 4, v%d' % (TMP, vLane))
        a('v_and_b32 v%d, 15, v%d' % (TMP + 1, vLane))
        self.swz(XA, TMP, TMP + 1, TMP + 2)
        a('v_add_u32 v%d, %d, v%d' % (XA + 1, 2 * MT, XA))
        a('v_lshlrev_b32 v%d, 3, v%d' % (TMP + 1, TMP + 1))
        a('v_lshl_add_u32 v%d, v%d, 8, v%d' % (XA + 2, TMP, TMP + 1))
        a('v_add_u32 v%d, 16384, v%d' % (XA + 2, XA + 2))

    def pub_pending(self, tmp, soft=False):
        a = self.a
        Ln = a.uid('Lnopub')
        a('s_cmp_eq_u32 s%d, 0' % sPub)
        if soft:
            a.softbranch('s_cbranch_scc1 %s' % Ln)
        else:
            a('s_cbranch_scc1 %s' % Ln)
        a('s_mov_b32 s%d, 0' % sPub)
        a('s_mov_b32 s%d, 0' % sP)
        self.both_modes(lambda sc: self.publish_event(0, tmp, sc))
        a('s_mov_b32 s%d, 1' % sP)
        a.label(Ln, noflush=soft)

    def m_role(self):
        a = self.a
        a.label('L_M_ROLE')
        a('s_mov_b32 s%d, 0' % sP)
        a.label('L_M_TASK')
        self.m_prep()
        a.label('L_M_GO')
        Lown = a.uid('Lown')
        a('s_cmp_eq_u32 s%d, 0' % sOwn)
        a('s_cbranch_scc1 %s' % Lown)
        a('s_waitcnt vmcnt(15)')
        self.set_flag(F_XR, sG, 40, add=1)
        a.label(Lown)
        self.kv_base(sBase, 's%d' % sLayer, 0)
        a('s_sub_u32 s%d, s%d, %d' % (sBase2, sBase, 32 * KVT))
        a('s_add_u32 s%d, s%d, 1' % (sT + 7, sG))
        Lrdy = a.uid('Lrdy')
        a('ds_read_b128 %s, v%d offset:%d' % (vr(40), vFlag, F_XR))
        a('s_waitcnt lgkmcnt(0)')
        self.flag_min(40)
        a('s_nop 1')
        a('s_cmp_ge_u32 s%d, s%d' % (sT + 8, sT + 7))
        a('s_cbranch_scc1 %s' % Lrdy)
        self.pub_pending(44)
        self.wait_flag(F_XR, sT + 7, 40, 1)
        a.label(Lrdy)
        if True:
            a('s_setprio 0')
        self.tr(11)
        for w in range(1, 4):
            a('s_cmp_eq_u32 s%d, %d' % (sWv, w))
            a('s_cbranch_scc1 L_A_W%d' % w)
        for w in range(4):
            a.label('L_A_W%d' % w)
            self.a_phase(w)
            if w < 3:
                a('s_branch L_M_EPI')
        a.label('L_M_EPI')
        if True:
            a('s_setprio %s' % '2')
        self.tr(12)
        self.attention()
        self.tr(15)
        a('s_add_u32 s%d, s%d, 1' % (sP, sP))
        a('s_cmp_lt_u32 s%d, 2' % sP)
        a('s_cbranch_scc1 L_M_TASK')
        a('s_mov_b32 s%d, 1' % sP)
        a('s_branch L_BPHASE')

    def a_phase(self, w):
        a = self.a
        ORDER = self.ORDER
        ACC = lambda s, t: (s * 2 + t) * 4
        G0, FL = 32, 36
        NB = 8
        RB = lambda i: 40 + 4 * (i % NB)
        QB, BPA, T3 = 72, 73, 74
        KD, KA = 76, 88
        XA = 95
        XT = 98
        LT = 99
        lds = []

        def L(tag, text):
            a(text)
            lds.append(tag)

        def wait_for(tag):
            idx = max(i for i, t in enumerate(lds) if t == tag)
            a('s_waitcnt lgkmcnt(%d)' % min(len(lds) - 1 - idx, 15))
        I = lambda text: (lambda: a(text))
        seq = [(u, ks) for u in range(4) for ks in range(18)]

        def rd(i):
            u, ks = seq[i]
            mt = ORDER[u]
            if ks < 16:
                L(('r', i), 'ds_read_b128 %s, v%d offset:%d' % (vr(RB(i)), XA + (mt >> 1), (mt & 1) * MT + ks * 1024))
            else:
                o = 128 * (ks - 16)
                L(('r', i), 'ds_read2_b64 %s, v%d offset0:%d offset1:%d' % (vr(RB(i)), XT, o, o + 16))
        PF = NB - 1
        chains = []

        def put(step, fns, deadline=10 ** 9):
            chains.append([step, deadline, list(fns)])

        def chk(off, tgt_fn, tag, code):
            def fin():
                Lok = a.uid('Lck')
                a('s_cmp_ge_u32 s%d, s%d' % (sT + 8, sT + 7))
                a.softbranch('s_cbranch_scc1 %s' % Lok)
                self.wait_flag(off, sT + 7, FL, code)
                a.label(Lok, noflush=True)
            return [lambda: L(tag, 'ds_read_b128 %s, v%d offset:%d' % (vr(FL), vFlag, off)),
                    I('s_nop 0'), I('s_nop 0'), I('s_nop 0'), tgt_fn,
                    lambda: (wait_for(tag), a('v_min3_u32 v%d, v%d, v%d, v%d' % (FL, FL, FL + 1, FL + 2))),
                    I('v_min_u32 v%d, v%d, v%d' % (FL, FL, FL + 3)),
                    I('s_nop 0'),
                    I('v_readfirstlane_b32 s%d, v%d' % (sT + 8, FL)),
                    I('s_nop 0'), fin]

        def setf_items(off, val, add, own_vm=None):
            def fin():
                if own_vm is None:
                    L('f', 'ds_write_b32 v%d, v%d offset:%d' % (vFlag, LT, off + 4 * w))
                else:
                    Lo = a.uid('Lop')
                    a('s_cmp_eq_u32 s%d, 0' % sOwn)
                    a.softbranch('s_cbranch_scc1 %s' % Lo)
                    a('s_waitcnt vmcnt(%d)' % own_vm)
                    a('ds_write_b32 v%d, v%d offset:%d' % (vFlag, LT, off + 4 * w))
                    a.label(Lo, noflush=True)
            return [I('s_add_u32 s%d, s%d, %d' % (sT + 6, val, add)),
                    I('v_mov_b32 v%d, s%d' % (LT, sT + 6)), fin]

        def epi_items(s):
            mt = ORDER[s]
            nm = T3
            it = [lambda: L(('m', s), 'ds_bpermute_b32 v%d, v%d, v%d' % (nm, BPA, ACC(s, 0) + 2))]
            G = G0
            if s == w:
                it += [I('v_add_u32 v%d, 0x%x, v%d' % (G + 2, L_ST + 64 * (mt + 1) - 192, BPA))]
            it.append(lambda: (wait_for(('m', s)), a('v_mul_f32 v%d, 0xbae38e39, v%d' % (nm, nm))))
            for t in range(2):
                for r in range(4):
                    it.append(I('v_fma_f32 v%d, v%d, v%d, v%d' % (ACC(s, t) + r, nm, vCS + 4 * t + r, ACC(s, t) + r)))
            for r in range(4):
                it.append(I('v_cvt_pk_bf16_f32 v%d, v%d, v%d' % (ACC(s, 0) + r, ACC(s, 0) + r, ACC(s, 1) + r)))
            if s == 0 and w > 0:
                def kvst():
                    a('s_mov_b32 exec_lo, 0xff00ff00')
                    a('s_mov_b32 exec_hi, 0xff00ff00')
                    a('buffer_store_dwordx4 %s, v%d, %s, s%d offen sc1' % (vr(ACC(0, 0)), KA, srd(sWS), sBase))
                    a('s_mov_b64 exec, -1')
                it.append(kvst)
            it.append(lambda: L('w', 'ds_write_b128 v%d, %s offset:%d' % (QB, vr(ACC(s, 0)), 16 * (mt + 1) * QP)))
            if s == w:
                def wr():
                    a('s_mov_b64 exec, 0xffff')
                    L('w', 'ds_write_b32 v%d, v%d' % (G + 2, G))
                    if w == 0:
                        a('s_mov_b64 exec, 0xff00')
                        a('buffer_store_dword v%d, v%d, %s, s%d offen offset:%d sc1' % (G, BPA, srd(sWS), sBase, 2048 - 192 - 32))
                    a('s_mov_b64 exec, -1')
                it += [I('v_fma_f32 v%d, -v%d, v%d, v%d' % (G, nm, nm, G)),
                       I('v_max_f32 v%d, 0, v%d' % (G, G)),
                       I('v_add_f32 v%d, 0x3727c5ac, v%d' % (G, G)),
                       I('v_rsq_f32 v%d, v%d' % (G, G)),
                       wr]
            return it
        pre = [I('v_and_b32 v%d, 15, v%d' % (T3, vLane)),
               I('v_add_u32 v%d, 48, v%d' % (BPA, T3)),
               I('v_lshlrev_b32 v%d, 2, v%d' % (BPA, BPA)),
               I('v_lshrrev_b32 v%d, 4, v%d' % (T3 + 1, vLane)),
               I('v_lshlrev_b32 v%d, 3, v%d' % (T3 + 1, T3 + 1)),
               I('s_mov_b32 s%d, 0x%x' % (sT + 5, sum((16 * self.UNIT[(3 * w + a_) if a_ < 3 else 12 + w]) << (8 * a_) for a_ in range(4)))),
               I('v_bfe_u32 v%d, s%d, v%d, 8' % (QB, sT + 5, T3 + 1))]
        if w > 0:
            pre += [I('v_and_b32 v%d, 7, v%d' % (KA, vLane)),
                    I('v_lshl_add_u32 v%d, v%d, 8, v%d' % (KA, KA, QB))]
        pre += [I('v_mul_u32_u24 v%d, %d, v%d' % (T3, QP, T3)),
                I('v_add_u32 v%d, 0x%x, v%d' % (T3, L_QKV, T3)),
                I('v_add_u32 v%d, v%d, v%d' % (QB, QB, T3))]
        put(0, pre, 10)
        put(5, [lambda: self.pub_pending(92, soft=True)], 5)
        G = G0
        put(18 * w + 6, [I('v_lshrrev_b32 v%d, 4, v%d' % (G, vLane)),
                         I('v_lshl_add_u32 v%d, v%d, 8, v%d' % (G, G, BPA)),
                         I('v_add_u32 v%d, 0x%x, v%d' % (G, ORDER[w] * MT + 18432 - 192, G)),
                         lambda: L('s2', 'ds_read2_b32 %s, v%d offset0:32 offset1:48' % (vr(G + 2, 2), G)),
                         lambda: L('s1', 'ds_read2_b32 %s, v%d offset0:0 offset1:16' % (vr(G, 2), G)),
                         I('s_nop 0'), I('s_nop 0'), I('s_nop 0'),
                         lambda: (wait_for('s1'), a('v_add_f32 v%d, v%d, v%d' % (G, G, G + 1))),
                         I('v_add_f32 v%d, v%d, v%d' % (G + 2, G + 2, G + 3)),
                         I('v_add_f32 v%d, v%d, v%d' % (G, G, G + 2)),
                         I('v_mov_b32 v%d, v%d' % (G + 1, G)),
                         I('v_permlane32_swap_b32 v%d, v%d' % (G, G + 1)),
                         I('v_add_f32 v%d, v%d, v%d' % (G, G, G + 1)),
                         I('v_mov_b32 v%d, v%d' % (G + 1, G)),
                         I('v_permlane16_swap_b32 v%d, v%d' % (G, G + 1)),
                         I('v_add_f32 v%d, v%d, v%d' % (G, G, G + 1)),
                         I('v_mul_f32 v%d, 0x3ae38e39, v%d' % (G, G))], 18 * w + 17)
        for k in range(1, 4):
            st = 18 * k - PF - 1
            put(6 * k - 5, setf_items(F_XR, sG, k + 1, own_vm=15 - 5 * k), 6 * k - 2)
            put(st - 7 if k > 1 else 5,
                chk(F_XR, I('s_add_u32 s%d, s%d, %d' % (sT + 7, sG, k + 1)), ('xr', k), 2), st)
        put(11, chk(F_QF, I('s_mov_b32 s%d, s%d' % (sT + 7, sN)), 'qf', 3), 17)
        for s_ in range(3):
            put(18 * (s_ + 1) + 3, epi_items(s_), (27 if s_ == 0 else 56) if s_ < 2 else 71)
        if w == 0:
            def kvld():
                a('buffer_load_dwordx4 %s, v%d, %s, s%d offen sc1' % (vr(KD), KA, srd(sWS), sBase2))
                a('buffer_load_dwordx4 %s, v%d, %s, s%d offen offset:1024 sc1' % (vr(KD + 4), KA, srd(sWS), sBase2))
                a('buffer_load_dword v%d, v%d, %s, s%d offen offset:2048 sc1' % (KD + 8, KA + 1, srd(sWS), sBase2))

            def kvaddr2():
                a('s_cmp_eq_u32 s%d, 0' % sTG)
                a('s_cselect_b64 vcc, -1, 0')
                a('v_cndmask_b32 v%d, v%d, v%d, vcc' % (KA, KA, KA + 2))
                a('v_cndmask_b32 v%d, v%d, v%d, vcc' % (KA + 1, KA + 1, KA + 2))

            def kvchk():
                Lrt, Lok, Lnf = a.uid('Lkrt'), a.uid('Lkok'), a.uid('Lknf')
                a('s_cmp_lg_u32 s%d, 0' % sN)
                a.softbranch('s_cbranch_scc1 %s' % Lnf)
                self.init_check(40)
                a('s_branch %s' % Lrt)
                a.label(Lnf, noflush=True)
                a('s_and_b64 vcc, vcc, s[%d:%d]' % (sKm, sKm + 1))
                a.softbranch('s_cbranch_scc0 %s' % Lok)
                a.label(Lrt)
                self.budget_check(5)
                kvld()
                a('s_waitcnt vmcnt(0)')
                self.sentinel_vcc(range(KD, KD + 9), FL)
                a('s_nop 1')
                a('s_and_b64 vcc, vcc, s[%d:%d]' % (sKm, sKm + 1))
                a('s_cbranch_scc1 %s' % Lrt)
                a.label(Lok, noflush=True)
            kv = [I('v_lshlrev_b32 v%d, 4, v%d' % (KA, vLane)),
                  I('v_and_b32 v%d, 7, v%d' % (KA + 1, vLane)),
                  I('v_lshlrev_b32 v%d, 2, v%d' % (KA + 1, KA + 1)),
                  I('v_add_u32 v%d, 0x%x, v%d' % (KA + 3, L_ST + 32, KA + 1)),
                  I('v_mov_b32 v%d, 0x%x' % (KA + 2, OOB)),
                  kvaddr2]
            put(30, kv, 46)
            put(60, [kvld], 60)
            kv2 = [I('v_lshrrev_b32 v%d, 4, v%d' % (KA + 2, vLane)),
                   I('v_mul_u32_u24 v%d, %d, v%d' % (KA + 2, QP, KA + 2)),
                   I('v_and_b32 v%d, 15, v%d' % (KD + 9, vLane)),
                   I('v_lshl_add_u32 v%d, v%d, 4, v%d' % (KA + 2, KD + 9, KA + 2)),
                   I('v_add_u32 v%d, 0x%x, v%d' % (KA + 2, L_QKV + 8 * QP, KA + 2))]
            put(61, kv2, 68)
            kv3 = [I('s_waitcnt vmcnt(0)'),
                   I('v_max3_u32 v%d, v%d, v%d, v%d' % (FL, KD, KD + 1, KD + 2)),
                   I('v_max3_u32 v%d, v%d, v%d, v%d' % (FL, FL, KD + 3, KD + 4)),
                   I('v_max3_u32 v%d, v%d, v%d, v%d' % (FL, FL, KD + 5, KD + 6)),
                   I('v_max3_u32 v%d, v%d, v%d, v%d' % (FL, FL, KD + 7, KD + 8)),
                   I('v_cmp_eq_u32 vcc, -1, v%d' % FL),
                   I('s_nop 0'), I('s_nop 0')]
            post = kv3 + [kvchk,
                    lambda: L('w', 'ds_write_b128 v%d, %s' % (KA + 2, vr(KD))),
                    lambda: L('w', 'ds_write_b128 v%d, %s offset:%d' % (KA + 2, vr(KD + 4), 4 * QP)),
                    lambda: L('w', 'ds_write_b32 v%d, v%d' % (KA + 3, KD + 8))]
        else:
            def ini():
                Lnf = a.uid('Lknf')
                a('s_cmp_lg_u32 s%d, 0' % sN)
                a('s_cbranch_scc1 %s' % Lnf)
                self.init_check(40)
                a.label(Lnf)
            post = [ini]
        a('v_add_u32 v%d, %d, v%d' % (XT, ORDER[0] * MT, XA + 2))
        for i in range(PF):
            rd(i)
        done_upto = [-1]

        def need(i):
            idx = max(k for k, t in enumerate(lds) if t == ('r', i))
            if idx <= done_upto[0]:
                return
            tgt = ('r', i + 1) if ('r', i + 1) in lds else ('r', i)
            idx2 = max(k for k, t in enumerate(lds) if t == tgt)
            a('s_waitcnt lgkmcnt(%d)' % min(len(lds) - 1 - idx2, 15))
            done_upto[0] = idx2

        def fill(step, n):
            cnt = 0
            while True:
                cand = [c for c in chains if c[2] and c[0] <= step]
                if not cand:
                    return
                c = min(cand, key=lambda c: (c[1] - step) * 3 - len(c[2]))
                if cnt >= n and (c[1] - step) * 3 >= len(c[2]):
                    return
                c[2].pop(0)()
                cnt += 1
        for i in range(72):
            u, ks = seq[i]
            if os.environ.get('FINE') and ks == 0 and u > 0:
                self.tr(50 + u)
            need(i)
            a(mfma(ACC(u, 0), W(0, ks), RB(i), ks == 0))
            fill(i, 2)
            a(mfma(ACC(u, 1), W(1, ks), RB(i), ks == 0))
            used = 0
            j = i + PF
            if j < 72:
                if seq[j][1] == 16 and seq[j][0] > 0:
                    a('v_add_u32 v%d, %d, v%d' % (XT, ORDER[seq[j][0]] * MT, XA + 2))
                    used += 1
                rd(j)
                used += 1
            nxt = 0
            if i + 1 < 72:
                idx = max(k for k, t in enumerate(lds) if t == ('r', i + 1))
                nxt = 1 if idx > done_upto[0] else 0
            fill(i, max(0, 2 - used - nxt))
        for c in chains:
            for fn in c[2]:
                fn()
        a('s_mov_b32 s%d, 0' % sOwn)
        if os.environ.get('FINE'):
            self.tr(54)
        a('s_setprio 2')
        for fn in setf_items(F_XF, sN, 1) + epi_items(3):
            fn()
        a('s_waitcnt lgkmcnt(0)')
        for fn in setf_items(F_QR, sN, 1) + post:
            fn()

    def attention(self):
        a = self.a
        Q = 0
        K = 12
        RK = 60
        RO = 64
        S = 65
        AD = 70
        T = 76
        il, hh, j, R = 84, 85, 86, 87
        SA = 88
        a('v_lshrrev_b32 v%d, 2, v%d' % (il, vLane))
        a('v_bfe_u32 v%d, v%d, 1, 1' % (hh, vLane))
        a('v_and_b32 v%d, 1, v%d' % (j, vLane))
        a('s_lshl_b32 s%d, s%d, 4' % (sT, sWv))
        a('s_add_u32 s%d, s%d, 16' % (sT, sT))
        a('v_add_u32 v%d, s%d, v%d' % (R, sT, il))
        a('v_mul_u32_u24 v%d, %d, v%d' % (T, QP, R))
        a('v_add_u32 v%d, 0x%x, v%d' % (T, L_QKV, T))
        a('v_lshl_add_u32 v%d, v%d, 7, v%d' % (AD, hh, T))
        a('v_lshl_add_u32 v%d, v%d, 2, v%d' % (AD + 1, hh, T))
        a('v_mul_u32_u24 v%d, %d, v%d' % (T + 1, 4 * QP, j))
        a('v_add_u32 v%d, %d, v%d' % (T + 1, 3 * QP, T + 1))
        a('v_sub_u32 v%d, v%d, v%d' % (AD + 2, AD, T + 1))
        a('v_sub_u32 v%d, v%d, v%d' % (AD + 3, AD + 1, T + 1))
        a('v_lshlrev_b32 v%d, 2, v%d' % (T + 2, R))
        a('v_add_u32 v%d, 0x%x, v%d' % (T + 2, L_ST, T + 2))
        a('v_lshlrev_b32 v%d, 4, v%d' % (T + 3, j))
        a('v_add_u32 v%d, 12, v%d' % (T + 3, T + 3))
        a('v_sub_u32 v%d, v%d, v%d' % (T + 3, T + 2, T + 3))
        a('v_lshl_add_u32 v%d, v%d, 6, v%d' % (AD + 4, j, AD))
        a('v_subrev_u32 v%d, %d, v%d' % (AD + 4, 7 * QP, AD + 4))
        a('v_subrev_u32 v%d, %d, v%d' % (AD + 5, 7 * QP, AD + 1))
        a('v_lshl_add_u32 v%d, v%d, 1, v%d' % (T + 4, hh, j))
        a('v_lshlrev_b32 v%d, 8, v%d' % (T + 4, T + 4))
        a('v_lshl_add_u32 v%d, v%d, 4, v%d' % (SA, il, T + 4))
        a('s_lshl_b32 s%d, s%d, 10' % (sT, sHG))
        a('v_add_u32 v%d, s%d, v%d' % (SA, sT, SA))
        a('s_lshl_b32 s%d, s%d, 7' % (sT, sHG))
        a('s_add_u32 s%d, s%d, 16384' % (sT, sT))
        a('v_lshlrev_b32 v%d, 3, v%d' % (T + 4, il))
        a('v_lshl_add_u32 v%d, v%d, 2, v%d' % (T + 4, hh, T + 4))
        a('v_add_u32 v%d, s%d, v%d' % (SA + 1, sT, T + 4))
        a('s_mul_i32 s%d, s%d, %d' % (sBase, sLayer, LSTR))
        a('s_mul_i32 s%d, s%d, %d' % (sT, sP, TILE))
        a('s_add_u32 s%d, s%d, s%d' % (sBase, sBase, sT))
        a('s_add_u32 s%d, s%d, s%d' % (sBase, sBase, sTileW))
        a('s_add_u32 s%d, s%d, 1' % (sT + 7, sN))
        self.wait_flag(F_QR, sT + 7, 92, 4)
        self.tr(14)
        a('ds_read_b128 %s, v%d' % (vr(Q), AD))
        a('ds_read_b128 %s, v%d offset:16' % (vr(Q + 4), AD))
        a('ds_read_b32 v%d, v%d offset:80' % (Q + 8, AD + 1))
        for w in range(4):
            o = (3 - w) * QP
            a('ds_read_b128 %s, v%d offset:%d' % (vr(K + 12 * w), AD + 2, o + 48))
        for w in range(4):
            o = (3 - w) * QP
            a('ds_read_b128 %s, v%d offset:%d' % (vr(K + 12 * w + 4), AD + 2, o + 64))
        for w in range(4):
            o = (3 - w) * QP
            a('ds_read_b32 v%d, v%d offset:%d' % (K + 12 * w + 8, AD + 3, o + 112))
        a('ds_read_b32 v%d, v%d' % (RO, T + 2))
        a('ds_read2_b32 %s, v%d offset0:0 offset1:1' % (vr(RK, 2), T + 3))
        a('ds_read2_b32 %s, v%d offset0:2 offset1:3' % (vr(RK + 2, 2), T + 3))
        a('s_waitcnt lgkmcnt(11)')
        for d in range(9):
            if d == 4:
                a('s_waitcnt lgkmcnt(7)')
            if d == 8:
                a('s_waitcnt lgkmcnt(3)')
            for w in range(4):
                c = '0' if d == 0 else 'v%d' % (S + w)
                a('v_dot2_f32_bf16 v%d, v%d, v%d, %s' % (S + w, Q + d, K + 12 * w + d, c))
        a('s_waitcnt lgkmcnt(0)')
        V = 12
        for w in range(8):
            o = (7 - w) * QP
            a('ds_read_b128 %s, v%d offset:%d' % (vr(V + 6 * w), AD + 4, o + 32))
            a('ds_read_b32 v%d, v%d offset:%d' % (V + 6 * w + 4, AD + 5, o + 208))
        c = struct.unpack('<I', struct.pack('<f', (18 ** -0.5) * 1.4426950408889634))[0]
        a('v_mul_f32 v%d, 0x%x, v%d' % (RO, c, RO))
        for w in range(4):
            a('v_mul_f32 v%d, v%d, v%d' % (S + w, S + w, RK + 3 - w))
        for w in range(4):
            a('v_mul_f32 v%d, v%d, v%d' % (S + w, S + w, RO))
        Lnm = a.uid('Lnomask')
        a('s_or_b32 s%d, s%d, s%d' % (sT, sTG, sWv))
        a('s_cmp_lg_u32 s%d, 0' % sT)
        a('s_cbranch_scc1 %s' % Lnm)
        a('v_lshlrev_b32 v%d, 2, v%d' % (T, j))
        a('v_mov_b32 v%d, 0xf149f2ca' % (T + 2))
        for w in range(4):
            a('v_add_u32 v%d, %d, v%d' % (T + 1, w, T))
            a('v_cmp_lt_u32 vcc, v%d, v%d' % (il, T + 1))
            a('v_cndmask_b32 v%d, v%d, v%d, vcc' % (S + w, S + w, T + 2))
        a.label(Lnm)
        a('v_max3_f32 v%d, v%d, v%d, v%d' % (T, S, S + 1, S + 2))
        a('v_max_f32 v%d, v%d, v%d' % (T, T, S + 3))
        a('v_cmp_eq_u32 vcc, 1, v%d' % j)
        a('v_max_f32_dpp v%d, v%d, v%d quad_perm:[1,0,3,2] row_mask:0xf bank_mask:0xf' % (T + 1, T, T))
        for w in range(4):
            a('v_sub_f32 v%d, v%d, v%d' % (S + w, S + w, T + 1))
        for w in range(4):
            a('v_exp_f32 v%d, v%d' % (S + w, S + w))
        a('v_add_f32 v%d, v%d, v%d' % (T, S, S + 1))
        a('v_add_f32 v%d, v%d, v%d' % (T + 1, S + 2, S + 3))
        a('v_add_f32 v%d, v%d, v%d' % (T, T, T + 1))
        for w in range(4):
            a('v_mul_f32 v%d, v%d, v%d' % (S + w, S + w, RK + 3 - w))
        a('v_add_f32_dpp v%d, v%d, v%d quad_perm:[1,0,3,2] row_mask:0xf bank_mask:0xf' % (T + 1, T, T))
        a('v_rcp_f32 v%d, v%d' % (T + 1, T + 1))
        for w in range(4):
            a('v_mul_f32 v%d, v%d, v%d' % (S + w, S + w, T + 1))
        a('v_cvt_pk_bf16_f32 v%d, v%d, v%d' % (T, S, S + 1))
        a('v_cvt_pk_bf16_f32 v%d, v%d, v%d' % (T + 1, S + 2, S + 3))
        a('v_mov_b32_dpp v%d, v%d quad_perm:[1,0,3,2] row_mask:0xf bank_mask:0xf' % (T + 2, T))
        a('v_mov_b32_dpp v%d, v%d quad_perm:[1,0,3,2] row_mask:0xf bank_mask:0xf' % (T + 3, T + 1))
        PP = 60
        a('v_cndmask_b32 v%d, v%d, v%d, vcc' % (PP, T, T + 2))
        a('v_cndmask_b32 v%d, v%d, v%d, vcc' % (PP + 1, T + 1, T + 3))
        a('v_cndmask_b32 v%d, v%d, v%d, vcc' % (PP + 2, T + 2, T))
        a('v_cndmask_b32 v%d, v%d, v%d, vcc' % (PP + 3, T + 3, T + 1))
        PL = 64
        for pr in range(4):
            a('v_and_b32 v%d, 0xffff, v%d' % (PL + 4 * pr, PP + pr))
            a('v_lshlrev_b32 v%d, 16, v%d' % (PL + 4 * pr + 1, PP + pr))
            a('v_lshrrev_b32 v%d, 16, v%d' % (PL + 4 * pr + 2, PP + pr))
            a('v_and_b32 v%d, 0xffff0000, v%d' % (PL + 4 * pr + 3, PP + pr))
        O = 0
        for w in range(8):
            a('s_waitcnt lgkmcnt(%d)' % (2 * (7 - w)))
            for m in range(5):
                for h in range(2):
                    c = '0' if w == 0 else 'v%d' % (O + 2 * m + h)
                    a('v_dot2_f32_bf16 v%d, v%d, v%d, %s' % (O + 2 * m + h, V + 6 * w + m, PL + 2 * w + h, c))
        for m in range(5):
            a('v_cvt_pk_bf16_f32 v%d, v%d, v%d' % (12 + m, O + 2 * m, O + 2 * m + 1))
        a('s_mov_b32 s%d, 0x55555555' % (sT + 2))
        a('s_mov_b32 s%d, 0x55555555' % (sT + 3))

        def st(sc):
            a('buffer_store_dwordx4 %s, v%d, %s, s%d offen%s' % (vr(12), SA, srd(sWS), sBase, sc))
            a('s_mov_b64 exec, s[%d:%d]' % (sT + 2, sT + 3))
            a('buffer_store_dword v16, v%d, %s, s%d offen%s' % (SA + 1, srd(sWS), sBase, sc))
            a('s_mov_b64 exec, -1')
            self.set_flag(F_QF, sN, 20, add=1)
            Ld = a.uid('Ldefer')
            a('s_mov_b32 s%d, 1' % sPub)
            a('s_cmp_eq_u32 s%d, 0' % sP)
            a('s_cbranch_scc1 %s' % Ld)
            a('s_mov_b32 s%d, 0' % sPub)
            self.publish_event(0, 24, sc)
            a.label(Ld)
        self.both_modes(st)

    def stage_generic(self):
        a = self.a
        TMP = 88
        AV = 84
        Lc = a.uid('Lnocs')
        a('s_cmp_eq_u32 s%d, 0' % sCs)
        a('s_cbranch_scc1 %s' % Lc)
        a('s_waitcnt vmcnt(0)')
        self.colsum(8)
        a('s_mov_b32 s%d, 0' % sCs)
        a.label(Lc)
        self.m_prep()
        Lne = a.uid('Lnoearly')
        a('s_cmp_eq_u32 s%d, 0' % sP)
        a('s_cbranch_scc1 %s' % Lne)
        a('ds_read_b128 %s, v%d offset:%d' % (vr(TMP), vFlag, F_XF))
        a('s_waitcnt lgkmcnt(0)')
        self.flag_min(TMP)
        a('s_nop 1')
        a('s_cmp_ge_u32 s%d, s%d' % (sT + 8, sN))
        a('s_cbranch_scc1 %s' % Lne)
        self.wo_stage(async_=True)
        a('s_mov_b32 s%d, 1' % sWoP)
        a.label(Lne)
        a('v_lshlrev_b32 v%d, 4, v%d' % (AV, vLane))
        a('s_sub_u32 s%d, s%d, 1' % (sT, sLayer))
        a('s_mul_i32 s%d, s%d, %d' % (sT, sT, LSTR))
        a('s_add_u32 s%d, s%d, %d' % (sT, sT, WS_X))
        a('s_mul_i32 s%d, s%d, %d' % (sT + 1, sP, TILE))
        a('s_add_u32 s%d, s%d, s%d' % (sT, sT, sT + 1))
        a('s_add_u32 s%d, s%d, s%d' % (sBase, sT, sTileW))
        a('s_sub_u32 s%d, s%d, s%d' % (sBase, sBase, sMt))
        a('s_mul_i32 s%d, s%d, 4864' % (sBase2, sWv))
        a('s_add_u32 s%d, s%d, s%d' % (sBase, sBase, sBase2))
        a('s_setprio 0')
        self.wait_flag(F_XF, sN, TMP, 6, sleep=1)
        self.tr(20)
        a('v_lshlrev_b32 v%d, 3, v%d' % (TMP + 2, vLane))
        a('s_lshl_b32 s%d, s%d, 9' % (sT + 2, sP))
        a('s_add_u32 s%d, s%d, s%d' % (sT + 2, sT + 2, sFlW))
        a('s_lshl_b32 s%d, s%d, 7' % (sT + 3, sWv))
        a('s_sub_u32 s%d, s%d, s%d' % (sT + 2, sT + 2, sT + 3))
        a('s_add_u32 s%d, s%d, 1024' % (sT + 2, sT + 2))
        a('s_add_u32 s%d, s%d, s%d' % (sT + 3, sNon, sLayer))
        a('s_mov_b64 vcc, -1')
        for k, mt in enumerate(self.ORDER):
            Lp, Lg = a.uid('Lsp'), a.uid('Lsg')
            half = 'vcc_lo' if mt < 2 else 'vcc_hi'
            msk = 0xffff << (16 * (mt & 1))
            a.label(Lp)
            a('s_and_b32 s%d, %s, 0x%x' % (sT, half, msk))
            a('s_cbranch_scc0 %s' % Lg)
            a('buffer_load_dwordx2 %s, v%d, %s, s%d offen sc1' % (vr(TMP, 2), TMP + 2, srd(sWS), sT + 2))
            self.budget_check(12)
            a('s_waitcnt vmcnt(0)')
            a('v_subrev_u32 v%d, s%d, v%d' % (TMP, sT + 3, TMP))
            a('v_xor_b32 v%d, s%d, v%d' % (TMP + 1, sNon + 1, TMP + 1))
            a('v_lshrrev_b32 v%d, 3, v%d' % (TMP, TMP))
            a('v_or_b32 v%d, v%d, v%d' % (TMP, TMP, TMP + 1))
            a('v_cmp_ne_u32 vcc, 0, v%d' % TMP)
            a('s_branch %s' % Lp)
            a.label(Lg)
            if k == 0:
                self.tr(25)
            a('s_add_u32 s%d, s%d, %d' % (sT, sBase, mt * MT))
            a('s_add_u32 s%d, s%d, %d' % (sT + 1, sBase2, mt * MT))
            a('s_mov_b32 m0, s%d' % (sT + 1))
            for k2 in range(4):
                a('buffer_load_dwordx4 v%d, %s, s%d offen offset:%d sc1 lds' % (AV, srd(sWS), sT, k2 * 1024))
            a('s_add_u32 s%d, s%d, 4096' % (sT, sT))
            a('s_add_u32 s%d, s%d, 4096' % (sT + 1, sT + 1))
            a('s_mov_b32 m0, s%d' % (sT + 1))
            a('s_mov_b32 exec_hi, 0xffff')
            a('buffer_load_dwordx4 v%d, %s, s%d offen sc1 lds' % (AV, srd(sWS), sT))
            a('s_mov_b32 exec_hi, -1')
        a('s_mov_b32 s%d, 1' % sOwn)
        a('s_cmp_eq_u32 s%d, 0' % sP)
        a('s_cbranch_scc1 L_M_GO')
        a('s_mov_b32 s%d, 0' % sOwn)
        a('s_waitcnt vmcnt(10)')
        self.set_flag(F_XR, sG, TMP, add=2)
        Lw1, Lw2 = a.uid('Lwe'), a.uid('Lwf')
        a('s_cmp_lg_u32 s%d, 0' % sWoP)
        a('s_cbranch_scc1 %s' % Lw1)
        self.wo_stage(async_=True)
        a('s_waitcnt vmcnt(11)')
        a('s_branch %s' % Lw2)
        a.label(Lw1)
        a('s_waitcnt vmcnt(0)')
        a.label(Lw2)
        self.set_flag(F_XR, sG, TMP, add=4)
        a('s_mov_b32 s%d, 1' % sWoP)
        self.tr(24)

    def stage_input_issue(self):
        a = self.a
        AV, LV, AT, LT_ = 84, 85, 86, 87
        TMP = 88
        a('s_mov_b32 s%d, s%d' % (sN, sP))
        a('s_lshl_b32 s%d, s%d, 2' % (sG, sN))
        a('v_lshrrev_b32 v%d, 2, v%d' % (TMP + 1, vLane))
        a('v_and_b32 v%d, 3, v%d' % (TMP, vLane))
        self.swz(LV, TMP, TMP + 1, TMP + 2)
        a('v_add_u32 v%d, s%d, v%d' % (LV, sMt, LV))
        a('s_lshl_b32 s%d, s%d, 7' % (sT, sTG))
        a('s_add_u32 s%d, s%d, s%d' % (sT, sT, sP))
        a('s_lshl_b32 s%d, s%d, 5' % (sT + 1, sWv))
        a('s_add_u32 s%d, s%d, s%d' % (sT + 1, sT + 1, sT))
        a('s_mul_i32 s%d, s%d, 1152' % (sT + 1, sT + 1))
        a('v_mul_u32_u24 v%d, 2304, v%d' % (TMP + 2, TMP + 1))
        a('v_add_u32 v%d, s%d, v%d' % (TMP + 2, sT + 1, TMP + 2))
        a('v_lshl_add_u32 v%d, v%d, 4, v%d' % (AV, TMP, TMP + 2))
        a('v_mul_u32_u24 v%d, 72, v%d' % (AT, TMP))
        a('v_add_u32 v%d, v%d, v%d' % (AT, AT, TMP + 2))
        a('v_lshlrev_b32 v%d, 7, v%d' % (LT_, TMP))
        a('v_lshl_add_u32 v%d, v%d, 3, v%d' % (LT_, TMP + 1, LT_))
        a('v_add_u32 v%d, s%d, v%d' % (LT_, sMt, LT_))
        for ks in range(16):
            a('buffer_load_dwordx4 %s, v%d, %s, 0 offen offset:%d' % (vr(4 * ks), AV, srd(sIN), 72 * ks))
        for c in range(4):
            a('buffer_load_dwordx2 %s, v%d, %s, 0 offen offset:%d' % (vr(64 + 2 * c, 2), AT, srd(sIN), 288 * c + 64))

    def stage_input_finish(self, extra_after=0, last_extra=0):
        a = self.a
        AV, LV, AT, LT_ = 84, 85, 86, 87
        TMP = 88
        self.wait_flag(F_XF, sN, TMP, 6)
        rem = [14, 8, 0]
        for seg in range(3):
            a('s_waitcnt vmcnt(%d)' % (rem[seg] + (extra_after if seg < 2 else last_extra)))
            if seg == 0:
                self.tr(21)
            for ks in range(6 * seg, min(6 * seg + 6, 16)):
                a('ds_write_b128 v%d, %s offset:%d' % (LV, vr(4 * ks), ks * 1024))
            if seg == 2:
                for c in range(4):
                    a('ds_write_b64 v%d, %s offset:%d' % (LT_, vr(64 + 2 * c, 2), 16384 + 512 * c))
        for i in range(72):
            a('v_dot2_f32_bf16 v%d, v%d, v%d, %s' % (TMP + (i & 1), i, i, '0' if i < 2 else 'v%d' % (TMP + (i & 1))))
        a('v_add_f32 v%d, v%d, v%d' % (TMP, TMP, TMP + 1))
        a('v_mov_b32 v%d, 0' % (TMP + 1))
        a('v_subrev_u32 v%d, s%d, v%d' % (TMP + 2, sMt, LT_))
        a('v_lshrrev_b32 v%d, 1, v%d' % (TMP + 2, TMP + 2))
        a('v_add_u32 v%d, s%d, v%d' % (TMP + 2, sMt, TMP + 2))
        a('ds_write_b32 v%d, v%d offset:18432' % (TMP + 2, TMP))
        for c in range(1, 4):
            a('ds_write_b32 v%d, v%d offset:%d' % (TMP + 2, TMP + 1, 18432 + 256 * c))
        a('s_waitcnt lgkmcnt(0)')
        self.set_flag(F_XR, sG, TMP, add=4)
        self.tr(24)

    def hb_addr(self, d, tmp):
        a = self.a
        a('v_and_b32 v%d, 7, v%d' % (tmp, vLane))
        a('v_lshrrev_b32 v%d, 4, v%d' % (tmp + 1, vLane))
        a('v_lshlrev_b32 v%d, 4, v%d' % (d, tmp))
        a('v_lshl_add_u32 v%d, v%d, 7, v%d' % (d, tmp + 1, d))
        a('s_lshl_b32 s%d, s%d, 9' % (sT, sHG))
        a('v_add_u32 v%d, s%d, v%d' % (d, sT, d))
        a('s_lshl_b32 s%d, s%d, 6' % (sT, sHG))
        a('s_add_u32 s%d, s%d, 8192' % (sT, sT))
        a('v_lshlrev_b32 v%d, 3, v%d' % (d + 1, tmp))
        a('v_add_u32 v%d, s%d, v%d' % (d + 1, sT, d + 1))

    def hb_store(self, d, data, soff):
        a = self.a
        a('s_mov_b32 s%d, 0xff00ff00' % (sT + 4))
        a('s_mov_b32 s%d, 0xff00ff00' % (sT + 5))
        a('s_mov_b64 exec, s[%d:%d]' % (sT + 4, sT + 5))
        a('buffer_store_dwordx4 %s, v%d, %s, s%d offen sc1' % (vr(data), d, srd(sWS), soff))
        a('s_mov_b64 exec, 0xff00')
        a('buffer_store_dwordx2 %s, v%d, %s, s%d offen sc1' % (vr(data + 4, 2), d + 1, srd(sWS), soff))
        a('s_mov_b64 exec, -1')

    def hb_base(self, dst, layer_add):
        a = self.a
        a('s_add_u32 s%d, s%d, %d' % (dst, sLayer, layer_add))
        a('s_lshl_b32 s%d, s%d, 5' % (dst, dst))
        a('s_lshl_b32 s%d, s%d, 1' % (sT + 1, sTG))
        a('s_add_u32 s%d, s%d, s%d' % (dst, dst, sT + 1))
        a('s_add_u32 s%d, s%d, s%d' % (dst, dst, sP))
        a('s_mul_i32 s%d, s%d, %d' % (dst, dst, HBT))
        a('s_add_u32 s%d, s%d, %d' % (dst, dst, WS_HB))

    def bphase(self):
        a = self.a
        NS = 12
        ACC = 48
        WB = [60, 72, 84]
        LA, LB, VT, TMP1 = 96, 97, 98, 99
        slot = lambda ks: 4 * (ks % NS)
        a('s_mul_i32 s%d, s%d, %d' % (sBase, sLayer, LSTR))
        a('s_mul_i32 s%d, s%d, %d' % (sT, sP, TILE))
        a('s_add_u32 s%d, s%d, s%d' % (sBase, sBase, sT))
        a('s_add_u32 s%d, s%d, s%d' % (sBase, sBase, sTileW))
        a('v_lshlrev_b32 v%d, 4, v%d' % (LA, vLane))
        a('v_add_u32 v%d, 0x%x, v%d' % (LA, L_WO, LA))
        a('v_and_b32 v%d, 3, v%d' % (LB, vLane))
        a('v_lshlrev_b32 v%d, 4, v%d' % (LB, LB))
        a('v_lshrrev_b32 v%d, 4, v%d' % (TMP1, vLane))
        a('v_lshl_add_u32 v%d, v%d, 6, v%d' % (LB, TMP1, LB))
        a('v_add_u32 v%d, 0x%x, v%d' % (LB, L_WO + 2048, LB))
        a('v_and_b32 v%d, 15, v%d' % (VT, vLane))
        a('v_lshlrev_b32 v%d, 3, v%d' % (VT, VT))
        a('v_lshl_add_u32 v%d, v%d, 8, v%d' % (VT, TMP1, VT))

        def wreads(ks):
            b = WB[ks % 3]
            a('ds_read_b128 %s, v%d offset:%d' % (vr(b), LA, ks * 2304))
            a('ds_read_b128 %s, v%d offset:%d' % (vr(b + 4), LA, ks * 2304 + 1024))
            a('ds_read_b128 %s, v%d offset:%d' % (vr(b + 8), LB, ks * 2304))
        def wread1(ks, t):
            b = WB[ks % 3]
            if t < 2:
                a('ds_read_b128 %s, v%d offset:%d' % (vr(b + 4 * t), LA, ks * 2304 + 1024 * t))
            else:
                a('ds_read_b128 %s, v%d offset:%d' % (vr(b + 8), LB, ks * 2304))
        self.tr(40)
        def hook():
            Lwp = a.uid('Lwop')
            a('s_cmp_eq_u32 s%d, 0' % sWoP)
            a('s_cbranch_scc1 %s' % Lwp)
            self.set_flag(F_WR, sLayer, WB[0], add=1)
            a('s_mov_b32 s%d, 0' % sWoP)
            a.label(Lwp)
        self.poll_event(0, 0, ACC, 13, hook=hook)
        self.tr(44)
        issued = []

        def oload(ks):
            if ks < 16:
                if ks % 4 == 0:
                    a('s_add_u32 s%d, s%d, %d' % (sT + 2, sBase, WS_PAD + ks * 1024 - L_WO))
                a('buffer_load_dwordx4 %s, v%d, %s, s%d offen offset:%d sc1' %
                  (vr(slot(ks)), LA, srd(sWS2), sT + 2, (ks % 4) * 1024))
                issued.append(ks)
            else:
                a('s_add_u32 s%d, s%d, 16384' % (sT + 3, sBase))
                a('buffer_load_dwordx2 %s, v%d, %s, s%d offen offset:%d sc1' %
                  (vr(slot(ks), 2), VT, srd(sWS), sT + 3, (ks - 16) * 1024))
                a('buffer_load_dwordx2 %s, v%d, %s, s%d offen offset:%d sc1' %
                  (vr(slot(ks) + 2, 2), VT, srd(sWS), sT + 3, (ks - 16) * 1024 + 128))
                issued.extend([ks, ks])
        for ks in range(NS):
            oload(ks)
        a('s_add_u32 s%d, s%d, 1' % (sT + 7, sLayer))
        self.wait_flag(F_WR, sT + 7, WB[0], 10)
        for ks in range(3):
            wreads(ks)
        RES = 24
        RA = 32
        for ks in range(18):
            last = max(i for i, t in enumerate(issued) if t == ks)
            a('s_waitcnt vmcnt(%d) lgkmcnt(%d)' % (len(issued) - 1 - last, 3 * min(2, 17 - ks)))
            if ks == 0:
                self.tr(41)
            for t in range(3):
                a(mfma(ACC + 4 * t, WB[ks % 3] + 4 * t, slot(ks), ks == 0))
                if ks + 3 < 18:
                    wread1(ks + 3, t)
            if ks + NS < 18:
                oload(ks + NS)
            if ks == 10:
                L0, L1 = a.uid('Lres0'), a.uid('Lres1')
                self.xaddr_frag(RA, RA + 4)
                self.xaddr_nat(RA + 2, RA + 4)
                a('s_add_u32 s%d, s%d, %d' % (sBase2, sBase, WS_X))
                a('s_cmp_eq_u32 s%d, 0' % sLayer)
                a('s_cbranch_scc1 %s' % L0)
                a('buffer_load_dwordx4 %s, v%d, %s, s%d offen sc1' % (vr(RES), RA, srd(sWS), sBase2))
                a('buffer_load_dwordx2 %s, v%d, %s, s%d offen sc1' % (vr(RES + 4, 2), RA + 1, srd(sWS), sBase2))
                a('s_branch %s' % L1)
                a.label(L0)
                a('buffer_load_dwordx4 %s, v%d, %s, 0 offen' % (vr(RES), RA + 2, srd(sIN)))
                a('buffer_load_dwordx2 %s, v%d, %s, 0 offen' % (vr(RES + 4, 2), RA + 3, srd(sIN)))
                a.label(L1)
                issued.extend(['r', 'r'])
        self.tr(42)
        E = 0
        U = 60
        pairs = [(ACC + r, ACC + 4 + r) for r in range(4)] + [(ACC + 8, ACC + 9), (ACC + 10, ACC + 11)]
        for m, (x0, x1) in enumerate(pairs):
            a('v_cvt_pk_bf16_f32 v%d, v%d, v%d' % (E + m, x0, x1))
        a('s_waitcnt vmcnt(0)')
        for m in range(6):
            a('v_lshlrev_b32 v%d, 16, v%d' % (U + 2 * m, E + m))
            a('v_and_b32 v%d, 0xffff0000, v%d' % (U + 1 + 2 * m, E + m))
            a('v_lshlrev_b32 v%d, 16, v%d' % (U + 12 + 2 * m, RES + m))
            a('v_and_b32 v%d, 0xffff0000, v%d' % (U + 13 + 2 * m, RES + m))
        for m in range(12):
            a('v_add_f32 v%d, v%d, v%d' % (U + m, U + m, U + 12 + m))
        for m in range(6):
            a('v_cvt_pk_bf16_f32 v%d, v%d, v%d' % (E + m, U + 2 * m, U + 1 + 2 * m))
        L0, L1 = a.uid('Lst0'), a.uid('Lst1')
        a('s_cmp_eq_u32 s%d, %d' % (sLayer, self.nlayers - 1))
        a('s_cbranch_scc1 %s' % L0)

        def st(sc):
            a('buffer_store_dwordx4 %s, v32, %s, s%d offen%s' % (vr(E), srd(sWS), sBase2, sc))
            a('s_mov_b64 exec, 0xffff')
            a('buffer_store_dwordx2 %s, v33, %s, s%d offen%s' % (vr(E + 4, 2), srd(sWS), sBase2, sc))
            a('s_mov_b64 exec, -1')
            for m in range(4):
                a('v_dot2_f32_bf16 v8, v%d, v%d, %s' % (E + m, E + m, '0' if m == 0 else 'v8'))
            a('v_dot2_f32_bf16 v10, v%d, v%d, 0' % (E + 4, E + 4))
            a('v_dot2_f32_bf16 v10, v%d, v%d, v10' % (E + 5, E + 5))
            a('v_lshrrev_b32 v11, 1, v33')
            a('v_mov_b32 v9, v8')
            a('v_permlane32_swap_b32 v8, v9')
            a('v_add_f32 v8, v8, v9')
            a('v_mov_b32 v9, v8')
            a('v_permlane16_swap_b32 v8, v9')
            a('v_add3_f32 v8, v8, v9, v10') if False else None
            a('v_add_f32 v8, v8, v9')
            a('v_add_f32 v8, v8, v10')
            a('s_add_u32 s%d, s%d, %d' % (sT + 2, sBase2, 18432 - 8192))
            a('s_mov_b64 exec, 0xffff')
            a('buffer_store_dword v8, v11, %s, s%d offen%s' % (srd(sWS), sT + 2, sc))
            a('s_mov_b64 exec, -1')
            self.publish_event(2, 44, sc)
        self.both_modes(st)
        a('s_branch %s' % L1)
        a.label(L0)
        a('buffer_store_dwordx4 %s, v34, %s, 0 offen' % (vr(E), srd(sOUT)))
        a('s_mov_b64 exec, 0xffff')
        a('buffer_store_dwordx2 %s, v35, %s, 0 offen' % (vr(E + 4, 2), srd(sOUT)))
        a('s_mov_b64 exec, -1')
        a.label(L1)
        a('s_lshl_b32 s%d, s%d, 4' % (sT, sP))
        a('s_lshl_b32 s%d, s%d, 2' % (sT + 1, sWv))
        a('s_sub_u32 s%d, s%d, s%d' % (sT, sT + 1, sT))
        a('v_add_u32 v60, s%d, v%d' % (sT, vFlag))
        a('s_add_u32 s%d, s%d, 1' % (sT, sLayer))
        a('v_mov_b32 v61, s%d' % sT)
        a('ds_write_b32 v60, v61 offset:%d' % F_WG)
        self.tr(43)

    def xaddr_frag(self, d, tmp):
        a = self.a
        a('v_lshrrev_b32 v%d, 4, v%d' % (tmp, vLane))
        a('v_and_b32 v%d, 15, v%d' % (tmp + 1, vLane))
        self.swz(d, tmp, tmp + 1, tmp + 2)
        a('s_lshl_b32 s%d, s%d, 10' % (sT, sHG))
        a('v_add_u32 v%d, s%d, v%d' % (d, sT, d))
        a('s_lshl_b32 s%d, s%d, 7' % (sT, sHG))
        a('s_add_u32 s%d, s%d, 16384' % (sT, sT))
        a('v_lshlrev_b32 v%d, 3, v%d' % (tmp + 1, tmp + 1))
        a('v_add_u32 v%d, s%d, v%d' % (d + 1, sT, tmp + 1))

    def xaddr_nat(self, d, tmp):
        a = self.a
        a('s_lshl_b32 s%d, s%d, 7' % (sT, sTG))
        a('s_add_u32 s%d, s%d, s%d' % (sT, sT, sP))
        a('s_lshl_b32 s%d, s%d, 5' % (sT + 1, sWv))
        a('s_add_u32 s%d, s%d, s%d' % (sT, sT, sT + 1))
        a('s_mul_i32 s%d, s%d, 1152' % (sT, sT))
        a('s_mul_i32 s%d, s%d, 72' % (sT + 1, sHG))
        a('s_add_u32 s%d, s%d, s%d' % (sT, sT, sT + 1))
        a('v_and_b32 v%d, 15, v%d' % (tmp, vLane))
        a('v_mul_u32_u24 v%d, 2304, v%d' % (tmp, tmp))
        a('v_add_u32 v%d, s%d, v%d' % (tmp, sT, tmp))
        a('v_add_u32 v%d, 64, v%d' % (d + 1, tmp))
        a('v_lshrrev_b32 v%d, 4, v%d' % (tmp + 1, vLane))
        a('v_lshl_add_u32 v%d, v%d, 4, v%d' % (d, tmp + 1, tmp))

    def build(self):
        a = self.a
        self.prologue()
        a('s_cmp_eq_u32 s%d, 0' % sSet)
        a('s_cbranch_scc0 L_H0')
        self.wload_addr(0, 1, 2)
        self.coop_issue(0, 1)
        self.wou_issue(16, 24)
        self.kv_prefill(32)
        a('s_waitcnt vmcnt(12)')
        self.tr(5)
        self.coop_store(2)
        a('s_waitcnt vmcnt(2)')
        self.wou_store(16, 24)
        self.get_nonce(8)
        self.coop_flag(12)
        self.wou_flag(8)
        a('s_mov_b32 s%d, 1' % (sT + 7))
        self.set_flag(F_XH, sT + 7, 12)
        self.tr(6)
        a('s_mov_b32 s%d, 0' % sP)
        self.stage_input_issue()
        self.stage_input_finish()
        self.coop_load(0)
        self.colsum(8, progressive=True)
        a('s_mov_b32 s%d, 2' % (sT + 7))
        self.set_flag(F_XH, sT + 7, 12)
        self.tr(2)
        a('s_branch L_M_ROLE')
        a.label('L_H0')
        Ln, Lp = a.uid('Lnn'), a.uid('Lpf0')
        a('s_cmp_lg_u32 s2, 0')
        a('s_cbranch_scc1 %s' % Ln)
        a('s_cmp_lg_u32 s%d, 0' % sWv)
        a('s_cbranch_scc1 %s' % Ln)
        a('s_memrealtime s[%d:%d]' % (sNon, sNon + 1))
        a('s_waitcnt lgkmcnt(0)')
        a('s_or_b32 s%d, s%d, 1' % (sNon, sNon))
        a('s_or_b32 s%d, s%d, 1' % (sNon + 1, sNon + 1))
        a('v_mov_b32 v72, s%d' % sNon)
        a('v_mov_b32 v73, s%d' % (sNon + 1))
        a('v_mov_b32 v74, 0')
        a('buffer_store_dwordx2 v[72:73], v74, %s, 0 offen sc1' % srd(sDBG))
        a.label(Ln)
        self.wload_addr(99, 100, 92)
        self.coop_issue(99, 100)
        self.wou_issue(72, 92)
        self.kv_prefill(80)
        a('s_waitcnt vmcnt(4)')
        self.tr(5)
        self.coop_store(vCS)
        self.wou_store(72, 92)
        self.get_nonce(72)
        a('s_mov_b32 s%d, 1' % (sT + 7))
        self.set_flag(F_XH + 16, sT + 7, 72)
        Lf = a.uid('Lif')
        a('s_cmp_lg_u32 s%d, 3' % sWv)
        a('s_cbranch_scc1 %s' % Lf)
        self.wait_flag(F_XH, sT + 7, 72, 18)
        self.wait_flag(F_XH + 16, sT + 7, 72, 19)
        a('s_lshl_b32 s%d, s%d, 4' % (sT, sTG))
        a('s_add_u32 s%d, s%d, s%d' % (sT, sT, sHG))
        a('s_lshl_b32 s%d, s%d, 4' % (sT, sT))
        a('s_add_u32 s%d, s%d, %d' % (sT, sT, WS_INI))
        a('v_mov_b32 v72, s%d' % sNon)
        a('v_mov_b32 v73, s%d' % (sNon + 1))
        a('v_mov_b32 v74, s%d' % sXcc)
        a('v_mov_b32 v75, s%d' % sNon)
        a('v_mov_b32 v76, 0')
        a('s_mov_b64 exec, 1')
        a('buffer_store_dwordx4 v[72:75], v76, %s, s%d offen sc1' % (srd(sWS), sT))
        a('s_mov_b64 exec, -1')
        a.label(Lf)
        self.coop_flag(78)
        self.wou_flag(92)
        self.tr(6)
        a('s_mov_b32 s%d, 2' % (sT + 7))
        self.wait_flag(F_XH, sT + 7, 72, 20, sleep=4)
        a('s_mov_b32 s%d, 1' % sP)
        self.stage_input_issue()
        self.wo_stage()
        self.init_check(72)
        self.coop_load(72)
        self.stage_input_finish(extra_after=36, last_extra=36)
        self.tr(3)
        a('s_mov_b32 s%d, 0' % sP)
        a('s_branch L_BPHASE')
        self.m_role()
        a.label('L_BPHASE')
        self.bphase()
        a('s_add_u32 s%d, s%d, 1' % (sLayer, sLayer))
        a('s_cmp_ge_u32 s%d, %d' % (sLayer, self.nlayers))
        a('s_cbranch_scc1 L_END')
        a.label('L_STAGE')
        self.stage_generic()
        a('s_cmp_eq_u32 s%d, 0' % sP)
        a('s_cbranch_scc1 L_M_ROLE')
        a('s_mov_b32 s%d, 0' % sP)
        a('s_branch L_BPHASE')
        a.label('L_ABORT')
        a('s_mov_b64 exec, -1')
        a('s_lshl_b32 s%d, s%d, 2' % (sT, sT + 9))
        a('s_add_u32 s%d, s%d, 64' % (sT, sT))
        a('v_mov_b32 v0, s2')
        a('v_add_u32 v0, 0x1000, v0')
        a('v_mov_b32 v1, s%d' % sT)
        a('buffer_store_dword v0, v1, %s, 0 offen sc1' % srd(sDBG))
        a.label('L_END')
        if self.debug:
            a('s_cmp_ge_u32 s2, 256')
            a('s_cbranch_scc1 L_END2')
            self.tr(63)
            a('s_lshl_b32 s%d, s2, 3' % sT)
            a('s_add_u32 s%d, s%d, s%d' % (sT, sT, sWave))
            a('s_lshl_b32 s%d, s%d, 8' % (sT, sT))
            a('s_add_u32 s%d, s%d, %d' % (sT, sT, WS_TRC))
            a('v_lshlrev_b32 v0, 2, v%d' % vLane)
            a('buffer_store_dword v%d, v0, %s, s%d offen' % (vTr, srd(sWS), sT))
            a.label('L_END2')
        a('s_endpgm')

    def text(self):
        hdr = open(os.path.join(os.path.dirname(os.path.abspath(__file__)), '..', 'cdna_kernels', NAME + '.s.ref')).read()
        out = hdr.split('; Override launch geometry')[0]
        out += '; @launch grid=(256,1,1) block=(512,1,1) lds=%d\n' % LDS_BYTES
        out += '.amdgcn_target "amdgcn-amd-amdhsa--gfx950"\n.text\n'
        out += '.globl %s_kernel\n.p2align 8\n.type %s_kernel,@function\n%s_kernel:\n' % (NAME, NAME, NAME)
        out += self.a.render()
        out += '''.section .rodata,"a"
.p2align 6
.amdhsa_kernel %s_kernel
  .amdhsa_next_free_vgpr 256
  .amdhsa_next_free_sgpr 96
  .amdhsa_accum_offset 256
  .amdhsa_group_segment_fixed_size 0
  .amdhsa_kernarg_size 72
  .amdhsa_user_sgpr_count 2
  .amdhsa_user_sgpr_kernarg_segment_ptr 1
  .amdhsa_system_sgpr_workgroup_id_x 1
.end_amdhsa_kernel
''' % NAME
        return out


if __name__ == '__main__':
    nl = int(sys.argv[2]) if len(sys.argv) > 2 else 4
    g = Gen(nlayers=nl, debug=(len(sys.argv) > 3 and sys.argv[3] == 'trace'))
    g.build()
    path = sys.argv[1] if len(sys.argv) > 1 else os.path.join(os.path.dirname(os.path.abspath(__file__)), '..', 'cdna_kernels', NAME + '.s')
    open(path, 'w').write(g.text())
    print('wrote', path)
```

```python
import sys, os, struct
sys.path.insert(0, os.path.dirname(os.path.abspath(__file__)))
from asmlib import Asm

NAME = 'interleave_layers__sliding_local_dilated__sliding_local_dilated__prompt'

XBYTES = 2048 * 576 * 2
MT = 19456
TILE = 4 * MT
WS_X = 4 * XBYTES
LSTR = 0
WS_KV = 6 * XBYTES
KVT = 2304
WS_FL = 9 * XBYTES
WS_INI = WS_FL + 65536
WS_CFLG = WS_FL + 131072
WS_WFLG = WS_FL + 262144
WS_TRC = 10 * XBYTES
WS_CIMG = 11 * XBYTES
WS_PIMG = 14 * XBYTES
WS_PFLG = WS_FL + 393216
WS_WIMG = 13 * XBYTES
WIS = 41984
WS_SIZE = 80 << 20
WS_PAD = 1 << 20
OOB = 0x7F000000

L_QKV = 4 * MT
QP = 272
L_WO = L_QKV + 80 * QP
L_ST = L_WO + 18 * 2304
L_FLG = L_ST + 320
L_TAB = L_FLG + 256
LDS_BYTES = 162560
F_XR, F_XF, F_QR, F_QF, F_WR, F_WF, F_WG, F_XH = 0, 16, 32, 48, 64, 80, 96, 112

sIN, sWQ, sWO, sOUT, sWS, sDBG = 24, 28, 32, 36, 40, 44
sWave, sWv, sSet, sTG, sHG, sLayer, sP, sN, sBud = 48, 49, 50, 51, 52, 53, 54, 55, 56
sG = 57
sNon = 58
sT = 60
sSelLo, sSelHi = 72, 73
sM1, sM2, sM3, sMD = 74, 76, 78, 80
sPend = 82
sBase = 83
sBase2 = 84
sFast = 85
sTm = 86
sWS2 = 88
sTi = 92
sXcc = 93
sWoOk = 94
sTileW = 95
sMt = 4
sQo = 8
sFlW = 12
sOwn = 13
sCs = 14
sQu = 16
sSt = 18
sKm = 20
sH = 22
sPass = 23
sWoP = 15
sPub = 7
sTab = 8
vTr = 101
vFlag, vLane = 102, 103
vCS = 104
vW = 112


def srd(n):
    return 's[%d:%d]' % (n, n + 3)


def vr(b, n=4):
    return 'v[%d:%d]' % (b, b + n - 1)


def W(t, ks):
    return vW + (ks * 2 + t) * 4


def mfma(d, a_, b_, first):
    return 'v_mfma_f32_16x16x32_bf16 %s, %s, %s, %s' % (vr(d), vr(a_), vr(b_), '0' if first else vr(d))


class Gen:
    def __init__(self, nlayers=4, debug=False):
        self.a = Asm()
        self.nlayers = nlayers
        self.debug = debug

    def budget_check(self, code):
        a = self.a
        a('s_sub_u32 s%d, s%d, 1' % (sBud, sBud))
        a('s_cmp_eq_u32 s%d, 0' % sBud)
        a('s_mov_b32 s%d, %d' % (sT + 9, code))
        a('s_cbranch_scc1 L_ABORT')

    def tr(self, ident):
        if not self.debug:
            return
        if os.environ.get('FINE') and ident in (20, 25, 24, 30, 40, 44, 41, 42, 43, 21, 3):
            return
        a = self.a
        a('%s s[%d:%d]' % ('s_memtime' if os.environ.get('CYC') else 's_memrealtime', sTm, sTm + 1))
        a('s_waitcnt lgkmcnt(0)')
        a('s_lshl_b32 s%d, s%d, 6' % (sTm, sTm))
        a('s_or_b32 s%d, s%d, %d' % (sTm, sTm, ident))
        a('s_mov_b32 m0, s%d' % sTi)
        a('s_nop 0')
        a('v_writelane_b32 v%d, s%d, m0' % (vTr, sTm))
        a('s_add_u32 s%d, s%d, 1' % (sTi, sTi))

    def flag_min(self, tmp):
        a = self.a
        a('v_min3_u32 v%d, v%d, v%d, v%d' % (tmp, tmp, tmp + 1, tmp + 2))
        a('v_min_u32 v%d, v%d, v%d' % (tmp, tmp, tmp + 3))
        a('v_readfirstlane_b32 s%d, v%d' % (sT + 8, tmp))

    def wait_flag(self, off, tgt, tmp, code, add=0, sleep=0):
        a = self.a
        L, Ld = a.uid('Lwf'), a.uid('Lwfd')
        a.label(L)
        a('ds_read_b128 %s, v%d offset:%d' % (vr(tmp), vFlag, off))
        a('s_waitcnt lgkmcnt(0)')
        self.flag_min(tmp)
        a('s_nop 1')
        if add:
            a('s_add_u32 s%d, s%d, %d' % (sT + 8, sT + 8, add))
        a('s_cmp_ge_u32 s%d, s%d' % (sT + 8, tgt))
        a('s_cbranch_scc1 %s' % Ld)
        self.budget_check(code)
        if sleep:
            a('s_sleep %d' % sleep)
        a('s_branch %s' % L)
        a.label(Ld)

    def set_flag(self, off, val_sreg, tmpv, add=0):
        a = self.a
        a('s_lshl_b32 s%d, s%d, 2' % (sT + 8, sWv))
        a('v_add_u32 v%d, s%d, v%d' % (tmpv, sT + 8, vFlag))
        if add:
            a('s_add_u32 s%d, s%d, %d' % (sT + 8, val_sreg, add))
            a('v_mov_b32 v%d, s%d' % (tmpv + 1, sT + 8))
        else:
            a('v_mov_b32 v%d, s%d' % (tmpv + 1, val_sreg))
        a('ds_write_b32 v%d, v%d offset:%d' % (tmpv, tmpv + 1, off))

    def swz(self, dst, q, r, tmp):
        a = self.a
        a('v_and_b32 v%d, 1, v%d' % (tmp, q))
        a('v_lshlrev_b32 v%d, 1, v%d' % (tmp, tmp))
        a('v_lshrrev_b32 v%d, 1, v%d' % (dst, q))
        a('v_mul_u32_u24 v%d, 12, v%d' % (dst, dst))
        a('v_add_u32 v%d, v%d, v%d' % (tmp, tmp, dst))
        a('v_xor_b32 v%d, v%d, v%d' % (tmp, tmp, r))
        a('v_lshlrev_b32 v%d, 4, v%d' % (tmp, tmp))
        a('v_lshl_add_u32 v%d, v%d, 8, v%d' % (dst, q, tmp))

    def sentinel_vcc(self, regs, tmp):
        a = self.a
        regs = list(regs)
        a('v_max3_u32 v%d, v%d, v%d, v%d' % (tmp, regs[0], regs[1], regs[2]))
        i = 3
        while i + 1 < len(regs):
            a('v_max3_u32 v%d, v%d, v%d, v%d' % (tmp, tmp, regs[i], regs[i + 1]))
            i += 2
        if i < len(regs):
            a('v_max_u32 v%d, v%d, v%d' % (tmp, tmp, regs[i]))
        a('v_cmp_eq_u32 vcc, -1, v%d' % tmp)

    def poll_event(self, kind_expr, layer_add, tmp, code, all64=False, hook=None):
        a = self.a
        if all64:
            a('v_lshlrev_b32 v%d, 3, v%d' % (tmp + 2, vLane))
        else:
            a('v_and_b32 v%d, 15, v%d' % (tmp + 2, vLane))
            a('v_lshlrev_b32 v%d, 3, v%d' % (tmp + 2, tmp + 2))
        a('s_lshl_b32 s%d, s%d, 9' % (sT, sP))
        a('s_add_u32 s%d, s%d, s%d' % (sT, sT, sFlW))
        if all64:
            a('s_lshl_b32 s%d, s%d, 7' % (sT + 1, sWv))
            a('s_sub_u32 s%d, s%d, s%d' % (sT, sT, sT + 1))
        if kind_expr:
            a('s_add_u32 s%d, s%d, %d' % (sT, sT, kind_expr * 512))
        a('s_add_u32 s%d, s%d, s%d' % (sT + 1, sNon, sLayer))
        a('s_add_u32 s%d, s%d, %d' % (sT + 1, sT + 1, 1 + layer_add))
        L, Ld = a.uid('Lpoll'), a.uid('Lpolld')
        a('s_setprio 0')
        a.label(L)
        a('buffer_load_dwordx2 %s, v%d, %s, s%d offen sc1' % (vr(tmp, 2), tmp + 2, srd(sWS), sT))
        a('s_waitcnt vmcnt(0)')
        if hook:
            hook()
        a('v_subrev_u32 v%d, s%d, v%d' % (tmp, sT + 1, tmp))
        a('v_xor_b32 v%d, s%d, v%d' % (tmp + 1, sNon + 1, tmp + 1))
        a('v_lshrrev_b32 v%d, 3, v%d' % (tmp, tmp))
        a('v_or_b32 v%d, v%d, v%d' % (tmp, tmp, tmp + 1))
        a('v_cmp_ne_u32 vcc, 0, v%d' % tmp)
        a('s_nop 1')
        a('s_cmp_eq_u64 vcc, 0')
        a('s_cbranch_scc1 %s' % Ld)
        self.budget_check(code)
        a('s_branch %s' % L)
        a.label(Ld)
        a('s_setprio 2')

    def publish_event(self, kind, tmp, sc):
        a = self.a
        a('s_lshl_b32 s%d, s%d, 9' % (sT, sP))
        a('s_add_u32 s%d, s%d, s%d' % (sT, sT, sFlW))
        a('s_lshl_b32 s%d, s%d, 3' % (sT + 1, sHG))
        a('s_add_u32 s%d, s%d, s%d' % (sT, sT, sT + 1))
        if kind:
            a('s_add_u32 s%d, s%d, %d' % (sT, sT, kind * 512))
        a('s_add_u32 s%d, s%d, s%d' % (sT + 1, sNon, sLayer))
        a('s_add_u32 s%d, s%d, 1' % (sT + 1, sT + 1))
        a('v_mov_b32 v%d, s%d' % (tmp, sT + 1))
        a('v_mov_b32 v%d, s%d' % (tmp + 1, sNon + 1))
        a('v_mov_b32 v%d, 0' % (tmp + 2))
        a('s_mov_b64 exec, 1')
        a('s_waitcnt vmcnt(0)')
        a('buffer_store_dwordx2 %s, v%d, %s, s%d offen%s' % (vr(tmp, 2), tmp + 2, srd(sWS), sT, sc))
        a('s_mov_b64 exec, -1')

    def both_modes(self, fn):
        a = self.a
        L0, L1 = a.uid('Lslow'), a.uid('Lmend')
        a('s_cmp_eq_u32 s%d, 0' % sFast)
        a('s_cbranch_scc1 %s' % L0)
        fn('')
        a('s_branch %s' % L1)
        a.label(L0)
        fn(' sc1')
        a.label(L1)

    def store_nonce_flag(self, soff, tmp):
        a = self.a
        a('v_mov_b32 v%d, s%d' % (tmp, sNon))
        a('v_mov_b32 v%d, s%d' % (tmp + 1, sNon + 1))
        a('v_mov_b32 v%d, 0' % (tmp + 2))
        a('s_mov_b64 exec, 1')
        a('buffer_store_dwordx2 %s, v%d, %s, s%d offen sc1' % (vr(tmp, 2), tmp + 2, srd(sWS), soff))
        a('s_mov_b64 exec, -1')

    def poll_nonce_flags(self, soff, vaddr, tmp, code):
        a = self.a
        L, Ld = a.uid('Lpn'), a.uid('Lpnd')
        a.label(L)
        a('buffer_load_dwordx2 %s, v%d, %s, s%d offen sc1' % (vr(tmp, 2), vaddr, srd(sWS), soff))
        a('s_waitcnt vmcnt(0)')
        a('v_xor_b32 v%d, s%d, v%d' % (tmp, sNon, tmp))
        a('v_xor_b32 v%d, s%d, v%d' % (tmp + 1, sNon + 1, tmp + 1))
        a('v_or_b32 v%d, v%d, v%d' % (tmp, tmp, tmp + 1))
        a('v_cmp_ne_u32 vcc, 0, v%d' % tmp)
        a('s_nop 1')
        a('s_cmp_eq_u64 vcc, 0')
        a('s_cbranch_scc1 %s' % Ld)
        self.budget_check(code)
        a('s_sleep 2')
        a('s_branch %s' % L)
        a.label(Ld)

    def get_nonce(self, tmp):
        a = self.a
        L, Ld = a.uid('Lnon'), a.uid('Lnond')
        a('v_mov_b32 v%d, 0' % (tmp + 2))
        a.label(L)
        a('buffer_load_dwordx2 %s, v%d, %s, 0 offen sc1' % (vr(tmp, 2), tmp + 2, srd(sDBG)))
        a('s_waitcnt vmcnt(0)')
        a('v_readfirstlane_b32 s%d, v%d' % (sNon, tmp))
        a('v_readfirstlane_b32 s%d, v%d' % (sNon + 1, tmp + 1))
        a('s_nop 1')
        a('s_min_u32 s%d, s%d, s%d' % (sT + 8, sNon, sNon + 1))
        a('s_cmp_lg_u32 s%d, 0' % (sT + 8))
        a('s_cbranch_scc1 %s' % Ld)
        self.budget_check(7)
        a('s_sleep 2')
        a('s_branch %s' % L)
        a.label(Ld)

    def init_check(self, tmp):
        a = self.a
        a('s_mov_b32 s%d, 2' % (sT + 7))
        self.wait_flag(F_XH + 16, sT + 7, tmp, 21)
        L, Ld = a.uid('Lini'), a.uid('Linid')
        a('v_and_b32 v%d, 15, v%d' % (tmp + 4, vLane))
        a('v_lshlrev_b32 v%d, 4, v%d' % (tmp + 4, tmp + 4))
        a('v_add_u32 v%d, 256, v%d' % (tmp + 5, tmp + 4))
        a('v_and_b32 v%d, 16, v%d' % (tmp + 6, vLane))
        a('s_cmp_eq_u32 s%d, 0' % sTG)
        a('s_cselect_b32 s%d, 0, 16' % sT)
        a('v_and_b32 v%d, s%d, v%d' % (tmp + 6, sT, tmp + 6))
        a('v_cmp_eq_u32 s[%d:%d], 0, v%d' % (sT + 2, sT + 3, tmp + 6))
        a('v_cndmask_b32 v%d, v%d, v%d, s[%d:%d]' % (tmp + 4, tmp + 4, tmp + 5, sT + 2, sT + 3))
        a('s_lshl_b32 s%d, s%d, 8' % (sT, sTG))
        a('s_add_u32 s%d, s%d, %d' % (sT, sT, WS_INI - 256))
        a.label(L)
        a('buffer_load_dwordx4 %s, v%d, %s, s%d offen sc1' % (vr(tmp), tmp + 4, srd(sWS), sT))
        a('s_waitcnt vmcnt(0)')
        a('v_xor_b32 v%d, s%d, v%d' % (tmp, sNon, tmp))
        a('v_xor_b32 v%d, s%d, v%d' % (tmp + 1, sNon + 1, tmp + 1))
        a('v_xor_b32 v%d, s%d, v%d' % (tmp + 3, sNon, tmp + 3))
        a('v_or3_b32 v%d, v%d, v%d, v%d' % (tmp, tmp, tmp + 1, tmp + 3))
        a('v_cmp_ne_u32 vcc, 0, v%d' % tmp)
        a('s_nop 1')
        a('s_cmp_eq_u64 vcc, 0')
        a('s_cbranch_scc1 %s' % Ld)
        self.budget_check(8)
        a('s_sleep 2')
        a('s_branch %s' % L)
        a.label(Ld)
        a('v_cmp_ne_u32 vcc, s%d, v%d' % (sXcc, tmp + 2))
        a('s_nop 1')
        a('s_and_b64 vcc, vcc, s[%d:%d]' % (sT + 2, sT + 3))
        a('s_cmp_eq_u64 vcc, 0')
        a('s_cselect_b32 s%d, 1, 0' % sFast)
        if os.environ.get('FORCE_SLOW'):
            a('s_mov_b32 s%d, 0' % sFast)

    def prologue(self):
        a = self.a
        a('s_cmp_ge_u32 s2, 256')
        a('s_cbranch_scc1 L_END')
        a('s_load_dwordx16 s[4:19], s[0:1], 0')
        a('s_load_dwordx2 s[20:21], s[0:1], 64')
        a('v_and_b32 v%d, 63, v0' % vLane)
        a('v_lshrrev_b32 v1, 6, v0')
        a('v_readfirstlane_b32 s%d, v1' % sWave)
        a('s_getreg_b32 s%d, hwreg(HW_REG_XCC_ID)' % sXcc)
        a('s_and_b32 s%d, s%d, 15' % (sXcc, sXcc))
        a('s_and_b32 s%d, s%d, 3' % (sWv, sWave))
        a('s_lshr_b32 s%d, s%d, 2' % (sSet, sWave))
        a('s_and_b32 s%d, s2, 7' % sT)
        a('s_lshr_b32 s%d, s2, 3' % (sT + 1))
        a('s_and_b32 s%d, s%d, 15' % (sHG, sT + 1))
        a('s_lshr_b32 s%d, s%d, 4' % (sT + 1, sT + 1))
        a('s_lshl_b32 s%d, s%d, 1' % (sTG, sT))
        a('s_add_u32 s%d, s%d, s%d' % (sTG, sTG, sT + 1))
        a('s_mov_b32 s%d, 0x%x' % (sBud, 2000000))
        a('s_mov_b32 s%d, 0x05040100' % sSelLo)
        a('s_mov_b32 s%d, 0x07060302' % sSelHi)
        a('s_mov_b32 s%d, 0' % sLayer)
        a('s_mov_b32 s%d, 0' % sWoOk)
        a('s_mov_b32 s%d, 0' % sFast)
        a('v_mov_b32 v%d, 0x%x' % (vFlag, L_FLG))
        a('v_and_b32 v1, 3, v%d' % vLane)
        a('v_cmp_eq_u32 s[%d:%d], 1, v1' % (sM1, sM1 + 1))
        a('v_cmp_eq_u32 s[%d:%d], 2, v1' % (sM2, sM2 + 1))
        a('v_cmp_eq_u32 s[%d:%d], 3, v1' % (sM3, sM3 + 1))
        a('v_lshrrev_b32 v1, 4, v%d' % vLane)
        a('v_bfe_u32 v2, v%d, 2, 2' % vLane)
        a('v_cmp_eq_u32 s[%d:%d], v1, v2' % (sMD, sMD + 1))
        a('v_mov_b32 v1, 0')
        a('v_lshl_add_u32 v2, v%d, 2, v%d' % (vLane, vFlag))
        a('ds_write_b32 v2, v1')
        a('s_waitcnt lgkmcnt(0)')

        def mk(n, lo, hi, size):
            a('s_mov_b32 s%d, s%d' % (n, lo))
            a('s_and_b32 s%d, s%d, 0xffff' % (n + 1, hi))
            a('s_mov_b32 s%d, 0x%x' % (n + 2, size))
            a('s_mov_b32 s%d, 0x00020000' % (n + 3))
        mk(sIN, 4, 5, XBYTES)
        mk(sOUT, 16, 17, XBYTES)
        mk(sDBG, 18, 19, 256)
        mk(sWS2, 20, 21, WS_SIZE)
        a('s_add_u32 s20, s20, 0x%x' % WS_PAD)
        a('s_addc_u32 s21, s21, 0')
        mk(sWS, 20, 21, WS_SIZE)
        a('s_mov_b32 s%d, 0' % sTi)
        a('s_cmp_eq_u32 s%d, 0' % sSet)
        a('s_cbranch_scc0 L_SETB_SRD')
        mk(sWQ, 6, 7, 576 * 1728 * 2)
        mk(sWO, 14, 15, 576 * 576 * 2)
        a('s_branch L_SRD_DONE')
        a.label('L_SETB_SRD')
        mk(sWQ, 12, 13, 576 * 1728 * 2)
        mk(sWO, 8, 9, 576 * 576 * 2)
        a.label('L_SRD_DONE')
        a('s_mul_i32 s%d, s%d, %d' % (sMt, sWv, MT))
        a('s_mul_i32 s%d, s%d, %d' % (sTileW, sTG, 2 * TILE))
        a('s_mul_i32 s%d, s%d, %d' % (sT, sWv, MT))
        a('s_add_u32 s%d, s%d, s%d' % (sTileW, sTileW, sT))
        a('s_lshl_b32 s%d, s%d, 11' % (sFlW, sTG))
        a('s_lshl_b32 s%d, s%d, 7' % (sT, sWv))
        a('s_add_u32 s%d, s%d, s%d' % (sFlW, sFlW, sT))
        a('s_add_u32 s%d, s%d, %d' % (sFlW, sFlW, WS_FL))
        a('s_mov_b32 s%d, 0' % sOwn)
        a('s_mov_b32 s%d, 0' % sWoP)
        a('s_mov_b32 s%d, 0' % sPub)
        a('s_mul_i32 s%d, s%d, 5120' % (sTab, sWv))
        a('s_add_u32 s%d, s%d, 0x%x' % (sTab, sTab, L_TAB))
        a('s_mov_b32 s%d, s%d' % (sCs, sSet))
        a('s_mul_i32 s%d, s%d, 48' % (sQu, sWv))
        a('s_add_u32 s%d, s%d, 0x%x' % (sQu, sQu, L_QKV))
        a('s_lshl_b32 s%d, s%d, 4' % (sQu + 1, sWv))
        a('s_add_u32 s%d, s%d, 0x%x' % (sQu + 1, sQu + 1, L_QKV + 192 - 48))
        a('s_lshl_b32 s%d, s%d, 6' % (sSt, sWv))
        a('s_add_u32 s%d, s%d, 0x%x' % (sSt, sSt, L_ST + 64 - 192))
        a('s_mov_b32 s%d, 0x%x' % (sSt + 1, L_ST - 192))
        a('s_and_b32 s%d, s%d, 1' % (sH, sTG))
        km = 0xffff & ~sum(1 << self.UNIT[i] for i in (0, 1, 2, 12))
        a('s_mov_b32 s%d, 0x%x' % (sKm, km | (km << 16)))
        a('s_mov_b32 s%d, 0x%x' % (sKm + 1, km | (km << 16)))
        if True:
            a('s_setprio %s' % '2')
        a('s_barrier')
        if self.debug:
            a('v_mov_b32 v%d, 0' % vTr)
        self.tr(1)

    def wload_addr(self, v1, v2, tmp):
        a = self.a
        i, q, oa, rr, t4, t5 = tmp, tmp + 1, tmp + 2, tmp + 3, tmp + 4, tmp + 5
        a('v_and_b32 v%d, 15, v%d' % (i, vLane))
        a('v_lshrrev_b32 v%d, 4, v%d' % (q, vLane))
        a('v_lshrrev_b32 v%d, 2, v%d' % (oa, i))
        a('v_and_b32 v%d, 3, v%d' % (rr, i))
        a('s_mul_i32 s%d, s%d, 3' % (sT, sWv))
        a('v_add_u32 v%d, s%d, v%d' % (t4, sT, oa))
        a('v_lshrrev_b32 v%d, 2, v%d' % (v1, t4))
        a('v_mul_u32_u24 v%d, 576, v%d' % (v1, v1))
        a('v_bfe_u32 v%d, v%d, 1, 1' % (t5, t4))
        a('v_mul_u32_u24 v%d, 18, v%d' % (t5, t5))
        a('v_add_u32 v%d, v%d, v%d' % (v1, v1, t5))
        a('v_and_b32 v%d, 1, v%d' % (t5, t4))
        a('v_lshl_add_u32 v%d, v%d, 3, v%d' % (v1, t5, v1))
        a('v_lshl_add_u32 v%d, v%d, 1, v%d' % (v1, rr, v1))
        a('s_mul_i32 s%d, s%d, 576' % (sT, sWv))
        a('s_add_u32 s%d, s%d, 16' % (sT, sT))
        a('v_mul_u32_u24 v%d, 18, v%d' % (t5, rr))
        a('v_add_u32 v%d, s%d, v%d' % (t5, sT, t5))
        a('v_cmp_eq_u32 vcc, 3, v%d' % oa)
        a('v_cndmask_b32 v%d, v%d, v%d, vcc' % (v1, v1, t5))
        a('s_mul_i32 s%d, s%d, 36' % (sT, sHG))
        a('v_add_u32 v%d, s%d, v%d' % (v1, sT, v1))
        a('v_lshlrev_b32 v%d, 1, v%d' % (v1, v1))
        a('s_cmp_eq_u32 s%d, 3' % sWv)
        a('s_cselect_b32 s%d, 12, 14' % sT)
        a('v_cmp_le_u32 vcc, s%d, v%d' % (sT, i))
        a('v_mov_b32 v%d, 0x%x' % (t5, OOB))
        a('v_cndmask_b32 v%d, v%d, v%d, vcc' % (v1, v1, t5))
        a('s_mov_b32 s%d, %d' % (sT, 72 * 3456))
        a('v_mul_lo_u32 v%d, v%d, s%d' % (t5, q, sT))
        a('v_add_u32 v%d, v%d, v%d' % (v2, v1, t5))
        a('v_mul_u32_u24 v%d, %d, v%d' % (t5, 8 * 3456, q))
        a('v_add_u32 v%d, v%d, v%d' % (v1, v1, t5))

    def wload_issue(self, ks_list, v1, v2):
        a = self.a
        if os.environ.get('NOW'):
            ks_list = list(ks_list)[:1]
        for ks in ks_list:
            for e in range(0, 8, 2):
                if ks < 16:
                    row, vo = 36 * ks + e, v1
                else:
                    row, vo = 288 * (ks - 16) + 36 * (e >> 2) + 32 + (e & 3), v2
                st = sT + (e >> 1) % 2
                a('s_mov_b32 s%d, %d' % (st, row * 3456))
                m = e >> 1
                a('buffer_load_dword v%d, v%d, %s, s%d offen' % (W(0, ks) + m, vo, srd(sWQ), st))
                a('buffer_load_dword v%d, v%d, %s, s%d offen offset:3456' % (W(1, ks) + m, vo, srd(sWQ), st))

    def wload_perm(self, ks_list, ones, tmp):
        a = self.a
        for ks in ks_list:
            for m in range(4):
                r0, r1 = W(0, ks) + m, W(1, ks) + m
                t = tmp + (m & 1)
                a('v_perm_b32 v%d, v%d, v%d, s%d' % (t, r1, r0, sSelLo))
                a('v_perm_b32 v%d, v%d, v%d, s%d' % (r1, r1, r0, sSelHi))
                a('v_or_b32 v%d, v%d, v%d' % (r0, ones, t))

    def pw_issue(self, v1, v2):
        a = self.a
        L1, L2 = a.uid('Lpi'), a.uid('Lpie')
        a('s_cmp_lg_u32 s%d, 0' % sH)
        a('s_cbranch_scc1 %s' % L1)
        self.wload_issue(range(0, 9), v1, v2)
        a('s_branch %s' % L2)
        a.label(L1)
        self.wload_issue(range(9, 18), v1, v2)
        a.label(L2)

    def pw_finish(self, v1, v2, tmp):
        a = self.a
        Ltop, L1, L2, Ldone, Lfb = a.uid('Lpt'), a.uid('Lp1'), a.uid('Lp2'), a.uid('Lpd'), a.uid('Lpfb')
        a('s_mov_b32 s%d, 0' % sPass)
        a.label(Ltop)
        self.ones_mask(tmp, tmp + 1)
        a('v_lshlrev_b32 v%d, 4, v%d' % (tmp + 4, vLane))
        a('s_lshl_b32 s%d, s2, 3' % (sT + 2))
        a('s_add_u32 s%d, s%d, s%d' % (sT + 2, sT + 2, sWave))
        a('s_mul_i32 s%d, s%d, 18432' % (sT + 3, sT + 2))
        a('s_add_u32 s%d, s%d, %d' % (sT + 3, sT + 3, WS_PIMG))
        a('s_waitcnt vmcnt(0)')
        a('s_cmp_lg_u32 s%d, 0' % sH)
        a('s_cbranch_scc1 %s' % L1)
        for h, lab in ((0, None), (1, L1)):
            if lab:
                a.label(lab)
            self.wload_perm(range(9 * h, 9 * h + 9), tmp, tmp + 2)
            a('s_cmp_lg_u32 s%d, 0' % sPass)
            a('s_cbranch_scc1 %s' % Ldone)
            for n in range(18):
                if n % 4 == 0 and n:
                    a('s_add_u32 s%d, s%d, 4096' % (sT + 3, sT + 3))
                a('buffer_store_dwordx4 %s, v%d, %s, s%d offen offset:%d' % (vr(vW + 72 * h + 4 * n), tmp + 4, srd(sWS), sT + 3, (n % 4) * 1024))
            if h == 0:
                a('s_branch %s' % L2)
        a.label(L2)
        a('s_lshl_b32 s%d, s%d, 4' % (sT + 3, sT + 2))
        a('s_add_u32 s%d, s%d, %d' % (sT + 3, sT + 3, WS_PFLG))
        a('v_mov_b32 v%d, s%d' % (tmp, sNon))
        a('v_mov_b32 v%d, s%d' % (tmp + 1, sNon + 1))
        a('v_mov_b32 v%d, s%d' % (tmp + 2, sXcc))
        a('v_mov_b32 v%d, s%d' % (tmp + 3, sNon))
        a('v_mov_b32 v%d, 0' % (tmp + 5))
        a('s_mov_b64 exec, 1')
        a('s_waitcnt vmcnt(0)')
        a('buffer_store_dwordx4 %s, v%d, %s, s%d offen' % (vr(tmp), tmp + 5, srd(sWS), sT + 3))
        a('s_mov_b64 exec, -1')
        a('s_xor_b32 s%d, s%d, 1024' % (sT + 2, sT + 2))
        a('s_lshl_b32 s%d, s%d, 4' % (sT + 3, sT + 2))
        a('s_add_u32 s%d, s%d, %d' % (sT + 3, sT + 3, WS_PFLG))
        a('s_mov_b32 s%d, %d' % (sT + 4, 1 if os.environ.get('FORCE_SLOW') else 200))
        Lp, Lg = a.uid('Lpp'), a.uid('Lpg')
        a.label(Lp)
        a('buffer_load_dwordx4 %s, v%d, %s, s%d offen sc1' % (vr(tmp), tmp + 5, srd(sWS), sT + 3))
        a('s_waitcnt vmcnt(0)')
        a('v_xor_b32 v%d, s%d, v%d' % (tmp, sNon, tmp))
        a('v_xor_b32 v%d, s%d, v%d' % (tmp + 1, sNon + 1, tmp + 1))
        a('v_xor_b32 v%d, s%d, v%d' % (tmp + 2, sXcc, tmp + 2))
        a('v_xor_b32 v%d, s%d, v%d' % (tmp + 3, sNon, tmp + 3))
        a('v_or3_b32 v%d, v%d, v%d, v%d' % (tmp, tmp, tmp + 1, tmp + 2))
        a('v_or_b32 v%d, v%d, v%d' % (tmp, tmp, tmp + 3))
        a('v_cmp_ne_u32 vcc, 0, v%d' % tmp)
        a('s_nop 1')
        a('s_cmp_eq_u64 vcc, 0')
        if not os.environ.get('FORCE_SLOW'):
            a('s_cbranch_scc1 %s' % Lg)
        a('s_sub_u32 s%d, s%d, 1' % (sT + 4, sT + 4))
        a('s_cmp_eq_u32 s%d, 0' % (sT + 4))
        a('s_cbranch_scc1 %s' % Lfb)
        a('s_sleep 1')
        a('s_branch %s' % Lp)
        a.label(Lfb)
        a('s_mov_b32 s%d, 1' % sPass)
        a('s_xor_b32 s%d, s%d, 1' % (sH, sH))
        self.pw_issue(v1, v2)
        a('s_branch %s' % Ltop)
        a.label(Lg)
        a('s_mul_i32 s%d, s%d, 18432' % (sT + 3, sT + 2))
        a('s_add_u32 s%d, s%d, %d' % (sT + 3, sT + 3, WS_PIMG))
        L3 = a.uid('Lp3')
        a('s_cmp_eq_u32 s%d, 0' % sH)
        a('s_cbranch_scc1 %s' % L3)
        for h, lab in ((0, None), (1, L3)):
            if lab:
                a.label(lab)
            for n in range(18):
                if n % 4 == 0 and n:
                    a('s_add_u32 s%d, s%d, 4096' % (sT + 3, sT + 3))
                a('buffer_load_dwordx4 %s, v%d, %s, s%d offen offset:%d sc1' % (vr(vW + 72 * h + 4 * n), tmp + 4, srd(sWS), sT + 3, (n % 4) * 1024))
            if h == 0:
                a('s_branch %s' % Ldone)
        a.label(Ldone)

    def ones_mask(self, dst, tmp):
        a = self.a
        a('v_and_b32 v%d, 15, v%d' % (tmp, vLane))
        a('v_cmp_eq_u32 vcc, 14, v%d' % tmp)
        a('v_mov_b32 v%d, 0x3f803f80' % tmp)
        a('v_cndmask_b32 v%d, 0, v%d, vcc' % (dst, tmp))

    def colsum(self, tmp, progressive=False):
        a = self.a
        for i in range(4):
            a('v_mov_b32 v%d, 0x3f803f80' % (tmp + i))
        for ks in range(18):
            if progressive:
                a('s_waitcnt vmcnt(%d)' % (34 - 2 * ks))
            for t in range(2):
                a(mfma(vCS + 4 * t, W(t, ks), tmp, ks == 0))

    def coop_issue(self, v1, v2):
        a = self.a
        a('s_mul_i32 s%d, s%d, %d' % (sT + 2, sTG, 36 * 3456))
        a('s_and_b32 s%d, s%d, 1' % (sT + 3, sTG))
        a('s_mul_i32 s%d, s%d, %d' % (sT + 3, sT + 3, 288 * 3456))
        for u in range(2):
            for e in range(0, 8, 2):
                row = e if u == 0 else 36 * (e >> 2) + 32 + (e & 3)
                st = sT + (e >> 1) % 2
                a('s_add_u32 s%d, s%d, %d' % (st, sT + 2 + u, row * 3456))
                m = e >> 1
                vo = v1 if u == 0 else v2
                a('buffer_load_dword v%d, v%d, %s, s%d offen' % (W(0, u) + m, vo, srd(sWQ), st))
                a('buffer_load_dword v%d, v%d, %s, s%d offen offset:3456' % (W(1, u) + m, vo, srd(sWQ), st))

    def coop_id(self, dst):
        a = self.a
        a('s_lshl_b32 s%d, s%d, 4' % (dst, sSet))
        a('s_add_u32 s%d, s%d, s%d' % (dst, dst, sHG))
        a('s_lshl_b32 s%d, s%d, 2' % (dst, dst))
        a('s_add_u32 s%d, s%d, s%d' % (dst, dst, sWv))

    def coop_store(self, tmp):
        a = self.a
        self.ones_mask(tmp, tmp + 1)
        self.wload_perm(range(2), tmp, tmp + 2)
        self.coop_id(sT + 2)
        a('s_mul_i32 s%d, s%d, %d' % (sT + 2, sT + 2, 36864))
        a('s_add_u32 s%d, s%d, %d' % (sT + 2, sT + 2, WS_CIMG))
        a('s_lshl_b32 s%d, s%d, 11' % (sT + 3, sTG))
        a('s_add_u32 s%d, s%d, s%d' % (sT + 3, sT + 3, sT + 2))
        a('v_lshlrev_b32 v%d, 4, v%d' % (tmp + 4, vLane))
        a('buffer_store_dwordx4 %s, v%d, %s, s%d offen sc1' % (vr(W(0, 0)), tmp + 4, srd(sWS), sT + 3))
        a('buffer_store_dwordx4 %s, v%d, %s, s%d offen offset:1024 sc1' % (vr(W(1, 0)), tmp + 4, srd(sWS), sT + 3))
        L = a.uid('Lcs')
        a('s_cmp_ge_u32 s%d, 2' % sTG)
        a('s_cbranch_scc1 %s' % L)
        a('s_add_u32 s%d, s%d, %d' % (sT + 3, sT + 3, 16 * 2048))
        a('buffer_store_dwordx4 %s, v%d, %s, s%d offen sc1' % (vr(W(0, 1)), tmp + 4, srd(sWS), sT + 3))
        a('buffer_store_dwordx4 %s, v%d, %s, s%d offen offset:1024 sc1' % (vr(W(1, 1)), tmp + 4, srd(sWS), sT + 3))
        a.label(L)

    def coop_flag(self, tmp):
        a = self.a
        self.coop_id(sT + 2)
        a('s_lshl_b32 s%d, s%d, 4' % (sT + 2, sT + 2))
        a('s_add_u32 s%d, s%d, s%d' % (sT + 2, sT + 2, sTG))
        a('s_lshl_b32 s%d, s%d, 3' % (sT + 2, sT + 2))
        a('s_add_u32 s%d, s%d, %d' % (sT + 2, sT + 2, WS_CFLG))
        self.store_nonce_flag(sT + 2, tmp)

    def coop_load(self, tmp):
        a = self.a
        self.coop_id(sT + 2)
        a('s_lshl_b32 s%d, s%d, 7' % (sT + 3, sT + 2))
        a('s_add_u32 s%d, s%d, %d' % (sT + 3, sT + 3, WS_CFLG))
        a('v_and_b32 v%d, 15, v%d' % (tmp + 2, vLane))
        a('v_lshlrev_b32 v%d, 3, v%d' % (tmp + 2, tmp + 2))
        self.poll_nonce_flags(sT + 3, tmp + 2, tmp, 15)
        a('s_mul_i32 s%d, s%d, %d' % (sT + 2, sT + 2, 36864))
        a('s_add_u32 s%d, s%d, %d' % (sT + 2, sT + 2, WS_CIMG))
        a('v_lshlrev_b32 v%d, 4, v%d' % (tmp + 2, vLane))
        for n in range(36):
            if n % 4 == 0 and n:
                a('s_add_u32 s%d, s%d, 4096' % (sT + 2, sT + 2))
            a('buffer_load_dwordx4 %s, v%d, %s, s%d offen offset:%d sc1' % (vr(vW + 4 * n), tmp + 2, srd(sWS), sT + 2, (n % 4) * 1024))

    def wou_issue(self, D, tmp):
        a = self.a
        i, q, t2, t3, vo, SEL = tmp, tmp + 1, tmp + 2, tmp + 3, tmp + 4, tmp + 5
        a('v_and_b32 v%d, 15, v%d' % (i, vLane))
        a('v_lshrrev_b32 v%d, 4, v%d' % (q, vLane))
        a('v_lshrrev_b32 v%d, 1, v%d' % (t2, q))
        a('v_mul_u32_u24 v%d, 18, v%d' % (t2, t2))
        a('v_and_b32 v%d, 1, v%d' % (t3, q))
        a('v_lshl_add_u32 v%d, v%d, 3, v%d' % (t2, t3, t2))
        a('v_mul_u32_u24 v%d, 72, v%d' % (t3, q))
        a('s_cmp_ge_u32 s%d, 2' % sWv)
        a('s_cselect_b64 vcc, -1, 0')
        a('v_cndmask_b32 v%d, v%d, v%d, vcc' % (t2, t2, t3))
        a('v_mul_u32_u24 v%d, 1152, v%d' % (vo, t2))
        a('v_lshlrev_b32 v%d, 2, v%d' % (t2, i))
        a('v_and_b32 v%d, 2, v%d' % (t3, i))
        a('v_lshlrev_b32 v%d, 1, v%d' % (t3, t3))
        a('v_add_u32 v%d, 64, v%d' % (t3, t3))
        a('s_and_b32 s%d, s%d, 1' % (sT, sWv))
        a('s_cmp_eq_u32 s%d, 1' % sT)
        a('s_cselect_b64 vcc, -1, 0')
        a('v_cndmask_b32 v%d, v%d, v%d, vcc' % (t2, t2, t3))
        a('s_mul_i32 s%d, s%d, 72' % (sT, sHG))
        a('v_add3_u32 v%d, v%d, v%d, s%d' % (vo, vo, t2, sT))
        a('v_and_b32 v%d, 1, v%d' % (t2, i))
        a('v_cmp_eq_u32 vcc, 1, v%d' % t2)
        a('v_mov_b32 v%d, s%d' % (t2, sSelLo))
        a('v_mov_b32 v%d, s%d' % (t3, sSelHi))
        a('v_cndmask_b32 v%d, v%d, v%d, vcc' % (SEL, t2, t3))
        a('s_mul_i32 s%d, s%d, %d' % (sT + 2, sTG, 36 * 1152))
        a('s_and_b32 s%d, s%d, 1' % (sT + 3, sTG))
        a('s_mul_i32 s%d, s%d, %d' % (sT + 3, sT + 3, 288 * 1152))
        a('s_cmp_ge_u32 s%d, 2' % sWv)
        for e in range(0, 8, 2):
            r0 = e * 1152
            r1 = (36 * (e >> 2) + 18 * ((e >> 1) & 1) + 16) * 1152
            a('s_cselect_b32 s%d, s%d, s%d' % (sT, sT + 3, sT + 2))
            a('s_cselect_b32 s%d, %d, %d' % (sT + 1, r1, r0)) if False else None
            a('s_mov_b32 s%d, %d' % (sT + 4, r0))
            a('s_mov_b32 s%d, %d' % (sT + 5, r1))
            a('s_cselect_b32 s%d, s%d, s%d' % (sT + 1, sT + 5, sT + 4))
            a('s_lshl_b32 s%d, s%d, 0' % (sT + 6, sT)) if False else None
            m = e >> 1
            a('s_add_u32 s%d, s%d, s%d' % (sT + 6 + (m & 1), sT, sT + 1))
            a('buffer_load_dword v%d, v%d, %s, s%d offen' % (D + m, vo, srd(sWO), sT + 6 + (m & 1)))
            a('buffer_load_dword v%d, v%d, %s, s%d offen offset:1152' % (D + 4 + m, vo, srd(sWO), sT + 6 + (m & 1)))
            a('s_cmp_ge_u32 s%d, 2' % sWv)

    def wou_ids(self):
        a = self.a
        a('s_lshl_b32 s%d, s%d, 4' % (sT + 2, sSet))
        a('s_add_u32 s%d, s%d, s%d' % (sT + 2, sT + 2, sHG))
        a('s_and_b32 s%d, s%d, 1' % (sT + 3, sTG))
        a('s_add_u32 s%d, s%d, 16' % (sT + 3, sT + 3))
        a('s_cmp_ge_u32 s%d, 2' % sWv)
        a('s_cselect_b32 s%d, s%d, s%d' % (sT + 3, sT + 3, sTG))

    def wou_store(self, D, tmp):
        a = self.a
        SEL = tmp + 5
        Lskip, Lk1 = a.uid('Lwus'), a.uid('Lwuk')
        a('s_lshr_b32 s%d, s%d, 1' % (sT, sWv))
        a('s_lshr_b32 s%d, s%d, 1' % (sT + 1, sTG))
        a('s_min_u32 s%d, s%d, s%d' % (sT, sT, sT + 1))
        a('s_cmp_lg_u32 s%d, 0' % sT)
        a('s_cbranch_scc1 %s' % Lskip)
        self.wou_ids()
        a('s_mul_i32 s%d, s%d, %d' % (sT + 2, sT + 2, WIS))
        a('s_mul_i32 s%d, s%d, 2304' % (sT + 3, sT + 3))
        a('s_add_u32 s%d, s%d, s%d' % (sT + 2, sT + 2, sT + 3))
        a('s_add_u32 s%d, s%d, %d' % (sT + 2, sT + 2, WS_WIMG))
        a('s_and_b32 s%d, s%d, 1' % (sT, sWv))
        a('s_cmp_eq_u32 s%d, 1' % sT)
        a('s_cbranch_scc1 %s' % Lk1)
        for m in range(4):
            r0, r1 = D + m, D + 4 + m
            t = tmp + (m & 1)
            a('v_perm_b32 v%d, v%d, v%d, s%d' % (t, r1, r0, sSelLo))
            a('v_perm_b32 v%d, v%d, v%d, s%d' % (r1, r1, r0, sSelHi))
            a('v_mov_b32 v%d, v%d' % (r0, t))
        a('v_lshlrev_b32 v%d, 4, v%d' % (tmp, vLane))
        a('buffer_store_dwordx4 %s, v%d, %s, s%d offen sc1' % (vr(D), tmp, srd(sWS), sT + 2))
        a('buffer_store_dwordx4 %s, v%d, %s, s%d offen offset:1024 sc1' % (vr(D + 4), tmp, srd(sWS), sT + 2))
        a('s_branch %s' % Lskip)
        a.label(Lk1)
        for m in range(4):
            a('v_perm_b32 v%d, v%d, v%d, v%d' % (D + m, D + 4 + m, D + m, SEL))
        a('v_and_b32 v%d, 15, v%d' % (tmp, vLane))
        a('v_cmp_gt_u32 vcc, 4, v%d' % tmp)
        a('v_lshlrev_b32 v%d, 4, v%d' % (tmp, tmp))
        a('v_lshrrev_b32 v%d, 4, v%d' % (tmp + 1, vLane))
        a('v_lshl_add_u32 v%d, v%d, 6, v%d' % (tmp, tmp + 1, tmp))
        a('s_mov_b64 exec, vcc')
        a('buffer_store_dwordx4 %s, v%d, %s, s%d offen offset:2048 sc1' % (vr(D), tmp, srd(sWS), sT + 2))
        a('s_mov_b64 exec, -1')
        a.label(Lskip)

    def wou_flag(self, tmp):
        a = self.a
        Lskip = a.uid('Lwuf')
        a('s_lshr_b32 s%d, s%d, 1' % (sT, sWv))
        a('s_lshr_b32 s%d, s%d, 1' % (sT + 1, sTG))
        a('s_min_u32 s%d, s%d, s%d' % (sT, sT, sT + 1))
        a('s_cmp_lg_u32 s%d, 0' % sT)
        a('s_cbranch_scc1 %s' % Lskip)
        self.wou_ids()
        a('s_lshl_b32 s%d, s%d, 9' % (sT + 2, sT + 2))
        a('s_and_b32 s%d, s%d, 1' % (sT, sWv))
        a('s_mul_i32 s%d, s%d, 18' % (sT, sT))
        a('s_add_u32 s%d, s%d, s%d' % (sT + 3, sT + 3, sT))
        a('s_lshl_b32 s%d, s%d, 3' % (sT + 3, sT + 3))
        a('s_add_u32 s%d, s%d, s%d' % (sT + 2, sT + 2, sT + 3))
        a('s_add_u32 s%d, s%d, %d' % (sT + 2, sT + 2, WS_WFLG))
        self.store_nonce_flag(sT + 2, tmp)
        a.label(Lskip)

    def wo_stage(self, async_=False):
        a = self.a
        TMP = 88
        Lok = a.uid('Lwook')
        a('s_lshl_b32 s%d, s%d, 4' % (sT + 2, sSet))
        a('s_add_u32 s%d, s%d, s%d' % (sT + 2, sT + 2, sHG))
        a('s_cmp_lg_u32 s%d, 0' % sWoOk)
        a('s_cbranch_scc1 %s' % Lok)
        a('s_lshl_b32 s%d, s%d, 9' % (sT + 3, sT + 2))
        a('s_add_u32 s%d, s%d, %d' % (sT + 3, sT + 3, WS_WFLG))
        a('v_min_u32 v%d, 35, v%d' % (TMP + 2, vLane))
        a('v_lshlrev_b32 v%d, 3, v%d' % (TMP + 2, TMP + 2))
        self.poll_nonce_flags(sT + 3, TMP + 2, TMP, 16)
        a('s_mov_b32 s%d, 1' % sWoOk)
        a.label(Lok)
        a('s_mul_i32 s%d, s%d, %d' % (sT + 2, sT + 2, WIS))
        a('s_mul_i32 s%d, s%d, 10240' % (sT + 3, sWv))
        a('s_add_u32 s%d, s%d, s%d' % (sT + 2, sT + 2, sT + 3))
        a('s_add_u32 s%d, s%d, %d' % (sBase, sT + 2, WS_WIMG))
        a('s_add_u32 s%d, s%d, %d' % (sBase2, sT + 3, L_WO))
        a('v_lshlrev_b32 v%d, 4, v%d' % (TMP + 4, vLane))
        self.wait_flag(F_WF, sLayer, TMP, 9)
        self.wait_flag(F_WG, sLayer, TMP, 14)
        for n in range(11):
            if n % 4 == 0:
                a('s_add_u32 s%d, s%d, %d' % (sT, sBase, n * 1024))
                a('s_add_u32 s%d, s%d, %d' % (sT + 1, sBase2, n * 1024))
                a('s_mov_b32 m0, s%d' % (sT + 1))
            if n == 10:
                a('s_mov_b32 exec_hi, 0')
            a('buffer_load_dwordx4 v%d, %s, s%d offen offset:%d sc1 lds' % (TMP + 4, srd(sWS), sT, (n % 4) * 1024))
        a('s_mov_b64 exec, -1')
        if not async_:
            a('s_waitcnt vmcnt(0)')
            self.set_flag(F_WR, sLayer, TMP, add=1)
        self.tr(30)

    ORDER = [3, 1, 2, 0]
    UNIT = [0, 1, 8, 9, 3, 4, 11, 12, 2, 6, 10, 14, 5, 7, 13, 15]

    def kv_base(self, dst, layer_sreg_or_const, tg_add):
        a = self.a
        if isinstance(layer_sreg_or_const, str):
            a('s_lshl_b32 s%d, %s, 5' % (dst, layer_sreg_or_const))
        else:
            a('s_mov_b32 s%d, %d' % (dst, layer_sreg_or_const * 32))
        a('s_lshl_b32 s%d, s%d, 1' % (sT + 1, sTG))
        a('s_add_u32 s%d, s%d, s%d' % (dst, dst, sT + 1))
        a('s_add_u32 s%d, s%d, s%d' % (dst, dst, sP))
        a('s_lshl_b32 s%d, s%d, 4' % (dst, dst))
        a('s_add_u32 s%d, s%d, s%d' % (dst, dst, sHG))
        a('s_mul_i32 s%d, s%d, %d' % (dst, dst, KVT))
        a('s_add_u32 s%d, s%d, %d' % (dst, dst, WS_KV + tg_add * 32 * KVT))

    def kv_prefill(self, tmp):
        a = self.a
        a('v_lshlrev_b32 v%d, 4, v%d' % (tmp, vLane))
        a('s_mul_i32 s%d, s%d, 576' % (sT, sWv))
        a('v_add_u32 v%d, s%d, v%d' % (tmp, sT, tmp))
        for i in range(4):
            a('v_mov_b32 v%d, -1' % (tmp + 2 + i))
        a('s_mov_b32 s%d, 0' % sP)
        self.kv_base(sT + 2, 's%d' % sSet, 0)
        a('s_mov_b32 exec_lo, -1')
        a('s_mov_b32 exec_hi, 15')
        for l2 in range(2):
            for p_ in range(2):
                a('s_add_u32 s%d, s%d, %d' % (sT + 3, sT + 2, (l2 * 64 + p_) * 16 * KVT))
                a('buffer_store_dwordx4 %s, v%d, %s, s%d offen sc1' % (vr(tmp + 2), tmp, srd(sWS), sT + 3))
        a('s_mov_b64 exec, -1')

    def m_prep(self):
        a = self.a
        XA, TMP = 95, 40
        a('s_lshl_b32 s%d, s%d, 1' % (sN, sLayer))
        a('s_add_u32 s%d, s%d, s%d' % (sN, sN, sP))
        a('s_lshl_b32 s%d, s%d, 2' % (sG, sN))
        a('v_lshrrev_b32 v%d, 4, v%d' % (TMP, vLane))
        a('v_and_b32 v%d, 15, v%d' % (TMP + 1, vLane))
        self.swz(XA, TMP, TMP + 1, TMP + 2)
        a('v_add_u32 v%d, %d, v%d' % (XA + 1, 2 * MT, XA))
        a('v_lshlrev_b32 v%d, 3, v%d' % (TMP + 1, TMP + 1))
        a('v_lshl_add_u32 v%d, v%d, 8, v%d' % (XA + 2, TMP, TMP + 1))
        a('v_add_u32 v%d, 16384, v%d' % (XA + 2, XA + 2))

    def pub_pending(self, tmp, soft=False):
        a = self.a
        Ln = a.uid('Lnopub')
        a('s_cmp_eq_u32 s%d, 0' % sPub)
        if soft:
            a.softbranch('s_cbranch_scc1 %s' % Ln)
        else:
            a('s_cbranch_scc1 %s' % Ln)
        a('s_mov_b32 s%d, 0' % sPub)
        a('s_mov_b32 s%d, 0' % sP)
        self.both_modes(lambda sc: self.publish_event(0, tmp, sc))
        a('s_mov_b32 s%d, 1' % sP)
        a.label(Ln, noflush=soft)

    def m_role(self):
        a = self.a
        a.label('L_M_ROLE')
        a('s_mov_b32 s%d, 0' % sP)
        a.label('L_M_TASK')
        self.m_prep()
        a.label('L_M_GO')
        Lown = a.uid('Lown')
        a('s_cmp_eq_u32 s%d, 0' % sOwn)
        a('s_cbranch_scc1 %s' % Lown)
        a('s_waitcnt vmcnt(15)')
        self.set_flag(F_XR, sG, 40, add=1)
        a.label(Lown)
        self.kv_base(sBase, 's%d' % sLayer, 0)
        a('s_sub_u32 s%d, s%d, %d' % (sBase2, sBase, 32 * KVT))
        a('s_add_u32 s%d, s%d, 1' % (sT + 7, sG))
        Lrdy = a.uid('Lrdy')
        a('ds_read_b128 %s, v%d offset:%d' % (vr(40), vFlag, F_XR))
        a('s_waitcnt lgkmcnt(0)')
        self.flag_min(40)
        a('s_nop 1')
        a('s_cmp_ge_u32 s%d, s%d' % (sT + 8, sT + 7))
        a('s_cbranch_scc1 %s' % Lrdy)
        self.pub_pending(44)
        self.wait_flag(F_XR, sT + 7, 40, 1)
        a.label(Lrdy)
        if True:
            a('s_setprio 0')
        self.tr(11)
        for w in range(1, 4):
            a('s_cmp_eq_u32 s%d, %d' % (sWv, w))
            a('s_cbranch_scc1 L_A_W%d' % w)
        for w in range(4):
            a.label('L_A_W%d' % w)
            self.a_phase(w)
            if w < 3:
                a('s_branch L_M_EPI')
        a.label('L_M_EPI')
        if True:
            a('s_setprio %s' % '2')
        self.tr(12)
        self.attention()
        self.tr(15)
        a('s_add_u32 s%d, s%d, 1' % (sP, sP))
        a('s_cmp_lt_u32 s%d, 2' % sP)
        a('s_cbranch_scc1 L_M_TASK')
        a('s_mov_b32 s%d, 1' % sP)
        a('s_branch L_BPHASE')

    def a_phase(self, w):
        a = self.a
        ORDER = self.ORDER
        ACC = lambda s, t: (s * 2 + t) * 4
        G0, FL = 32, 36
        NB = 8
        RB = lambda i: 40 + 4 * (i % NB)
        QB, BPA, T3 = 72, 73, 74
        KD, KA = 76, 88
        XA = 95
        XT = 98
        LT = 99
        lds = []

        def L(tag, text):
            a(text)
            lds.append(tag)

        def wait_for(tag):
            idx = max(i for i, t in enumerate(lds) if t == tag)
            a('s_waitcnt lgkmcnt(%d)' % min(len(lds) - 1 - idx, 15))
        I = lambda text: (lambda: a(text))
        seq = [(u, ks) for u in range(4) for ks in range(18)]

        def rd(i):
            u, ks = seq[i]
            mt = ORDER[u]
            if ks < 16:
                L(('r', i), 'ds_read_b128 %s, v%d offset:%d' % (vr(RB(i)), XA + (mt >> 1), (mt & 1) * MT + ks * 1024))
            else:
                o = 128 * (ks - 16)
                L(('r', i), 'ds_read2_b64 %s, v%d offset0:%d offset1:%d' % (vr(RB(i)), XT, o, o + 16))
        PF = NB - 1
        chains = []

        def put(step, fns, deadline=10 ** 9):
            chains.append([step, deadline, list(fns)])

        def chk(off, tgt_fn, tag, code):
            def fin():
                Lok = a.uid('Lck')
                a('s_cmp_ge_u32 s%d, s%d' % (sT + 8, sT + 7))
                a.softbranch('s_cbranch_scc1 %s' % Lok)
                self.wait_flag(off, sT + 7, FL, code)
                a.label(Lok, noflush=True)
            return [lambda: L(tag, 'ds_read_b128 %s, v%d offset:%d' % (vr(FL), vFlag, off)),
                    I('s_nop 0'), I('s_nop 0'), I('s_nop 0'), tgt_fn,
                    lambda: (wait_for(tag), a('v_min3_u32 v%d, v%d, v%d, v%d' % (FL, FL, FL + 1, FL + 2))),
                    I('v_min_u32 v%d, v%d, v%d' % (FL, FL, FL + 3)),
                    I('s_nop 0'),
                    I('v_readfirstlane_b32 s%d, v%d' % (sT + 8, FL)),
                    I('s_nop 0'), fin]

        def setf_items(off, val, add, own_vm=None):
            def fin():
                if own_vm is None:
                    L('f', 'ds_write_b32 v%d, v%d offset:%d' % (vFlag, LT, off + 4 * w))
                else:
                    Lo = a.uid('Lop')
                    a('s_cmp_eq_u32 s%d, 0' % sOwn)
                    a.softbranch('s_cbranch_scc1 %s' % Lo)
                    a('s_waitcnt vmcnt(%d)' % own_vm)
                    a('ds_write_b32 v%d, v%d offset:%d' % (vFlag, LT, off + 4 * w))
                    a.label(Lo, noflush=True)
            return [I('s_add_u32 s%d, s%d, %d' % (sT + 6, val, add)),
                    I('v_mov_b32 v%d, s%d' % (LT, sT + 6)), fin]

        def epi_items(s):
            mt = ORDER[s]
            nm = T3
            it = [lambda: L(('m', s), 'ds_bpermute_b32 v%d, v%d, v%d' % (nm, BPA, ACC(s, 0) + 2))]
            G = G0
            if s == w:
                it += [I('v_add_u32 v%d, 0x%x, v%d' % (G + 2, L_ST + 64 * (mt + 1) - 192, BPA))]
            it.append(lambda: (wait_for(('m', s)), a('v_mul_f32 v%d, 0xbae38e39, v%d' % (nm, nm))))
            for t in range(2):
                for r in range(4):
                    it.append(I('v_fma_f32 v%d, v%d, v%d, v%d' % (ACC(s, t) + r, nm, vCS + 4 * t + r, ACC(s, t) + r)))
            for r in range(4):
                it.append(I('v_cvt_pk_bf16_f32 v%d, v%d, v%d' % (ACC(s, 0) + r, ACC(s, 0) + r, ACC(s, 1) + r)))
            if s == 0 and w > 0:
                def kvst():
                    a('s_mov_b32 exec_lo, 0xff00ff00')
                    a('s_mov_b32 exec_hi, 0xff00ff00')
                    a('buffer_store_dwordx4 %s, v%d, %s, s%d offen sc1' % (vr(ACC(0, 0)), KA, srd(sWS), sBase))
                    a('s_mov_b64 exec, -1')
                it.append(kvst)
            it.append(lambda: L('w', 'ds_write_b128 v%d, %s offset:%d' % (QB, vr(ACC(s, 0)), 16 * (mt + 1) * QP)))
            if s == w:
                def wr():
                    a('s_mov_b64 exec, 0xffff')
                    L('w', 'ds_write_b32 v%d, v%d' % (G + 2, G))
                    if w == 0:
                        a('s_mov_b64 exec, 0xff00')
                        a('buffer_store_dword v%d, v%d, %s, s%d offen offset:%d sc1' % (G, BPA, srd(sWS), sBase, 2048 - 192 - 32))
                    a('s_mov_b64 exec, -1')
                it += [I('v_fma_f32 v%d, -v%d, v%d, v%d' % (G, nm, nm, G)),
                       I('v_max_f32 v%d, 0, v%d' % (G, G)),
                       I('v_add_f32 v%d, 0x3727c5ac, v%d' % (G, G)),
                       I('v_rsq_f32 v%d, v%d' % (G, G)),
                       wr]
            return it
        pre = [I('v_and_b32 v%d, 15, v%d' % (T3, vLane)),
               I('v_add_u32 v%d, 48, v%d' % (BPA, T3)),
               I('v_lshlrev_b32 v%d, 2, v%d' % (BPA, BPA)),
               I('v_lshrrev_b32 v%d, 4, v%d' % (T3 + 1, vLane)),
               I('v_lshlrev_b32 v%d, 3, v%d' % (T3 + 1, T3 + 1)),
               I('s_mov_b32 s%d, 0x%x' % (sT + 5, sum((16 * self.UNIT[(3 * w + a_) if a_ < 3 else 12 + w]) << (8 * a_) for a_ in range(4)))),
               I('v_bfe_u32 v%d, s%d, v%d, 8' % (QB, sT + 5, T3 + 1))]
        if w > 0:
            pre += [I('v_and_b32 v%d, 7, v%d' % (KA, vLane)),
                    I('v_lshl_add_u32 v%d, v%d, 8, v%d' % (KA, KA, QB))]
        pre += [I('v_mul_u32_u24 v%d, %d, v%d' % (T3, QP, T3)),
                I('v_add_u32 v%d, 0x%x, v%d' % (T3, L_QKV, T3)),
                I('v_add_u32 v%d, v%d, v%d' % (QB, QB, T3))]
        put(0, pre, 10)
        put(5, [lambda: self.pub_pending(92, soft=True)], 5)
        G = G0
        put(18 * w + 6, [I('v_lshrrev_b32 v%d, 4, v%d' % (G, vLane)),
                         I('v_lshl_add_u32 v%d, v%d, 8, v%d' % (G, G, BPA)),
                         I('v_add_u32 v%d, 0x%x, v%d' % (G, ORDER[w] * MT + 18432 - 192, G)),
                         lambda: L('s2', 'ds_read2_b32 %s, v%d offset0:32 offset1:48' % (vr(G + 2, 2), G)),
                         lambda: L('s1', 'ds_read2_b32 %s, v%d offset0:0 offset1:16' % (vr(G, 2), G)),
                         I('s_nop 0'), I('s_nop 0'), I('s_nop 0'),
                         lambda: (wait_for('s1'), a('v_add_f32 v%d, v%d, v%d' % (G, G, G + 1))),
                         I('v_add_f32 v%d, v%d, v%d' % (G + 2, G + 2, G + 3)),
                         I('v_add_f32 v%d, v%d, v%d' % (G, G, G + 2)),
                         I('v_mov_b32 v%d, v%d' % (G + 1, G)),
                         I('v_permlane32_swap_b32 v%d, v%d' % (G, G + 1)),
                         I('v_add_f32 v%d, v%d, v%d' % (G, G, G + 1)),
                         I('v_mov_b32 v%d, v%d' % (G + 1, G)),
                         I('v_permlane16_swap_b32 v%d, v%d' % (G, G + 1)),
                         I('v_add_f32 v%d, v%d, v%d' % (G, G, G + 1)),
                         I('v_mul_f32 v%d, 0x3ae38e39, v%d' % (G, G))], 18 * w + 17)
        for k in range(1, 4):
            st = 18 * k - PF - 1
            put(6 * k - 5, setf_items(F_XR, sG, k + 1, own_vm=15 - 5 * k), 6 * k - 2)
            put(st - 7 if k > 1 else 5,
                chk(F_XR, I('s_add_u32 s%d, s%d, %d' % (sT + 7, sG, k + 1)), ('xr', k), 2), st)
        put(11, chk(F_QF, I('s_mov_b32 s%d, s%d' % (sT + 7, sN)), 'qf', 3), 17)
        for s_ in range(3):
            put(18 * (s_ + 1) + 3, epi_items(s_), (27 if s_ == 0 else 56) if s_ < 2 else 71)
        if w == 0:
            def kvld():
                a('buffer_load_dwordx4 %s, v%d, %s, s%d offen sc1' % (vr(KD), KA, srd(sWS), sBase2))
                a('buffer_load_dwordx4 %s, v%d, %s, s%d offen offset:1024 sc1' % (vr(KD + 4), KA, srd(sWS), sBase2))
                a('buffer_load_dword v%d, v%d, %s, s%d offen offset:2048 sc1' % (KD + 8, KA + 1, srd(sWS), sBase2))

            def kvaddr2():
                a('s_cmp_eq_u32 s%d, 0' % sTG)
                a('s_cselect_b64 vcc, -1, 0')
                a('v_cndmask_b32 v%d, v%d, v%d, vcc' % (KA, KA, KA + 2))
                a('v_cndmask_b32 v%d, v%d, v%d, vcc' % (KA + 1, KA + 1, KA + 2))

            def kvchk():
                Lrt, Lok, Lnf = a.uid('Lkrt'), a.uid('Lkok'), a.uid('Lknf')
                a('s_cmp_lg_u32 s%d, 0' % sN)
                a.softbranch('s_cbranch_scc1 %s' % Lnf)
                self.init_check(40)
                a('s_branch %s' % Lrt)
                a.label(Lnf, noflush=True)
                a('s_and_b64 vcc, vcc, s[%d:%d]' % (sKm, sKm + 1))
                a.softbranch('s_cbranch_scc0 %s' % Lok)
                a.label(Lrt)
                self.budget_check(5)
                kvld()
                a('s_waitcnt vmcnt(0)')
                self.sentinel_vcc(range(KD, KD + 9), FL)
                a('s_nop 1')
                a('s_and_b64 vcc, vcc, s[%d:%d]' % (sKm, sKm + 1))
                a('s_cbranch_scc1 %s' % Lrt)
                a.label(Lok, noflush=True)
            kv = [I('v_lshlrev_b32 v%d, 4, v%d' % (KA, vLane)),
                  I('v_and_b32 v%d, 7, v%d' % (KA + 1, vLane)),
                  I('v_lshlrev_b32 v%d, 2, v%d' % (KA + 1, KA + 1)),
                  I('v_add_u32 v%d, 0x%x, v%d' % (KA + 3, L_ST + 32, KA + 1)),
                  I('v_mov_b32 v%d, 0x%x' % (KA + 2, OOB)),
                  kvaddr2]
            put(30, kv, 46)
            put(60, [kvld], 60)
            kv2 = [I('v_lshrrev_b32 v%d, 4, v%d' % (KA + 2, vLane)),
                   I('v_mul_u32_u24 v%d, %d, v%d' % (KA + 2, QP, KA + 2)),
                   I('v_and_b32 v%d, 15, v%d' % (KD + 9, vLane)),
                   I('v_lshl_add_u32 v%d, v%d, 4, v%d' % (KA + 2, KD + 9, KA + 2)),
                   I('v_add_u32 v%d, 0x%x, v%d' % (KA + 2, L_QKV + 8 * QP, KA + 2))]
            put(61, kv2, 68)
            kv3 = [I('s_waitcnt vmcnt(0)'),
                   I('v_max3_u32 v%d, v%d, v%d, v%d' % (FL, KD, KD + 1, KD + 2)),
                   I('v_max3_u32 v%d, v%d, v%d, v%d' % (FL, FL, KD + 3, KD + 4)),
                   I('v_max3_u32 v%d, v%d, v%d, v%d' % (FL, FL, KD + 5, KD + 6)),
                   I('v_max3_u32 v%d, v%d, v%d, v%d' % (FL, FL, KD + 7, KD + 8)),
                   I('v_cmp_eq_u32 vcc, -1, v%d' % FL),
                   I('s_nop 0'), I('s_nop 0')]
            post = kv3 + [kvchk,
                    lambda: L('w', 'ds_write_b128 v%d, %s' % (KA + 2, vr(KD))),
                    lambda: L('w', 'ds_write_b128 v%d, %s offset:%d' % (KA + 2, vr(KD + 4), 4 * QP)),
                    lambda: L('w', 'ds_write_b32 v%d, v%d' % (KA + 3, KD + 8))]
        else:
            def ini():
                Lnf = a.uid('Lknf')
                a('s_cmp_lg_u32 s%d, 0' % sN)
                a('s_cbranch_scc1 %s' % Lnf)
                self.init_check(40)
                a.label(Lnf)
            post = [ini]
        a('v_add_u32 v%d, %d, v%d' % (XT, ORDER[0] * MT, XA + 2))
        for i in range(PF):
            rd(i)
        done_upto = [-1]

        def need(i):
            idx = max(k for k, t in enumerate(lds) if t == ('r', i))
            if idx <= done_upto[0]:
                return
            tgt = ('r', i + 1) if ('r', i + 1) in lds else ('r', i)
            idx2 = max(k for k, t in enumerate(lds) if t == tgt)
            a('s_waitcnt lgkmcnt(%d)' % min(len(lds) - 1 - idx2, 15))
            done_upto[0] = idx2

        def fill(step, n):
            cnt = 0
            while True:
                cand = [c for c in chains if c[2] and c[0] <= step]
                if not cand:
                    return
                c = min(cand, key=lambda c: (c[1] - step) * 3 - len(c[2]))
                if cnt >= n and (c[1] - step) * 3 >= len(c[2]):
                    return
                c[2].pop(0)()
                cnt += 1
        for i in range(72):
            u, ks = seq[i]
            if os.environ.get('FINE') and ks == 0 and u > 0:
                self.tr(50 + u)
            need(i)
            a(mfma(ACC(u, 0), W(0, ks), RB(i), ks == 0))
            fill(i, 2)
            a(mfma(ACC(u, 1), W(1, ks), RB(i), ks == 0))
            used = 0
            j = i + PF
            if j < 72:
                if seq[j][1] == 16 and seq[j][0] > 0:
                    a('v_add_u32 v%d, %d, v%d' % (XT, ORDER[seq[j][0]] * MT, XA + 2))
                    used += 1
                rd(j)
                used += 1
            nxt = 0
            if i + 1 < 72:
                idx = max(k for k, t in enumerate(lds) if t == ('r', i + 1))
                nxt = 1 if idx > done_upto[0] else 0
            fill(i, max(0, 2 - used - nxt))
        for c in chains:
            for fn in c[2]:
                fn()
        a('s_mov_b32 s%d, 0' % sOwn)
        if os.environ.get('FINE'):
            self.tr(54)
        a('s_setprio 2')
        for fn in setf_items(F_XF, sN, 1) + epi_items(3):
            fn()
        a('s_waitcnt lgkmcnt(0)')
        for fn in setf_items(F_QR, sN, 1) + post:
            fn()

    def build_tables(self):
        a = self.a
        AD = 70
        T = 76
        il, hh, j, R = 84, 85, 86, 87
        SA = 88
        a('v_lshrrev_b32 v%d, 2, v%d' % (il, vLane))
        a('v_bfe_u32 v%d, v%d, 1, 1' % (hh, vLane))
        a('v_and_b32 v%d, 1, v%d' % (j, vLane))
        a('s_lshl_b32 s%d, s%d, 4' % (sT, sWv))
        a('s_add_u32 s%d, s%d, 16' % (sT, sT))
        a('v_add_u32 v%d, s%d, v%d' % (R, sT, il))
        a('v_mul_u32_u24 v%d, %d, v%d' % (T, QP, R))
        a('v_add_u32 v%d, 0x%x, v%d' % (T, L_QKV, T))
        a('v_lshl_add_u32 v%d, v%d, 7, v%d' % (AD, hh, T))
        a('v_lshl_add_u32 v%d, v%d, 2, v%d' % (AD + 1, hh, T))
        a('v_mul_u32_u24 v%d, %d, v%d' % (T + 1, 4 * QP, j))
        a('v_add_u32 v%d, %d, v%d' % (T + 1, 3 * QP, T + 1))
        a('v_sub_u32 v%d, v%d, v%d' % (AD + 2, AD, T + 1))
        a('v_sub_u32 v%d, v%d, v%d' % (AD + 3, AD + 1, T + 1))
        a('v_lshlrev_b32 v%d, 2, v%d' % (T + 2, R))
        a('v_add_u32 v%d, 0x%x, v%d' % (T + 2, L_ST, T + 2))
        a('v_lshlrev_b32 v%d, 4, v%d' % (T + 3, j))
        a('v_add_u32 v%d, 12, v%d' % (T + 3, T + 3))
        a('v_sub_u32 v%d, v%d, v%d' % (T + 3, T + 2, T + 3))
        a('v_lshl_add_u32 v%d, v%d, 6, v%d' % (AD + 4, j, AD))
        a('v_subrev_u32 v%d, %d, v%d' % (AD + 4, 7 * QP, AD + 4))
        a('v_subrev_u32 v%d, %d, v%d' % (AD + 5, 7 * QP, AD + 1))
        a('v_lshl_add_u32 v%d, v%d, 1, v%d' % (T + 4, hh, j))
        a('v_lshlrev_b32 v%d, 8, v%d' % (T + 4, T + 4))
        a('v_lshl_add_u32 v%d, v%d, 4, v%d' % (SA, il, T + 4))
        a('s_lshl_b32 s%d, s%d, 10' % (sT, sHG))
        a('v_add_u32 v%d, s%d, v%d' % (SA, sT, SA))
        a('s_lshl_b32 s%d, s%d, 7' % (sT, sHG))
        a('s_add_u32 s%d, s%d, 16384' % (sT, sT))
        a('v_lshlrev_b32 v%d, 3, v%d' % (T + 4, il))
        a('v_lshl_add_u32 v%d, v%d, 2, v%d' % (T + 4, hh, T + 4))
        a('v_add_u32 v%d, s%d, v%d' % (SA + 1, sT, T + 4))
        a('v_mov_b32 v76, v%d' % (T + 2))
        a('v_mov_b32 v77, v%d' % (T + 3))
        a('v_mov_b32 v90, v%d' % il)
        a('v_mov_b32 v91, v%d' % j)
        a('v_lshlrev_b32 v92, 4, v%d' % vLane)
        a('v_add_u32 v92, s%d, v92' % sTab)
        a('ds_write_b128 v92, %s' % vr(70))
        a('ds_write_b128 v92, %s offset:1024' % vr(74))
        a('ds_write_b128 v92, %s offset:2048' % vr(88))
        LA, LB, VT, TMP1 = 72, 73, 74, 75
        a('v_lshlrev_b32 v%d, 4, v%d' % (LA, vLane))
        a('v_add_u32 v%d, 0x%x, v%d' % (LA, L_WO, LA))
        a('v_and_b32 v%d, 3, v%d' % (LB, vLane))
        a('v_lshlrev_b32 v%d, 4, v%d' % (LB, LB))
        a('v_lshrrev_b32 v%d, 4, v%d' % (TMP1, vLane))
        a('v_lshl_add_u32 v%d, v%d, 6, v%d' % (LB, TMP1, LB))
        a('v_add_u32 v%d, 0x%x, v%d' % (LB, L_WO + 2048, LB))
        a('v_and_b32 v%d, 15, v%d' % (VT, vLane))
        a('v_lshlrev_b32 v%d, 3, v%d' % (VT, VT))
        a('v_lshl_add_u32 v%d, v%d, 8, v%d' % (VT, TMP1, VT))
        a('s_mov_b32 s%d, 0' % sP)
        self.xaddr_frag(76, 80)
        self.xaddr_nat(78, 80)
        a('ds_write_b128 v92, %s offset:3072' % vr(72))
        a('ds_write_b128 v92, %s offset:4096' % vr(76))
        a('s_waitcnt lgkmcnt(0)')

    def attention(self):
        a = self.a
        Q = 0
        K = 12
        RK = 60
        RO = 64
        S = 65
        AD = 70
        T = 76
        SA, il, j = 84, 86, 87
        a('v_lshlrev_b32 v%d, 4, v%d' % (92, vLane))
        a('v_add_u32 v%d, s%d, v%d' % (92, sTab, 92))
        a('ds_read_b128 %s, v92' % vr(70))
        a('ds_read_b128 %s, v92 offset:1024' % vr(74))
        a('ds_read_b128 %s, v92 offset:2048' % vr(84))
        a('s_mul_i32 s%d, s%d, %d' % (sBase, sLayer, LSTR))
        a('s_mul_i32 s%d, s%d, %d' % (sT, sP, TILE))
        a('s_add_u32 s%d, s%d, s%d' % (sBase, sBase, sT))
        a('s_add_u32 s%d, s%d, s%d' % (sBase, sBase, sTileW))
        a('s_add_u32 s%d, s%d, 1' % (sT + 7, sN))
        self.wait_flag(F_QR, sT + 7, 92, 4)
        self.tr(14)
        a('ds_read_b128 %s, v%d' % (vr(Q), AD))
        a('ds_read_b128 %s, v%d offset:16' % (vr(Q + 4), AD))
        a('ds_read_b32 v%d, v%d offset:80' % (Q + 8, AD + 1))
        for w in range(4):
            o = (3 - w) * QP
            a('ds_read_b128 %s, v%d offset:%d' % (vr(K + 12 * w), AD + 2, o + 48))
        for w in range(4):
            o = (3 - w) * QP
            a('ds_read_b128 %s, v%d offset:%d' % (vr(K + 12 * w + 4), AD + 2, o + 64))
        for w in range(4):
            o = (3 - w) * QP
            a('ds_read_b32 v%d, v%d offset:%d' % (K + 12 * w + 8, AD + 3, o + 112))
        a('ds_read_b32 v%d, v%d' % (RO, T))
        a('ds_read2_b32 %s, v%d offset0:0 offset1:1' % (vr(RK, 2), T + 1))
        a('ds_read2_b32 %s, v%d offset0:2 offset1:3' % (vr(RK + 2, 2), T + 1))
        a('s_waitcnt lgkmcnt(11)')
        for d in range(9):
            if d == 4:
                a('s_waitcnt lgkmcnt(7)')
            if d == 8:
                a('s_waitcnt lgkmcnt(3)')
            for w in range(4):
                c = '0' if d == 0 else 'v%d' % (S + w)
                a('v_dot2_f32_bf16 v%d, v%d, v%d, %s' % (S + w, Q + d, K + 12 * w + d, c))
        a('s_waitcnt lgkmcnt(0)')
        V = 12
        for w in range(8):
            o = (7 - w) * QP
            a('ds_read_b128 %s, v%d offset:%d' % (vr(V + 6 * w), AD + 4, o + 32))
            a('ds_read_b32 v%d, v%d offset:%d' % (V + 6 * w + 4, AD + 5, o + 208))
        c = struct.unpack('<I', struct.pack('<f', (18 ** -0.5) * 1.4426950408889634))[0]
        a('v_mul_f32 v%d, 0x%x, v%d' % (RO, c, RO))
        for w in range(4):
            a('v_mul_f32 v%d, v%d, v%d' % (S + w, S + w, RK + 3 - w))
        for w in range(4):
            a('v_mul_f32 v%d, v%d, v%d' % (S + w, S + w, RO))
        Lnm = a.uid('Lnomask')
        a('s_or_b32 s%d, s%d, s%d' % (sT, sTG, sWv))
        a('s_cmp_lg_u32 s%d, 0' % sT)
        a('s_cbranch_scc1 %s' % Lnm)
        a('v_lshlrev_b32 v%d, 2, v%d' % (T, j))
        a('v_mov_b32 v%d, 0xf149f2ca' % (T + 2))
        for w in range(4):
            a('v_add_u32 v%d, %d, v%d' % (T + 1, w, T))
            a('v_cmp_lt_u32 vcc, v%d, v%d' % (il, T + 1))
            a('v_cndmask_b32 v%d, v%d, v%d, vcc' % (S + w, S + w, T + 2))
        a.label(Lnm)
        a('v_max3_f32 v%d, v%d, v%d, v%d' % (T, S, S + 1, S + 2))
        a('v_max_f32 v%d, v%d, v%d' % (T, T, S + 3))
        a('v_cmp_eq_u32 vcc, 1, v%d' % j)
        a('v_max_f32_dpp v%d, v%d, v%d quad_perm:[1,0,3,2] row_mask:0xf bank_mask:0xf' % (T + 1, T, T))
        for w in range(4):
            a('v_sub_f32 v%d, v%d, v%d' % (S + w, S + w, T + 1))
        for w in range(4):
            a('v_exp_f32 v%d, v%d' % (S + w, S + w))
        a('v_add_f32 v%d, v%d, v%d' % (T, S, S + 1))
        a('v_add_f32 v%d, v%d, v%d' % (T + 1, S + 2, S + 3))
        a('v_add_f32 v%d, v%d, v%d' % (T, T, T + 1))
        for w in range(4):
            a('v_mul_f32 v%d, v%d, v%d' % (S + w, S + w, RK + 3 - w))
        a('v_add_f32_dpp v%d, v%d, v%d quad_perm:[1,0,3,2] row_mask:0xf bank_mask:0xf' % (T + 1, T, T))
        a('v_rcp_f32 v%d, v%d' % (T + 1, T + 1))
        for w in range(4):
            a('v_mul_f32 v%d, v%d, v%d' % (S + w, S + w, T + 1))
        a('v_cvt_pk_bf16_f32 v%d, v%d, v%d' % (T, S, S + 1))
        a('v_cvt_pk_bf16_f32 v%d, v%d, v%d' % (T + 1, S + 2, S + 3))
        a('v_mov_b32_dpp v%d, v%d quad_perm:[1,0,3,2] row_mask:0xf bank_mask:0xf' % (T + 2, T))
        a('v_mov_b32_dpp v%d, v%d quad_perm:[1,0,3,2] row_mask:0xf bank_mask:0xf' % (T + 3, T + 1))
        PP = 60
        a('v_cndmask_b32 v%d, v%d, v%d, vcc' % (PP, T, T + 2))
        a('v_cndmask_b32 v%d, v%d, v%d, vcc' % (PP + 1, T + 1, T + 3))
        a('v_cndmask_b32 v%d, v%d, v%d, vcc' % (PP + 2, T + 2, T))
        a('v_cndmask_b32 v%d, v%d, v%d, vcc' % (PP + 3, T + 3, T + 1))
        PL = 64
        for pr in range(4):
            a('v_and_b32 v%d, 0xffff, v%d' % (PL + 4 * pr, PP + pr))
            a('v_lshlrev_b32 v%d, 16, v%d' % (PL + 4 * pr + 1, PP + pr))
            a('v_lshrrev_b32 v%d, 16, v%d' % (PL + 4 * pr + 2, PP + pr))
            a('v_and_b32 v%d, 0xffff0000, v%d' % (PL + 4 * pr + 3, PP + pr))
        O = 0
        for w in range(8):
            a('s_waitcnt lgkmcnt(%d)' % (2 * (7 - w)))
            for m in range(5):
                for h in range(2):
                    c = '0' if w == 0 else 'v%d' % (O + 2 * m + h)
                    a('v_dot2_f32_bf16 v%d, v%d, v%d, %s' % (O + 2 * m + h, V + 6 * w + m, PL + 2 * w + h, c))
        for m in range(5):
            a('v_cvt_pk_bf16_f32 v%d, v%d, v%d' % (12 + m, O + 2 * m, O + 2 * m + 1))
        a('s_mov_b32 s%d, 0x55555555' % (sT + 2))
        a('s_mov_b32 s%d, 0x55555555' % (sT + 3))

        def st(sc):
            a('buffer_store_dwordx4 %s, v%d, %s, s%d offen%s' % (vr(12), SA, srd(sWS), sBase, sc))
            a('s_mov_b64 exec, s[%d:%d]' % (sT + 2, sT + 3))
            a('buffer_store_dword v16, v%d, %s, s%d offen%s' % (SA + 1, srd(sWS), sBase, sc))
            a('s_mov_b64 exec, -1')
            self.set_flag(F_QF, sN, 20, add=1)
            Ld = a.uid('Ldefer')
            a('s_mov_b32 s%d, 1' % sPub)
            a('s_cmp_eq_u32 s%d, 0' % sP)
            a('s_cbranch_scc1 %s' % Ld)
            a('s_mov_b32 s%d, 0' % sPub)
            self.publish_event(0, 24, sc)
            a.label(Ld)
        self.both_modes(st)

    def stage_generic(self):
        a = self.a
        TMP = 88
        AV = 84
        Lc = a.uid('Lnocs')
        a('s_cmp_eq_u32 s%d, 0' % sCs)
        a('s_cbranch_scc1 %s' % Lc)
        a('s_waitcnt vmcnt(0)')
        self.colsum(8)
        a('s_mov_b32 s%d, 0' % sCs)
        a.label(Lc)
        self.m_prep()
        Lne = a.uid('Lnoearly')
        a('s_cmp_eq_u32 s%d, 0' % sP)
        a('s_cbranch_scc1 %s' % Lne)
        a('ds_read_b128 %s, v%d offset:%d' % (vr(TMP), vFlag, F_XF))
        a('s_waitcnt lgkmcnt(0)')
        self.flag_min(TMP)
        a('s_nop 1')
        a('s_cmp_ge_u32 s%d, s%d' % (sT + 8, sN))
        a('s_cbranch_scc1 %s' % Lne)
        self.wo_stage(async_=True)
        a('s_mov_b32 s%d, 1' % sWoP)
        a.label(Lne)
        a('v_lshlrev_b32 v%d, 4, v%d' % (AV, vLane))
        a('s_sub_u32 s%d, s%d, 1' % (sT, sLayer))
        a('s_mul_i32 s%d, s%d, %d' % (sT, sT, LSTR))
        a('s_add_u32 s%d, s%d, %d' % (sT, sT, WS_X))
        a('s_mul_i32 s%d, s%d, %d' % (sT + 1, sP, TILE))
        a('s_add_u32 s%d, s%d, s%d' % (sT, sT, sT + 1))
        a('s_add_u32 s%d, s%d, s%d' % (sBase, sT, sTileW))
        a('s_sub_u32 s%d, s%d, s%d' % (sBase, sBase, sMt))
        a('s_mul_i32 s%d, s%d, 4864' % (sBase2, sWv))
        a('s_add_u32 s%d, s%d, s%d' % (sBase, sBase, sBase2))
        a('s_setprio 0')
        self.wait_flag(F_XF, sN, TMP, 6, sleep=1)
        self.tr(20)
        a('v_lshlrev_b32 v%d, 3, v%d' % (TMP + 2, vLane))
        a('s_lshl_b32 s%d, s%d, 9' % (sT + 2, sP))
        a('s_add_u32 s%d, s%d, s%d' % (sT + 2, sT + 2, sFlW))
        a('s_lshl_b32 s%d, s%d, 7' % (sT + 3, sWv))
        a('s_sub_u32 s%d, s%d, s%d' % (sT + 2, sT + 2, sT + 3))
        a('s_add_u32 s%d, s%d, 1024' % (sT + 2, sT + 2))
        a('s_add_u32 s%d, s%d, s%d' % (sT + 3, sNon, sLayer))
        a('s_mov_b64 vcc, -1')
        for k, mt in enumerate(self.ORDER):
            Lp, Lg = a.uid('Lsp'), a.uid('Lsg')
            half = 'vcc_lo' if mt < 2 else 'vcc_hi'
            msk = 0xffff << (16 * (mt & 1))
            a.label(Lp)
            a('s_and_b32 s%d, %s, 0x%x' % (sT, half, msk))
            a('s_cbranch_scc0 %s' % Lg)
            a('buffer_load_dwordx2 %s, v%d, %s, s%d offen sc1' % (vr(TMP, 2), TMP + 2, srd(sWS), sT + 2))
            self.budget_check(12)
            a('s_waitcnt vmcnt(0)')
            a('v_subrev_u32 v%d, s%d, v%d' % (TMP, sT + 3, TMP))
            a('v_xor_b32 v%d, s%d, v%d' % (TMP + 1, sNon + 1, TMP + 1))
            a('v_lshrrev_b32 v%d, 3, v%d' % (TMP, TMP))
            a('v_or_b32 v%d, v%d, v%d' % (TMP, TMP, TMP + 1))
            a('v_cmp_ne_u32 vcc, 0, v%d' % TMP)
            a('s_branch %s' % Lp)
            a.label(Lg)
            if k == 0:
                self.tr(25)
            a('s_add_u32 s%d, s%d, %d' % (sT, sBase, mt * MT))
            a('s_add_u32 s%d, s%d, %d' % (sT + 1, sBase2, mt * MT))
            a('s_mov_b32 m0, s%d' % (sT + 1))
            for k2 in range(4):
                a('buffer_load_dwordx4 v%d, %s, s%d offen offset:%d sc1 lds' % (AV, srd(sWS), sT, k2 * 1024))
            a('s_add_u32 s%d, s%d, 4096' % (sT, sT))
            a('s_add_u32 s%d, s%d, 4096' % (sT + 1, sT + 1))
            a('s_mov_b32 m0, s%d' % (sT + 1))
            a('s_mov_b32 exec_hi, 0xffff')
            a('buffer_load_dwordx4 v%d, %s, s%d offen sc1 lds' % (AV, srd(sWS), sT))
            a('s_mov_b32 exec_hi, -1')
        a('s_mov_b32 s%d, 1' % sOwn)
        a('s_cmp_eq_u32 s%d, 0' % sP)
        a('s_cbranch_scc1 L_M_GO')
        a('s_mov_b32 s%d, 0' % sOwn)
        a('s_waitcnt vmcnt(10)')
        self.set_flag(F_XR, sG, TMP, add=2)
        Lw1, Lw2 = a.uid('Lwe'), a.uid('Lwf')
        a('s_cmp_lg_u32 s%d, 0' % sWoP)
        a('s_cbranch_scc1 %s' % Lw1)
        self.wo_stage(async_=True)
        a('s_waitcnt vmcnt(11)')
        a('s_branch %s' % Lw2)
        a.label(Lw1)
        a('s_waitcnt vmcnt(0)')
        a.label(Lw2)
        self.set_flag(F_XR, sG, TMP, add=4)
        a('s_mov_b32 s%d, 1' % sWoP)
        self.tr(24)

    def stage_input_issue(self):
        a = self.a
        AV, LV, AT, LT_ = 84, 85, 86, 87
        TMP = 88
        a('s_mov_b32 s%d, s%d' % (sN, sP))
        a('s_lshl_b32 s%d, s%d, 2' % (sG, sN))
        a('v_lshrrev_b32 v%d, 2, v%d' % (TMP + 1, vLane))
        a('v_and_b32 v%d, 3, v%d' % (TMP, vLane))
        self.swz(LV, TMP, TMP + 1, TMP + 2)
        a('v_add_u32 v%d, s%d, v%d' % (LV, sMt, LV))
        a('s_lshl_b32 s%d, s%d, 7' % (sT, sTG))
        a('s_add_u32 s%d, s%d, s%d' % (sT, sT, sP))
        a('s_lshl_b32 s%d, s%d, 5' % (sT + 1, sWv))
        a('s_add_u32 s%d, s%d, s%d' % (sT + 1, sT + 1, sT))
        a('s_mul_i32 s%d, s%d, 1152' % (sT + 1, sT + 1))
        a('v_mul_u32_u24 v%d, 2304, v%d' % (TMP + 2, TMP + 1))
        a('v_add_u32 v%d, s%d, v%d' % (TMP + 2, sT + 1, TMP + 2))
        a('v_lshl_add_u32 v%d, v%d, 4, v%d' % (AV, TMP, TMP + 2))
        a('v_mul_u32_u24 v%d, 72, v%d' % (AT, TMP))
        a('v_add_u32 v%d, v%d, v%d' % (AT, AT, TMP + 2))
        a('v_lshlrev_b32 v%d, 7, v%d' % (LT_, TMP))
        a('v_lshl_add_u32 v%d, v%d, 3, v%d' % (LT_, TMP + 1, LT_))
        a('v_add_u32 v%d, s%d, v%d' % (LT_, sMt, LT_))
        for ks in range(16):
            a('buffer_load_dwordx4 %s, v%d, %s, 0 offen offset:%d' % (vr(4 * ks), AV, srd(sIN), 72 * ks))
        for c in range(4):
            a('buffer_load_dwordx2 %s, v%d, %s, 0 offen offset:%d' % (vr(64 + 2 * c, 2), AT, srd(sIN), 288 * c + 64))

    def stage_input_finish(self, extra_after=0, last_extra=0):
        a = self.a
        AV, LV, AT, LT_ = 84, 85, 86, 87
        TMP = 88
        self.wait_flag(F_XF, sN, TMP, 6)
        rem = [14, 8, 0]
        for seg in range(3):
            a('s_waitcnt vmcnt(%d)' % (rem[seg] + (extra_after if seg < 2 else last_extra)))
            if seg == 0:
                self.tr(21)
            for ks in range(6 * seg, min(6 * seg + 6, 16)):
                a('ds_write_b128 v%d, %s offset:%d' % (LV, vr(4 * ks), ks * 1024))
            if seg == 2:
                for c in range(4):
                    a('ds_write_b64 v%d, %s offset:%d' % (LT_, vr(64 + 2 * c, 2), 16384 + 512 * c))
        for i in range(72):
            a('v_dot2_f32_bf16 v%d, v%d, v%d, %s' % (TMP + (i & 1), i, i, '0' if i < 2 else 'v%d' % (TMP + (i & 1))))
        a('v_add_f32 v%d, v%d, v%d' % (TMP, TMP, TMP + 1))
        a('v_mov_b32 v%d, 0' % (TMP + 1))
        a('v_subrev_u32 v%d, s%d, v%d' % (TMP + 2, sMt, LT_))
        a('v_lshrrev_b32 v%d, 1, v%d' % (TMP + 2, TMP + 2))
        a('v_add_u32 v%d, s%d, v%d' % (TMP + 2, sMt, TMP + 2))
        a('ds_write_b32 v%d, v%d offset:18432' % (TMP + 2, TMP))
        for c in range(1, 4):
            a('ds_write_b32 v%d, v%d offset:%d' % (TMP + 2, TMP + 1, 18432 + 256 * c))
        a('s_waitcnt lgkmcnt(0)')
        self.set_flag(F_XR, sG, TMP, add=4)
        self.tr(24)

    def hb_addr(self, d, tmp):
        a = self.a
        a('v_and_b32 v%d, 7, v%d' % (tmp, vLane))
        a('v_lshrrev_b32 v%d, 4, v%d' % (tmp + 1, vLane))
        a('v_lshlrev_b32 v%d, 4, v%d' % (d, tmp))
        a('v_lshl_add_u32 v%d, v%d, 7, v%d' % (d, tmp + 1, d))
        a('s_lshl_b32 s%d, s%d, 9' % (sT, sHG))
        a('v_add_u32 v%d, s%d, v%d' % (d, sT, d))
        a('s_lshl_b32 s%d, s%d, 6' % (sT, sHG))
        a('s_add_u32 s%d, s%d, 8192' % (sT, sT))
        a('v_lshlrev_b32 v%d, 3, v%d' % (d + 1, tmp))
        a('v_add_u32 v%d, s%d, v%d' % (d + 1, sT, d + 1))

    def hb_store(self, d, data, soff):
        a = self.a
        a('s_mov_b32 s%d, 0xff00ff00' % (sT + 4))
        a('s_mov_b32 s%d, 0xff00ff00' % (sT + 5))
        a('s_mov_b64 exec, s[%d:%d]' % (sT + 4, sT + 5))
        a('buffer_store_dwordx4 %s, v%d, %s, s%d offen sc1' % (vr(data), d, srd(sWS), soff))
        a('s_mov_b64 exec, 0xff00')
        a('buffer_store_dwordx2 %s, v%d, %s, s%d offen sc1' % (vr(data + 4, 2), d + 1, srd(sWS), soff))
        a('s_mov_b64 exec, -1')

    def hb_base(self, dst, layer_add):
        a = self.a
        a('s_add_u32 s%d, s%d, %d' % (dst, sLayer, layer_add))
        a('s_lshl_b32 s%d, s%d, 5' % (dst, dst))
        a('s_lshl_b32 s%d, s%d, 1' % (sT + 1, sTG))
        a('s_add_u32 s%d, s%d, s%d' % (dst, dst, sT + 1))
        a('s_add_u32 s%d, s%d, s%d' % (dst, dst, sP))
        a('s_mul_i32 s%d, s%d, %d' % (dst, dst, HBT))
        a('s_add_u32 s%d, s%d, %d' % (dst, dst, WS_HB))

    def bphase(self):
        a = self.a
        NS = 12
        ACC = 48
        WB = [60, 72, 84]
        LA, LB, VT, TMP1 = 96, 97, 98, 99
        slot = lambda ks: 4 * (ks % NS)
        a('s_mul_i32 s%d, s%d, %d' % (sBase, sLayer, LSTR))
        a('s_mul_i32 s%d, s%d, %d' % (sT, sP, TILE))
        a('s_add_u32 s%d, s%d, s%d' % (sBase, sBase, sT))
        a('s_add_u32 s%d, s%d, s%d' % (sBase, sBase, sTileW))
        a('v_lshlrev_b32 v100, 4, v%d' % vLane)
        a('v_add_u32 v100, s%d, v100' % sTab)
        a('ds_read_b128 %s, v100 offset:3072' % vr(96))
        a('s_waitcnt lgkmcnt(0)')

        def wreads(ks):
            b = WB[ks % 3]
            a('ds_read_b128 %s, v%d offset:%d' % (vr(b), LA, ks * 2304))
            a('ds_read_b128 %s, v%d offset:%d' % (vr(b + 4), LA, ks * 2304 + 1024))
            a('ds_read_b128 %s, v%d offset:%d' % (vr(b + 8), LB, ks * 2304))
        def wread1(ks, t):
            b = WB[ks % 3]
            if t < 2:
                a('ds_read_b128 %s, v%d offset:%d' % (vr(b + 4 * t), LA, ks * 2304 + 1024 * t))
            else:
                a('ds_read_b128 %s, v%d offset:%d' % (vr(b + 8), LB, ks * 2304))
        self.tr(40)
        def hook():
            Lwp = a.uid('Lwop')
            a('s_cmp_eq_u32 s%d, 0' % sWoP)
            a('s_cbranch_scc1 %s' % Lwp)
            self.set_flag(F_WR, sLayer, WB[0], add=1)
            a('s_mov_b32 s%d, 0' % sWoP)
            a.label(Lwp)
        self.poll_event(0, 0, ACC, 13, hook=hook)
        self.tr(44)
        issued = []

        def oload(ks):
            if ks < 16:
                if ks % 4 == 0:
                    a('s_add_u32 s%d, s%d, %d' % (sT + 2, sBase, WS_PAD + ks * 1024 - L_WO))
                a('buffer_load_dwordx4 %s, v%d, %s, s%d offen offset:%d sc1' %
                  (vr(slot(ks)), LA, srd(sWS2), sT + 2, (ks % 4) * 1024))
                issued.append(ks)
            else:
                a('s_add_u32 s%d, s%d, 16384' % (sT + 3, sBase))
                a('buffer_load_dwordx2 %s, v%d, %s, s%d offen offset:%d sc1' %
                  (vr(slot(ks), 2), VT, srd(sWS), sT + 3, (ks - 16) * 1024))
                a('buffer_load_dwordx2 %s, v%d, %s, s%d offen offset:%d sc1' %
                  (vr(slot(ks) + 2, 2), VT, srd(sWS), sT + 3, (ks - 16) * 1024 + 128))
                issued.extend([ks, ks])
        for ks in range(NS):
            oload(ks)
        a('s_add_u32 s%d, s%d, 1' % (sT + 7, sLayer))
        self.wait_flag(F_WR, sT + 7, WB[0], 10)
        for ks in range(3):
            wreads(ks)
        RES = 24
        RA = 32
        for ks in range(18):
            last = max(i for i, t in enumerate(issued) if t == ks)
            a('s_waitcnt vmcnt(%d) lgkmcnt(%d)' % (len(issued) - 1 - last, 3 * min(2, 17 - ks)))
            if ks == 0:
                self.tr(41)
            for t in range(3):
                a(mfma(ACC + 4 * t, WB[ks % 3] + 4 * t, slot(ks), ks == 0))
                if ks + 3 < 18:
                    wread1(ks + 3, t)
            if ks + NS < 18:
                oload(ks + NS)
            if ks == 9:
                a('ds_read_b128 %s, v100 offset:4096' % vr(RA))
            if ks == 10:
                L0, L1 = a.uid('Lres0'), a.uid('Lres1')
                a('s_add_u32 s%d, s%d, %d' % (sBase2, sBase, WS_X))
                a('s_mul_i32 s%d, s%d, 1152' % (sT + 4, sP))
                a('s_waitcnt lgkmcnt(3)')
                a('s_cmp_eq_u32 s%d, 0' % sLayer)
                a.softbranch('s_cbranch_scc1 %s' % L0)
                a('buffer_load_dwordx4 %s, v%d, %s, s%d offen sc1' % (vr(RES), RA, srd(sWS), sBase2))
                a('buffer_load_dwordx2 %s, v%d, %s, s%d offen sc1' % (vr(RES + 4, 2), RA + 1, srd(sWS), sBase2))
                a.softbranch('s_branch %s' % L1)
                a.label(L0, noflush=True)
                a('buffer_load_dwordx4 %s, v%d, %s, s%d offen' % (vr(RES), RA + 2, srd(sIN), sT + 4))
                a('buffer_load_dwordx2 %s, v%d, %s, s%d offen' % (vr(RES + 4, 2), RA + 3, srd(sIN), sT + 4))
                a.label(L1, noflush=True)
                issued.extend(['r', 'r'])
        self.tr(42)
        E = 0
        U = 60
        pairs = [(ACC + r, ACC + 4 + r) for r in range(4)] + [(ACC + 8, ACC + 9), (ACC + 10, ACC + 11)]
        if os.environ.get('ONEROUND'):
            a('s_waitcnt vmcnt(0)')
            for m in range(6):
                a('v_lshlrev_b32 v%d, 16, v%d' % (U + 2 * m, RES + m))
                a('v_and_b32 v%d, 0xffff0000, v%d' % (U + 1 + 2 * m, RES + m))
            for m, (x0, x1) in enumerate(pairs):
                a('v_add_f32 v%d, v%d, v%d' % (U + 2 * m, U + 2 * m, x0))
                a('v_add_f32 v%d, v%d, v%d' % (U + 1 + 2 * m, U + 1 + 2 * m, x1))
            for m in range(6):
                a('v_cvt_pk_bf16_f32 v%d, v%d, v%d' % (E + m, U + 2 * m, U + 1 + 2 * m))
        else:
            for m, (x0, x1) in enumerate(pairs):
                a('v_cvt_pk_bf16_f32 v%d, v%d, v%d' % (E + m, x0, x1))
            a('s_waitcnt vmcnt(0)')
            for m in range(6):
                a('v_lshlrev_b32 v%d, 16, v%d' % (U + 2 * m, E + m))
                a('v_and_b32 v%d, 0xffff0000, v%d' % (U + 1 + 2 * m, E + m))
                a('v_lshlrev_b32 v%d, 16, v%d' % (U + 12 + 2 * m, RES + m))
                a('v_and_b32 v%d, 0xffff0000, v%d' % (U + 13 + 2 * m, RES + m))
            for m in range(12):
                a('v_add_f32 v%d, v%d, v%d' % (U + m, U + m, U + 12 + m))
            for m in range(6):
                a('v_cvt_pk_bf16_f32 v%d, v%d, v%d' % (E + m, U + 2 * m, U + 1 + 2 * m))
        L0, L1 = a.uid('Lst0'), a.uid('Lst1')
        a('s_cmp_eq_u32 s%d, %d' % (sLayer, self.nlayers - 1))
        a('s_cbranch_scc1 %s' % L0)

        def st(sc):
            a('buffer_store_dwordx4 %s, v32, %s, s%d offen%s' % (vr(E), srd(sWS), sBase2, sc))
            a('s_mov_b64 exec, 0xffff')
            a('buffer_store_dwordx2 %s, v33, %s, s%d offen%s' % (vr(E + 4, 2), srd(sWS), sBase2, sc))
            a('s_mov_b64 exec, -1')
            for m in range(4):
                a('v_dot2_f32_bf16 v8, v%d, v%d, %s' % (E + m, E + m, '0' if m == 0 else 'v8'))
            a('v_dot2_f32_bf16 v10, v%d, v%d, 0' % (E + 4, E + 4))
            a('v_dot2_f32_bf16 v10, v%d, v%d, v10' % (E + 5, E + 5))
            a('v_lshrrev_b32 v11, 1, v33')
            a('v_mov_b32 v9, v8')
            a('v_permlane32_swap_b32 v8, v9')
            a('v_add_f32 v8, v8, v9')
            a('v_mov_b32 v9, v8')
            a('v_permlane16_swap_b32 v8, v9')
            a('v_add3_f32 v8, v8, v9, v10') if False else None
            a('v_add_f32 v8, v8, v9')
            a('v_add_f32 v8, v8, v10')
            a('s_add_u32 s%d, s%d, %d' % (sT + 2, sBase2, 18432 - 8192))
            a('s_mov_b64 exec, 0xffff')
            a('buffer_store_dword v8, v11, %s, s%d offen%s' % (srd(sWS), sT + 2, sc))
            a('s_mov_b64 exec, -1')
            self.publish_event(2, 44, sc)
        self.both_modes(st)
        a('s_branch %s' % L1)
        a.label(L0)
        a('buffer_store_dwordx4 %s, v34, %s, s%d offen' % (vr(E), srd(sOUT), sT + 4))
        a('s_mov_b64 exec, 0xffff')
        a('buffer_store_dwordx2 %s, v35, %s, s%d offen' % (vr(E + 4, 2), srd(sOUT), sT + 4))
        a('s_mov_b64 exec, -1')
        a.label(L1)
        a('s_lshl_b32 s%d, s%d, 4' % (sT, sP))
        a('s_lshl_b32 s%d, s%d, 2' % (sT + 1, sWv))
        a('s_sub_u32 s%d, s%d, s%d' % (sT, sT + 1, sT))
        a('v_add_u32 v60, s%d, v%d' % (sT, vFlag))
        a('s_add_u32 s%d, s%d, 1' % (sT, sLayer))
        a('v_mov_b32 v61, s%d' % sT)
        a('ds_write_b32 v60, v61 offset:%d' % F_WG)
        self.tr(43)

    def xaddr_frag(self, d, tmp):
        a = self.a
        a('v_lshrrev_b32 v%d, 4, v%d' % (tmp, vLane))
        a('v_and_b32 v%d, 15, v%d' % (tmp + 1, vLane))
        self.swz(d, tmp, tmp + 1, tmp + 2)
        a('s_lshl_b32 s%d, s%d, 10' % (sT, sHG))
        a('v_add_u32 v%d, s%d, v%d' % (d, sT, d))
        a('s_lshl_b32 s%d, s%d, 7' % (sT, sHG))
        a('s_add_u32 s%d, s%d, 16384' % (sT, sT))
        a('v_lshlrev_b32 v%d, 3, v%d' % (tmp + 1, tmp + 1))
        a('v_add_u32 v%d, s%d, v%d' % (d + 1, sT, tmp + 1))

    def xaddr_nat(self, d, tmp):
        a = self.a
        a('s_lshl_b32 s%d, s%d, 7' % (sT, sTG))
        a('s_add_u32 s%d, s%d, s%d' % (sT, sT, sP))
        a('s_lshl_b32 s%d, s%d, 5' % (sT + 1, sWv))
        a('s_add_u32 s%d, s%d, s%d' % (sT, sT, sT + 1))
        a('s_mul_i32 s%d, s%d, 1152' % (sT, sT))
        a('s_mul_i32 s%d, s%d, 72' % (sT + 1, sHG))
        a('s_add_u32 s%d, s%d, s%d' % (sT, sT, sT + 1))
        a('v_and_b32 v%d, 15, v%d' % (tmp, vLane))
        a('v_mul_u32_u24 v%d, 2304, v%d' % (tmp, tmp))
        a('v_add_u32 v%d, s%d, v%d' % (tmp, sT, tmp))
        a('v_add_u32 v%d, 64, v%d' % (d + 1, tmp))
        a('v_lshrrev_b32 v%d, 4, v%d' % (tmp + 1, vLane))
        a('v_lshl_add_u32 v%d, v%d, 4, v%d' % (d, tmp + 1, tmp))

    def build(self):
        a = self.a
        self.prologue()
        a('s_cmp_eq_u32 s%d, 0' % sSet)
        a('s_cbranch_scc0 L_H0')
        if not os.environ.get('DIRECTA'):
            self.wload_addr(0, 1, 2)
            self.coop_issue(0, 1)
            self.wou_issue(16, 24)
            self.kv_prefill(32)
            a('s_waitcnt vmcnt(12)')
            self.tr(5)
            self.coop_store(2)
            a('s_waitcnt vmcnt(2)')
            self.wou_store(16, 24)
            self.get_nonce(8)
            self.coop_flag(12)
            self.wou_flag(8)
            a('s_mov_b32 s%d, 1' % (sT + 7))
            self.set_flag(F_XH, sT + 7, 12)
            self.tr(6)
            a('s_mov_b32 s%d, 0' % sP)
            self.stage_input_issue()
            self.stage_input_finish()
            self.coop_load(0)
            self.colsum(8, progressive=True)
        else:
            self.wload_addr(99, 100, 92)
            self.kv_prefill(80)
            self.wou_issue(72, 92)
            self.stage_input_issue()
            self.wload_issue(range(0, 18), 99, 100)
            self.tr(5)
            self.stage_input_finish(extra_after=49, last_extra=63)
            self.wou_store(72, 92)
            self.ones_mask(2, 3)
            self.get_nonce(8)
            self.wou_flag(8)
            self.tr(6)
            self.wload_perm(range(18), 2, 4)
            self.colsum(8)
        a('s_mov_b32 s%d, 2' % (sT + 7))
        self.set_flag(F_XH, sT + 7, 12)
        self.tr(2)
        a('s_branch L_M_ROLE')
        a.label('L_H0')
        Ln, Lp = a.uid('Lnn'), a.uid('Lpf0')
        a('s_cmp_lg_u32 s2, 0')
        a('s_cbranch_scc1 %s' % Ln)
        a('s_cmp_lg_u32 s%d, 0' % sWv)
        a('s_cbranch_scc1 %s' % Ln)
        a('s_memrealtime s[%d:%d]' % (sNon, sNon + 1))
        a('s_waitcnt lgkmcnt(0)')
        a('s_or_b32 s%d, s%d, 1' % (sNon, sNon))
        a('s_or_b32 s%d, s%d, 1' % (sNon + 1, sNon + 1))
        a('v_mov_b32 v72, s%d' % sNon)
        a('v_mov_b32 v73, s%d' % (sNon + 1))
        a('v_mov_b32 v74, 0')
        a('buffer_store_dwordx2 v[72:73], v74, %s, 0 offen sc1' % srd(sDBG))
        a.label(Ln)
        self.wload_addr(99, 100, 92)
        self.coop_issue(99, 100)
        self.wou_issue(72, 92)
        self.kv_prefill(80)
        a('s_waitcnt vmcnt(4)')
        self.tr(5)
        self.coop_store(vCS)
        self.wou_store(72, 92)
        self.get_nonce(72)
        a('s_mov_b32 s%d, 1' % (sT + 7))
        self.set_flag(F_XH + 16, sT + 7, 72)
        Lf = a.uid('Lif')
        a('s_cmp_lg_u32 s%d, 3' % sWv)
        a('s_cbranch_scc1 %s' % Lf)
        self.wait_flag(F_XH, sT + 7, 72, 18)
        self.wait_flag(F_XH + 16, sT + 7, 72, 19)
        a('s_lshl_b32 s%d, s%d, 4' % (sT, sTG))
        a('s_add_u32 s%d, s%d, s%d' % (sT, sT, sHG))
        a('s_lshl_b32 s%d, s%d, 4' % (sT, sT))
        a('s_add_u32 s%d, s%d, %d' % (sT, sT, WS_INI))
        a('v_mov_b32 v72, s%d' % sNon)
        a('v_mov_b32 v73, s%d' % (sNon + 1))
        a('v_mov_b32 v74, s%d' % sXcc)
        a('v_mov_b32 v75, s%d' % sNon)
        a('v_mov_b32 v76, 0')
        a('s_mov_b64 exec, 1')
        a('buffer_store_dwordx4 v[72:75], v76, %s, s%d offen sc1' % (srd(sWS), sT))
        a('s_mov_b64 exec, -1')
        a.label(Lf)
        self.coop_flag(78)
        self.wou_flag(92)
        self.tr(6)
        self.build_tables()
        a('s_mov_b32 s%d, 2' % (sT + 7))
        self.set_flag(F_XH + 16, sT + 7, 72)
        self.wait_flag(F_XH, sT + 7, 72, 20, sleep=4)
        a('s_mov_b32 s%d, 1' % sP)
        self.stage_input_issue()
        self.wo_stage()
        self.init_check(72)
        self.coop_load(72)
        self.stage_input_finish(extra_after=36, last_extra=36)
        self.tr(3)
        a('s_mov_b32 s%d, 0' % sP)
        a('s_branch L_BPHASE')
        self.m_role()
        a.label('L_BPHASE')
        self.bphase()
        a('s_add_u32 s%d, s%d, 1' % (sLayer, sLayer))
        a('s_cmp_ge_u32 s%d, %d' % (sLayer, self.nlayers))
        a('s_cbranch_scc1 L_END')
        a.label('L_STAGE')
        self.stage_generic()
        a('s_cmp_eq_u32 s%d, 0' % sP)
        a('s_cbranch_scc1 L_M_ROLE')
        a('s_mov_b32 s%d, 0' % sP)
        a('s_branch L_BPHASE')
        a.label('L_ABORT')
        a('s_mov_b64 exec, -1')
        a('s_lshl_b32 s%d, s%d, 2' % (sT, sT + 9))
        a('s_add_u32 s%d, s%d, 64' % (sT, sT))
        a('v_mov_b32 v0, s2')
        a('v_add_u32 v0, 0x1000, v0')
        a('v_mov_b32 v1, s%d' % sT)
        a('buffer_store_dword v0, v1, %s, 0 offen sc1' % srd(sDBG))
        a.label('L_END')
        if self.debug:
            a('s_cmp_ge_u32 s2, 256')
            a('s_cbranch_scc1 L_END2')
            self.tr(63)
            a('s_lshl_b32 s%d, s2, 3' % sT)
            a('s_add_u32 s%d, s%d, s%d' % (sT, sT, sWave))
            a('s_lshl_b32 s%d, s%d, 8' % (sT, sT))
            a('s_add_u32 s%d, s%d, %d' % (sT, sT, WS_TRC))
            a('v_lshlrev_b32 v0, 2, v%d' % vLane)
            a('buffer_store_dword v%d, v0, %s, s%d offen' % (vTr, srd(sWS), sT))
            a.label('L_END2')
        a('s_endpgm')

    def text(self):
        hdr = open(os.path.join(os.path.dirname(os.path.abspath(__file__)), '..', 'cdna_kernels', NAME + '.s.ref')).read()
        out = hdr.split('; Override launch geometry')[0]
        out += '; @launch grid=(256,1,1) block=(512,1,1) lds=%d\n' % LDS_BYTES
        out += '.amdgcn_target "amdgcn-amd-amdhsa--gfx950"\n.text\n'
        out += '.globl %s_kernel\n.p2align 8\n.type %s_kernel,@function\n%s_kernel:\n' % (NAME, NAME, NAME)
        out += self.a.render()
        out += '''.section .rodata,"a"
.p2align 6
.amdhsa_kernel %s_kernel
  .amdhsa_next_free_vgpr 256
  .amdhsa_next_free_sgpr 96
  .amdhsa_accum_offset 256
  .amdhsa_group_segment_fixed_size 0
  .amdhsa_kernarg_size 72
  .amdhsa_user_sgpr_count 2
  .amdhsa_user_sgpr_kernarg_segment_ptr 1
  .amdhsa_system_sgpr_workgroup_id_x 1
.end_amdhsa_kernel
''' % NAME
        return out


if __name__ == '__main__':
    nl = int(sys.argv[2]) if len(sys.argv) > 2 else 4
    g = Gen(nlayers=nl, debug=(len(sys.argv) > 3 and sys.argv[3] == 'trace'))
    g.build()
    path = sys.argv[1] if len(sys.argv) > 1 else os.path.join(os.path.dirname(os.path.abspath(__file__)), '..', 'cdna_kernels', NAME + '.s')
    open(path, 'w').write(g.text())
    print('wrote', path)
```

```python
import sys, os, struct
sys.path.insert(0, os.path.dirname(os.path.abspath(__file__)))
from asmlib import Asm

NAME = 'interleave_layers__sliding_local_dilated__sliding_local_dilated__prompt'

XBYTES = 2048 * 576 * 2
MT = 19456
TILE = 4 * MT
WS_X = 4 * XBYTES
LSTR = 0
WS_KV = 6 * XBYTES
KVT = 2304
WS_FL = 9 * XBYTES
WS_INI = WS_FL + 65536
WS_CFLG = WS_FL + 131072
WS_WFLG = WS_FL + 262144
WS_TRC = 10 * XBYTES
WS_CIMG = 11 * XBYTES
WS_PIMG = 14 * XBYTES
WS_PFLG = WS_FL + 393216
WS_WIMG = 13 * XBYTES
WIS = 41984
WS_SIZE = 80 << 20
WS_PAD = 1 << 20
OOB = 0x7F000000

L_QKV = 4 * MT
QP = 272
L_WO = L_QKV + 80 * QP
L_ST = L_WO + 18 * 2304
L_FLG = L_ST + 320
L_TAB = L_FLG + 256
LDS_BYTES = 162560
F_XR, F_XF, F_QR, F_QF, F_WR, F_WF, F_WG, F_XH = 0, 16, 32, 48, 64, 80, 96, 112

sIN, sWQ, sWO, sOUT, sWS, sDBG = 24, 28, 32, 36, 40, 44
sWave, sWv, sSet, sTG, sHG, sLayer, sP, sN, sBud = 48, 49, 50, 51, 52, 53, 54, 55, 56
sG = 57
sNon = 58
sT = 60
sSelLo, sSelHi = 72, 73
sM1, sM2, sM3, sMD = 74, 76, 78, 80
sPend = 82
sBase = 83
sBase2 = 84
sFast = 85
sTm = 86
sWS2 = 88
sTi = 92
sXcc = 93
sWoOk = 94
sTileW = 95
sMt = 4
sQo = 8
sFlW = 12
sOwn = 13
sCs = 14
sQu = 16
sSt = 18
sKm = 20
sH = 22
sPass = 23
sWoP = 15
sPub = 7
sTab = 8
vTr = 101
vFlag, vLane = 102, 103
vCS = 104
vW = 112


def srd(n):
    return 's[%d:%d]' % (n, n + 3)


def vr(b, n=4):
    return 'v[%d:%d]' % (b, b + n - 1)


def W(t, ks):
    return vW + (ks * 2 + t) * 4


def mfma(d, a_, b_, first):
    return 'v_mfma_f32_16x16x32_bf16 %s, %s, %s, %s' % (vr(d), vr(a_), vr(b_), '0' if first else vr(d))


class Gen:
    def __init__(self, nlayers=4, debug=False):
        self.a = Asm()
        self.nlayers = nlayers
        self.debug = debug

    def budget_check(self, code):
        a = self.a
        a('s_sub_u32 s%d, s%d, 1' % (sBud, sBud))
        a('s_cmp_eq_u32 s%d, 0' % sBud)
        a('s_mov_b32 s%d, %d' % (sT + 9, code))
        a('s_cbranch_scc1 L_ABORT')

    def tr(self, ident):
        if not self.debug:
            return
        if os.environ.get('FINE') and ident in (20, 25, 24, 30, 40, 44, 41, 42, 43, 21, 3):
            return
        a = self.a
        a('%s s[%d:%d]' % ('s_memtime' if os.environ.get('CYC') else 's_memrealtime', sTm, sTm + 1))
        a('s_waitcnt lgkmcnt(0)')
        a('s_lshl_b32 s%d, s%d, 6' % (sTm, sTm))
        a('s_or_b32 s%d, s%d, %d' % (sTm, sTm, ident))
        a('s_mov_b32 m0, s%d' % sTi)
        a('s_nop 0')
        a('v_writelane_b32 v%d, s%d, m0' % (vTr, sTm))
        a('s_add_u32 s%d, s%d, 1' % (sTi, sTi))

    def flag_min(self, tmp):
        a = self.a
        a('v_min3_u32 v%d, v%d, v%d, v%d' % (tmp, tmp, tmp + 1, tmp + 2))
        a('v_min_u32 v%d, v%d, v%d' % (tmp, tmp, tmp + 3))
        a('v_readfirstlane_b32 s%d, v%d' % (sT + 8, tmp))

    def wait_flag(self, off, tgt, tmp, code, add=0, sleep=0):
        a = self.a
        L, Ld = a.uid('Lwf'), a.uid('Lwfd')
        a.label(L)
        a('ds_read_b128 %s, v%d offset:%d' % (vr(tmp), vFlag, off))
        a('s_waitcnt lgkmcnt(0)')
        self.flag_min(tmp)
        a('s_nop 1')
        if add:
            a('s_add_u32 s%d, s%d, %d' % (sT + 8, sT + 8, add))
        a('s_cmp_ge_u32 s%d, s%d' % (sT + 8, tgt))
        a('s_cbranch_scc1 %s' % Ld)
        self.budget_check(code)
        if sleep:
            a('s_sleep %d' % sleep)
        a('s_branch %s' % L)
        a.label(Ld)

    def set_flag(self, off, val_sreg, tmpv, add=0):
        a = self.a
        a('s_lshl_b32 s%d, s%d, 2' % (sT + 8, sWv))
        a('v_add_u32 v%d, s%d, v%d' % (tmpv, sT + 8, vFlag))
        if add:
            a('s_add_u32 s%d, s%d, %d' % (sT + 8, val_sreg, add))
            a('v_mov_b32 v%d, s%d' % (tmpv + 1, sT + 8))
        else:
            a('v_mov_b32 v%d, s%d' % (tmpv + 1, val_sreg))
        a('ds_write_b32 v%d, v%d offset:%d' % (tmpv, tmpv + 1, off))

    def swz(self, dst, q, r, tmp):
        a = self.a
        a('v_and_b32 v%d, 1, v%d' % (tmp, q))
        a('v_lshlrev_b32 v%d, 1, v%d' % (tmp, tmp))
        a('v_lshrrev_b32 v%d, 1, v%d' % (dst, q))
        a('v_mul_u32_u24 v%d, 12, v%d' % (dst, dst))
        a('v_add_u32 v%d, v%d, v%d' % (tmp, tmp, dst))
        a('v_xor_b32 v%d, v%d, v%d' % (tmp, tmp, r))
        a('v_lshlrev_b32 v%d, 4, v%d' % (tmp, tmp))
        a('v_lshl_add_u32 v%d, v%d, 8, v%d' % (dst, q, tmp))

    def sentinel_vcc(self, regs, tmp):
        a = self.a
        regs = list(regs)
        a('v_max3_u32 v%d, v%d, v%d, v%d' % (tmp, regs[0], regs[1], regs[2]))
        i = 3
        while i + 1 < len(regs):
            a('v_max3_u32 v%d, v%d, v%d, v%d' % (tmp, tmp, regs[i], regs[i + 1]))
            i += 2
        if i < len(regs):
            a('v_max_u32 v%d, v%d, v%d' % (tmp, tmp, regs[i]))
        a('v_cmp_eq_u32 vcc, -1, v%d' % tmp)

    def poll_event(self, kind_expr, layer_add, tmp, code, all64=False, hook=None):
        a = self.a
        if all64:
            a('v_lshlrev_b32 v%d, 3, v%d' % (tmp + 2, vLane))
        else:
            a('v_and_b32 v%d, 15, v%d' % (tmp + 2, vLane))
            a('v_lshlrev_b32 v%d, 3, v%d' % (tmp + 2, tmp + 2))
        a('s_lshl_b32 s%d, s%d, 9' % (sT, sP))
        a('s_add_u32 s%d, s%d, s%d' % (sT, sT, sFlW))
        if all64:
            a('s_lshl_b32 s%d, s%d, 7' % (sT + 1, sWv))
            a('s_sub_u32 s%d, s%d, s%d' % (sT, sT, sT + 1))
        if kind_expr:
            a('s_add_u32 s%d, s%d, %d' % (sT, sT, kind_expr * 512))
        a('s_add_u32 s%d, s%d, s%d' % (sT + 1, sNon, sLayer))
        a('s_add_u32 s%d, s%d, %d' % (sT + 1, sT + 1, 1 + layer_add))
        L, Ld = a.uid('Lpoll'), a.uid('Lpolld')
        a('s_setprio 0')
        a.label(L)
        a('buffer_load_dwordx2 %s, v%d, %s, s%d offen sc1' % (vr(tmp, 2), tmp + 2, srd(sWS), sT))
        a('s_waitcnt vmcnt(0)')
        if hook:
            hook()
        a('v_subrev_u32 v%d, s%d, v%d' % (tmp, sT + 1, tmp))
        a('v_xor_b32 v%d, s%d, v%d' % (tmp + 1, sNon + 1, tmp + 1))
        a('v_lshrrev_b32 v%d, 3, v%d' % (tmp, tmp))
        a('v_or_b32 v%d, v%d, v%d' % (tmp, tmp, tmp + 1))
        a('v_cmp_ne_u32 vcc, 0, v%d' % tmp)
        a('s_nop 1')
        a('s_cmp_eq_u64 vcc, 0')
        a('s_cbranch_scc1 %s' % Ld)
        self.budget_check(code)
        a('s_branch %s' % L)
        a.label(Ld)
        a('s_setprio 2')

    def publish_event(self, kind, tmp, sc):
        a = self.a
        a('s_lshl_b32 s%d, s%d, 9' % (sT, sP))
        a('s_add_u32 s%d, s%d, s%d' % (sT, sT, sFlW))
        a('s_lshl_b32 s%d, s%d, 3' % (sT + 1, sHG))
        a('s_add_u32 s%d, s%d, s%d' % (sT, sT, sT + 1))
        if kind:
            a('s_add_u32 s%d, s%d, %d' % (sT, sT, kind * 512))
        a('s_add_u32 s%d, s%d, s%d' % (sT + 1, sNon, sLayer))
        a('s_add_u32 s%d, s%d, 1' % (sT + 1, sT + 1))
        a('v_mov_b32 v%d, s%d' % (tmp, sT + 1))
        a('v_mov_b32 v%d, s%d' % (tmp + 1, sNon + 1))
        a('v_mov_b32 v%d, 0' % (tmp + 2))
        a('s_mov_b64 exec, 1')
        a('s_waitcnt vmcnt(0)')
        a('buffer_store_dwordx2 %s, v%d, %s, s%d offen%s' % (vr(tmp, 2), tmp + 2, srd(sWS), sT, sc))
        a('s_mov_b64 exec, -1')

    def both_modes(self, fn):
        a = self.a
        L0, L1 = a.uid('Lslow'), a.uid('Lmend')
        a('s_cmp_eq_u32 s%d, 0' % sFast)
        a('s_cbranch_scc1 %s' % L0)
        fn('')
        a('s_branch %s' % L1)
        a.label(L0)
        fn(' sc1')
        a.label(L1)

    def store_nonce_flag(self, soff, tmp):
        a = self.a
        a('v_mov_b32 v%d, s%d' % (tmp, sNon))
        a('v_mov_b32 v%d, s%d' % (tmp + 1, sNon + 1))
        a('v_mov_b32 v%d, 0' % (tmp + 2))
        a('s_mov_b64 exec, 1')
        a('buffer_store_dwordx2 %s, v%d, %s, s%d offen sc1' % (vr(tmp, 2), tmp + 2, srd(sWS), soff))
        a('s_mov_b64 exec, -1')

    def poll_nonce_flags(self, soff, vaddr, tmp, code):
        a = self.a
        L, Ld = a.uid('Lpn'), a.uid('Lpnd')
        a.label(L)
        a('buffer_load_dwordx2 %s, v%d, %s, s%d offen sc1' % (vr(tmp, 2), vaddr, srd(sWS), soff))
        a('s_waitcnt vmcnt(0)')
        a('v_xor_b32 v%d, s%d, v%d' % (tmp, sNon, tmp))
        a('v_xor_b32 v%d, s%d, v%d' % (tmp + 1, sNon + 1, tmp + 1))
        a('v_or_b32 v%d, v%d, v%d' % (tmp, tmp, tmp + 1))
        a('v_cmp_ne_u32 vcc, 0, v%d' % tmp)
        a('s_nop 1')
        a('s_cmp_eq_u64 vcc, 0')
        a('s_cbranch_scc1 %s' % Ld)
        self.budget_check(code)
        a('s_sleep 2')
        a('s_branch %s' % L)
        a.label(Ld)

    def get_nonce(self, tmp):
        a = self.a
        L, Ld = a.uid('Lnon'), a.uid('Lnond')
        a('v_mov_b32 v%d, 0' % (tmp + 2))
        a.label(L)
        a('buffer_load_dwordx2 %s, v%d, %s, 0 offen sc1' % (vr(tmp, 2), tmp + 2, srd(sDBG)))
        a('s_waitcnt vmcnt(0)')
        a('v_readfirstlane_b32 s%d, v%d' % (sNon, tmp))
        a('v_readfirstlane_b32 s%d, v%d' % (sNon + 1, tmp + 1))
        a('s_nop 1')
        a('s_min_u32 s%d, s%d, s%d' % (sT + 8, sNon, sNon + 1))
        a('s_cmp_lg_u32 s%d, 0' % (sT + 8))
        a('s_cbranch_scc1 %s' % Ld)
        self.budget_check(7)
        a('s_sleep 2')
        a('s_branch %s' % L)
        a.label(Ld)

    def init_check(self, tmp):
        a = self.a
        a('s_mov_b32 s%d, 2' % (sT + 7))
        self.wait_flag(F_XH + 16, sT + 7, tmp, 21)
        L, Ld = a.uid('Lini'), a.uid('Linid')
        a('v_and_b32 v%d, 15, v%d' % (tmp + 4, vLane))
        a('v_lshlrev_b32 v%d, 4, v%d' % (tmp + 4, tmp + 4))
        a('v_add_u32 v%d, 256, v%d' % (tmp + 5, tmp + 4))
        a('v_and_b32 v%d, 16, v%d' % (tmp + 6, vLane))
        a('s_cmp_eq_u32 s%d, 0' % sTG)
        a('s_cselect_b32 s%d, 0, 16' % sT)
        a('v_and_b32 v%d, s%d, v%d' % (tmp + 6, sT, tmp + 6))
        a('v_cmp_eq_u32 s[%d:%d], 0, v%d' % (sT + 2, sT + 3, tmp + 6))
        a('v_cndmask_b32 v%d, v%d, v%d, s[%d:%d]' % (tmp + 4, tmp + 4, tmp + 5, sT + 2, sT + 3))
        a('s_lshl_b32 s%d, s%d, 8' % (sT, sTG))
        a('s_add_u32 s%d, s%d, %d' % (sT, sT, WS_INI - 256))
        a.label(L)
        a('buffer_load_dwordx4 %s, v%d, %s, s%d offen sc1' % (vr(tmp), tmp + 4, srd(sWS), sT))
        a('s_waitcnt vmcnt(0)')
        a('v_xor_b32 v%d, s%d, v%d' % (tmp, sNon, tmp))
        a('v_xor_b32 v%d, s%d, v%d' % (tmp + 1, sNon + 1, tmp + 1))
        a('v_xor_b32 v%d, s%d, v%d' % (tmp + 3, sNon, tmp + 3))
        a('v_or3_b32 v%d, v%d, v%d, v%d' % (tmp, tmp, tmp + 1, tmp + 3))
        a('v_cmp_ne_u32 vcc, 0, v%d' % tmp)
        a('s_nop 1')
        a('s_cmp_eq_u64 vcc, 0')
        a('s_cbranch_scc1 %s' % Ld)
        self.budget_check(8)
        a('s_sleep 2')
        a('s_branch %s' % L)
        a.label(Ld)
        a('v_cmp_ne_u32 vcc, s%d, v%d' % (sXcc, tmp + 2))
        a('s_nop 1')
        a('s_and_b64 vcc, vcc, s[%d:%d]' % (sT + 2, sT + 3))
        a('s_cmp_eq_u64 vcc, 0')
        a('s_cselect_b32 s%d, 1, 0' % sFast)
        if os.environ.get('FORCE_SLOW'):
            a('s_mov_b32 s%d, 0' % sFast)

    def prologue(self):
        a = self.a
        a('s_cmp_ge_u32 s2, 256')
        a('s_cbranch_scc1 L_END')
        a('s_load_dwordx16 s[4:19], s[0:1], 0')
        a('s_load_dwordx2 s[20:21], s[0:1], 64')
        a('v_and_b32 v%d, 63, v0' % vLane)
        a('v_lshrrev_b32 v1, 6, v0')
        a('v_readfirstlane_b32 s%d, v1' % sWave)
        a('s_getreg_b32 s%d, hwreg(HW_REG_XCC_ID)' % sXcc)
        a('s_and_b32 s%d, s%d, 15' % (sXcc, sXcc))
        a('s_and_b32 s%d, s%d, 3' % (sWv, sWave))
        a('s_lshr_b32 s%d, s%d, 2' % (sSet, sWave))
        a('s_and_b32 s%d, s2, 7' % sT)
        a('s_lshr_b32 s%d, s2, 3' % (sT + 1))
        a('s_and_b32 s%d, s%d, 15' % (sHG, sT + 1))
        a('s_lshr_b32 s%d, s%d, 4' % (sT + 1, sT + 1))
        a('s_lshl_b32 s%d, s%d, 1' % (sTG, sT))
        a('s_add_u32 s%d, s%d, s%d' % (sTG, sTG, sT + 1))
        a('s_mov_b32 s%d, 0x%x' % (sBud, 2000000))
        a('s_mov_b32 s%d, 0x05040100' % sSelLo)
        a('s_mov_b32 s%d, 0x07060302' % sSelHi)
        a('s_mov_b32 s%d, 0' % sLayer)
        a('s_mov_b32 s%d, 0' % sWoOk)
        a('s_mov_b32 s%d, 0' % sFast)
        a('v_mov_b32 v%d, 0x%x' % (vFlag, L_FLG))
        a('v_and_b32 v1, 3, v%d' % vLane)
        a('v_cmp_eq_u32 s[%d:%d], 1, v1' % (sM1, sM1 + 1))
        a('v_cmp_eq_u32 s[%d:%d], 2, v1' % (sM2, sM2 + 1))
        a('v_cmp_eq_u32 s[%d:%d], 3, v1' % (sM3, sM3 + 1))
        a('v_lshrrev_b32 v1, 4, v%d' % vLane)
        a('v_bfe_u32 v2, v%d, 2, 2' % vLane)
        a('v_cmp_eq_u32 s[%d:%d], v1, v2' % (sMD, sMD + 1))
        a('v_mov_b32 v1, 0')
        a('v_lshl_add_u32 v2, v%d, 2, v%d' % (vLane, vFlag))
        a('ds_write_b32 v2, v1')
        a('s_waitcnt lgkmcnt(0)')

        def mk(n, lo, hi, size):
            a('s_mov_b32 s%d, s%d' % (n, lo))
            a('s_and_b32 s%d, s%d, 0xffff' % (n + 1, hi))
            a('s_mov_b32 s%d, 0x%x' % (n + 2, size))
            a('s_mov_b32 s%d, 0x00020000' % (n + 3))
        mk(sIN, 4, 5, XBYTES)
        mk(sOUT, 16, 17, XBYTES)
        mk(sDBG, 18, 19, 256)
        mk(sWS2, 20, 21, WS_SIZE)
        a('s_add_u32 s20, s20, 0x%x' % WS_PAD)
        a('s_addc_u32 s21, s21, 0')
        mk(sWS, 20, 21, WS_SIZE)
        a('s_mov_b32 s%d, 0' % sTi)
        a('s_cmp_eq_u32 s%d, 0' % sSet)
        a('s_cbranch_scc0 L_SETB_SRD')
        mk(sWQ, 6, 7, 576 * 1728 * 2)
        mk(sWO, 14, 15, 576 * 576 * 2)
        a('s_branch L_SRD_DONE')
        a.label('L_SETB_SRD')
        mk(sWQ, 12, 13, 576 * 1728 * 2)
        mk(sWO, 8, 9, 576 * 576 * 2)
        a.label('L_SRD_DONE')
        a('s_mul_i32 s%d, s%d, %d' % (sMt, sWv, MT))
        a('s_mul_i32 s%d, s%d, %d' % (sTileW, sTG, 2 * TILE))
        a('s_mul_i32 s%d, s%d, %d' % (sT, sWv, MT))
        a('s_add_u32 s%d, s%d, s%d' % (sTileW, sTileW, sT))
        a('s_lshl_b32 s%d, s%d, 11' % (sFlW, sTG))
        a('s_lshl_b32 s%d, s%d, 7' % (sT, sWv))
        a('s_add_u32 s%d, s%d, s%d' % (sFlW, sFlW, sT))
        a('s_add_u32 s%d, s%d, %d' % (sFlW, sFlW, WS_FL))
        a('s_mov_b32 s%d, 0' % sOwn)
        a('s_mov_b32 s%d, 0' % sWoP)
        a('s_mov_b32 s%d, 0' % sPub)
        a('s_mul_i32 s%d, s%d, 5120' % (sTab, sWv))
        a('s_add_u32 s%d, s%d, 0x%x' % (sTab, sTab, L_TAB))
        a('s_mov_b32 s%d, s%d' % (sCs, sSet))
        a('s_mul_i32 s%d, s%d, 48' % (sQu, sWv))
        a('s_add_u32 s%d, s%d, 0x%x' % (sQu, sQu, L_QKV))
        a('s_lshl_b32 s%d, s%d, 4' % (sQu + 1, sWv))
        a('s_add_u32 s%d, s%d, 0x%x' % (sQu + 1, sQu + 1, L_QKV + 192 - 48))
        a('s_lshl_b32 s%d, s%d, 6' % (sSt, sWv))
        a('s_add_u32 s%d, s%d, 0x%x' % (sSt, sSt, L_ST + 64 - 192))
        a('s_mov_b32 s%d, 0x%x' % (sSt + 1, L_ST - 192))
        a('s_and_b32 s%d, s%d, 1' % (sH, sTG))
        km = 0xffff & ~sum(1 << self.UNIT[i] for i in (0, 1, 2, 12))
        a('s_mov_b32 s%d, 0x%x' % (sKm, km | (km << 16)))
        a('s_mov_b32 s%d, 0x%x' % (sKm + 1, km | (km << 16)))
        if True:
            a('s_setprio %s' % '2')
        a('s_barrier')
        if self.debug:
            a('v_mov_b32 v%d, 0' % vTr)
        self.tr(1)

    def wload_addr(self, v1, v2, tmp):
        a = self.a
        i, q, oa, rr, t4, t5 = tmp, tmp + 1, tmp + 2, tmp + 3, tmp + 4, tmp + 5
        a('v_and_b32 v%d, 15, v%d' % (i, vLane))
        a('v_lshrrev_b32 v%d, 4, v%d' % (q, vLane))
        a('v_lshrrev_b32 v%d, 2, v%d' % (oa, i))
        a('v_and_b32 v%d, 3, v%d' % (rr, i))
        a('s_mul_i32 s%d, s%d, 3' % (sT, sWv))
        a('v_add_u32 v%d, s%d, v%d' % (t4, sT, oa))
        a('v_lshrrev_b32 v%d, 2, v%d' % (v1, t4))
        a('v_mul_u32_u24 v%d, 576, v%d' % (v1, v1))
        a('v_bfe_u32 v%d, v%d, 1, 1' % (t5, t4))
        a('v_mul_u32_u24 v%d, 18, v%d' % (t5, t5))
        a('v_add_u32 v%d, v%d, v%d' % (v1, v1, t5))
        a('v_and_b32 v%d, 1, v%d' % (t5, t4))
        a('v_lshl_add_u32 v%d, v%d, 3, v%d' % (v1, t5, v1))
        a('v_lshl_add_u32 v%d, v%d, 1, v%d' % (v1, rr, v1))
        a('s_mul_i32 s%d, s%d, 576' % (sT, sWv))
        a('s_add_u32 s%d, s%d, 16' % (sT, sT))
        a('v_mul_u32_u24 v%d, 18, v%d' % (t5, rr))
        a('v_add_u32 v%d, s%d, v%d' % (t5, sT, t5))
        a('v_cmp_eq_u32 vcc, 3, v%d' % oa)
        a('v_cndmask_b32 v%d, v%d, v%d, vcc' % (v1, v1, t5))
        a('s_mul_i32 s%d, s%d, 36' % (sT, sHG))
        a('v_add_u32 v%d, s%d, v%d' % (v1, sT, v1))
        a('v_lshlrev_b32 v%d, 1, v%d' % (v1, v1))
        a('s_cmp_eq_u32 s%d, 3' % sWv)
        a('s_cselect_b32 s%d, 12, 14' % sT)
        a('v_cmp_le_u32 vcc, s%d, v%d' % (sT, i))
        a('v_mov_b32 v%d, 0x%x' % (t5, OOB))
        a('v_cndmask_b32 v%d, v%d, v%d, vcc' % (v1, v1, t5))
        a('s_mov_b32 s%d, %d' % (sT, 72 * 3456))
        a('v_mul_lo_u32 v%d, v%d, s%d' % (t5, q, sT))
        a('v_add_u32 v%d, v%d, v%d' % (v2, v1, t5))
        a('v_mul_u32_u24 v%d, %d, v%d' % (t5, 8 * 3456, q))
        a('v_add_u32 v%d, v%d, v%d' % (v1, v1, t5))

    def wload_issue(self, ks_list, v1, v2):
        a = self.a
        if os.environ.get('NOW'):
            ks_list = list(ks_list)[:1]
        for ks in ks_list:
            for e in range(0, 8, 2):
                if ks < 16:
                    row, vo = 36 * ks + e, v1
                else:
                    row, vo = 288 * (ks - 16) + 36 * (e >> 2) + 32 + (e & 3), v2
                st = sT + (e >> 1) % 2
                a('s_mov_b32 s%d, %d' % (st, row * 3456))
                m = e >> 1
                a('buffer_load_dword v%d, v%d, %s, s%d offen' % (W(0, ks) + m, vo, srd(sWQ), st))
                a('buffer_load_dword v%d, v%d, %s, s%d offen offset:3456' % (W(1, ks) + m, vo, srd(sWQ), st))

    def wload_perm(self, ks_list, ones, tmp):
        a = self.a
        for ks in ks_list:
            for m in range(4):
                r0, r1 = W(0, ks) + m, W(1, ks) + m
                t = tmp + (m & 1)
                a('v_perm_b32 v%d, v%d, v%d, s%d' % (t, r1, r0, sSelLo))
                a('v_perm_b32 v%d, v%d, v%d, s%d' % (r1, r1, r0, sSelHi))
                a('v_or_b32 v%d, v%d, v%d' % (r0, ones, t))

    def pw_issue(self, v1, v2):
        a = self.a
        L1, L2 = a.uid('Lpi'), a.uid('Lpie')
        a('s_cmp_lg_u32 s%d, 0' % sH)
        a('s_cbranch_scc1 %s' % L1)
        self.wload_issue(range(0, 9), v1, v2)
        a('s_branch %s' % L2)
        a.label(L1)
        self.wload_issue(range(9, 18), v1, v2)
        a.label(L2)

    def pw_finish(self, v1, v2, tmp):
        a = self.a
        Ltop, L1, L2, Ldone, Lfb = a.uid('Lpt'), a.uid('Lp1'), a.uid('Lp2'), a.uid('Lpd'), a.uid('Lpfb')
        a('s_mov_b32 s%d, 0' % sPass)
        a.label(Ltop)
        self.ones_mask(tmp, tmp + 1)
        a('v_lshlrev_b32 v%d, 4, v%d' % (tmp + 4, vLane))
        a('s_lshl_b32 s%d, s2, 3' % (sT + 2))
        a('s_add_u32 s%d, s%d, s%d' % (sT + 2, sT + 2, sWave))
        a('s_mul_i32 s%d, s%d, 18432' % (sT + 3, sT + 2))
        a('s_add_u32 s%d, s%d, %d' % (sT + 3, sT + 3, WS_PIMG))
        a('s_waitcnt vmcnt(0)')
        a('s_cmp_lg_u32 s%d, 0' % sH)
        a('s_cbranch_scc1 %s' % L1)
        for h, lab in ((0, None), (1, L1)):
            if lab:
                a.label(lab)
            self.wload_perm(range(9 * h, 9 * h + 9), tmp, tmp + 2)
            a('s_cmp_lg_u32 s%d, 0' % sPass)
            a('s_cbranch_scc1 %s' % Ldone)
            for n in range(18):
                if n % 4 == 0 and n:
                    a('s_add_u32 s%d, s%d, 4096' % (sT + 3, sT + 3))
                a('buffer_store_dwordx4 %s, v%d, %s, s%d offen offset:%d' % (vr(vW + 72 * h + 4 * n), tmp + 4, srd(sWS), sT + 3, (n % 4) * 1024))
            if h == 0:
                a('s_branch %s' % L2)
        a.label(L2)
        a('s_lshl_b32 s%d, s%d, 4' % (sT + 3, sT + 2))
        a('s_add_u32 s%d, s%d, %d' % (sT + 3, sT + 3, WS_PFLG))
        a('v_mov_b32 v%d, s%d' % (tmp, sNon))
        a('v_mov_b32 v%d, s%d' % (tmp + 1, sNon + 1))
        a('v_mov_b32 v%d, s%d' % (tmp + 2, sXcc))
        a('v_mov_b32 v%d, s%d' % (tmp + 3, sNon))
        a('v_mov_b32 v%d, 0' % (tmp + 5))
        a('s_mov_b64 exec, 1')
        a('s_waitcnt vmcnt(0)')
        a('buffer_store_dwordx4 %s, v%d, %s, s%d offen' % (vr(tmp), tmp + 5, srd(sWS), sT + 3))
        a('s_mov_b64 exec, -1')
        a('s_xor_b32 s%d, s%d, 1024' % (sT + 2, sT + 2))
        a('s_lshl_b32 s%d, s%d, 4' % (sT + 3, sT + 2))
        a('s_add_u32 s%d, s%d, %d' % (sT + 3, sT + 3, WS_PFLG))
        a('s_mov_b32 s%d, %d' % (sT + 4, 1 if os.environ.get('FORCE_SLOW') else 200))
        Lp, Lg = a.uid('Lpp'), a.uid('Lpg')
        a.label(Lp)
        a('buffer_load_dwordx4 %s, v%d, %s, s%d offen sc1' % (vr(tmp), tmp + 5, srd(sWS), sT + 3))
        a('s_waitcnt vmcnt(0)')
        a('v_xor_b32 v%d, s%d, v%d' % (tmp, sNon, tmp))
        a('v_xor_b32 v%d, s%d, v%d' % (tmp + 1, sNon + 1, tmp + 1))
        a('v_xor_b32 v%d, s%d, v%d' % (tmp + 2, sXcc, tmp + 2))
        a('v_xor_b32 v%d, s%d, v%d' % (tmp + 3, sNon, tmp + 3))
        a('v_or3_b32 v%d, v%d, v%d, v%d' % (tmp, tmp, tmp + 1, tmp + 2))
        a('v_or_b32 v%d, v%d, v%d' % (tmp, tmp, tmp + 3))
        a('v_cmp_ne_u32 vcc, 0, v%d' % tmp)
        a('s_nop 1')
        a('s_cmp_eq_u64 vcc, 0')
        if not os.environ.get('FORCE_SLOW'):
            a('s_cbranch_scc1 %s' % Lg)
        a('s_sub_u32 s%d, s%d, 1' % (sT + 4, sT + 4))
        a('s_cmp_eq_u32 s%d, 0' % (sT + 4))
        a('s_cbranch_scc1 %s' % Lfb)
        a('s_sleep 1')
        a('s_branch %s' % Lp)
        a.label(Lfb)
        a('s_mov_b32 s%d, 1' % sPass)
        a('s_xor_b32 s%d, s%d, 1' % (sH, sH))
        self.pw_issue(v1, v2)
        a('s_branch %s' % Ltop)
        a.label(Lg)
        a('s_mul_i32 s%d, s%d, 18432' % (sT + 3, sT + 2))
        a('s_add_u32 s%d, s%d, %d' % (sT + 3, sT + 3, WS_PIMG))
        L3 = a.uid('Lp3')
        a('s_cmp_eq_u32 s%d, 0' % sH)
        a('s_cbranch_scc1 %s' % L3)
        for h, lab in ((0, None), (1, L3)):
            if lab:
                a.label(lab)
            for n in range(18):
                if n % 4 == 0 and n:
                    a('s_add_u32 s%d, s%d, 4096' % (sT + 3, sT + 3))
                a('buffer_load_dwordx4 %s, v%d, %s, s%d offen offset:%d sc1' % (vr(vW + 72 * h + 4 * n), tmp + 4, srd(sWS), sT + 3, (n % 4) * 1024))
            if h == 0:
                a('s_branch %s' % Ldone)
        a.label(Ldone)

    def ones_mask(self, dst, tmp):
        a = self.a
        a('v_and_b32 v%d, 15, v%d' % (tmp, vLane))
        a('v_cmp_eq_u32 vcc, 14, v%d' % tmp)
        a('v_mov_b32 v%d, 0x3f803f80' % tmp)
        a('v_cndmask_b32 v%d, 0, v%d, vcc' % (dst, tmp))

    def colsum(self, tmp, progressive=False):
        a = self.a
        for i in range(4):
            a('v_mov_b32 v%d, 0x3f803f80' % (tmp + i))
        for ks in range(18):
            if progressive:
                a('s_waitcnt vmcnt(%d)' % (34 - 2 * ks))
            for t in range(2):
                a(mfma(vCS + 4 * t, W(t, ks), tmp, ks == 0))

    def coop_issue(self, v1, v2):
        a = self.a
        a('s_mul_i32 s%d, s%d, %d' % (sT + 2, sTG, 36 * 3456))
        a('s_and_b32 s%d, s%d, 1' % (sT + 3, sTG))
        a('s_mul_i32 s%d, s%d, %d' % (sT + 3, sT + 3, 288 * 3456))
        for u in range(2):
            for e in range(0, 8, 2):
                row = e if u == 0 else 36 * (e >> 2) + 32 + (e & 3)
                st = sT + (e >> 1) % 2
                a('s_add_u32 s%d, s%d, %d' % (st, sT + 2 + u, row * 3456))
                m = e >> 1
                vo = v1 if u == 0 else v2
                a('buffer_load_dword v%d, v%d, %s, s%d offen' % (W(0, u) + m, vo, srd(sWQ), st))
                a('buffer_load_dword v%d, v%d, %s, s%d offen offset:3456' % (W(1, u) + m, vo, srd(sWQ), st))

    def coop_id(self, dst):
        a = self.a
        a('s_lshl_b32 s%d, s%d, 4' % (dst, sSet))
        a('s_add_u32 s%d, s%d, s%d' % (dst, dst, sHG))
        a('s_lshl_b32 s%d, s%d, 2' % (dst, dst))
        a('s_add_u32 s%d, s%d, s%d' % (dst, dst, sWv))

    def coop_store(self, tmp):
        a = self.a
        self.ones_mask(tmp, tmp + 1)
        self.wload_perm(range(2), tmp, tmp + 2)
        self.coop_id(sT + 2)
        a('s_mul_i32 s%d, s%d, %d' % (sT + 2, sT + 2, 36864))
        a('s_add_u32 s%d, s%d, %d' % (sT + 2, sT + 2, WS_CIMG))
        a('s_lshl_b32 s%d, s%d, 11' % (sT + 3, sTG))
        a('s_add_u32 s%d, s%d, s%d' % (sT + 3, sT + 3, sT + 2))
        a('v_lshlrev_b32 v%d, 4, v%d' % (tmp + 4, vLane))
        a('buffer_store_dwordx4 %s, v%d, %s, s%d offen sc1' % (vr(W(0, 0)), tmp + 4, srd(sWS), sT + 3))
        a('buffer_store_dwordx4 %s, v%d, %s, s%d offen offset:1024 sc1' % (vr(W(1, 0)), tmp + 4, srd(sWS), sT + 3))
        L = a.uid('Lcs')
        a('s_cmp_ge_u32 s%d, 2' % sTG)
        a('s_cbranch_scc1 %s' % L)
        a('s_add_u32 s%d, s%d, %d' % (sT + 3, sT + 3, 16 * 2048))
        a('buffer_store_dwordx4 %s, v%d, %s, s%d offen sc1' % (vr(W(0, 1)), tmp + 4, srd(sWS), sT + 3))
        a('buffer_store_dwordx4 %s, v%d, %s, s%d offen offset:1024 sc1' % (vr(W(1, 1)), tmp + 4, srd(sWS), sT + 3))
        a.label(L)

    def coop_flag(self, tmp):
        a = self.a
        self.coop_id(sT + 2)
        a('s_lshl_b32 s%d, s%d, 4' % (sT + 2, sT + 2))
        a('s_add_u32 s%d, s%d, s%d' % (sT + 2, sT + 2, sTG))
        a('s_lshl_b32 s%d, s%d, 3' % (sT + 2, sT + 2))
        a('s_add_u32 s%d, s%d, %d' % (sT + 2, sT + 2, WS_CFLG))
        self.store_nonce_flag(sT + 2, tmp)

    def coop_load(self, tmp):
        a = self.a
        self.coop_id(sT + 2)
        a('s_lshl_b32 s%d, s%d, 7' % (sT + 3, sT + 2))
        a('s_add_u32 s%d, s%d, %d' % (sT + 3, sT + 3, WS_CFLG))
        a('v_and_b32 v%d, 15, v%d' % (tmp + 2, vLane))
        a('v_lshlrev_b32 v%d, 3, v%d' % (tmp + 2, tmp + 2))
        self.poll_nonce_flags(sT + 3, tmp + 2, tmp, 15)
        a('s_mul_i32 s%d, s%d, %d' % (sT + 2, sT + 2, 36864))
        a('s_add_u32 s%d, s%d, %d' % (sT + 2, sT + 2, WS_CIMG))
        a('v_lshlrev_b32 v%d, 4, v%d' % (tmp + 2, vLane))
        for n in range(36):
            if n % 4 == 0 and n:
                a('s_add_u32 s%d, s%d, 4096' % (sT + 2, sT + 2))
            a('buffer_load_dwordx4 %s, v%d, %s, s%d offen offset:%d sc1' % (vr(vW + 4 * n), tmp + 2, srd(sWS), sT + 2, (n % 4) * 1024))

    def wou_issue(self, D, tmp):
        a = self.a
        i, q, t2, t3, vo, SEL = tmp, tmp + 1, tmp + 2, tmp + 3, tmp + 4, tmp + 5
        a('v_and_b32 v%d, 15, v%d' % (i, vLane))
        a('v_lshrrev_b32 v%d, 4, v%d' % (q, vLane))
        a('v_lshrrev_b32 v%d, 1, v%d' % (t2, q))
        a('v_mul_u32_u24 v%d, 18, v%d' % (t2, t2))
        a('v_and_b32 v%d, 1, v%d' % (t3, q))
        a('v_lshl_add_u32 v%d, v%d, 3, v%d' % (t2, t3, t2))
        a('v_mul_u32_u24 v%d, 72, v%d' % (t3, q))
        a('s_cmp_ge_u32 s%d, 2' % sWv)
        a('s_cselect_b64 vcc, -1, 0')
        a('v_cndmask_b32 v%d, v%d, v%d, vcc' % (t2, t2, t3))
        a('v_mul_u32_u24 v%d, 1152, v%d' % (vo, t2))
        a('v_lshlrev_b32 v%d, 2, v%d' % (t2, i))
        a('v_and_b32 v%d, 2, v%d' % (t3, i))
        a('v_lshlrev_b32 v%d, 1, v%d' % (t3, t3))
        a('v_add_u32 v%d, 64, v%d' % (t3, t3))
        a('s_and_b32 s%d, s%d, 1' % (sT, sWv))
        a('s_cmp_eq_u32 s%d, 1' % sT)
        a('s_cselect_b64 vcc, -1, 0')
        a('v_cndmask_b32 v%d, v%d, v%d, vcc' % (t2, t2, t3))
        a('s_mul_i32 s%d, s%d, 72' % (sT, sHG))
        a('v_add3_u32 v%d, v%d, v%d, s%d' % (vo, vo, t2, sT))
        a('v_and_b32 v%d, 1, v%d' % (t2, i))
        a('v_cmp_eq_u32 vcc, 1, v%d' % t2)
        a('v_mov_b32 v%d, s%d' % (t2, sSelLo))
        a('v_mov_b32 v%d, s%d' % (t3, sSelHi))
        a('v_cndmask_b32 v%d, v%d, v%d, vcc' % (SEL, t2, t3))
        a('s_mul_i32 s%d, s%d, %d' % (sT + 2, sTG, 36 * 1152))
        a('s_and_b32 s%d, s%d, 1' % (sT + 3, sTG))
        a('s_mul_i32 s%d, s%d, %d' % (sT + 3, sT + 3, 288 * 1152))
        a('s_cmp_ge_u32 s%d, 2' % sWv)
        for e in range(0, 8, 2):
            r0 = e * 1152
            r1 = (36 * (e >> 2) + 18 * ((e >> 1) & 1) + 16) * 1152
            a('s_cselect_b32 s%d, s%d, s%d' % (sT, sT + 3, sT + 2))
            a('s_cselect_b32 s%d, %d, %d' % (sT + 1, r1, r0)) if False else None
            a('s_mov_b32 s%d, %d' % (sT + 4, r0))
            a('s_mov_b32 s%d, %d' % (sT + 5, r1))
            a('s_cselect_b32 s%d, s%d, s%d' % (sT + 1, sT + 5, sT + 4))
            a('s_lshl_b32 s%d, s%d, 0' % (sT + 6, sT)) if False else None
            m = e >> 1
            a('s_add_u32 s%d, s%d, s%d' % (sT + 6 + (m & 1), sT, sT + 1))
            a('buffer_load_dword v%d, v%d, %s, s%d offen' % (D + m, vo, srd(sWO), sT + 6 + (m & 1)))
            a('buffer_load_dword v%d, v%d, %s, s%d offen offset:1152' % (D + 4 + m, vo, srd(sWO), sT + 6 + (m & 1)))
            a('s_cmp_ge_u32 s%d, 2' % sWv)

    def wou_ids(self):
        a = self.a
        a('s_lshl_b32 s%d, s%d, 4' % (sT + 2, sSet))
        a('s_add_u32 s%d, s%d, s%d' % (sT + 2, sT + 2, sHG))
        a('s_and_b32 s%d, s%d, 1' % (sT + 3, sTG))
        a('s_add_u32 s%d, s%d, 16' % (sT + 3, sT + 3))
        a('s_cmp_ge_u32 s%d, 2' % sWv)
        a('s_cselect_b32 s%d, s%d, s%d' % (sT + 3, sT + 3, sTG))

    def wou_store(self, D, tmp):
        a = self.a
        SEL = tmp + 5
        Lskip, Lk1 = a.uid('Lwus'), a.uid('Lwuk')
        a('s_lshr_b32 s%d, s%d, 1' % (sT, sWv))
        a('s_lshr_b32 s%d, s%d, 1' % (sT + 1, sTG))
        a('s_min_u32 s%d, s%d, s%d' % (sT, sT, sT + 1))
        a('s_cmp_lg_u32 s%d, 0' % sT)
        a('s_cbranch_scc1 %s' % Lskip)
        self.wou_ids()
        a('s_mul_i32 s%d, s%d, %d' % (sT + 2, sT + 2, WIS))
        a('s_mul_i32 s%d, s%d, 2304' % (sT + 3, sT + 3))
        a('s_add_u32 s%d, s%d, s%d' % (sT + 2, sT + 2, sT + 3))
        a('s_add_u32 s%d, s%d, %d' % (sT + 2, sT + 2, WS_WIMG))
        a('s_and_b32 s%d, s%d, 1' % (sT, sWv))
        a('s_cmp_eq_u32 s%d, 1' % sT)
        a('s_cbranch_scc1 %s' % Lk1)
        for m in range(4):
            r0, r1 = D + m, D + 4 + m
            t = tmp + (m & 1)
            a('v_perm_b32 v%d, v%d, v%d, s%d' % (t, r1, r0, sSelLo))
            a('v_perm_b32 v%d, v%d, v%d, s%d' % (r1, r1, r0, sSelHi))
            a('v_mov_b32 v%d, v%d' % (r0, t))
        a('v_lshlrev_b32 v%d, 4, v%d' % (tmp, vLane))
        a('buffer_store_dwordx4 %s, v%d, %s, s%d offen sc1' % (vr(D), tmp, srd(sWS), sT + 2))
        a('buffer_store_dwordx4 %s, v%d, %s, s%d offen offset:1024 sc1' % (vr(D + 4), tmp, srd(sWS), sT + 2))
        a('s_branch %s' % Lskip)
        a.label(Lk1)
        for m in range(4):
            a('v_perm_b32 v%d, v%d, v%d, v%d' % (D + m, D + 4 + m, D + m, SEL))
        a('v_and_b32 v%d, 15, v%d' % (tmp, vLane))
        a('v_cmp_gt_u32 vcc, 4, v%d' % tmp)
        a('v_lshlrev_b32 v%d, 4, v%d' % (tmp, tmp))
        a('v_lshrrev_b32 v%d, 4, v%d' % (tmp + 1, vLane))
        a('v_lshl_add_u32 v%d, v%d, 6, v%d' % (tmp, tmp + 1, tmp))
        a('s_mov_b64 exec, vcc')
        a('buffer_store_dwordx4 %s, v%d, %s, s%d offen offset:2048 sc1' % (vr(D), tmp, srd(sWS), sT + 2))
        a('s_mov_b64 exec, -1')
        a.label(Lskip)

    def wou_flag(self, tmp):
        a = self.a
        Lskip = a.uid('Lwuf')
        a('s_lshr_b32 s%d, s%d, 1' % (sT, sWv))
        a('s_lshr_b32 s%d, s%d, 1' % (sT + 1, sTG))
        a('s_min_u32 s%d, s%d, s%d' % (sT, sT, sT + 1))
        a('s_cmp_lg_u32 s%d, 0' % sT)
        a('s_cbranch_scc1 %s' % Lskip)
        self.wou_ids()
        a('s_lshl_b32 s%d, s%d, 9' % (sT + 2, sT + 2))
        a('s_and_b32 s%d, s%d, 1' % (sT, sWv))
        a('s_mul_i32 s%d, s%d, 18' % (sT, sT))
        a('s_add_u32 s%d, s%d, s%d' % (sT + 3, sT + 3, sT))
        a('s_lshl_b32 s%d, s%d, 3' % (sT + 3, sT + 3))
        a('s_add_u32 s%d, s%d, s%d' % (sT + 2, sT + 2, sT + 3))
        a('s_add_u32 s%d, s%d, %d' % (sT + 2, sT + 2, WS_WFLG))
        self.store_nonce_flag(sT + 2, tmp)
        a.label(Lskip)

    def wo_stage(self, async_=False):
        a = self.a
        TMP = 88
        Lok = a.uid('Lwook')
        a('s_lshl_b32 s%d, s%d, 4' % (sT + 2, sSet))
        a('s_add_u32 s%d, s%d, s%d' % (sT + 2, sT + 2, sHG))
        a('s_cmp_lg_u32 s%d, 0' % sWoOk)
        a('s_cbranch_scc1 %s' % Lok)
        a('s_lshl_b32 s%d, s%d, 9' % (sT + 3, sT + 2))
        a('s_add_u32 s%d, s%d, %d' % (sT + 3, sT + 3, WS_WFLG))
        a('v_min_u32 v%d, 35, v%d' % (TMP + 2, vLane))
        a('v_lshlrev_b32 v%d, 3, v%d' % (TMP + 2, TMP + 2))
        self.poll_nonce_flags(sT + 3, TMP + 2, TMP, 16)
        a('s_mov_b32 s%d, 1' % sWoOk)
        a.label(Lok)
        a('s_mul_i32 s%d, s%d, %d' % (sT + 2, sT + 2, WIS))
        a('s_mul_i32 s%d, s%d, 10240' % (sT + 3, sWv))
        a('s_add_u32 s%d, s%d, s%d' % (sT + 2, sT + 2, sT + 3))
        a('s_add_u32 s%d, s%d, %d' % (sBase, sT + 2, WS_WIMG))
        a('s_add_u32 s%d, s%d, %d' % (sBase2, sT + 3, L_WO))
        a('v_lshlrev_b32 v%d, 4, v%d' % (TMP + 4, vLane))
        self.wait_flag(F_WF, sLayer, TMP, 9)
        self.wait_flag(F_WG, sLayer, TMP, 14)
        for n in range(11):
            if n % 4 == 0:
                a('s_add_u32 s%d, s%d, %d' % (sT, sBase, n * 1024))
                a('s_add_u32 s%d, s%d, %d' % (sT + 1, sBase2, n * 1024))
                a('s_mov_b32 m0, s%d' % (sT + 1))
            if n == 10:
                a('s_mov_b32 exec_hi, 0')
            a('buffer_load_dwordx4 v%d, %s, s%d offen offset:%d sc1 lds' % (TMP + 4, srd(sWS), sT, (n % 4) * 1024))
        a('s_mov_b64 exec, -1')
        if not async_:
            a('s_waitcnt vmcnt(0)')
            self.set_flag(F_WR, sLayer, TMP, add=1)
        self.tr(30)

    ORDER = [3, 1, 2, 0]
    UNIT = [0, 1, 8, 9, 3, 4, 11, 12, 2, 6, 10, 14, 5, 7, 13, 15]

    def kv_base(self, dst, layer_sreg_or_const, tg_add):
        a = self.a
        if isinstance(layer_sreg_or_const, str):
            a('s_lshl_b32 s%d, %s, 5' % (dst, layer_sreg_or_const))
        else:
            a('s_mov_b32 s%d, %d' % (dst, layer_sreg_or_const * 32))
        a('s_lshl_b32 s%d, s%d, 1' % (sT + 1, sTG))
        a('s_add_u32 s%d, s%d, s%d' % (dst, dst, sT + 1))
        a('s_add_u32 s%d, s%d, s%d' % (dst, dst, sP))
        a('s_lshl_b32 s%d, s%d, 4' % (dst, dst))
        a('s_add_u32 s%d, s%d, s%d' % (dst, dst, sHG))
        a('s_mul_i32 s%d, s%d, %d' % (dst, dst, KVT))
        a('s_add_u32 s%d, s%d, %d' % (dst, dst, WS_KV + tg_add * 32 * KVT))

    def kv_prefill(self, tmp):
        a = self.a
        a('v_lshlrev_b32 v%d, 4, v%d' % (tmp, vLane))
        a('s_mul_i32 s%d, s%d, 576' % (sT, sWv))
        a('v_add_u32 v%d, s%d, v%d' % (tmp, sT, tmp))
        for i in range(4):
            a('v_mov_b32 v%d, -1' % (tmp + 2 + i))
        a('s_mov_b32 s%d, 0' % sP)
        self.kv_base(sT + 2, 's%d' % sSet, 0)
        a('s_mov_b32 exec_lo, -1')
        a('s_mov_b32 exec_hi, 15')
        for l2 in range(2):
            for p_ in range(2):
                a('s_add_u32 s%d, s%d, %d' % (sT + 3, sT + 2, (l2 * 64 + p_) * 16 * KVT))
                a('buffer_store_dwordx4 %s, v%d, %s, s%d offen sc1' % (vr(tmp + 2), tmp, srd(sWS), sT + 3))
        a('s_mov_b64 exec, -1')

    def m_prep(self):
        a = self.a
        XA, TMP = 95, 40
        a('s_lshl_b32 s%d, s%d, 1' % (sN, sLayer))
        a('s_add_u32 s%d, s%d, s%d' % (sN, sN, sP))
        a('s_lshl_b32 s%d, s%d, 2' % (sG, sN))
        a('v_lshrrev_b32 v%d, 4, v%d' % (TMP, vLane))
        a('v_and_b32 v%d, 15, v%d' % (TMP + 1, vLane))
        self.swz(XA, TMP, TMP + 1, TMP + 2)
        a('v_add_u32 v%d, %d, v%d' % (XA + 1, 2 * MT, XA))
        a('v_lshlrev_b32 v%d, 3, v%d' % (TMP + 1, TMP + 1))
        a('v_lshl_add_u32 v%d, v%d, 8, v%d' % (XA + 2, TMP, TMP + 1))
        a('v_add_u32 v%d, 16384, v%d' % (XA + 2, XA + 2))

    def pub_pending(self, tmp, soft=False):
        a = self.a
        Ln = a.uid('Lnopub')
        a('s_cmp_eq_u32 s%d, 0' % sPub)
        if soft:
            a.softbranch('s_cbranch_scc1 %s' % Ln)
        else:
            a('s_cbranch_scc1 %s' % Ln)
        a('s_mov_b32 s%d, 0' % sPub)
        a('s_mov_b32 s%d, 0' % sP)
        self.both_modes(lambda sc: self.publish_event(0, tmp, sc))
        a('s_mov_b32 s%d, 1' % sP)
        a.label(Ln, noflush=soft)

    def m_role(self):
        a = self.a
        a.label('L_M_ROLE')
        a('s_mov_b32 s%d, 0' % sP)
        a.label('L_M_TASK')
        self.m_prep()
        a.label('L_M_GO')
        Lown = a.uid('Lown')
        a('s_cmp_eq_u32 s%d, 0' % sOwn)
        a('s_cbranch_scc1 %s' % Lown)
        a('s_waitcnt vmcnt(15)')
        self.set_flag(F_XR, sG, 40, add=1)
        a.label(Lown)
        self.kv_base(sBase, 's%d' % sLayer, 0)
        a('s_sub_u32 s%d, s%d, %d' % (sBase2, sBase, 32 * KVT))
        a('s_add_u32 s%d, s%d, 1' % (sT + 7, sG))
        Lrdy = a.uid('Lrdy')
        a('ds_read_b128 %s, v%d offset:%d' % (vr(40), vFlag, F_XR))
        a('s_waitcnt lgkmcnt(0)')
        self.flag_min(40)
        a('s_nop 1')
        a('s_cmp_ge_u32 s%d, s%d' % (sT + 8, sT + 7))
        a('s_cbranch_scc1 %s' % Lrdy)
        self.pub_pending(44)
        self.wait_flag(F_XR, sT + 7, 40, 1)
        a.label(Lrdy)
        if True:
            a('s_setprio 0')
        self.tr(11)
        for w in range(1, 4):
            a('s_cmp_eq_u32 s%d, %d' % (sWv, w))
            a('s_cbranch_scc1 L_A_W%d' % w)
        for w in range(4):
            a.label('L_A_W%d' % w)
            self.a_phase(w)
            if w < 3:
                a('s_branch L_M_EPI')
        a.label('L_M_EPI')
        if True:
            a('s_setprio %s' % '2')
        self.tr(12)
        self.attention()
        self.tr(15)
        a('s_add_u32 s%d, s%d, 1' % (sP, sP))
        a('s_cmp_lt_u32 s%d, 2' % sP)
        a('s_cbranch_scc1 L_M_TASK')
        a('s_mov_b32 s%d, 1' % sP)
        a('s_branch L_BPHASE')

    def a_phase(self, w):
        a = self.a
        ORDER = self.ORDER
        ACC = lambda s, t: (s * 2 + t) * 4
        G0, FL = 32, 36
        NB = 8
        RB = lambda i: 40 + 4 * (i % NB)
        QB, BPA, T3 = 72, 73, 74
        KD, KA = 76, 88
        XA = 95
        XT = 98
        LT = 99
        lds = []

        def L(tag, text):
            a(text)
            lds.append(tag)

        def wait_for(tag):
            idx = max(i for i, t in enumerate(lds) if t == tag)
            a('s_waitcnt lgkmcnt(%d)' % min(len(lds) - 1 - idx, 15))
        I = lambda text: (lambda: a(text))
        seq = [(u, ks) for u in range(4) for ks in range(18)]

        def rd(i):
            u, ks = seq[i]
            mt = ORDER[u]
            if ks < 16:
                L(('r', i), 'ds_read_b128 %s, v%d offset:%d' % (vr(RB(i)), XA + (mt >> 1), (mt & 1) * MT + ks * 1024))
            else:
                o = 128 * (ks - 16)
                L(('r', i), 'ds_read2_b64 %s, v%d offset0:%d offset1:%d' % (vr(RB(i)), XT, o, o + 16))
        PF = NB - 1
        chains = []

        def put(step, fns, deadline=10 ** 9):
            chains.append([step, deadline, list(fns)])

        def chk(off, tgt_fn, tag, code):
            def fin():
                Lok = a.uid('Lck')
                a('s_cmp_ge_u32 s%d, s%d' % (sT + 8, sT + 7))
                a.softbranch('s_cbranch_scc1 %s' % Lok)
                self.wait_flag(off, sT + 7, FL, code)
                a.label(Lok, noflush=True)
            return [lambda: L(tag, 'ds_read_b128 %s, v%d offset:%d' % (vr(FL), vFlag, off)),
                    I('s_nop 0'), I('s_nop 0'), I('s_nop 0'), tgt_fn,
                    lambda: (wait_for(tag), a('v_min3_u32 v%d, v%d, v%d, v%d' % (FL, FL, FL + 1, FL + 2))),
                    I('v_min_u32 v%d, v%d, v%d' % (FL, FL, FL + 3)),
                    I('s_nop 0'),
                    I('v_readfirstlane_b32 s%d, v%d' % (sT + 8, FL)),
                    I('s_nop 0'), fin]

        def setf_items(off, val, add, own_vm=None):
            def fin():
                if own_vm is None:
                    L('f', 'ds_write_b32 v%d, v%d offset:%d' % (vFlag, LT, off + 4 * w))
                else:
                    Lo = a.uid('Lop')
                    a('s_cmp_eq_u32 s%d, 0' % sOwn)
                    a.softbranch('s_cbranch_scc1 %s' % Lo)
                    a('s_waitcnt vmcnt(%d)' % own_vm)
                    a('ds_write_b32 v%d, v%d offset:%d' % (vFlag, LT, off + 4 * w))
                    a.label(Lo, noflush=True)
            return [I('s_add_u32 s%d, s%d, %d' % (sT + 6, val, add)),
                    I('v_mov_b32 v%d, s%d' % (LT, sT + 6)), fin]

        def epi_items(s):
            mt = ORDER[s]
            nm = T3
            it = [lambda: L(('m', s), 'ds_bpermute_b32 v%d, v%d, v%d' % (nm, BPA, ACC(s, 0) + 2))]
            G = G0
            if s == w:
                it += [I('v_add_u32 v%d, 0x%x, v%d' % (G + 2, L_ST + 64 * (mt + 1) - 192, BPA))]
            it.append(lambda: (wait_for(('m', s)), a('v_mul_f32 v%d, 0xbae38e39, v%d' % (nm, nm))))
            for t in range(2):
                for r in range(4):
                    it.append(I('v_fma_f32 v%d, v%d, v%d, v%d' % (ACC(s, t) + r, nm, vCS + 4 * t + r, ACC(s, t) + r)))
            for r in range(4):
                it.append(I('v_cvt_pk_bf16_f32 v%d, v%d, v%d' % (ACC(s, 0) + r, ACC(s, 0) + r, ACC(s, 1) + r)))
            if s == 0 and w > 0:
                def kvst():
                    a('s_mov_b32 exec_lo, 0xff00ff00')
                    a('s_mov_b32 exec_hi, 0xff00ff00')
                    a('buffer_store_dwordx4 %s, v%d, %s, s%d offen sc1' % (vr(ACC(0, 0)), KA, srd(sWS), sBase))
                    a('s_mov_b64 exec, -1')
                it.append(kvst)
            it.append(lambda: L('w', 'ds_write_b128 v%d, %s offset:%d' % (QB, vr(ACC(s, 0)), 16 * (mt + 1) * QP)))
            if s == w:
                def wr():
                    a('s_mov_b64 exec, 0xffff')
                    L('w', 'ds_write_b32 v%d, v%d' % (G + 2, G))
                    if w == 0:
                        a('s_mov_b64 exec, 0xff00')
                        a('buffer_store_dword v%d, v%d, %s, s%d offen offset:%d sc1' % (G, BPA, srd(sWS), sBase, 2048 - 192 - 32))
                    a('s_mov_b64 exec, -1')
                it += [I('v_fma_f32 v%d, -v%d, v%d, v%d' % (G, nm, nm, G)),
                       I('v_max_f32 v%d, 0, v%d' % (G, G)),
                       I('v_add_f32 v%d, 0x3727c5ac, v%d' % (G, G)),
                       I('v_rsq_f32 v%d, v%d' % (G, G)),
                       wr]
            return it
        pre = [I('v_and_b32 v%d, 15, v%d' % (T3, vLane)),
               I('v_add_u32 v%d, 48, v%d' % (BPA, T3)),
               I('v_lshlrev_b32 v%d, 2, v%d' % (BPA, BPA)),
               I('v_lshrrev_b32 v%d, 4, v%d' % (T3 + 1, vLane)),
               I('v_lshlrev_b32 v%d, 3, v%d' % (T3 + 1, T3 + 1)),
               I('s_mov_b32 s%d, 0x%x' % (sT + 5, sum((16 * self.UNIT[(3 * w + a_) if a_ < 3 else 12 + w]) << (8 * a_) for a_ in range(4)))),
               I('v_bfe_u32 v%d, s%d, v%d, 8' % (QB, sT + 5, T3 + 1))]
        if w > 0:
            pre += [I('v_and_b32 v%d, 7, v%d' % (KA, vLane)),
                    I('v_lshl_add_u32 v%d, v%d, 8, v%d' % (KA, KA, QB))]
        pre += [I('v_mul_u32_u24 v%d, %d, v%d' % (T3, QP, T3)),
                I('v_add_u32 v%d, 0x%x, v%d' % (T3, L_QKV, T3)),
                I('v_add_u32 v%d, v%d, v%d' % (QB, QB, T3))]
        put(0, pre, 10)
        put(int(os.environ.get('PUBSTEP', 5)), [lambda: self.pub_pending(92, soft=True)], int(os.environ.get('PUBSTEP', 5)))
        G = G0
        put(18 * w + 6, [I('v_lshrrev_b32 v%d, 4, v%d' % (G, vLane)),
                         I('v_lshl_add_u32 v%d, v%d, 8, v%d' % (G, G, BPA)),
                         I('v_add_u32 v%d, 0x%x, v%d' % (G, ORDER[w] * MT + 18432 - 192, G)),
                         lambda: L('s2', 'ds_read2_b32 %s, v%d offset0:32 offset1:48' % (vr(G + 2, 2), G)),
                         lambda: L('s1', 'ds_read2_b32 %s, v%d offset0:0 offset1:16' % (vr(G, 2), G)),
                         I('s_nop 0'), I('s_nop 0'), I('s_nop 0'),
                         lambda: (wait_for('s1'), a('v_add_f32 v%d, v%d, v%d' % (G, G, G + 1))),
                         I('v_add_f32 v%d, v%d, v%d' % (G + 2, G + 2, G + 3)),
                         I('v_add_f32 v%d, v%d, v%d' % (G, G, G + 2)),
                         I('v_mov_b32 v%d, v%d' % (G + 1, G)),
                         I('v_permlane32_swap_b32 v%d, v%d' % (G, G + 1)),
                         I('v_add_f32 v%d, v%d, v%d' % (G, G, G + 1)),
                         I('v_mov_b32 v%d, v%d' % (G + 1, G)),
                         I('v_permlane16_swap_b32 v%d, v%d' % (G, G + 1)),
                         I('v_add_f32 v%d, v%d, v%d' % (G, G, G + 1)),
                         I('v_mul_f32 v%d, 0x3ae38e39, v%d' % (G, G))], 18 * w + 17)
        for k in range(1, 4):
            st = 18 * k - PF - 1
            put(6 * k - 5, setf_items(F_XR, sG, k + 1, own_vm=15 - 5 * k), 6 * k - 2)
            put(st - 7 if k > 1 else 5,
                chk(F_XR, I('s_add_u32 s%d, s%d, %d' % (sT + 7, sG, k + 1)), ('xr', k), 2), st)
        put(11, chk(F_QF, I('s_mov_b32 s%d, s%d' % (sT + 7, sN)), 'qf', 3), 17)
        for s_ in range(3):
            put(18 * (s_ + 1) + 3, epi_items(s_), (27 if s_ == 0 else 56) if s_ < 2 else 71)
        if w == 0:
            def kvld():
                a('buffer_load_dwordx4 %s, v%d, %s, s%d offen sc1' % (vr(KD), KA, srd(sWS), sBase2))
                a('buffer_load_dwordx4 %s, v%d, %s, s%d offen offset:1024 sc1' % (vr(KD + 4), KA, srd(sWS), sBase2))
                a('buffer_load_dword v%d, v%d, %s, s%d offen offset:2048 sc1' % (KD + 8, KA + 1, srd(sWS), sBase2))

            def kvaddr2():
                a('s_cmp_eq_u32 s%d, 0' % sTG)
                a('s_cselect_b64 vcc, -1, 0')
                a('v_cndmask_b32 v%d, v%d, v%d, vcc' % (KA, KA, KA + 2))
                a('v_cndmask_b32 v%d, v%d, v%d, vcc' % (KA + 1, KA + 1, KA + 2))

            def kvchk():
                Lrt, Lok, Lnf = a.uid('Lkrt'), a.uid('Lkok'), a.uid('Lknf')
                a('s_cmp_lg_u32 s%d, 0' % sN)
                a.softbranch('s_cbranch_scc1 %s' % Lnf)
                self.init_check(40)
                a('s_branch %s' % Lrt)
                a.label(Lnf, noflush=True)
                a('s_and_b64 vcc, vcc, s[%d:%d]' % (sKm, sKm + 1))
                a.softbranch('s_cbranch_scc0 %s' % Lok)
                a.label(Lrt)
                self.budget_check(5)
                kvld()
                a('s_waitcnt vmcnt(0)')
                self.sentinel_vcc(range(KD, KD + 9), FL)
                a('s_nop 1')
                a('s_and_b64 vcc, vcc, s[%d:%d]' % (sKm, sKm + 1))
                a('s_cbranch_scc1 %s' % Lrt)
                a.label(Lok, noflush=True)
            kv = [I('v_lshlrev_b32 v%d, 4, v%d' % (KA, vLane)),
                  I('v_and_b32 v%d, 7, v%d' % (KA + 1, vLane)),
                  I('v_lshlrev_b32 v%d, 2, v%d' % (KA + 1, KA + 1)),
                  I('v_add_u32 v%d, 0x%x, v%d' % (KA + 3, L_ST + 32, KA + 1)),
                  I('v_mov_b32 v%d, 0x%x' % (KA + 2, OOB)),
                  kvaddr2]
            put(30, kv, 46)
            put(60, [kvld], 60)
            kv2 = [I('v_lshrrev_b32 v%d, 4, v%d' % (KA + 2, vLane)),
                   I('v_mul_u32_u24 v%d, %d, v%d' % (KA + 2, QP, KA + 2)),
                   I('v_and_b32 v%d, 15, v%d' % (KD + 9, vLane)),
                   I('v_lshl_add_u32 v%d, v%d, 4, v%d' % (KA + 2, KD + 9, KA + 2)),
                   I('v_add_u32 v%d, 0x%x, v%d' % (KA + 2, L_QKV + 8 * QP, KA + 2))]
            put(61, kv2, 68)
            kv3 = [I('s_waitcnt vmcnt(0)'),
                   I('v_max3_u32 v%d, v%d, v%d, v%d' % (FL, KD, KD + 1, KD + 2)),
                   I('v_max3_u32 v%d, v%d, v%d, v%d' % (FL, FL, KD + 3, KD + 4)),
                   I('v_max3_u32 v%d, v%d, v%d, v%d' % (FL, FL, KD + 5, KD + 6)),
                   I('v_max3_u32 v%d, v%d, v%d, v%d' % (FL, FL, KD + 7, KD + 8)),
                   I('v_cmp_eq_u32 vcc, -1, v%d' % FL),
                   I('s_nop 0'), I('s_nop 0')]
            post = kv3 + [kvchk,
                    lambda: L('w', 'ds_write_b128 v%d, %s' % (KA + 2, vr(KD))),
                    lambda: L('w', 'ds_write_b128 v%d, %s offset:%d' % (KA + 2, vr(KD + 4), 4 * QP)),
                    lambda: L('w', 'ds_write_b32 v%d, v%d' % (KA + 3, KD + 8))]
        else:
            def ini():
                Lnf = a.uid('Lknf')
                a('s_cmp_lg_u32 s%d, 0' % sN)
                a('s_cbranch_scc1 %s' % Lnf)
                self.init_check(40)
                a.label(Lnf)
            post = [ini]
        a('v_add_u32 v%d, %d, v%d' % (XT, ORDER[0] * MT, XA + 2))
        for i in range(PF):
            rd(i)
        done_upto = [-1]

        def need(i):
            idx = max(k for k, t in enumerate(lds) if t == ('r', i))
            if idx <= done_upto[0]:
                return
            tgt = ('r', i + 1) if ('r', i + 1) in lds else ('r', i)
            idx2 = max(k for k, t in enumerate(lds) if t == tgt)
            a('s_waitcnt lgkmcnt(%d)' % min(len(lds) - 1 - idx2, 15))
            done_upto[0] = idx2

        def fill(step, n):
            cnt = 0
            while True:
                cand = [c for c in chains if c[2] and c[0] <= step]
                if not cand:
                    return
                c = min(cand, key=lambda c: (c[1] - step) * 3 - len(c[2]))
                if cnt >= n and (c[1] - step) * 3 >= len(c[2]):
                    return
                c[2].pop(0)()
                cnt += 1
        for i in range(72):
            u, ks = seq[i]
            if os.environ.get('FINE') and ks == 0 and u > 0:
                self.tr(50 + u)
            need(i)
            a(mfma(ACC(u, 0), W(0, ks), RB(i), ks == 0))
            fill(i, 2)
            a(mfma(ACC(u, 1), W(1, ks), RB(i), ks == 0))
            used = 0
            j = i + PF
            if j < 72:
                if seq[j][1] == 16 and seq[j][0] > 0:
                    a('v_add_u32 v%d, %d, v%d' % (XT, ORDER[seq[j][0]] * MT, XA + 2))
                    used += 1
                rd(j)
                used += 1
            nxt = 0
            if i + 1 < 72:
                idx = max(k for k, t in enumerate(lds) if t == ('r', i + 1))
                nxt = 1 if idx > done_upto[0] else 0
            fill(i, max(0, 2 - used - nxt))
        for c in chains:
            for fn in c[2]:
                fn()
        a('s_mov_b32 s%d, 0' % sOwn)
        if os.environ.get('FINE'):
            self.tr(54)
        a('s_setprio 2')
        for fn in setf_items(F_XF, sN, 1) + epi_items(3):
            fn()
        a('s_waitcnt lgkmcnt(0)')
        for fn in setf_items(F_QR, sN, 1) + post:
            fn()

    def build_tables(self):
        a = self.a
        AD = 70
        T = 76
        il, hh, j, R = 84, 85, 86, 87
        SA = 88
        a('v_lshrrev_b32 v%d, 2, v%d' % (il, vLane))
        a('v_bfe_u32 v%d, v%d, 1, 1' % (hh, vLane))
        a('v_and_b32 v%d, 1, v%d' % (j, vLane))
        a('s_lshl_b32 s%d, s%d, 4' % (sT, sWv))
        a('s_add_u32 s%d, s%d, 16' % (sT, sT))
        a('v_add_u32 v%d, s%d, v%d' % (R, sT, il))
        a('v_mul_u32_u24 v%d, %d, v%d' % (T, QP, R))
        a('v_add_u32 v%d, 0x%x, v%d' % (T, L_QKV, T))
        a('v_lshl_add_u32 v%d, v%d, 7, v%d' % (AD, hh, T))
        a('v_lshl_add_u32 v%d, v%d, 2, v%d' % (AD + 1, hh, T))
        a('v_mul_u32_u24 v%d, %d, v%d' % (T + 1, 4 * QP, j))
        a('v_add_u32 v%d, %d, v%d' % (T + 1, 3 * QP, T + 1))
        a('v_sub_u32 v%d, v%d, v%d' % (AD + 2, AD, T + 1))
        a('v_sub_u32 v%d, v%d, v%d' % (AD + 3, AD + 1, T + 1))
        a('v_lshlrev_b32 v%d, 2, v%d' % (T + 2, R))
        a('v_add_u32 v%d, 0x%x, v%d' % (T + 2, L_ST, T + 2))
        a('v_lshlrev_b32 v%d, 4, v%d' % (T + 3, j))
        a('v_add_u32 v%d, 12, v%d' % (T + 3, T + 3))
        a('v_sub_u32 v%d, v%d, v%d' % (T + 3, T + 2, T + 3))
        a('v_lshl_add_u32 v%d, v%d, 6, v%d' % (AD + 4, j, AD))
        a('v_subrev_u32 v%d, %d, v%d' % (AD + 4, 7 * QP, AD + 4))
        a('v_subrev_u32 v%d, %d, v%d' % (AD + 5, 7 * QP, AD + 1))
        a('v_lshl_add_u32 v%d, v%d, 1, v%d' % (T + 4, hh, j))
        a('v_lshlrev_b32 v%d, 8, v%d' % (T + 4, T + 4))
        a('v_lshl_add_u32 v%d, v%d, 4, v%d' % (SA, il, T + 4))
        a('s_lshl_b32 s%d, s%d, 10' % (sT, sHG))
        a('v_add_u32 v%d, s%d, v%d' % (SA, sT, SA))
        a('s_lshl_b32 s%d, s%d, 7' % (sT, sHG))
        a('s_add_u32 s%d, s%d, 16384' % (sT, sT))
        a('v_lshlrev_b32 v%d, 3, v%d' % (T + 4, il))
        a('v_lshl_add_u32 v%d, v%d, 2, v%d' % (T + 4, hh, T + 4))
        a('v_add_u32 v%d, s%d, v%d' % (SA + 1, sT, T + 4))
        a('v_mov_b32 v76, v%d' % (T + 2))
        a('v_mov_b32 v77, v%d' % (T + 3))
        a('v_mov_b32 v90, v%d' % il)
        a('v_mov_b32 v91, v%d' % j)
        a('v_lshlrev_b32 v92, 4, v%d' % vLane)
        a('v_add_u32 v92, s%d, v92' % sTab)
        a('ds_write_b128 v92, %s' % vr(70))
        a('ds_write_b128 v92, %s offset:1024' % vr(74))
        a('ds_write_b128 v92, %s offset:2048' % vr(88))
        LA, LB, VT, TMP1 = 72, 73, 74, 75
        a('v_lshlrev_b32 v%d, 4, v%d' % (LA, vLane))
        a('v_add_u32 v%d, 0x%x, v%d' % (LA, L_WO, LA))
        a('v_and_b32 v%d, 3, v%d' % (LB, vLane))
        a('v_lshlrev_b32 v%d, 4, v%d' % (LB, LB))
        a('v_lshrrev_b32 v%d, 4, v%d' % (TMP1, vLane))
        a('v_lshl_add_u32 v%d, v%d, 6, v%d' % (LB, TMP1, LB))
        a('v_add_u32 v%d, 0x%x, v%d' % (LB, L_WO + 2048, LB))
        a('v_and_b32 v%d, 15, v%d' % (VT, vLane))
        a('v_lshlrev_b32 v%d, 3, v%d' % (VT, VT))
        a('v_lshl_add_u32 v%d, v%d, 8, v%d' % (VT, TMP1, VT))
        a('s_mov_b32 s%d, 0' % sP)
        self.xaddr_frag(76, 80)
        self.xaddr_nat(78, 80)
        a('ds_write_b128 v92, %s offset:3072' % vr(72))
        a('ds_write_b128 v92, %s offset:4096' % vr(76))
        a('s_waitcnt lgkmcnt(0)')

    def attention(self):
        a = self.a
        Q = 0
        K = 12
        RK = 60
        RO = 64
        S = 65
        AD = 70
        T = 76
        SA, il, j = 84, 86, 87
        a('v_lshlrev_b32 v%d, 4, v%d' % (92, vLane))
        a('v_add_u32 v%d, s%d, v%d' % (92, sTab, 92))
        a('ds_read_b128 %s, v92' % vr(70))
        a('ds_read_b128 %s, v92 offset:1024' % vr(74))
        a('ds_read_b128 %s, v92 offset:2048' % vr(84))
        a('s_mul_i32 s%d, s%d, %d' % (sBase, sLayer, LSTR))
        a('s_mul_i32 s%d, s%d, %d' % (sT, sP, TILE))
        a('s_add_u32 s%d, s%d, s%d' % (sBase, sBase, sT))
        a('s_add_u32 s%d, s%d, s%d' % (sBase, sBase, sTileW))
        a('s_add_u32 s%d, s%d, 1' % (sT + 7, sN))
        self.wait_flag(F_QR, sT + 7, 92, 4)
        self.tr(14)
        a('ds_read_b128 %s, v%d' % (vr(Q), AD))
        a('ds_read_b128 %s, v%d offset:16' % (vr(Q + 4), AD))
        a('ds_read_b32 v%d, v%d offset:80' % (Q + 8, AD + 1))
        for w in range(4):
            o = (3 - w) * QP
            a('ds_read_b128 %s, v%d offset:%d' % (vr(K + 12 * w), AD + 2, o + 48))
        for w in range(4):
            o = (3 - w) * QP
            a('ds_read_b128 %s, v%d offset:%d' % (vr(K + 12 * w + 4), AD + 2, o + 64))
        for w in range(4):
            o = (3 - w) * QP
            a('ds_read_b32 v%d, v%d offset:%d' % (K + 12 * w + 8, AD + 3, o + 112))
        a('ds_read_b32 v%d, v%d' % (RO, T))
        a('ds_read2_b32 %s, v%d offset0:0 offset1:1' % (vr(RK, 2), T + 1))
        a('ds_read2_b32 %s, v%d offset0:2 offset1:3' % (vr(RK + 2, 2), T + 1))
        a('s_waitcnt lgkmcnt(11)')
        for d in range(9):
            if d == 4:
                a('s_waitcnt lgkmcnt(7)')
            if d == 8:
                a('s_waitcnt lgkmcnt(3)')
            for w in range(4):
                c = '0' if d == 0 else 'v%d' % (S + w)
                a('v_dot2_f32_bf16 v%d, v%d, v%d, %s' % (S + w, Q + d, K + 12 * w + d, c))
        a('s_waitcnt lgkmcnt(0)')
        V = 12
        for w in range(8):
            o = (7 - w) * QP
            a('ds_read_b128 %s, v%d offset:%d' % (vr(V + 6 * w), AD + 4, o + 32))
            a('ds_read_b32 v%d, v%d offset:%d' % (V + 6 * w + 4, AD + 5, o + 208))
        c = struct.unpack('<I', struct.pack('<f', (18 ** -0.5) * 1.4426950408889634))[0]
        a('v_mul_f32 v%d, 0x%x, v%d' % (RO, c, RO))
        for w in range(4):
            a('v_mul_f32 v%d, v%d, v%d' % (S + w, S + w, RK + 3 - w))
        for w in range(4):
            a('v_mul_f32 v%d, v%d, v%d' % (S + w, S + w, RO))
        Lnm = a.uid('Lnomask')
        a('s_or_b32 s%d, s%d, s%d' % (sT, sTG, sWv))
        a('s_cmp_lg_u32 s%d, 0' % sT)
        a('s_cbranch_scc1 %s' % Lnm)
        a('v_lshlrev_b32 v%d, 2, v%d' % (T, j))
        a('v_mov_b32 v%d, 0xf149f2ca' % (T + 2))
        for w in range(4):
            a('v_add_u32 v%d, %d, v%d' % (T + 1, w, T))
            a('v_cmp_lt_u32 vcc, v%d, v%d' % (il, T + 1))
            a('v_cndmask_b32 v%d, v%d, v%d, vcc' % (S + w, S + w, T + 2))
        a.label(Lnm)
        a('v_max3_f32 v%d, v%d, v%d, v%d' % (T, S, S + 1, S + 2))
        a('v_max_f32 v%d, v%d, v%d' % (T, T, S + 3))
        a('v_cmp_eq_u32 vcc, 1, v%d' % j)
        a('v_max_f32_dpp v%d, v%d, v%d quad_perm:[1,0,3,2] row_mask:0xf bank_mask:0xf' % (T + 1, T, T))
        for w in range(4):
            a('v_sub_f32 v%d, v%d, v%d' % (S + w, S + w, T + 1))
        for w in range(4):
            a('v_exp_f32 v%d, v%d' % (S + w, S + w))
        a('v_add_f32 v%d, v%d, v%d' % (T, S, S + 1))
        a('v_add_f32 v%d, v%d, v%d' % (T + 1, S + 2, S + 3))
        a('v_add_f32 v%d, v%d, v%d' % (T, T, T + 1))
        for w in range(4):
            a('v_mul_f32 v%d, v%d, v%d' % (S + w, S + w, RK + 3 - w))
        a('v_add_f32_dpp v%d, v%d, v%d quad_perm:[1,0,3,2] row_mask:0xf bank_mask:0xf' % (T + 1, T, T))
        a('v_rcp_f32 v%d, v%d' % (T + 1, T + 1))
        for w in range(4):
            a('v_mul_f32 v%d, v%d, v%d' % (S + w, S + w, T + 1))
        a('v_cvt_pk_bf16_f32 v%d, v%d, v%d' % (T, S, S + 1))
        a('v_cvt_pk_bf16_f32 v%d, v%d, v%d' % (T + 1, S + 2, S + 3))
        a('v_mov_b32_dpp v%d, v%d quad_perm:[1,0,3,2] row_mask:0xf bank_mask:0xf' % (T + 2, T))
        a('v_mov_b32_dpp v%d, v%d quad_perm:[1,0,3,2] row_mask:0xf bank_mask:0xf' % (T + 3, T + 1))
        PP = 60
        a('v_cndmask_b32 v%d, v%d, v%d, vcc' % (PP, T, T + 2))
        a('v_cndmask_b32 v%d, v%d, v%d, vcc' % (PP + 1, T + 1, T + 3))
        a('v_cndmask_b32 v%d, v%d, v%d, vcc' % (PP + 2, T + 2, T))
        a('v_cndmask_b32 v%d, v%d, v%d, vcc' % (PP + 3, T + 3, T + 1))
        PL = 64
        for pr in range(4):
            a('v_and_b32 v%d, 0xffff, v%d' % (PL + 4 * pr, PP + pr))
            a('v_lshlrev_b32 v%d, 16, v%d' % (PL + 4 * pr + 1, PP + pr))
            a('v_lshrrev_b32 v%d, 16, v%d' % (PL + 4 * pr + 2, PP + pr))
            a('v_and_b32 v%d, 0xffff0000, v%d' % (PL + 4 * pr + 3, PP + pr))
        O = 0
        for w in range(8):
            a('s_waitcnt lgkmcnt(%d)' % (2 * (7 - w)))
            for m in range(5):
                for h in range(2):
                    c = '0' if w == 0 else 'v%d' % (O + 2 * m + h)
                    a('v_dot2_f32_bf16 v%d, v%d, v%d, %s' % (O + 2 * m + h, V + 6 * w + m, PL + 2 * w + h, c))
        for m in range(5):
            a('v_cvt_pk_bf16_f32 v%d, v%d, v%d' % (12 + m, O + 2 * m, O + 2 * m + 1))
        a('s_mov_b32 s%d, 0x55555555' % (sT + 2))
        a('s_mov_b32 s%d, 0x55555555' % (sT + 3))

        def st(sc):
            a('buffer_store_dwordx4 %s, v%d, %s, s%d offen%s' % (vr(12), SA, srd(sWS), sBase, sc))
            a('s_mov_b64 exec, s[%d:%d]' % (sT + 2, sT + 3))
            a('buffer_store_dword v16, v%d, %s, s%d offen%s' % (SA + 1, srd(sWS), sBase, sc))
            a('s_mov_b64 exec, -1')
            self.set_flag(F_QF, sN, 20, add=1)
            Ld = a.uid('Ldefer')
            a('s_mov_b32 s%d, 1' % sPub)
            a('s_cmp_eq_u32 s%d, %d' % (sP, 5 if os.environ.get('NODEFER') else 0))
            a('s_cbranch_scc1 %s' % Ld)
            a('s_mov_b32 s%d, 0' % sPub)
            self.publish_event(0, 24, sc)
            a.label(Ld)
        self.both_modes(st)

    def stage_generic(self):
        a = self.a
        TMP = 88
        AV = 84
        Lc = a.uid('Lnocs')
        a('s_cmp_eq_u32 s%d, 0' % sCs)
        a('s_cbranch_scc1 %s' % Lc)
        a('s_waitcnt vmcnt(0)')
        self.colsum(8)
        a('s_mov_b32 s%d, 0' % sCs)
        a.label(Lc)
        self.m_prep()
        Lne = a.uid('Lnoearly')
        a('s_cmp_eq_u32 s%d, 0' % sP)
        a('s_cbranch_scc1 %s' % Lne)
        a('ds_read_b128 %s, v%d offset:%d' % (vr(TMP), vFlag, F_XF))
        a('s_waitcnt lgkmcnt(0)')
        self.flag_min(TMP)
        a('s_nop 1')
        a('s_cmp_ge_u32 s%d, s%d' % (sT + 8, sN))
        a('s_cbranch_scc1 %s' % Lne)
        self.wo_stage(async_=True)
        a('s_mov_b32 s%d, 1' % sWoP)
        a.label(Lne)
        a('v_lshlrev_b32 v%d, 4, v%d' % (AV, vLane))
        a('s_sub_u32 s%d, s%d, 1' % (sT, sLayer))
        a('s_mul_i32 s%d, s%d, %d' % (sT, sT, LSTR))
        a('s_add_u32 s%d, s%d, %d' % (sT, sT, WS_X))
        a('s_mul_i32 s%d, s%d, %d' % (sT + 1, sP, TILE))
        a('s_add_u32 s%d, s%d, s%d' % (sT, sT, sT + 1))
        a('s_add_u32 s%d, s%d, s%d' % (sBase, sT, sTileW))
        a('s_sub_u32 s%d, s%d, s%d' % (sBase, sBase, sMt))
        a('s_mul_i32 s%d, s%d, 4864' % (sBase2, sWv))
        a('s_add_u32 s%d, s%d, s%d' % (sBase, sBase, sBase2))
        a('s_setprio 0')
        self.wait_flag(F_XF, sN, TMP, 6, sleep=1)
        self.tr(20)
        a('v_lshlrev_b32 v%d, 3, v%d' % (TMP + 2, vLane))
        a('s_lshl_b32 s%d, s%d, 9' % (sT + 2, sP))
        a('s_add_u32 s%d, s%d, s%d' % (sT + 2, sT + 2, sFlW))
        a('s_lshl_b32 s%d, s%d, 7' % (sT + 3, sWv))
        a('s_sub_u32 s%d, s%d, s%d' % (sT + 2, sT + 2, sT + 3))
        a('s_add_u32 s%d, s%d, 1024' % (sT + 2, sT + 2))
        a('s_add_u32 s%d, s%d, s%d' % (sT + 3, sNon, sLayer))
        a('s_mov_b64 vcc, -1')
        for k, mt in enumerate(self.ORDER):
            Lp, Lg = a.uid('Lsp'), a.uid('Lsg')
            half = 'vcc_lo' if mt < 2 else 'vcc_hi'
            msk = 0xffff << (16 * (mt & 1))
            a.label(Lp)
            a('s_and_b32 s%d, %s, 0x%x' % (sT, half, msk))
            a('s_cbranch_scc0 %s' % Lg)
            a('buffer_load_dwordx2 %s, v%d, %s, s%d offen sc1' % (vr(TMP, 2), TMP + 2, srd(sWS), sT + 2))
            self.budget_check(12)
            a('s_waitcnt vmcnt(0)')
            a('v_subrev_u32 v%d, s%d, v%d' % (TMP, sT + 3, TMP))
            a('v_xor_b32 v%d, s%d, v%d' % (TMP + 1, sNon + 1, TMP + 1))
            a('v_lshrrev_b32 v%d, 3, v%d' % (TMP, TMP))
            a('v_or_b32 v%d, v%d, v%d' % (TMP, TMP, TMP + 1))
            a('v_cmp_ne_u32 vcc, 0, v%d' % TMP)
            a('s_branch %s' % Lp)
            a.label(Lg)
            if k == 0:
                self.tr(25)
            a('s_add_u32 s%d, s%d, %d' % (sT, sBase, mt * MT))
            a('s_add_u32 s%d, s%d, %d' % (sT + 1, sBase2, mt * MT))
            a('s_mov_b32 m0, s%d' % (sT + 1))
            for k2 in range(4):
                a('buffer_load_dwordx4 v%d, %s, s%d offen offset:%d sc1 lds' % (AV, srd(sWS), sT, k2 * 1024))
            a('s_add_u32 s%d, s%d, 4096' % (sT, sT))
            a('s_add_u32 s%d, s%d, 4096' % (sT + 1, sT + 1))
            a('s_mov_b32 m0, s%d' % (sT + 1))
            a('s_mov_b32 exec_hi, 0xffff')
            a('buffer_load_dwordx4 v%d, %s, s%d offen sc1 lds' % (AV, srd(sWS), sT))
            a('s_mov_b32 exec_hi, -1')
        a('s_mov_b32 s%d, 1' % sOwn)
        a('s_cmp_eq_u32 s%d, 0' % sP)
        a('s_cbranch_scc1 L_M_GO')
        a('s_mov_b32 s%d, 0' % sOwn)
        a('s_waitcnt vmcnt(10)')
        self.set_flag(F_XR, sG, TMP, add=2)
        Lw1, Lw2 = a.uid('Lwe'), a.uid('Lwf')
        a('s_cmp_lg_u32 s%d, 0' % sWoP)
        a('s_cbranch_scc1 %s' % Lw1)
        self.wo_stage(async_=True)
        a('s_waitcnt vmcnt(11)')
        a('s_branch %s' % Lw2)
        a.label(Lw1)
        a('s_waitcnt vmcnt(0)')
        a.label(Lw2)
        self.set_flag(F_XR, sG, TMP, add=4)
        a('s_mov_b32 s%d, 1' % sWoP)
        self.tr(24)

    def stage_input_issue(self):
        a = self.a
        AV, LV, AT, LT_ = 84, 85, 86, 87
        TMP = 88
        a('s_mov_b32 s%d, s%d' % (sN, sP))
        a('s_lshl_b32 s%d, s%d, 2' % (sG, sN))
        a('v_lshrrev_b32 v%d, 2, v%d' % (TMP + 1, vLane))
        a('v_and_b32 v%d, 3, v%d' % (TMP, vLane))
        self.swz(LV, TMP, TMP + 1, TMP + 2)
        a('v_add_u32 v%d, s%d, v%d' % (LV, sMt, LV))
        a('s_lshl_b32 s%d, s%d, 7' % (sT, sTG))
        a('s_add_u32 s%d, s%d, s%d' % (sT, sT, sP))
        a('s_lshl_b32 s%d, s%d, 5' % (sT + 1, sWv))
        a('s_add_u32 s%d, s%d, s%d' % (sT + 1, sT + 1, sT))
        a('s_mul_i32 s%d, s%d, 1152' % (sT + 1, sT + 1))
        a('v_mul_u32_u24 v%d, 2304, v%d' % (TMP + 2, TMP + 1))
        a('v_add_u32 v%d, s%d, v%d' % (TMP + 2, sT + 1, TMP + 2))
        a('v_lshl_add_u32 v%d, v%d, 4, v%d' % (AV, TMP, TMP + 2))
        a('v_mul_u32_u24 v%d, 72, v%d' % (AT, TMP))
        a('v_add_u32 v%d, v%d, v%d' % (AT, AT, TMP + 2))
        a('v_lshlrev_b32 v%d, 7, v%d' % (LT_, TMP))
        a('v_lshl_add_u32 v%d, v%d, 3, v%d' % (LT_, TMP + 1, LT_))
        a('v_add_u32 v%d, s%d, v%d' % (LT_, sMt, LT_))
        for ks in range(16):
            a('buffer_load_dwordx4 %s, v%d, %s, 0 offen offset:%d' % (vr(4 * ks), AV, srd(sIN), 72 * ks))
        for c in range(4):
            a('buffer_load_dwordx2 %s, v%d, %s, 0 offen offset:%d' % (vr(64 + 2 * c, 2), AT, srd(sIN), 288 * c + 64))

    def stage_input_finish(self, extra_after=0, last_extra=0):
        a = self.a
        AV, LV, AT, LT_ = 84, 85, 86, 87
        TMP = 88
        self.wait_flag(F_XF, sN, TMP, 6)
        rem = [14, 8, 0]
        for seg in range(3):
            a('s_waitcnt vmcnt(%d)' % (rem[seg] + (extra_after if seg < 2 else last_extra)))
            if seg == 0:
                self.tr(21)
            for ks in range(6 * seg, min(6 * seg + 6, 16)):
                a('ds_write_b128 v%d, %s offset:%d' % (LV, vr(4 * ks), ks * 1024))
            if seg == 2:
                for c in range(4):
                    a('ds_write_b64 v%d, %s offset:%d' % (LT_, vr(64 + 2 * c, 2), 16384 + 512 * c))
        for i in range(72):
            a('v_dot2_f32_bf16 v%d, v%d, v%d, %s' % (TMP + (i & 1), i, i, '0' if i < 2 else 'v%d' % (TMP + (i & 1))))
        a('v_add_f32 v%d, v%d, v%d' % (TMP, TMP, TMP + 1))
        a('v_mov_b32 v%d, 0' % (TMP + 1))
        a('v_subrev_u32 v%d, s%d, v%d' % (TMP + 2, sMt, LT_))
        a('v_lshrrev_b32 v%d, 1, v%d' % (TMP + 2, TMP + 2))
        a('v_add_u32 v%d, s%d, v%d' % (TMP + 2, sMt, TMP + 2))
        a('ds_write_b32 v%d, v%d offset:18432' % (TMP + 2, TMP))
        for c in range(1, 4):
            a('ds_write_b32 v%d, v%d offset:%d' % (TMP + 2, TMP + 1, 18432 + 256 * c))
        a('s_waitcnt lgkmcnt(0)')
        self.set_flag(F_XR, sG, TMP, add=4)
        self.tr(24)

    def hb_addr(self, d, tmp):
        a = self.a
        a('v_and_b32 v%d, 7, v%d' % (tmp, vLane))
        a('v_lshrrev_b32 v%d, 4, v%d' % (tmp + 1, vLane))
        a('v_lshlrev_b32 v%d, 4, v%d' % (d, tmp))
        a('v_lshl_add_u32 v%d, v%d, 7, v%d' % (d, tmp + 1, d))
        a('s_lshl_b32 s%d, s%d, 9' % (sT, sHG))
        a('v_add_u32 v%d, s%d, v%d' % (d, sT, d))
        a('s_lshl_b32 s%d, s%d, 6' % (sT, sHG))
        a('s_add_u32 s%d, s%d, 8192' % (sT, sT))
        a('v_lshlrev_b32 v%d, 3, v%d' % (d + 1, tmp))
        a('v_add_u32 v%d, s%d, v%d' % (d + 1, sT, d + 1))

    def hb_store(self, d, data, soff):
        a = self.a
        a('s_mov_b32 s%d, 0xff00ff00' % (sT + 4))
        a('s_mov_b32 s%d, 0xff00ff00' % (sT + 5))
        a('s_mov_b64 exec, s[%d:%d]' % (sT + 4, sT + 5))
        a('buffer_store_dwordx4 %s, v%d, %s, s%d offen sc1' % (vr(data), d, srd(sWS), soff))
        a('s_mov_b64 exec, 0xff00')
        a('buffer_store_dwordx2 %s, v%d, %s, s%d offen sc1' % (vr(data + 4, 2), d + 1, srd(sWS), soff))
        a('s_mov_b64 exec, -1')

    def hb_base(self, dst, layer_add):
        a = self.a
        a('s_add_u32 s%d, s%d, %d' % (dst, sLayer, layer_add))
        a('s_lshl_b32 s%d, s%d, 5' % (dst, dst))
        a('s_lshl_b32 s%d, s%d, 1' % (sT + 1, sTG))
        a('s_add_u32 s%d, s%d, s%d' % (dst, dst, sT + 1))
        a('s_add_u32 s%d, s%d, s%d' % (dst, dst, sP))
        a('s_mul_i32 s%d, s%d, %d' % (dst, dst, HBT))
        a('s_add_u32 s%d, s%d, %d' % (dst, dst, WS_HB))

    def bphase(self):
        a = self.a
        NS = 12
        ACC = 48
        WB = [60, 72, 84]
        LA, LB, VT, TMP1 = 96, 97, 98, 99
        slot = lambda ks: 4 * (ks % NS)
        a('s_mul_i32 s%d, s%d, %d' % (sBase, sLayer, LSTR))
        a('s_mul_i32 s%d, s%d, %d' % (sT, sP, TILE))
        a('s_add_u32 s%d, s%d, s%d' % (sBase, sBase, sT))
        a('s_add_u32 s%d, s%d, s%d' % (sBase, sBase, sTileW))
        a('v_lshlrev_b32 v100, 4, v%d' % vLane)
        a('v_add_u32 v100, s%d, v100' % sTab)
        a('ds_read_b128 %s, v100 offset:3072' % vr(96))
        a('s_waitcnt lgkmcnt(0)')

        def wreads(ks):
            b = WB[ks % 3]
            a('ds_read_b128 %s, v%d offset:%d' % (vr(b), LA, ks * 2304))
            a('ds_read_b128 %s, v%d offset:%d' % (vr(b + 4), LA, ks * 2304 + 1024))
            a('ds_read_b128 %s, v%d offset:%d' % (vr(b + 8), LB, ks * 2304))
        def wread1(ks, t):
            b = WB[ks % 3]
            if t < 2:
                a('ds_read_b128 %s, v%d offset:%d' % (vr(b + 4 * t), LA, ks * 2304 + 1024 * t))
            else:
                a('ds_read_b128 %s, v%d offset:%d' % (vr(b + 8), LB, ks * 2304))
        self.tr(40)
        def hook():
            Lwp = a.uid('Lwop')
            a('s_cmp_eq_u32 s%d, 0' % sWoP)
            a('s_cbranch_scc1 %s' % Lwp)
            self.set_flag(F_WR, sLayer, WB[0], add=1)
            a('s_mov_b32 s%d, 0' % sWoP)
            a.label(Lwp)
        self.poll_event(0, 0, ACC, 13, hook=hook)
        self.tr(44)
        issued = []

        def oload(ks):
            if ks < 16:
                if ks % 4 == 0:
                    a('s_add_u32 s%d, s%d, %d' % (sT + 2, sBase, WS_PAD + ks * 1024 - L_WO))
                a('buffer_load_dwordx4 %s, v%d, %s, s%d offen offset:%d sc1' %
                  (vr(slot(ks)), LA, srd(sWS2), sT + 2, (ks % 4) * 1024))
                issued.append(ks)
            else:
                a('s_add_u32 s%d, s%d, 16384' % (sT + 3, sBase))
                a('buffer_load_dwordx2 %s, v%d, %s, s%d offen offset:%d sc1' %
                  (vr(slot(ks), 2), VT, srd(sWS), sT + 3, (ks - 16) * 1024))
                a('buffer_load_dwordx2 %s, v%d, %s, s%d offen offset:%d sc1' %
                  (vr(slot(ks) + 2, 2), VT, srd(sWS), sT + 3, (ks - 16) * 1024 + 128))
                issued.extend([ks, ks])
        for ks in range(NS):
            oload(ks)
        a('s_add_u32 s%d, s%d, 1' % (sT + 7, sLayer))
        self.wait_flag(F_WR, sT + 7, WB[0], 10)
        for ks in range(3):
            wreads(ks)
        RES = 24
        RA = 32
        for ks in range(18):
            last = max(i for i, t in enumerate(issued) if t == ks)
            a('s_waitcnt vmcnt(%d) lgkmcnt(%d)' % (len(issued) - 1 - last, 3 * min(2, 17 - ks)))
            if ks == 0:
                self.tr(41)
            for t in range(3):
                a(mfma(ACC + 4 * t, WB[ks % 3] + 4 * t, slot(ks), ks == 0))
                if ks + 3 < 18:
                    wread1(ks + 3, t)
            if ks + NS < 18:
                oload(ks + NS)
            if ks == 9:
                a('ds_read_b128 %s, v100 offset:4096' % vr(RA))
            if ks == 10:
                L0, L1 = a.uid('Lres0'), a.uid('Lres1')
                a('s_add_u32 s%d, s%d, %d' % (sBase2, sBase, WS_X))
                a('s_mul_i32 s%d, s%d, 1152' % (sT + 4, sP))
                a('s_waitcnt lgkmcnt(3)')
                a('s_cmp_eq_u32 s%d, 0' % sLayer)
                a.softbranch('s_cbranch_scc1 %s' % L0)
                a('buffer_load_dwordx4 %s, v%d, %s, s%d offen sc1' % (vr(RES), RA, srd(sWS), sBase2))
                a('buffer_load_dwordx2 %s, v%d, %s, s%d offen sc1' % (vr(RES + 4, 2), RA + 1, srd(sWS), sBase2))
                a.softbranch('s_branch %s' % L1)
                a.label(L0, noflush=True)
                a('buffer_load_dwordx4 %s, v%d, %s, s%d offen' % (vr(RES), RA + 2, srd(sIN), sT + 4))
                a('buffer_load_dwordx2 %s, v%d, %s, s%d offen' % (vr(RES + 4, 2), RA + 3, srd(sIN), sT + 4))
                a.label(L1, noflush=True)
                issued.extend(['r', 'r'])
        self.tr(42)
        E = 0
        U = 60
        pairs = [(ACC + r, ACC + 4 + r) for r in range(4)] + [(ACC + 8, ACC + 9), (ACC + 10, ACC + 11)]
        if os.environ.get('ONEROUND'):
            a('s_waitcnt vmcnt(0)')
            for m in range(6):
                a('v_lshlrev_b32 v%d, 16, v%d' % (U + 2 * m, RES + m))
                a('v_and_b32 v%d, 0xffff0000, v%d' % (U + 1 + 2 * m, RES + m))
            for m, (x0, x1) in enumerate(pairs):
                a('v_add_f32 v%d, v%d, v%d' % (U + 2 * m, U + 2 * m, x0))
                a('v_add_f32 v%d, v%d, v%d' % (U + 1 + 2 * m, U + 1 + 2 * m, x1))
            for m in range(6):
                a('v_cvt_pk_bf16_f32 v%d, v%d, v%d' % (E + m, U + 2 * m, U + 1 + 2 * m))
        else:
            for m, (x0, x1) in enumerate(pairs):
                a('v_cvt_pk_bf16_f32 v%d, v%d, v%d' % (E + m, x0, x1))
            a('s_waitcnt vmcnt(0)')
            for m in range(6):
                a('v_lshlrev_b32 v%d, 16, v%d' % (U + 2 * m, E + m))
                a('v_and_b32 v%d, 0xffff0000, v%d' % (U + 1 + 2 * m, E + m))
                a('v_lshlrev_b32 v%d, 16, v%d' % (U + 12 + 2 * m, RES + m))
                a('v_and_b32 v%d, 0xffff0000, v%d' % (U + 13 + 2 * m, RES + m))
            for m in range(12):
                a('v_add_f32 v%d, v%d, v%d' % (U + m, U + m, U + 12 + m))
            for m in range(6):
                a('v_cvt_pk_bf16_f32 v%d, v%d, v%d' % (E + m, U + 2 * m, U + 1 + 2 * m))
        L0, L1 = a.uid('Lst0'), a.uid('Lst1')
        a('s_cmp_eq_u32 s%d, %d' % (sLayer, self.nlayers - 1))
        a('s_cbranch_scc1 %s' % L0)

        def st(sc):
            a('buffer_store_dwordx4 %s, v32, %s, s%d offen%s' % (vr(E), srd(sWS), sBase2, sc))
            a('s_mov_b64 exec, 0xffff')
            a('buffer_store_dwordx2 %s, v33, %s, s%d offen%s' % (vr(E + 4, 2), srd(sWS), sBase2, sc))
            a('s_mov_b64 exec, -1')
            for m in range(4):
                a('v_dot2_f32_bf16 v8, v%d, v%d, %s' % (E + m, E + m, '0' if m == 0 else 'v8'))
            a('v_dot2_f32_bf16 v10, v%d, v%d, 0' % (E + 4, E + 4))
            a('v_dot2_f32_bf16 v10, v%d, v%d, v10' % (E + 5, E + 5))
            a('v_lshrrev_b32 v11, 1, v33')
            a('v_mov_b32 v9, v8')
            a('v_permlane32_swap_b32 v8, v9')
            a('v_add_f32 v8, v8, v9')
            a('v_mov_b32 v9, v8')
            a('v_permlane16_swap_b32 v8, v9')
            a('v_add3_f32 v8, v8, v9, v10') if False else None
            a('v_add_f32 v8, v8, v9')
            a('v_add_f32 v8, v8, v10')
            a('s_add_u32 s%d, s%d, %d' % (sT + 2, sBase2, 18432 - 8192))
            a('s_mov_b64 exec, 0xffff')
            a('buffer_store_dword v8, v11, %s, s%d offen%s' % (srd(sWS), sT + 2, sc))
            a('s_mov_b64 exec, -1')
            self.publish_event(2, 44, sc)
        self.both_modes(st)
        a('s_branch %s' % L1)
        a.label(L0)
        OSC = os.environ.get('OUTSC', '')
        a('buffer_store_dwordx4 %s, v34, %s, s%d offen %s' % (vr(E), srd(sOUT), sT + 4, OSC))
        a('s_mov_b64 exec, 0xffff')
        a('buffer_store_dwordx2 %s, v35, %s, s%d offen %s' % (vr(E + 4, 2), srd(sOUT), sT + 4, OSC))
        a('s_mov_b64 exec, -1')
        a.label(L1)
        a('s_lshl_b32 s%d, s%d, 4' % (sT, sP))
        a('s_lshl_b32 s%d, s%d, 2' % (sT + 1, sWv))
        a('s_sub_u32 s%d, s%d, s%d' % (sT, sT + 1, sT))
        a('v_add_u32 v60, s%d, v%d' % (sT, vFlag))
        a('s_add_u32 s%d, s%d, 1' % (sT, sLayer))
        a('v_mov_b32 v61, s%d' % sT)
        a('ds_write_b32 v60, v61 offset:%d' % F_WG)
        self.tr(43)

    def xaddr_frag(self, d, tmp):
        a = self.a
        a('v_lshrrev_b32 v%d, 4, v%d' % (tmp, vLane))
        a('v_and_b32 v%d, 15, v%d' % (tmp + 1, vLane))
        self.swz(d, tmp, tmp + 1, tmp + 2)
        a('s_lshl_b32 s%d, s%d, 10' % (sT, sHG))
        a('v_add_u32 v%d, s%d, v%d' % (d, sT, d))
        a('s_lshl_b32 s%d, s%d, 7' % (sT, sHG))
        a('s_add_u32 s%d, s%d, 16384' % (sT, sT))
        a('v_lshlrev_b32 v%d, 3, v%d' % (tmp + 1, tmp + 1))
        a('v_add_u32 v%d, s%d, v%d' % (d + 1, sT, tmp + 1))

    def xaddr_nat(self, d, tmp):
        a = self.a
        a('s_lshl_b32 s%d, s%d, 7' % (sT, sTG))
        a('s_add_u32 s%d, s%d, s%d' % (sT, sT, sP))
        a('s_lshl_b32 s%d, s%d, 5' % (sT + 1, sWv))
        a('s_add_u32 s%d, s%d, s%d' % (sT, sT, sT + 1))
        a('s_mul_i32 s%d, s%d, 1152' % (sT, sT))
        a('s_mul_i32 s%d, s%d, 72' % (sT + 1, sHG))
        a('s_add_u32 s%d, s%d, s%d' % (sT, sT, sT + 1))
        a('v_and_b32 v%d, 15, v%d' % (tmp, vLane))
        a('v_mul_u32_u24 v%d, 2304, v%d' % (tmp, tmp))
        a('v_add_u32 v%d, s%d, v%d' % (tmp, sT, tmp))
        a('v_add_u32 v%d, 64, v%d' % (d + 1, tmp))
        a('v_lshrrev_b32 v%d, 4, v%d' % (tmp + 1, vLane))
        a('v_lshl_add_u32 v%d, v%d, 4, v%d' % (d, tmp + 1, tmp))

    def build(self):
        a = self.a
        self.prologue()
        a('s_cmp_eq_u32 s%d, 0' % sSet)
        a('s_cbranch_scc0 L_H0')
        if not os.environ.get('DIRECTA'):
            self.wload_addr(0, 1, 2)
            self.coop_issue(0, 1)
            self.wou_issue(16, 24)
            self.kv_prefill(32)
            a('s_waitcnt vmcnt(12)')
            self.tr(5)
            self.coop_store(2)
            a('s_waitcnt vmcnt(2)')
            self.wou_store(16, 24)
            self.get_nonce(8)
            self.coop_flag(12)
            self.wou_flag(8)
            a('s_mov_b32 s%d, 1' % (sT + 7))
            self.set_flag(F_XH, sT + 7, 12)
            self.tr(6)
            a('s_mov_b32 s%d, 0' % sP)
            self.stage_input_issue()
            self.stage_input_finish()
            self.coop_load(0)
            self.colsum(8, progressive=True)
        else:
            self.wload_addr(99, 100, 92)
            self.kv_prefill(80)
            self.wou_issue(72, 92)
            self.stage_input_issue()
            self.wload_issue(range(0, 18), 99, 100)
            self.tr(5)
            self.stage_input_finish(extra_after=49, last_extra=63)
            self.wou_store(72, 92)
            self.ones_mask(2, 3)
            self.get_nonce(8)
            self.wou_flag(8)
            self.tr(6)
            self.wload_perm(range(18), 2, 4)
            self.colsum(8)
        a('s_mov_b32 s%d, 2' % (sT + 7))
        self.set_flag(F_XH, sT + 7, 12)
        self.tr(2)
        a('s_branch L_M_ROLE')
        a.label('L_H0')
        Ln, Lp = a.uid('Lnn'), a.uid('Lpf0')
        a('s_cmp_lg_u32 s2, 0')
        a('s_cbranch_scc1 %s' % Ln)
        a('s_cmp_lg_u32 s%d, 0' % sWv)
        a('s_cbranch_scc1 %s' % Ln)
        a('s_memrealtime s[%d:%d]' % (sNon, sNon + 1))
        a('s_waitcnt lgkmcnt(0)')
        a('s_or_b32 s%d, s%d, 1' % (sNon, sNon))
        a('s_or_b32 s%d, s%d, 1' % (sNon + 1, sNon + 1))
        a('v_mov_b32 v72, s%d' % sNon)
        a('v_mov_b32 v73, s%d' % (sNon + 1))
        a('v_mov_b32 v74, 0')
        a('buffer_store_dwordx2 v[72:73], v74, %s, 0 offen sc1' % srd(sDBG))
        a.label(Ln)
        self.wload_addr(99, 100, 92)
        self.coop_issue(99, 100)
        self.wou_issue(72, 92)
        self.kv_prefill(80)
        a('s_waitcnt vmcnt(4)')
        self.tr(5)
        self.coop_store(vCS)
        self.wou_store(72, 92)
        self.get_nonce(72)
        a('s_mov_b32 s%d, 1' % (sT + 7))
        self.set_flag(F_XH + 16, sT + 7, 72)
        Lf = a.uid('Lif')
        a('s_cmp_lg_u32 s%d, 3' % sWv)
        a('s_cbranch_scc1 %s' % Lf)
        self.wait_flag(F_XH, sT + 7, 72, 18)
        self.wait_flag(F_XH + 16, sT + 7, 72, 19)
        a('s_lshl_b32 s%d, s%d, 4' % (sT, sTG))
        a('s_add_u32 s%d, s%d, s%d' % (sT, sT, sHG))
        a('s_lshl_b32 s%d, s%d, 4' % (sT, sT))
        a('s_add_u32 s%d, s%d, %d' % (sT, sT, WS_INI))
        a('v_mov_b32 v72, s%d' % sNon)
        a('v_mov_b32 v73, s%d' % (sNon + 1))
        a('v_mov_b32 v74, s%d' % sXcc)
        a('v_mov_b32 v75, s%d' % sNon)
        a('v_mov_b32 v76, 0')
        a('s_mov_b64 exec, 1')
        a('buffer_store_dwordx4 v[72:75], v76, %s, s%d offen sc1' % (srd(sWS), sT))
        a('s_mov_b64 exec, -1')
        a.label(Lf)
        self.coop_flag(78)
        self.wou_flag(92)
        self.tr(6)
        self.build_tables()
        a('s_mov_b32 s%d, 2' % (sT + 7))
        self.set_flag(F_XH + 16, sT + 7, 72)
        self.wait_flag(F_XH, sT + 7, 72, 20, sleep=4)
        a('s_mov_b32 s%d, 1' % sP)
        self.stage_input_issue()
        self.wo_stage()
        self.init_check(72)
        self.coop_load(72)
        self.stage_input_finish(extra_after=36, last_extra=36)
        self.tr(3)
        a('s_mov_b32 s%d, 0' % sP)
        a('s_branch L_BPHASE')
        self.m_role()
        a.label('L_BPHASE')
        self.bphase()
        a('s_add_u32 s%d, s%d, 1' % (sLayer, sLayer))
        a('s_cmp_ge_u32 s%d, %d' % (sLayer, self.nlayers))
        a('s_cbranch_scc1 L_END')
        a.label('L_STAGE')
        self.stage_generic()
        a('s_cmp_eq_u32 s%d, 0' % sP)
        a('s_cbranch_scc1 L_M_ROLE')
        a('s_mov_b32 s%d, 0' % sP)
        a('s_branch L_BPHASE')
        a.label('L_ABORT')
        a('s_mov_b64 exec, -1')
        a('s_lshl_b32 s%d, s%d, 2' % (sT, sT + 9))
        a('s_add_u32 s%d, s%d, 64' % (sT, sT))
        a('v_mov_b32 v0, s2')
        a('v_add_u32 v0, 0x1000, v0')
        a('v_mov_b32 v1, s%d' % sT)
        a('buffer_store_dword v0, v1, %s, 0 offen sc1' % srd(sDBG))
        a.label('L_END')
        if self.debug:
            a('s_cmp_ge_u32 s2, 256')
            a('s_cbranch_scc1 L_END2')
            self.tr(63)
            a('s_lshl_b32 s%d, s2, 3' % sT)
            a('s_add_u32 s%d, s%d, s%d' % (sT, sT, sWave))
            a('s_lshl_b32 s%d, s%d, 8' % (sT, sT))
            a('s_add_u32 s%d, s%d, %d' % (sT, sT, WS_TRC))
            a('v_lshlrev_b32 v0, 2, v%d' % vLane)
            a('buffer_store_dword v%d, v0, %s, s%d offen' % (vTr, srd(sWS), sT))
            a.label('L_END2')
        a('s_endpgm')

    def text(self):
        hdr = open(os.path.join(os.path.dirname(os.path.abspath(__file__)), '..', 'cdna_kernels', NAME + '.s.ref')).read()
        out = hdr.split('; Override launch geometry')[0]
        out += '; @launch grid=(256,1,1) block=(512,1,1) lds=%d\n' % LDS_BYTES
        out += '.amdgcn_target "amdgcn-amd-amdhsa--gfx950"\n.text\n'
        out += '.globl %s_kernel\n.p2align 8\n.type %s_kernel,@function\n%s_kernel:\n' % (NAME, NAME, NAME)
        out += self.a.render()
        out += '''.section .rodata,"a"
.p2align 6
.amdhsa_kernel %s_kernel
  .amdhsa_next_free_vgpr 256
  .amdhsa_next_free_sgpr 96
  .amdhsa_accum_offset 256
  .amdhsa_group_segment_fixed_size 0
  .amdhsa_kernarg_size 72
  .amdhsa_user_sgpr_count 2
  .amdhsa_user_sgpr_kernarg_segment_ptr 1
  .amdhsa_system_sgpr_workgroup_id_x 1
.end_amdhsa_kernel
''' % NAME
        return out


if __name__ == '__main__':
    nl = int(sys.argv[2]) if len(sys.argv) > 2 else 4
    g = Gen(nlayers=nl, debug=(len(sys.argv) > 3 and sys.argv[3] == 'trace'))
    g.build()
    path = sys.argv[1] if len(sys.argv) > 1 else os.path.join(os.path.dirname(os.path.abspath(__file__)), '..', 'cdna_kernels', NAME + '.s')
    open(path, 'w').write(g.text())
    print('wrote', path)
```

```python
import sys, os, struct
sys.path.insert(0, os.path.dirname(os.path.abspath(__file__)))
from asmlib import Asm

NAME = 'interleave_layers__sliding_local_dilated__sliding_local_dilated__prompt'

XBYTES = 2048 * 576 * 2
MT = 19456
TILE = 4 * MT
WS_X = 4 * XBYTES
LSTR = 0
WS_KV = 6 * XBYTES
KVT = 2304
WS_FL = 9 * XBYTES
WS_INI = WS_FL + 65536
WS_CFLG = WS_FL + 131072
WS_WFLG = WS_FL + 262144
WS_TRC = 10 * XBYTES
WS_CIMG = 11 * XBYTES
WS_PIMG = 14 * XBYTES
WS_PFLG = WS_FL + 393216
WS_WIMG = 13 * XBYTES
WIS = 41984
WS_SIZE = 80 << 20
WS_PAD = 1 << 20
OOB = 0x7F000000

L_QKV = 4 * MT
QP = 272
L_WO = L_QKV + 80 * QP
L_ST = L_WO + 18 * 2304
L_FLG = L_ST + 320
L_TAB = L_FLG + 256
LDS_BYTES = 162560
F_XR, F_XF, F_QR, F_QF, F_WR, F_WF, F_WG, F_XH = 0, 16, 32, 48, 64, 80, 96, 112

sIN, sWQ, sWO, sOUT, sWS, sDBG = 24, 28, 32, 36, 40, 44
sWave, sWv, sSet, sTG, sHG, sLayer, sP, sN, sBud = 48, 49, 50, 51, 52, 53, 54, 55, 56
sG = 57
sNon = 58
sT = 60
sSelLo, sSelHi = 72, 73
sM1, sM2, sM3, sMD = 74, 76, 78, 80
sPend = 82
sBase = 83
sBase2 = 84
sFast = 85
sTm = 86
sWS2 = 88
sTi = 92
sXcc = 93
sWoOk = 94
sTileW = 95
sMt = 4
sQo = 8
sFlW = 12
sOwn = 13
sCs = 14
sQu = 16
sSt = 18
sKm = 20
sH = 22
sPass = 23
sWoP = 15
sPub = 7
sTab = 8
vTr = 101
vFlag, vLane = 102, 103
vCS = 104
vW = 112


def srd(n):
    return 's[%d:%d]' % (n, n + 3)


def vr(b, n=4):
    return 'v[%d:%d]' % (b, b + n - 1)


def W(t, ks):
    return vW + (ks * 2 + t) * 4


def mfma(d, a_, b_, first):
    return 'v_mfma_f32_16x16x32_bf16 %s, %s, %s, %s' % (vr(d), vr(a_), vr(b_), '0' if first else vr(d))


class Gen:
    def __init__(self, nlayers=4, debug=False):
        self.a = Asm()
        self.nlayers = nlayers
        self.debug = debug

    def budget_check(self, code):
        a = self.a
        a('s_sub_u32 s%d, s%d, 1' % (sBud, sBud))
        a('s_cmp_eq_u32 s%d, 0' % sBud)
        a('s_mov_b32 s%d, %d' % (sT + 9, code))
        a('s_cbranch_scc1 L_ABORT')

    def tr(self, ident):
        if not self.debug:
            return
        if os.environ.get('FINE') and ident in (20, 25, 24, 30, 40, 44, 41, 42, 43, 21, 3):
            return
        a = self.a
        a('%s s[%d:%d]' % ('s_memtime' if os.environ.get('CYC') else 's_memrealtime', sTm, sTm + 1))
        a('s_waitcnt lgkmcnt(0)')
        a('s_lshl_b32 s%d, s%d, 6' % (sTm, sTm))
        a('s_or_b32 s%d, s%d, %d' % (sTm, sTm, ident))
        a('s_mov_b32 m0, s%d' % sTi)
        a('s_nop 0')
        a('v_writelane_b32 v%d, s%d, m0' % (vTr, sTm))
        a('s_add_u32 s%d, s%d, 1' % (sTi, sTi))

    def flag_min(self, tmp):
        a = self.a
        a('v_min3_u32 v%d, v%d, v%d, v%d' % (tmp, tmp, tmp + 1, tmp + 2))
        a('v_min_u32 v%d, v%d, v%d' % (tmp, tmp, tmp + 3))
        a('v_readfirstlane_b32 s%d, v%d' % (sT + 8, tmp))

    def wait_flag(self, off, tgt, tmp, code, add=0, sleep=0):
        a = self.a
        L, Ld = a.uid('Lwf'), a.uid('Lwfd')
        a.label(L)
        a('ds_read_b128 %s, v%d offset:%d' % (vr(tmp), vFlag, off))
        a('s_waitcnt lgkmcnt(0)')
        self.flag_min(tmp)
        a('s_nop 1')
        if add:
            a('s_add_u32 s%d, s%d, %d' % (sT + 8, sT + 8, add))
        a('s_cmp_ge_u32 s%d, s%d' % (sT + 8, tgt))
        a('s_cbranch_scc1 %s' % Ld)
        self.budget_check(code)
        if sleep:
            a('s_sleep %d' % sleep)
        a('s_branch %s' % L)
        a.label(Ld)

    def set_flag(self, off, val_sreg, tmpv, add=0):
        a = self.a
        a('s_lshl_b32 s%d, s%d, 2' % (sT + 8, sWv))
        a('v_add_u32 v%d, s%d, v%d' % (tmpv, sT + 8, vFlag))
        if add:
            a('s_add_u32 s%d, s%d, %d' % (sT + 8, val_sreg, add))
            a('v_mov_b32 v%d, s%d' % (tmpv + 1, sT + 8))
        else:
            a('v_mov_b32 v%d, s%d' % (tmpv + 1, val_sreg))
        a('ds_write_b32 v%d, v%d offset:%d' % (tmpv, tmpv + 1, off))

    def swz(self, dst, q, r, tmp):
        a = self.a
        a('v_and_b32 v%d, 1, v%d' % (tmp, q))
        a('v_lshlrev_b32 v%d, 1, v%d' % (tmp, tmp))
        a('v_lshrrev_b32 v%d, 1, v%d' % (dst, q))
        a('v_mul_u32_u24 v%d, 12, v%d' % (dst, dst))
        a('v_add_u32 v%d, v%d, v%d' % (tmp, tmp, dst))
        a('v_xor_b32 v%d, v%d, v%d' % (tmp, tmp, r))
        a('v_lshlrev_b32 v%d, 4, v%d' % (tmp, tmp))
        a('v_lshl_add_u32 v%d, v%d, 8, v%d' % (dst, q, tmp))

    def sentinel_vcc(self, regs, tmp):
        a = self.a
        regs = list(regs)
        a('v_max3_u32 v%d, v%d, v%d, v%d' % (tmp, regs[0], regs[1], regs[2]))
        i = 3
        while i + 1 < len(regs):
            a('v_max3_u32 v%d, v%d, v%d, v%d' % (tmp, tmp, regs[i], regs[i + 1]))
            i += 2
        if i < len(regs):
            a('v_max_u32 v%d, v%d, v%d' % (tmp, tmp, regs[i]))
        a('v_cmp_eq_u32 vcc, -1, v%d' % tmp)

    def poll_event(self, kind_expr, layer_add, tmp, code, all64=False, hook=None):
        a = self.a
        if all64:
            a('v_lshlrev_b32 v%d, 3, v%d' % (tmp + 2, vLane))
        else:
            a('v_and_b32 v%d, 15, v%d' % (tmp + 2, vLane))
            a('v_lshlrev_b32 v%d, 3, v%d' % (tmp + 2, tmp + 2))
        a('s_lshl_b32 s%d, s%d, 9' % (sT, sP))
        a('s_add_u32 s%d, s%d, s%d' % (sT, sT, sFlW))
        if all64:
            a('s_lshl_b32 s%d, s%d, 7' % (sT + 1, sWv))
            a('s_sub_u32 s%d, s%d, s%d' % (sT, sT, sT + 1))
        if kind_expr:
            a('s_add_u32 s%d, s%d, %d' % (sT, sT, kind_expr * 512))
        a('s_add_u32 s%d, s%d, s%d' % (sT + 1, sNon, sLayer))
        a('s_add_u32 s%d, s%d, %d' % (sT + 1, sT + 1, 1 + layer_add))
        L, Ld = a.uid('Lpoll'), a.uid('Lpolld')
        a('s_setprio 0')
        a.label(L)
        a('buffer_load_dwordx2 %s, v%d, %s, s%d offen sc1' % (vr(tmp, 2), tmp + 2, srd(sWS), sT))
        a('s_waitcnt vmcnt(0)')
        if hook:
            hook()
        a('v_subrev_u32 v%d, s%d, v%d' % (tmp, sT + 1, tmp))
        a('v_xor_b32 v%d, s%d, v%d' % (tmp + 1, sNon + 1, tmp + 1))
        a('v_lshrrev_b32 v%d, 3, v%d' % (tmp, tmp))
        a('v_or_b32 v%d, v%d, v%d' % (tmp, tmp, tmp + 1))
        a('v_cmp_ne_u32 vcc, 0, v%d' % tmp)
        a('s_nop 1')
        a('s_cmp_eq_u64 vcc, 0')
        a('s_cbranch_scc1 %s' % Ld)
        self.budget_check(code)
        a('s_branch %s' % L)
        a.label(Ld)
        a('s_setprio 2')

    def publish_event(self, kind, tmp, sc):
        a = self.a
        a('s_lshl_b32 s%d, s%d, 9' % (sT, sP))
        a('s_add_u32 s%d, s%d, s%d' % (sT, sT, sFlW))
        a('s_lshl_b32 s%d, s%d, 3' % (sT + 1, sHG))
        a('s_add_u32 s%d, s%d, s%d' % (sT, sT, sT + 1))
        if kind:
            a('s_add_u32 s%d, s%d, %d' % (sT, sT, kind * 512))
        a('s_add_u32 s%d, s%d, s%d' % (sT + 1, sNon, sLayer))
        a('s_add_u32 s%d, s%d, 1' % (sT + 1, sT + 1))
        a('v_mov_b32 v%d, s%d' % (tmp, sT + 1))
        a('v_mov_b32 v%d, s%d' % (tmp + 1, sNon + 1))
        a('v_mov_b32 v%d, 0' % (tmp + 2))
        a('s_mov_b64 exec, 1')
        a('s_waitcnt vmcnt(0)')
        a('buffer_store_dwordx2 %s, v%d, %s, s%d offen%s' % (vr(tmp, 2), tmp + 2, srd(sWS), sT, sc))
        a('s_mov_b64 exec, -1')

    def both_modes(self, fn):
        a = self.a
        L0, L1 = a.uid('Lslow'), a.uid('Lmend')
        a('s_cmp_eq_u32 s%d, 0' % sFast)
        a('s_cbranch_scc1 %s' % L0)
        fn('')
        a('s_branch %s' % L1)
        a.label(L0)
        fn(' sc1')
        a.label(L1)

    def store_nonce_flag(self, soff, tmp):
        a = self.a
        a('v_mov_b32 v%d, s%d' % (tmp, sNon))
        a('v_mov_b32 v%d, s%d' % (tmp + 1, sNon + 1))
        a('v_mov_b32 v%d, 0' % (tmp + 2))
        a('s_mov_b64 exec, 1')
        a('buffer_store_dwordx2 %s, v%d, %s, s%d offen sc1' % (vr(tmp, 2), tmp + 2, srd(sWS), soff))
        a('s_mov_b64 exec, -1')

    def poll_nonce_flags(self, soff, vaddr, tmp, code):
        a = self.a
        L, Ld = a.uid('Lpn'), a.uid('Lpnd')
        a.label(L)
        a('buffer_load_dwordx2 %s, v%d, %s, s%d offen sc1' % (vr(tmp, 2), vaddr, srd(sWS), soff))
        a('s_waitcnt vmcnt(0)')
        a('v_xor_b32 v%d, s%d, v%d' % (tmp, sNon, tmp))
        a('v_xor_b32 v%d, s%d, v%d' % (tmp + 1, sNon + 1, tmp + 1))
        a('v_or_b32 v%d, v%d, v%d' % (tmp, tmp, tmp + 1))
        a('v_cmp_ne_u32 vcc, 0, v%d' % tmp)
        a('s_nop 1')
        a('s_cmp_eq_u64 vcc, 0')
        a('s_cbranch_scc1 %s' % Ld)
        self.budget_check(code)
        a('s_sleep 2')
        a('s_branch %s' % L)
        a.label(Ld)

    def get_nonce(self, tmp):
        a = self.a
        L, Ld = a.uid('Lnon'), a.uid('Lnond')
        a('v_mov_b32 v%d, 0' % (tmp + 2))
        a.label(L)
        a('buffer_load_dwordx2 %s, v%d, %s, 0 offen sc1' % (vr(tmp, 2), tmp + 2, srd(sDBG)))
        a('s_waitcnt vmcnt(0)')
        a('v_readfirstlane_b32 s%d, v%d' % (sNon, tmp))
        a('v_readfirstlane_b32 s%d, v%d' % (sNon + 1, tmp + 1))
        a('s_nop 1')
        a('s_min_u32 s%d, s%d, s%d' % (sT + 8, sNon, sNon + 1))
        a('s_cmp_lg_u32 s%d, 0' % (sT + 8))
        a('s_cbranch_scc1 %s' % Ld)
        self.budget_check(7)
        a('s_sleep 2')
        a('s_branch %s' % L)
        a.label(Ld)

    def init_check(self, tmp):
        a = self.a
        a('s_mov_b32 s%d, 2' % (sT + 7))
        self.wait_flag(F_XH + 16, sT + 7, tmp, 21)
        L, Ld = a.uid('Lini'), a.uid('Linid')
        a('v_and_b32 v%d, 15, v%d' % (tmp + 4, vLane))
        a('v_lshlrev_b32 v%d, 4, v%d' % (tmp + 4, tmp + 4))
        a('v_add_u32 v%d, 256, v%d' % (tmp + 5, tmp + 4))
        a('v_and_b32 v%d, 16, v%d' % (tmp + 6, vLane))
        a('s_cmp_eq_u32 s%d, 0' % sTG)
        a('s_cselect_b32 s%d, 0, 16' % sT)
        a('v_and_b32 v%d, s%d, v%d' % (tmp + 6, sT, tmp + 6))
        a('v_cmp_eq_u32 s[%d:%d], 0, v%d' % (sT + 2, sT + 3, tmp + 6))
        a('v_cndmask_b32 v%d, v%d, v%d, s[%d:%d]' % (tmp + 4, tmp + 4, tmp + 5, sT + 2, sT + 3))
        a('s_lshl_b32 s%d, s%d, 8' % (sT, sTG))
        a('s_add_u32 s%d, s%d, %d' % (sT, sT, WS_INI - 256))
        a.label(L)
        a('buffer_load_dwordx4 %s, v%d, %s, s%d offen sc1' % (vr(tmp), tmp + 4, srd(sWS), sT))
        a('s_waitcnt vmcnt(0)')
        a('v_xor_b32 v%d, s%d, v%d' % (tmp, sNon, tmp))
        a('v_xor_b32 v%d, s%d, v%d' % (tmp + 1, sNon + 1, tmp + 1))
        a('v_xor_b32 v%d, s%d, v%d' % (tmp + 3, sNon, tmp + 3))
        a('v_or3_b32 v%d, v%d, v%d, v%d' % (tmp, tmp, tmp + 1, tmp + 3))
        a('v_cmp_ne_u32 vcc, 0, v%d' % tmp)
        a('s_nop 1')
        a('s_cmp_eq_u64 vcc, 0')
        a('s_cbranch_scc1 %s' % Ld)
        self.budget_check(8)
        a('s_sleep 2')
        a('s_branch %s' % L)
        a.label(Ld)
        a('v_cmp_ne_u32 vcc, s%d, v%d' % (sXcc, tmp + 2))
        a('s_nop 1')
        a('s_and_b64 vcc, vcc, s[%d:%d]' % (sT + 2, sT + 3))
        a('s_cmp_eq_u64 vcc, 0')
        a('s_cselect_b32 s%d, 1, 0' % sFast)
        if os.environ.get('FORCE_SLOW'):
            a('s_mov_b32 s%d, 0' % sFast)

    def prologue(self):
        a = self.a
        a('s_cmp_ge_u32 s2, 256')
        a('s_cbranch_scc1 L_END')
        a('s_load_dwordx16 s[4:19], s[0:1], 0')
        a('s_load_dwordx2 s[20:21], s[0:1], 64')
        a('v_and_b32 v%d, 63, v0' % vLane)
        a('v_lshrrev_b32 v1, 6, v0')
        a('v_readfirstlane_b32 s%d, v1' % sWave)
        a('s_getreg_b32 s%d, hwreg(HW_REG_XCC_ID)' % sXcc)
        a('s_and_b32 s%d, s%d, 15' % (sXcc, sXcc))
        a('s_and_b32 s%d, s%d, 3' % (sWv, sWave))
        a('s_lshr_b32 s%d, s%d, 2' % (sSet, sWave))
        a('s_and_b32 s%d, s2, 7' % sT)
        a('s_lshr_b32 s%d, s2, 3' % (sT + 1))
        a('s_and_b32 s%d, s%d, 15' % (sHG, sT + 1))
        a('s_lshr_b32 s%d, s%d, 4' % (sT + 1, sT + 1))
        a('s_lshl_b32 s%d, s%d, 1' % (sTG, sT))
        a('s_add_u32 s%d, s%d, s%d' % (sTG, sTG, sT + 1))
        a('s_mov_b32 s%d, 0x%x' % (sBud, 2000000))
        a('s_mov_b32 s%d, 0x05040100' % sSelLo)
        a('s_mov_b32 s%d, 0x07060302' % sSelHi)
        a('s_mov_b32 s%d, 0' % sLayer)
        a('s_mov_b32 s%d, 0' % sWoOk)
        a('s_mov_b32 s%d, 0' % sFast)
        a('v_mov_b32 v%d, 0x%x' % (vFlag, L_FLG))
        a('v_and_b32 v1, 3, v%d' % vLane)
        a('v_cmp_eq_u32 s[%d:%d], 1, v1' % (sM1, sM1 + 1))
        a('v_cmp_eq_u32 s[%d:%d], 2, v1' % (sM2, sM2 + 1))
        a('v_cmp_eq_u32 s[%d:%d], 3, v1' % (sM3, sM3 + 1))
        a('v_lshrrev_b32 v1, 4, v%d' % vLane)
        a('v_bfe_u32 v2, v%d, 2, 2' % vLane)
        a('v_cmp_eq_u32 s[%d:%d], v1, v2' % (sMD, sMD + 1))
        a('v_mov_b32 v1, 0')
        a('v_lshl_add_u32 v2, v%d, 2, v%d' % (vLane, vFlag))
        a('ds_write_b32 v2, v1')
        a('s_waitcnt lgkmcnt(0)')

        def mk(n, lo, hi, size):
            a('s_mov_b32 s%d, s%d' % (n, lo))
            a('s_and_b32 s%d, s%d, 0xffff' % (n + 1, hi))
            a('s_mov_b32 s%d, 0x%x' % (n + 2, size))
            a('s_mov_b32 s%d, 0x00020000' % (n + 3))
        mk(sIN, 4, 5, XBYTES)
        mk(sOUT, 16, 17, XBYTES)
        mk(sDBG, 18, 19, 256)
        mk(sWS2, 20, 21, WS_SIZE)
        a('s_add_u32 s20, s20, 0x%x' % WS_PAD)
        a('s_addc_u32 s21, s21, 0')
        mk(sWS, 20, 21, WS_SIZE)
        a('s_mov_b32 s%d, 0' % sTi)
        a('s_cmp_eq_u32 s%d, 0' % sSet)
        a('s_cbranch_scc0 L_SETB_SRD')
        mk(sWQ, 6, 7, 576 * 1728 * 2)
        mk(sWO, 14, 15, 576 * 576 * 2)
        a('s_branch L_SRD_DONE')
        a.label('L_SETB_SRD')
        mk(sWQ, 12, 13, 576 * 1728 * 2)
        mk(sWO, 8, 9, 576 * 576 * 2)
        a.label('L_SRD_DONE')
        a('s_mul_i32 s%d, s%d, %d' % (sMt, sWv, MT))
        a('s_mul_i32 s%d, s%d, %d' % (sTileW, sTG, 2 * TILE))
        a('s_mul_i32 s%d, s%d, %d' % (sT, sWv, MT))
        a('s_add_u32 s%d, s%d, s%d' % (sTileW, sTileW, sT))
        a('s_lshl_b32 s%d, s%d, 11' % (sFlW, sTG))
        a('s_lshl_b32 s%d, s%d, 7' % (sT, sWv))
        a('s_add_u32 s%d, s%d, s%d' % (sFlW, sFlW, sT))
        a('s_add_u32 s%d, s%d, %d' % (sFlW, sFlW, WS_FL))
        a('s_mov_b32 s%d, 0' % sOwn)
        a('s_mov_b32 s%d, 0' % sWoP)
        a('s_mov_b32 s%d, 0' % sPub)
        a('s_mul_i32 s%d, s%d, 5120' % (sTab, sWv))
        a('s_add_u32 s%d, s%d, 0x%x' % (sTab, sTab, L_TAB))
        a('s_mov_b32 s%d, s%d' % (sCs, sSet))
        a('s_mul_i32 s%d, s%d, 48' % (sQu, sWv))
        a('s_add_u32 s%d, s%d, 0x%x' % (sQu, sQu, L_QKV))
        a('s_lshl_b32 s%d, s%d, 4' % (sQu + 1, sWv))
        a('s_add_u32 s%d, s%d, 0x%x' % (sQu + 1, sQu + 1, L_QKV + 192 - 48))
        a('s_lshl_b32 s%d, s%d, 6' % (sSt, sWv))
        a('s_add_u32 s%d, s%d, 0x%x' % (sSt, sSt, L_ST + 64 - 192))
        a('s_mov_b32 s%d, 0x%x' % (sSt + 1, L_ST - 192))
        a('s_and_b32 s%d, s%d, 1' % (sH, sTG))
        km = 0xffff & ~sum(1 << self.UNIT[i] for i in (0, 1, 2, 12))
        a('s_mov_b32 s%d, 0x%x' % (sKm, km | (km << 16)))
        a('s_mov_b32 s%d, 0x%x' % (sKm + 1, km | (km << 16)))
        if True:
            a('s_setprio %s' % '2')
        a('s_barrier')
        if self.debug:
            a('v_mov_b32 v%d, 0' % vTr)
        self.tr(1)

    def wload_addr(self, v1, v2, tmp):
        a = self.a
        i, q, oa, rr, t4, t5 = tmp, tmp + 1, tmp + 2, tmp + 3, tmp + 4, tmp + 5
        a('v_and_b32 v%d, 15, v%d' % (i, vLane))
        a('v_lshrrev_b32 v%d, 4, v%d' % (q, vLane))
        a('v_lshrrev_b32 v%d, 2, v%d' % (oa, i))
        a('v_and_b32 v%d, 3, v%d' % (rr, i))
        a('s_mul_i32 s%d, s%d, 3' % (sT, sWv))
        a('v_add_u32 v%d, s%d, v%d' % (t4, sT, oa))
        a('v_lshrrev_b32 v%d, 2, v%d' % (v1, t4))
        a('v_mul_u32_u24 v%d, 576, v%d' % (v1, v1))
        a('v_bfe_u32 v%d, v%d, 1, 1' % (t5, t4))
        a('v_mul_u32_u24 v%d, 18, v%d' % (t5, t5))
        a('v_add_u32 v%d, v%d, v%d' % (v1, v1, t5))
        a('v_and_b32 v%d, 1, v%d' % (t5, t4))
        a('v_lshl_add_u32 v%d, v%d, 3, v%d' % (v1, t5, v1))
        a('v_lshl_add_u32 v%d, v%d, 1, v%d' % (v1, rr, v1))
        a('s_mul_i32 s%d, s%d, 576' % (sT, sWv))
        a('s_add_u32 s%d, s%d, 16' % (sT, sT))
        a('v_mul_u32_u24 v%d, 18, v%d' % (t5, rr))
        a('v_add_u32 v%d, s%d, v%d' % (t5, sT, t5))
        a('v_cmp_eq_u32 vcc, 3, v%d' % oa)
        a('v_cndmask_b32 v%d, v%d, v%d, vcc' % (v1, v1, t5))
        a('s_mul_i32 s%d, s%d, 36' % (sT, sHG))
        a('v_add_u32 v%d, s%d, v%d' % (v1, sT, v1))
        a('v_lshlrev_b32 v%d, 1, v%d' % (v1, v1))
        a('s_cmp_eq_u32 s%d, 3' % sWv)
        a('s_cselect_b32 s%d, 12, 14' % sT)
        a('v_cmp_le_u32 vcc, s%d, v%d' % (sT, i))
        a('v_mov_b32 v%d, 0x%x' % (t5, OOB))
        a('v_cndmask_b32 v%d, v%d, v%d, vcc' % (v1, v1, t5))
        a('s_mov_b32 s%d, %d' % (sT, 72 * 3456))
        a('v_mul_lo_u32 v%d, v%d, s%d' % (t5, q, sT))
        a('v_add_u32 v%d, v%d, v%d' % (v2, v1, t5))
        a('v_mul_u32_u24 v%d, %d, v%d' % (t5, 8 * 3456, q))
        a('v_add_u32 v%d, v%d, v%d' % (v1, v1, t5))

    def wload_issue(self, ks_list, v1, v2):
        a = self.a
        if os.environ.get('NOW'):
            ks_list = list(ks_list)[:1]
        for ks in ks_list:
            for e in range(0, 8, 2):
                if ks < 16:
                    row, vo = 36 * ks + e, v1
                else:
                    row, vo = 288 * (ks - 16) + 36 * (e >> 2) + 32 + (e & 3), v2
                st = sT + (e >> 1) % 2
                a('s_mov_b32 s%d, %d' % (st, row * 3456))
                m = e >> 1
                a('buffer_load_dword v%d, v%d, %s, s%d offen' % (W(0, ks) + m, vo, srd(sWQ), st))
                a('buffer_load_dword v%d, v%d, %s, s%d offen offset:3456' % (W(1, ks) + m, vo, srd(sWQ), st))

    def wload_perm(self, ks_list, ones, tmp):
        a = self.a
        for ks in ks_list:
            for m in range(4):
                r0, r1 = W(0, ks) + m, W(1, ks) + m
                t = tmp + (m & 1)
                a('v_perm_b32 v%d, v%d, v%d, s%d' % (t, r1, r0, sSelLo))
                a('v_perm_b32 v%d, v%d, v%d, s%d' % (r1, r1, r0, sSelHi))
                a('v_or_b32 v%d, v%d, v%d' % (r0, ones, t))

    def pw_issue(self, v1, v2):
        a = self.a
        L1, L2 = a.uid('Lpi'), a.uid('Lpie')
        a('s_cmp_lg_u32 s%d, 0' % sH)
        a('s_cbranch_scc1 %s' % L1)
        self.wload_issue(range(0, 9), v1, v2)
        a('s_branch %s' % L2)
        a.label(L1)
        self.wload_issue(range(9, 18), v1, v2)
        a.label(L2)

    def pw_finish(self, v1, v2, tmp):
        a = self.a
        Ltop, L1, L2, Ldone, Lfb = a.uid('Lpt'), a.uid('Lp1'), a.uid('Lp2'), a.uid('Lpd'), a.uid('Lpfb')
        a('s_mov_b32 s%d, 0' % sPass)
        a.label(Ltop)
        self.ones_mask(tmp, tmp + 1)
        a('v_lshlrev_b32 v%d, 4, v%d' % (tmp + 4, vLane))
        a('s_lshl_b32 s%d, s2, 3' % (sT + 2))
        a('s_add_u32 s%d, s%d, s%d' % (sT + 2, sT + 2, sWave))
        a('s_mul_i32 s%d, s%d, 18432' % (sT + 3, sT + 2))
        a('s_add_u32 s%d, s%d, %d' % (sT + 3, sT + 3, WS_PIMG))
        a('s_waitcnt vmcnt(0)')
        a('s_cmp_lg_u32 s%d, 0' % sH)
        a('s_cbranch_scc1 %s' % L1)
        for h, lab in ((0, None), (1, L1)):
            if lab:
                a.label(lab)
            self.wload_perm(range(9 * h, 9 * h + 9), tmp, tmp + 2)
            a('s_cmp_lg_u32 s%d, 0' % sPass)
            a('s_cbranch_scc1 %s' % Ldone)
            for n in range(18):
                if n % 4 == 0 and n:
                    a('s_add_u32 s%d, s%d, 4096' % (sT + 3, sT + 3))
                a('buffer_store_dwordx4 %s, v%d, %s, s%d offen offset:%d' % (vr(vW + 72 * h + 4 * n), tmp + 4, srd(sWS), sT + 3, (n % 4) * 1024))
            if h == 0:
                a('s_branch %s' % L2)
        a.label(L2)
        a('s_lshl_b32 s%d, s%d, 4' % (sT + 3, sT + 2))
        a('s_add_u32 s%d, s%d, %d' % (sT + 3, sT + 3, WS_PFLG))
        a('v_mov_b32 v%d, s%d' % (tmp, sNon))
        a('v_mov_b32 v%d, s%d' % (tmp + 1, sNon + 1))
        a('v_mov_b32 v%d, s%d' % (tmp + 2, sXcc))
        a('v_mov_b32 v%d, s%d' % (tmp + 3, sNon))
        a('v_mov_b32 v%d, 0' % (tmp + 5))
        a('s_mov_b64 exec, 1')
        a('s_waitcnt vmcnt(0)')
        a('buffer_store_dwordx4 %s, v%d, %s, s%d offen' % (vr(tmp), tmp + 5, srd(sWS), sT + 3))
        a('s_mov_b64 exec, -1')
        a('s_xor_b32 s%d, s%d, 1024' % (sT + 2, sT + 2))
        a('s_lshl_b32 s%d, s%d, 4' % (sT + 3, sT + 2))
        a('s_add_u32 s%d, s%d, %d' % (sT + 3, sT + 3, WS_PFLG))
        a('s_mov_b32 s%d, %d' % (sT + 4, 1 if os.environ.get('FORCE_SLOW') else 200))
        Lp, Lg = a.uid('Lpp'), a.uid('Lpg')
        a.label(Lp)
        a('buffer_load_dwordx4 %s, v%d, %s, s%d offen sc1' % (vr(tmp), tmp + 5, srd(sWS), sT + 3))
        a('s_waitcnt vmcnt(0)')
        a('v_xor_b32 v%d, s%d, v%d' % (tmp, sNon, tmp))
        a('v_xor_b32 v%d, s%d, v%d' % (tmp + 1, sNon + 1, tmp + 1))
        a('v_xor_b32 v%d, s%d, v%d' % (tmp + 2, sXcc, tmp + 2))
        a('v_xor_b32 v%d, s%d, v%d' % (tmp + 3, sNon, tmp + 3))
        a('v_or3_b32 v%d, v%d, v%d, v%d' % (tmp, tmp, tmp + 1, tmp + 2))
        a('v_or_b32 v%d, v%d, v%d' % (tmp, tmp, tmp + 3))
        a('v_cmp_ne_u32 vcc, 0, v%d' % tmp)
        a('s_nop 1')
        a('s_cmp_eq_u64 vcc, 0')
        if not os.environ.get('FORCE_SLOW'):
            a('s_cbranch_scc1 %s' % Lg)
        a('s_sub_u32 s%d, s%d, 1' % (sT + 4, sT + 4))
        a('s_cmp_eq_u32 s%d, 0' % (sT + 4))
        a('s_cbranch_scc1 %s' % Lfb)
        a('s_sleep 1')
        a('s_branch %s' % Lp)
        a.label(Lfb)
        a('s_mov_b32 s%d, 1' % sPass)
        a('s_xor_b32 s%d, s%d, 1' % (sH, sH))
        self.pw_issue(v1, v2)
        a('s_branch %s' % Ltop)
        a.label(Lg)
        a('s_mul_i32 s%d, s%d, 18432' % (sT + 3, sT + 2))
        a('s_add_u32 s%d, s%d, %d' % (sT + 3, sT + 3, WS_PIMG))
        L3 = a.uid('Lp3')
        a('s_cmp_eq_u32 s%d, 0' % sH)
        a('s_cbranch_scc1 %s' % L3)
        for h, lab in ((0, None), (1, L3)):
            if lab:
                a.label(lab)
            for n in range(18):
                if n % 4 == 0 and n:
                    a('s_add_u32 s%d, s%d, 4096' % (sT + 3, sT + 3))
                a('buffer_load_dwordx4 %s, v%d, %s, s%d offen offset:%d sc1' % (vr(vW + 72 * h + 4 * n), tmp + 4, srd(sWS), sT + 3, (n % 4) * 1024))
            if h == 0:
                a('s_branch %s' % Ldone)
        a.label(Ldone)

    def ones_mask(self, dst, tmp):
        a = self.a
        a('v_and_b32 v%d, 15, v%d' % (tmp, vLane))
        a('v_cmp_eq_u32 vcc, 14, v%d' % tmp)
        a('v_mov_b32 v%d, 0x3f803f80' % tmp)
        a('v_cndmask_b32 v%d, 0, v%d, vcc' % (dst, tmp))

    def colsum(self, tmp, progressive=False):
        a = self.a
        for i in range(4):
            a('v_mov_b32 v%d, 0x3f803f80' % (tmp + i))
        for ks in range(18):
            if progressive:
                a('s_waitcnt vmcnt(%d)' % (34 - 2 * ks))
            for t in range(2):
                a(mfma(vCS + 4 * t, W(t, ks), tmp, ks == 0))

    def coop_issue(self, v1, v2):
        a = self.a
        a('s_mul_i32 s%d, s%d, %d' % (sT + 2, sTG, 36 * 3456))
        a('s_and_b32 s%d, s%d, 1' % (sT + 3, sTG))
        a('s_mul_i32 s%d, s%d, %d' % (sT + 3, sT + 3, 288 * 3456))
        for u in range(2):
            for e in range(0, 8, 2):
                row = e if u == 0 else 36 * (e >> 2) + 32 + (e & 3)
                st = sT + (e >> 1) % 2
                a('s_add_u32 s%d, s%d, %d' % (st, sT + 2 + u, row * 3456))
                m = e >> 1
                vo = v1 if u == 0 else v2
                a('buffer_load_dword v%d, v%d, %s, s%d offen' % (W(0, u) + m, vo, srd(sWQ), st))
                a('buffer_load_dword v%d, v%d, %s, s%d offen offset:3456' % (W(1, u) + m, vo, srd(sWQ), st))

    def coop_id(self, dst):
        a = self.a
        a('s_lshl_b32 s%d, s%d, 4' % (dst, sSet))
        a('s_add_u32 s%d, s%d, s%d' % (dst, dst, sHG))
        a('s_lshl_b32 s%d, s%d, 2' % (dst, dst))
        a('s_add_u32 s%d, s%d, s%d' % (dst, dst, sWv))

    def coop_store(self, tmp):
        a = self.a
        self.ones_mask(tmp, tmp + 1)
        self.wload_perm(range(2), tmp, tmp + 2)
        self.coop_id(sT + 2)
        a('s_mul_i32 s%d, s%d, %d' % (sT + 2, sT + 2, 36864))
        a('s_add_u32 s%d, s%d, %d' % (sT + 2, sT + 2, WS_CIMG))
        a('s_lshl_b32 s%d, s%d, 11' % (sT + 3, sTG))
        a('s_add_u32 s%d, s%d, s%d' % (sT + 3, sT + 3, sT + 2))
        a('v_lshlrev_b32 v%d, 4, v%d' % (tmp + 4, vLane))
        a('buffer_store_dwordx4 %s, v%d, %s, s%d offen sc1' % (vr(W(0, 0)), tmp + 4, srd(sWS), sT + 3))
        a('buffer_store_dwordx4 %s, v%d, %s, s%d offen offset:1024 sc1' % (vr(W(1, 0)), tmp + 4, srd(sWS), sT + 3))
        L = a.uid('Lcs')
        a('s_cmp_ge_u32 s%d, 2' % sTG)
        a('s_cbranch_scc1 %s' % L)
        a('s_add_u32 s%d, s%d, %d' % (sT + 3, sT + 3, 16 * 2048))
        a('buffer_store_dwordx4 %s, v%d, %s, s%d offen sc1' % (vr(W(0, 1)), tmp + 4, srd(sWS), sT + 3))
        a('buffer_store_dwordx4 %s, v%d, %s, s%d offen offset:1024 sc1' % (vr(W(1, 1)), tmp + 4, srd(sWS), sT + 3))
        a.label(L)

    def coop_flag(self, tmp):
        a = self.a
        self.coop_id(sT + 2)
        a('s_lshl_b32 s%d, s%d, 4' % (sT + 2, sT + 2))
        a('s_add_u32 s%d, s%d, s%d' % (sT + 2, sT + 2, sTG))
        a('s_lshl_b32 s%d, s%d, 3' % (sT + 2, sT + 2))
        a('s_add_u32 s%d, s%d, %d' % (sT + 2, sT + 2, WS_CFLG))
        self.store_nonce_flag(sT + 2, tmp)

    def coop_load(self, tmp):
        a = self.a
        self.coop_id(sT + 2)
        a('s_lshl_b32 s%d, s%d, 7' % (sT + 3, sT + 2))
        a('s_add_u32 s%d, s%d, %d' % (sT + 3, sT + 3, WS_CFLG))
        a('v_and_b32 v%d, 15, v%d' % (tmp + 2, vLane))
        a('v_lshlrev_b32 v%d, 3, v%d' % (tmp + 2, tmp + 2))
        self.poll_nonce_flags(sT + 3, tmp + 2, tmp, 15)
        a('s_mul_i32 s%d, s%d, %d' % (sT + 2, sT + 2, 36864))
        a('s_add_u32 s%d, s%d, %d' % (sT + 2, sT + 2, WS_CIMG))
        a('v_lshlrev_b32 v%d, 4, v%d' % (tmp + 2, vLane))
        for n in range(36):
            if n % 4 == 0 and n:
                a('s_add_u32 s%d, s%d, 4096' % (sT + 2, sT + 2))
            a('buffer_load_dwordx4 %s, v%d, %s, s%d offen offset:%d sc1' % (vr(vW + 4 * n), tmp + 2, srd(sWS), sT + 2, (n % 4) * 1024))

    def wou_issue(self, D, tmp):
        a = self.a
        i, q, t2, t3, vo, SEL = tmp, tmp + 1, tmp + 2, tmp + 3, tmp + 4, tmp + 5
        a('v_and_b32 v%d, 15, v%d' % (i, vLane))
        a('v_lshrrev_b32 v%d, 4, v%d' % (q, vLane))
        a('v_lshrrev_b32 v%d, 1, v%d' % (t2, q))
        a('v_mul_u32_u24 v%d, 18, v%d' % (t2, t2))
        a('v_and_b32 v%d, 1, v%d' % (t3, q))
        a('v_lshl_add_u32 v%d, v%d, 3, v%d' % (t2, t3, t2))
        a('v_mul_u32_u24 v%d, 72, v%d' % (t3, q))
        a('s_cmp_ge_u32 s%d, 2' % sWv)
        a('s_cselect_b64 vcc, -1, 0')
        a('v_cndmask_b32 v%d, v%d, v%d, vcc' % (t2, t2, t3))
        a('v_mul_u32_u24 v%d, 1152, v%d' % (vo, t2))
        a('v_lshlrev_b32 v%d, 2, v%d' % (t2, i))
        a('v_and_b32 v%d, 2, v%d' % (t3, i))
        a('v_lshlrev_b32 v%d, 1, v%d' % (t3, t3))
        a('v_add_u32 v%d, 64, v%d' % (t3, t3))
        a('s_and_b32 s%d, s%d, 1' % (sT, sWv))
        a('s_cmp_eq_u32 s%d, 1' % sT)
        a('s_cselect_b64 vcc, -1, 0')
        a('v_cndmask_b32 v%d, v%d, v%d, vcc' % (t2, t2, t3))
        a('s_mul_i32 s%d, s%d, 72' % (sT, sHG))
        a('v_add3_u32 v%d, v%d, v%d, s%d' % (vo, vo, t2, sT))
        a('v_and_b32 v%d, 1, v%d' % (t2, i))
        a('v_cmp_eq_u32 vcc, 1, v%d' % t2)
        a('v_mov_b32 v%d, s%d' % (t2, sSelLo))
        a('v_mov_b32 v%d, s%d' % (t3, sSelHi))
        a('v_cndmask_b32 v%d, v%d, v%d, vcc' % (SEL, t2, t3))
        a('s_mul_i32 s%d, s%d, %d' % (sT + 2, sTG, 36 * 1152))
        a('s_and_b32 s%d, s%d, 1' % (sT + 3, sTG))
        a('s_mul_i32 s%d, s%d, %d' % (sT + 3, sT + 3, 288 * 1152))
        a('s_cmp_ge_u32 s%d, 2' % sWv)
        for e in range(0, 8, 2):
            r0 = e * 1152
            r1 = (36 * (e >> 2) + 18 * ((e >> 1) & 1) + 16) * 1152
            a('s_cselect_b32 s%d, s%d, s%d' % (sT, sT + 3, sT + 2))
            a('s_cselect_b32 s%d, %d, %d' % (sT + 1, r1, r0)) if False else None
            a('s_mov_b32 s%d, %d' % (sT + 4, r0))
            a('s_mov_b32 s%d, %d' % (sT + 5, r1))
            a('s_cselect_b32 s%d, s%d, s%d' % (sT + 1, sT + 5, sT + 4))
            a('s_lshl_b32 s%d, s%d, 0' % (sT + 6, sT)) if False else None
            m = e >> 1
            a('s_add_u32 s%d, s%d, s%d' % (sT + 6 + (m & 1), sT, sT + 1))
            a('buffer_load_dword v%d, v%d, %s, s%d offen' % (D + m, vo, srd(sWO), sT + 6 + (m & 1)))
            a('buffer_load_dword v%d, v%d, %s, s%d offen offset:1152' % (D + 4 + m, vo, srd(sWO), sT + 6 + (m & 1)))
            a('s_cmp_ge_u32 s%d, 2' % sWv)

    def wou_ids(self):
        a = self.a
        a('s_lshl_b32 s%d, s%d, 4' % (sT + 2, sSet))
        a('s_add_u32 s%d, s%d, s%d' % (sT + 2, sT + 2, sHG))
        a('s_and_b32 s%d, s%d, 1' % (sT + 3, sTG))
        a('s_add_u32 s%d, s%d, 16' % (sT + 3, sT + 3))
        a('s_cmp_ge_u32 s%d, 2' % sWv)
        a('s_cselect_b32 s%d, s%d, s%d' % (sT + 3, sT + 3, sTG))

    def wou_store(self, D, tmp):
        a = self.a
        SEL = tmp + 5
        Lskip, Lk1 = a.uid('Lwus'), a.uid('Lwuk')
        a('s_lshr_b32 s%d, s%d, 1' % (sT, sWv))
        a('s_lshr_b32 s%d, s%d, 1' % (sT + 1, sTG))
        a('s_min_u32 s%d, s%d, s%d' % (sT, sT, sT + 1))
        a('s_cmp_lg_u32 s%d, 0' % sT)
        a('s_cbranch_scc1 %s' % Lskip)
        self.wou_ids()
        a('s_mul_i32 s%d, s%d, %d' % (sT + 2, sT + 2, WIS))
        a('s_mul_i32 s%d, s%d, 2304' % (sT + 3, sT + 3))
        a('s_add_u32 s%d, s%d, s%d' % (sT + 2, sT + 2, sT + 3))
        a('s_add_u32 s%d, s%d, %d' % (sT + 2, sT + 2, WS_WIMG))
        a('s_and_b32 s%d, s%d, 1' % (sT, sWv))
        a('s_cmp_eq_u32 s%d, 1' % sT)
        a('s_cbranch_scc1 %s' % Lk1)
        for m in range(4):
            r0, r1 = D + m, D + 4 + m
            t = tmp + (m & 1)
            a('v_perm_b32 v%d, v%d, v%d, s%d' % (t, r1, r0, sSelLo))
            a('v_perm_b32 v%d, v%d, v%d, s%d' % (r1, r1, r0, sSelHi))
            a('v_mov_b32 v%d, v%d' % (r0, t))
        a('v_lshlrev_b32 v%d, 4, v%d' % (tmp, vLane))
        a('buffer_store_dwordx4 %s, v%d, %s, s%d offen sc1' % (vr(D), tmp, srd(sWS), sT + 2))
        a('buffer_store_dwordx4 %s, v%d, %s, s%d offen offset:1024 sc1' % (vr(D + 4), tmp, srd(sWS), sT + 2))
        a('s_branch %s' % Lskip)
        a.label(Lk1)
        for m in range(4):
            a('v_perm_b32 v%d, v%d, v%d, v%d' % (D + m, D + 4 + m, D + m, SEL))
        a('v_and_b32 v%d, 15, v%d' % (tmp, vLane))
        a('v_cmp_gt_u32 vcc, 4, v%d' % tmp)
        a('v_lshlrev_b32 v%d, 4, v%d' % (tmp, tmp))
        a('v_lshrrev_b32 v%d, 4, v%d' % (tmp + 1, vLane))
        a('v_lshl_add_u32 v%d, v%d, 6, v%d' % (tmp, tmp + 1, tmp))
        a('s_mov_b64 exec, vcc')
        a('buffer_store_dwordx4 %s, v%d, %s, s%d offen offset:2048 sc1' % (vr(D), tmp, srd(sWS), sT + 2))
        a('s_mov_b64 exec, -1')
        a.label(Lskip)

    def wou_flag(self, tmp):
        a = self.a
        Lskip = a.uid('Lwuf')
        a('s_lshr_b32 s%d, s%d, 1' % (sT, sWv))
        a('s_lshr_b32 s%d, s%d, 1' % (sT + 1, sTG))
        a('s_min_u32 s%d, s%d, s%d' % (sT, sT, sT + 1))
        a('s_cmp_lg_u32 s%d, 0' % sT)
        a('s_cbranch_scc1 %s' % Lskip)
        self.wou_ids()
        a('s_lshl_b32 s%d, s%d, 9' % (sT + 2, sT + 2))
        a('s_and_b32 s%d, s%d, 1' % (sT, sWv))
        a('s_mul_i32 s%d, s%d, 18' % (sT, sT))
        a('s_add_u32 s%d, s%d, s%d' % (sT + 3, sT + 3, sT))
        a('s_lshl_b32 s%d, s%d, 3' % (sT + 3, sT + 3))
        a('s_add_u32 s%d, s%d, s%d' % (sT + 2, sT + 2, sT + 3))
        a('s_add_u32 s%d, s%d, %d' % (sT + 2, sT + 2, WS_WFLG))
        self.store_nonce_flag(sT + 2, tmp)
        a.label(Lskip)

    def wo_stage(self, async_=False):
        a = self.a
        TMP = 88
        Lok = a.uid('Lwook')
        a('s_lshl_b32 s%d, s%d, 4' % (sT + 2, sSet))
        a('s_add_u32 s%d, s%d, s%d' % (sT + 2, sT + 2, sHG))
        a('s_cmp_lg_u32 s%d, 0' % sWoOk)
        a('s_cbranch_scc1 %s' % Lok)
        a('s_lshl_b32 s%d, s%d, 9' % (sT + 3, sT + 2))
        a('s_add_u32 s%d, s%d, %d' % (sT + 3, sT + 3, WS_WFLG))
        a('v_min_u32 v%d, 35, v%d' % (TMP + 2, vLane))
        a('v_lshlrev_b32 v%d, 3, v%d' % (TMP + 2, TMP + 2))
        self.poll_nonce_flags(sT + 3, TMP + 2, TMP, 16)
        a('s_mov_b32 s%d, 1' % sWoOk)
        a.label(Lok)
        a('s_mul_i32 s%d, s%d, %d' % (sT + 2, sT + 2, WIS))
        a('s_mul_i32 s%d, s%d, 10240' % (sT + 3, sWv))
        a('s_add_u32 s%d, s%d, s%d' % (sT + 2, sT + 2, sT + 3))
        a('s_add_u32 s%d, s%d, %d' % (sBase, sT + 2, WS_WIMG))
        a('s_add_u32 s%d, s%d, %d' % (sBase2, sT + 3, L_WO))
        a('v_lshlrev_b32 v%d, 4, v%d' % (TMP + 4, vLane))
        self.wait_flag(F_WF, sLayer, TMP, 9)
        self.wait_flag(F_WG, sLayer, TMP, 14)
        for n in range(11):
            if n % 4 == 0:
                a('s_add_u32 s%d, s%d, %d' % (sT, sBase, n * 1024))
                a('s_add_u32 s%d, s%d, %d' % (sT + 1, sBase2, n * 1024))
                a('s_mov_b32 m0, s%d' % (sT + 1))
            if n == 10:
                a('s_mov_b32 exec_hi, 0')
            a('buffer_load_dwordx4 v%d, %s, s%d offen offset:%d sc1 lds' % (TMP + 4, srd(sWS), sT, (n % 4) * 1024))
        a('s_mov_b64 exec, -1')
        if not async_:
            a('s_waitcnt vmcnt(0)')
            self.set_flag(F_WR, sLayer, TMP, add=1)
        self.tr(30)

    ORDER = [3, 1, 2, 0]
    UNIT = [0, 1, 8, 9, 3, 4, 11, 12, 2, 6, 10, 14, 5, 7, 13, 15]

    def kv_base(self, dst, layer_sreg_or_const, tg_add):
        a = self.a
        if isinstance(layer_sreg_or_const, str):
            a('s_lshl_b32 s%d, %s, 5' % (dst, layer_sreg_or_const))
        else:
            a('s_mov_b32 s%d, %d' % (dst, layer_sreg_or_const * 32))
        a('s_lshl_b32 s%d, s%d, 1' % (sT + 1, sTG))
        a('s_add_u32 s%d, s%d, s%d' % (dst, dst, sT + 1))
        a('s_add_u32 s%d, s%d, s%d' % (dst, dst, sP))
        a('s_lshl_b32 s%d, s%d, 4' % (dst, dst))
        a('s_add_u32 s%d, s%d, s%d' % (dst, dst, sHG))
        a('s_mul_i32 s%d, s%d, %d' % (dst, dst, KVT))
        a('s_add_u32 s%d, s%d, %d' % (dst, dst, WS_KV + tg_add * 32 * KVT))

    def kv_prefill(self, tmp):
        a = self.a
        a('v_lshlrev_b32 v%d, 4, v%d' % (tmp, vLane))
        a('s_mul_i32 s%d, s%d, 576' % (sT, sWv))
        a('v_add_u32 v%d, s%d, v%d' % (tmp, sT, tmp))
        for i in range(4):
            a('v_mov_b32 v%d, -1' % (tmp + 2 + i))
        a('s_mov_b32 s%d, 0' % sP)
        self.kv_base(sT + 2, 's%d' % sSet, 0)
        a('s_mov_b32 exec_lo, -1')
        a('s_mov_b32 exec_hi, 15')
        for l2 in range(2):
            for p_ in range(2):
                a('s_add_u32 s%d, s%d, %d' % (sT + 3, sT + 2, (l2 * 64 + p_) * 16 * KVT))
                a('buffer_store_dwordx4 %s, v%d, %s, s%d offen sc1' % (vr(tmp + 2), tmp, srd(sWS), sT + 3))
        a('s_mov_b64 exec, -1')

    def m_prep(self):
        a = self.a
        XA, TMP = 95, 40
        a('s_lshl_b32 s%d, s%d, 1' % (sN, sLayer))
        a('s_add_u32 s%d, s%d, s%d' % (sN, sN, sP))
        a('s_lshl_b32 s%d, s%d, 2' % (sG, sN))
        a('v_lshrrev_b32 v%d, 4, v%d' % (TMP, vLane))
        a('v_and_b32 v%d, 15, v%d' % (TMP + 1, vLane))
        self.swz(XA, TMP, TMP + 1, TMP + 2)
        a('v_add_u32 v%d, %d, v%d' % (XA + 1, 2 * MT, XA))
        a('v_lshlrev_b32 v%d, 3, v%d' % (TMP + 1, TMP + 1))
        a('v_lshl_add_u32 v%d, v%d, 8, v%d' % (XA + 2, TMP, TMP + 1))
        a('v_add_u32 v%d, 16384, v%d' % (XA + 2, XA + 2))

    def pub_pending(self, tmp, soft=False):
        a = self.a
        Ln = a.uid('Lnopub')
        a('s_cmp_eq_u32 s%d, 0' % sPub)
        if soft:
            a.softbranch('s_cbranch_scc1 %s' % Ln)
        else:
            a('s_cbranch_scc1 %s' % Ln)
        a('s_mov_b32 s%d, 0' % sPub)
        a('s_mov_b32 s%d, 0' % sP)
        self.both_modes(lambda sc: self.publish_event(0, tmp, sc))
        a('s_mov_b32 s%d, 1' % sP)
        a.label(Ln, noflush=soft)

    def m_role(self):
        a = self.a
        a.label('L_M_ROLE')
        a('s_mov_b32 s%d, 0' % sP)
        a.label('L_M_TASK')
        self.m_prep()
        a.label('L_M_GO')
        Lown = a.uid('Lown')
        a('s_cmp_eq_u32 s%d, 0' % sOwn)
        a('s_cbranch_scc1 %s' % Lown)
        a('s_waitcnt vmcnt(15)')
        self.set_flag(F_XR, sG, 40, add=1)
        a.label(Lown)
        self.kv_base(sBase, 's%d' % sLayer, 0)
        a('s_sub_u32 s%d, s%d, %d' % (sBase2, sBase, 32 * KVT))
        a('s_add_u32 s%d, s%d, 1' % (sT + 7, sG))
        Lrdy = a.uid('Lrdy')
        a('ds_read_b128 %s, v%d offset:%d' % (vr(40), vFlag, F_XR))
        a('s_waitcnt lgkmcnt(0)')
        self.flag_min(40)
        a('s_nop 1')
        a('s_cmp_ge_u32 s%d, s%d' % (sT + 8, sT + 7))
        a('s_cbranch_scc1 %s' % Lrdy)
        self.pub_pending(44)
        self.wait_flag(F_XR, sT + 7, 40, 1)
        a.label(Lrdy)
        if True:
            a('s_setprio 0')
        self.tr(11)
        for w in range(1, 4):
            a('s_cmp_eq_u32 s%d, %d' % (sWv, w))
            a('s_cbranch_scc1 L_A_W%d' % w)
        for w in range(4):
            a.label('L_A_W%d' % w)
            self.a_phase(w)
            if w < 3:
                a('s_branch L_M_EPI')
        a.label('L_M_EPI')
        if True:
            a('s_setprio %s' % '2')
        self.tr(12)
        self.attention()
        self.tr(15)
        a('s_add_u32 s%d, s%d, 1' % (sP, sP))
        a('s_cmp_lt_u32 s%d, 2' % sP)
        a('s_cbranch_scc1 L_M_TASK')
        a('s_mov_b32 s%d, 1' % sP)
        a('s_branch L_BPHASE')

    def a_phase(self, w):
        a = self.a
        ORDER = self.ORDER
        ACC = lambda s, t: (s * 2 + t) * 4
        G0, FL = 32, 36
        NB = 8
        RB = lambda i: 40 + 4 * (i % NB)
        QB, BPA, T3 = 72, 73, 74
        KD, KA = 76, 88
        XA = 95
        XT = 98
        LT = 99
        lds = []

        def L(tag, text):
            a(text)
            lds.append(tag)

        def wait_for(tag):
            idx = max(i for i, t in enumerate(lds) if t == tag)
            a('s_waitcnt lgkmcnt(%d)' % min(len(lds) - 1 - idx, 15))
        I = lambda text: (lambda: a(text))
        seq = [(u, ks) for u in range(4) for ks in range(18)]

        def rd(i):
            u, ks = seq[i]
            mt = ORDER[u]
            if ks < 16:
                L(('r', i), 'ds_read_b128 %s, v%d offset:%d' % (vr(RB(i)), XA + (mt >> 1), (mt & 1) * MT + ks * 1024))
            else:
                o = 128 * (ks - 16)
                L(('r', i), 'ds_read2_b64 %s, v%d offset0:%d offset1:%d' % (vr(RB(i)), XT, o, o + 16))
        PF = NB - 1
        chains = []

        def put(step, fns, deadline=10 ** 9):
            chains.append([step, deadline, list(fns)])

        def chk(off, tgt_fn, tag, code):
            def fin():
                Lok = a.uid('Lck')
                a('s_cmp_ge_u32 s%d, s%d' % (sT + 8, sT + 7))
                a.softbranch('s_cbranch_scc1 %s' % Lok)
                self.wait_flag(off, sT + 7, FL, code)
                a.label(Lok, noflush=True)
            return [lambda: L(tag, 'ds_read_b128 %s, v%d offset:%d' % (vr(FL), vFlag, off)),
                    I('s_nop 0'), I('s_nop 0'), I('s_nop 0'), tgt_fn,
                    lambda: (wait_for(tag), a('v_min3_u32 v%d, v%d, v%d, v%d' % (FL, FL, FL + 1, FL + 2))),
                    I('v_min_u32 v%d, v%d, v%d' % (FL, FL, FL + 3)),
                    I('s_nop 0'),
                    I('v_readfirstlane_b32 s%d, v%d' % (sT + 8, FL)),
                    I('s_nop 0'), fin]

        def setf_items(off, val, add, own_vm=None):
            def fin():
                if own_vm is None:
                    L('f', 'ds_write_b32 v%d, v%d offset:%d' % (vFlag, LT, off + 4 * w))
                else:
                    Lo = a.uid('Lop')
                    a('s_cmp_eq_u32 s%d, 0' % sOwn)
                    a.softbranch('s_cbranch_scc1 %s' % Lo)
                    a('s_waitcnt vmcnt(%d)' % own_vm)
                    a('ds_write_b32 v%d, v%d offset:%d' % (vFlag, LT, off + 4 * w))
                    a.label(Lo, noflush=True)
            return [I('s_add_u32 s%d, s%d, %d' % (sT + 6, val, add)),
                    I('v_mov_b32 v%d, s%d' % (LT, sT + 6)), fin]

        def epi_items(s):
            mt = ORDER[s]
            nm = T3
            it = [lambda: L(('m', s), 'ds_bpermute_b32 v%d, v%d, v%d' % (nm, BPA, ACC(s, 0) + 2))]
            G = G0
            if s == w:
                it += [I('v_add_u32 v%d, 0x%x, v%d' % (G + 2, L_ST + 64 * (mt + 1) - 192, BPA))]
            it.append(lambda: (wait_for(('m', s)), a('v_mul_f32 v%d, 0xbae38e39, v%d' % (nm, nm))))
            for t in range(2):
                for r in range(4):
                    it.append(I('v_fma_f32 v%d, v%d, v%d, v%d' % (ACC(s, t) + r, nm, vCS + 4 * t + r, ACC(s, t) + r)))
            for r in range(4):
                it.append(I('v_cvt_pk_bf16_f32 v%d, v%d, v%d' % (ACC(s, 0) + r, ACC(s, 0) + r, ACC(s, 1) + r)))
            if s == 0 and w > 0:
                def kvst():
                    a('s_mov_b32 exec_lo, 0xff00ff00')
                    a('s_mov_b32 exec_hi, 0xff00ff00')
                    a('buffer_store_dwordx4 %s, v%d, %s, s%d offen sc1' % (vr(ACC(0, 0)), KA, srd(sWS), sBase))
                    a('s_mov_b64 exec, -1')
                it.append(kvst)
            it.append(lambda: L('w', 'ds_write_b128 v%d, %s offset:%d' % (QB, vr(ACC(s, 0)), 16 * (mt + 1) * QP)))
            if s == w:
                def wr():
                    a('s_mov_b64 exec, 0xffff')
                    L('w', 'ds_write_b32 v%d, v%d' % (G + 2, G))
                    if w == 0:
                        a('s_mov_b64 exec, 0xff00')
                        a('buffer_store_dword v%d, v%d, %s, s%d offen offset:%d sc1' % (G, BPA, srd(sWS), sBase, 2048 - 192 - 32))
                    a('s_mov_b64 exec, -1')
                it += [I('v_fma_f32 v%d, -v%d, v%d, v%d' % (G, nm, nm, G)),
                       I('v_max_f32 v%d, 0, v%d' % (G, G)),
                       I('v_add_f32 v%d, 0x3727c5ac, v%d' % (G, G)),
                       I('v_rsq_f32 v%d, v%d' % (G, G)),
                       wr]
            return it
        pre = [I('v_and_b32 v%d, 15, v%d' % (T3, vLane)),
               I('v_add_u32 v%d, 48, v%d' % (BPA, T3)),
               I('v_lshlrev_b32 v%d, 2, v%d' % (BPA, BPA)),
               I('v_lshrrev_b32 v%d, 4, v%d' % (T3 + 1, vLane)),
               I('v_lshlrev_b32 v%d, 3, v%d' % (T3 + 1, T3 + 1)),
               I('s_mov_b32 s%d, 0x%x' % (sT + 5, sum((16 * self.UNIT[(3 * w + a_) if a_ < 3 else 12 + w]) << (8 * a_) for a_ in range(4)))),
               I('v_bfe_u32 v%d, s%d, v%d, 8' % (QB, sT + 5, T3 + 1))]
        if w > 0:
            pre += [I('v_and_b32 v%d, 7, v%d' % (KA, vLane)),
                    I('v_lshl_add_u32 v%d, v%d, 8, v%d' % (KA, KA, QB))]
        pre += [I('v_mul_u32_u24 v%d, %d, v%d' % (T3, QP, T3)),
                I('v_add_u32 v%d, 0x%x, v%d' % (T3, L_QKV, T3)),
                I('v_add_u32 v%d, v%d, v%d' % (QB, QB, T3))]
        put(0, pre, 10)
        put(int(os.environ.get('PUBSTEP', 5)), [lambda: self.pub_pending(92, soft=True)], int(os.environ.get('PUBSTEP', 5)))
        G = G0
        put(18 * w + 6, [I('v_lshrrev_b32 v%d, 4, v%d' % (G, vLane)),
                         I('v_lshl_add_u32 v%d, v%d, 8, v%d' % (G, G, BPA)),
                         I('v_add_u32 v%d, 0x%x, v%d' % (G, ORDER[w] * MT + 18432 - 192, G)),
                         lambda: L('s2', 'ds_read2_b32 %s, v%d offset0:32 offset1:48' % (vr(G + 2, 2), G)),
                         lambda: L('s1', 'ds_read2_b32 %s, v%d offset0:0 offset1:16' % (vr(G, 2), G)),
                         I('s_nop 0'), I('s_nop 0'), I('s_nop 0'),
                         lambda: (wait_for('s1'), a('v_add_f32 v%d, v%d, v%d' % (G, G, G + 1))),
                         I('v_add_f32 v%d, v%d, v%d' % (G + 2, G + 2, G + 3)),
                         I('v_add_f32 v%d, v%d, v%d' % (G, G, G + 2)),
                         I('v_mov_b32 v%d, v%d' % (G + 1, G)),
                         I('v_permlane32_swap_b32 v%d, v%d' % (G, G + 1)),
                         I('v_add_f32 v%d, v%d, v%d' % (G, G, G + 1)),
                         I('v_mov_b32 v%d, v%d' % (G + 1, G)),
                         I('v_permlane16_swap_b32 v%d, v%d' % (G, G + 1)),
                         I('v_add_f32 v%d, v%d, v%d' % (G, G, G + 1)),
                         I('v_mul_f32 v%d, 0x3ae38e39, v%d' % (G, G))], 18 * w + 17)
        for k in range(1, 4):
            st = 18 * k - PF - 1
            put(6 * k - 5, setf_items(F_XR, sG, k + 1, own_vm=15 - 5 * k), 6 * k - 2)
            put(st - 7 if k > 1 else 5,
                chk(F_XR, I('s_add_u32 s%d, s%d, %d' % (sT + 7, sG, k + 1)), ('xr', k), 2), st)
        put(11, chk(F_QF, I('s_mov_b32 s%d, s%d' % (sT + 7, sN)), 'qf', 3), 17)
        for s_ in range(3):
            put(18 * (s_ + 1) + 3, epi_items(s_), (27 if s_ == 0 else 56) if s_ < 2 else 71)
        if w == 0:
            def kvld():
                a('buffer_load_dwordx4 %s, v%d, %s, s%d offen sc1' % (vr(KD), KA, srd(sWS), sBase2))
                a('buffer_load_dwordx4 %s, v%d, %s, s%d offen offset:1024 sc1' % (vr(KD + 4), KA, srd(sWS), sBase2))
                a('buffer_load_dword v%d, v%d, %s, s%d offen offset:2048 sc1' % (KD + 8, KA + 1, srd(sWS), sBase2))

            def kvaddr2():
                a('s_cmp_eq_u32 s%d, 0' % sTG)
                a('s_cselect_b64 vcc, -1, 0')
                a('v_cndmask_b32 v%d, v%d, v%d, vcc' % (KA, KA, KA + 2))
                a('v_cndmask_b32 v%d, v%d, v%d, vcc' % (KA + 1, KA + 1, KA + 2))

            def kvchk():
                Lrt, Lok, Lnf = a.uid('Lkrt'), a.uid('Lkok'), a.uid('Lknf')
                a('s_cmp_lg_u32 s%d, 0' % sN)
                a.softbranch('s_cbranch_scc1 %s' % Lnf)
                self.init_check(40)
                a('s_branch %s' % Lrt)
                a.label(Lnf, noflush=True)
                a('s_and_b64 vcc, vcc, s[%d:%d]' % (sKm, sKm + 1))
                a.softbranch('s_cbranch_scc0 %s' % Lok)
                a.label(Lrt)
                self.budget_check(5)
                kvld()
                a('s_waitcnt vmcnt(0)')
                self.sentinel_vcc(range(KD, KD + 9), FL)
                a('s_nop 1')
                a('s_and_b64 vcc, vcc, s[%d:%d]' % (sKm, sKm + 1))
                a('s_cbranch_scc1 %s' % Lrt)
                a.label(Lok, noflush=True)
            kv = [I('v_lshlrev_b32 v%d, 4, v%d' % (KA, vLane)),
                  I('v_and_b32 v%d, 7, v%d' % (KA + 1, vLane)),
                  I('v_lshlrev_b32 v%d, 2, v%d' % (KA + 1, KA + 1)),
                  I('v_add_u32 v%d, 0x%x, v%d' % (KA + 3, L_ST + 32, KA + 1)),
                  I('v_mov_b32 v%d, 0x%x' % (KA + 2, OOB)),
                  kvaddr2]
            put(30, kv, 46)
            put(60, [kvld], 60)
            kv2 = [I('v_lshrrev_b32 v%d, 4, v%d' % (KA + 2, vLane)),
                   I('v_mul_u32_u24 v%d, %d, v%d' % (KA + 2, QP, KA + 2)),
                   I('v_and_b32 v%d, 15, v%d' % (KD + 9, vLane)),
                   I('v_lshl_add_u32 v%d, v%d, 4, v%d' % (KA + 2, KD + 9, KA + 2)),
                   I('v_add_u32 v%d, 0x%x, v%d' % (KA + 2, L_QKV + 8 * QP, KA + 2))]
            put(61, kv2, 68)
            kv3 = [I('s_waitcnt vmcnt(0)'),
                   I('v_max3_u32 v%d, v%d, v%d, v%d' % (FL, KD, KD + 1, KD + 2)),
                   I('v_max3_u32 v%d, v%d, v%d, v%d' % (FL, FL, KD + 3, KD + 4)),
                   I('v_max3_u32 v%d, v%d, v%d, v%d' % (FL, FL, KD + 5, KD + 6)),
                   I('v_max3_u32 v%d, v%d, v%d, v%d' % (FL, FL, KD + 7, KD + 8)),
                   I('v_cmp_eq_u32 vcc, -1, v%d' % FL),
                   I('s_nop 0'), I('s_nop 0')]
            post = kv3 + [kvchk,
                    lambda: L('w', 'ds_write_b128 v%d, %s' % (KA + 2, vr(KD))),
                    lambda: L('w', 'ds_write_b128 v%d, %s offset:%d' % (KA + 2, vr(KD + 4), 4 * QP)),
                    lambda: L('w', 'ds_write_b32 v%d, v%d' % (KA + 3, KD + 8))]
        else:
            def ini():
                Lnf = a.uid('Lknf')
                a('s_cmp_lg_u32 s%d, 0' % sN)
                a('s_cbranch_scc1 %s' % Lnf)
                self.init_check(40)
                a.label(Lnf)
            post = [ini]
        a('v_add_u32 v%d, %d, v%d' % (XT, ORDER[0] * MT, XA + 2))
        for i in range(PF):
            rd(i)
        done_upto = [-1]

        def need(i):
            idx = max(k for k, t in enumerate(lds) if t == ('r', i))
            if idx <= done_upto[0]:
                return
            tgt = ('r', i + 1) if ('r', i + 1) in lds else ('r', i)
            idx2 = max(k for k, t in enumerate(lds) if t == tgt)
            a('s_waitcnt lgkmcnt(%d)' % min(len(lds) - 1 - idx2, 15))
            done_upto[0] = idx2

        def fill(step, n):
            cnt = 0
            while True:
                cand = [c for c in chains if c[2] and c[0] <= step]
                if not cand:
                    return
                c = min(cand, key=lambda c: (c[1] - step) * 3 - len(c[2]))
                if cnt >= n and (c[1] - step) * 3 >= len(c[2]):
                    return
                c[2].pop(0)()
                cnt += 1
        for i in range(72):
            u, ks = seq[i]
            if os.environ.get('FINE') and ks == 0 and u > 0:
                self.tr(50 + u)
            need(i)
            a(mfma(ACC(u, 0), W(0, ks), RB(i), ks == 0))
            fill(i, 2)
            a(mfma(ACC(u, 1), W(1, ks), RB(i), ks == 0))
            used = 0
            j = i + PF
            if j < 72:
                if seq[j][1] == 16 and seq[j][0] > 0:
                    a('v_add_u32 v%d, %d, v%d' % (XT, ORDER[seq[j][0]] * MT, XA + 2))
                    used += 1
                rd(j)
                used += 1
            nxt = 0
            if i + 1 < 72:
                idx = max(k for k, t in enumerate(lds) if t == ('r', i + 1))
                nxt = 1 if idx > done_upto[0] else 0
            fill(i, max(0, 2 - used - nxt))
        for c in chains:
            for fn in c[2]:
                fn()
        a('s_mov_b32 s%d, 0' % sOwn)
        if os.environ.get('FINE'):
            self.tr(54)
        a('s_setprio 2')
        for fn in setf_items(F_XF, sN, 1) + epi_items(3):
            fn()
        a('s_waitcnt lgkmcnt(0)')
        for fn in setf_items(F_QR, sN, 1) + post:
            fn()

    def build_tables(self):
        a = self.a
        AD = 70
        T = 76
        il, hh, j, R = 84, 85, 86, 87
        SA = 88
        a('v_lshrrev_b32 v%d, 2, v%d' % (il, vLane))
        a('v_bfe_u32 v%d, v%d, 1, 1' % (hh, vLane))
        a('v_and_b32 v%d, 1, v%d' % (j, vLane))
        a('s_lshl_b32 s%d, s%d, 4' % (sT, sWv))
        a('s_add_u32 s%d, s%d, 16' % (sT, sT))
        a('v_add_u32 v%d, s%d, v%d' % (R, sT, il))
        a('v_mul_u32_u24 v%d, %d, v%d' % (T, QP, R))
        a('v_add_u32 v%d, 0x%x, v%d' % (T, L_QKV, T))
        a('v_lshl_add_u32 v%d, v%d, 7, v%d' % (AD, hh, T))
        a('v_lshl_add_u32 v%d, v%d, 2, v%d' % (AD + 1, hh, T))
        a('v_mul_u32_u24 v%d, %d, v%d' % (T + 1, 4 * QP, j))
        a('v_add_u32 v%d, %d, v%d' % (T + 1, 3 * QP, T + 1))
        a('v_sub_u32 v%d, v%d, v%d' % (AD + 2, AD, T + 1))
        a('v_sub_u32 v%d, v%d, v%d' % (AD + 3, AD + 1, T + 1))
        a('v_lshlrev_b32 v%d, 2, v%d' % (T + 2, R))
        a('v_add_u32 v%d, 0x%x, v%d' % (T + 2, L_ST, T + 2))
        a('v_lshlrev_b32 v%d, 4, v%d' % (T + 3, j))
        a('v_add_u32 v%d, 12, v%d' % (T + 3, T + 3))
        a('v_sub_u32 v%d, v%d, v%d' % (T + 3, T + 2, T + 3))
        a('v_lshl_add_u32 v%d, v%d, 6, v%d' % (AD + 4, j, AD))
        a('v_subrev_u32 v%d, %d, v%d' % (AD + 4, 7 * QP, AD + 4))
        a('v_subrev_u32 v%d, %d, v%d' % (AD + 5, 7 * QP, AD + 1))
        a('v_lshl_add_u32 v%d, v%d, 1, v%d' % (T + 4, hh, j))
        a('v_lshlrev_b32 v%d, 8, v%d' % (T + 4, T + 4))
        a('v_lshl_add_u32 v%d, v%d, 4, v%d' % (SA, il, T + 4))
        a('s_lshl_b32 s%d, s%d, 10' % (sT, sHG))
        a('v_add_u32 v%d, s%d, v%d' % (SA, sT, SA))
        a('s_lshl_b32 s%d, s%d, 7' % (sT, sHG))
        a('s_add_u32 s%d, s%d, 16384' % (sT, sT))
        a('v_lshlrev_b32 v%d, 3, v%d' % (T + 4, il))
        a('v_lshl_add_u32 v%d, v%d, 2, v%d' % (T + 4, hh, T + 4))
        a('v_add_u32 v%d, s%d, v%d' % (SA + 1, sT, T + 4))
        a('v_mov_b32 v76, v%d' % (T + 2))
        a('v_mov_b32 v77, v%d' % (T + 3))
        a('v_mov_b32 v90, v%d' % il)
        a('v_mov_b32 v91, v%d' % j)
        a('v_lshlrev_b32 v92, 4, v%d' % vLane)
        a('v_add_u32 v92, s%d, v92' % sTab)
        a('ds_write_b128 v92, %s' % vr(70))
        a('ds_write_b128 v92, %s offset:1024' % vr(74))
        a('ds_write_b128 v92, %s offset:2048' % vr(88))
        LA, LB, VT, TMP1 = 72, 73, 74, 75
        a('v_lshlrev_b32 v%d, 4, v%d' % (LA, vLane))
        a('v_add_u32 v%d, 0x%x, v%d' % (LA, L_WO, LA))
        a('v_and_b32 v%d, 3, v%d' % (LB, vLane))
        a('v_lshlrev_b32 v%d, 4, v%d' % (LB, LB))
        a('v_lshrrev_b32 v%d, 4, v%d' % (TMP1, vLane))
        a('v_lshl_add_u32 v%d, v%d, 6, v%d' % (LB, TMP1, LB))
        a('v_add_u32 v%d, 0x%x, v%d' % (LB, L_WO + 2048, LB))
        a('v_and_b32 v%d, 15, v%d' % (VT, vLane))
        a('v_lshlrev_b32 v%d, 3, v%d' % (VT, VT))
        a('v_lshl_add_u32 v%d, v%d, 8, v%d' % (VT, TMP1, VT))
        a('s_mov_b32 s%d, 0' % sP)
        self.xaddr_frag(76, 80)
        self.xaddr_nat(78, 80)
        a('ds_write_b128 v92, %s offset:3072' % vr(72))
        a('ds_write_b128 v92, %s offset:4096' % vr(76))
        a('s_waitcnt lgkmcnt(0)')

    def attention(self):
        a = self.a
        Q = 0
        K = 12
        RK = 60
        RO = 64
        S = 65
        AD = 70
        T = 76
        SA, il, j = 84, 86, 87
        a('v_lshlrev_b32 v%d, 4, v%d' % (92, vLane))
        a('v_add_u32 v%d, s%d, v%d' % (92, sTab, 92))
        a('ds_read_b128 %s, v92' % vr(70))
        a('ds_read_b128 %s, v92 offset:1024' % vr(74))
        a('ds_read_b128 %s, v92 offset:2048' % vr(84))
        a('s_mul_i32 s%d, s%d, %d' % (sBase, sLayer, LSTR))
        a('s_mul_i32 s%d, s%d, %d' % (sT, sP, TILE))
        a('s_add_u32 s%d, s%d, s%d' % (sBase, sBase, sT))
        a('s_add_u32 s%d, s%d, s%d' % (sBase, sBase, sTileW))
        a('s_add_u32 s%d, s%d, 1' % (sT + 7, sN))
        self.wait_flag(F_QR, sT + 7, 92, 4)
        self.tr(14)
        a('ds_read_b128 %s, v%d' % (vr(Q), AD))
        a('ds_read_b128 %s, v%d offset:16' % (vr(Q + 4), AD))
        a('ds_read_b32 v%d, v%d offset:80' % (Q + 8, AD + 1))
        for w in range(4):
            o = (3 - w) * QP
            a('ds_read_b128 %s, v%d offset:%d' % (vr(K + 12 * w), AD + 2, o + 48))
        for w in range(4):
            o = (3 - w) * QP
            a('ds_read_b128 %s, v%d offset:%d' % (vr(K + 12 * w + 4), AD + 2, o + 64))
        for w in range(4):
            o = (3 - w) * QP
            a('ds_read_b32 v%d, v%d offset:%d' % (K + 12 * w + 8, AD + 3, o + 112))
        a('ds_read_b32 v%d, v%d' % (RO, T))
        a('ds_read2_b32 %s, v%d offset0:0 offset1:1' % (vr(RK, 2), T + 1))
        a('ds_read2_b32 %s, v%d offset0:2 offset1:3' % (vr(RK + 2, 2), T + 1))
        a('s_waitcnt lgkmcnt(11)')
        for d in range(9):
            if d == 4:
                a('s_waitcnt lgkmcnt(7)')
            if d == 8:
                a('s_waitcnt lgkmcnt(3)')
            for w in range(4):
                c = '0' if d == 0 else 'v%d' % (S + w)
                a('v_dot2_f32_bf16 v%d, v%d, v%d, %s' % (S + w, Q + d, K + 12 * w + d, c))
        a('s_waitcnt lgkmcnt(0)')
        V = 12
        for w in range(8):
            o = (7 - w) * QP
            a('ds_read_b128 %s, v%d offset:%d' % (vr(V + 6 * w), AD + 4, o + 32))
            a('ds_read_b32 v%d, v%d offset:%d' % (V + 6 * w + 4, AD + 5, o + 208))
        c = struct.unpack('<I', struct.pack('<f', (18 ** -0.5) * 1.4426950408889634))[0]
        a('v_mul_f32 v%d, 0x%x, v%d' % (RO, c, RO))
        for w in range(4):
            a('v_mul_f32 v%d, v%d, v%d' % (S + w, S + w, RK + 3 - w))
        for w in range(4):
            a('v_mul_f32 v%d, v%d, v%d' % (S + w, S + w, RO))
        Lnm = a.uid('Lnomask')
        a('s_or_b32 s%d, s%d, s%d' % (sT, sTG, sWv))
        a('s_cmp_lg_u32 s%d, 0' % sT)
        a('s_cbranch_scc1 %s' % Lnm)
        a('v_lshlrev_b32 v%d, 2, v%d' % (T, j))
        a('v_mov_b32 v%d, 0xf149f2ca' % (T + 2))
        for w in range(4):
            a('v_add_u32 v%d, %d, v%d' % (T + 1, w, T))
            a('v_cmp_lt_u32 vcc, v%d, v%d' % (il, T + 1))
            a('v_cndmask_b32 v%d, v%d, v%d, vcc' % (S + w, S + w, T + 2))
        a.label(Lnm)
        a('v_max3_f32 v%d, v%d, v%d, v%d' % (T, S, S + 1, S + 2))
        a('v_max_f32 v%d, v%d, v%d' % (T, T, S + 3))
        a('v_cmp_eq_u32 vcc, 1, v%d' % j)
        a('v_max_f32_dpp v%d, v%d, v%d quad_perm:[1,0,3,2] row_mask:0xf bank_mask:0xf' % (T + 1, T, T))
        for w in range(4):
            a('v_sub_f32 v%d, v%d, v%d' % (S + w, S + w, T + 1))
        for w in range(4):
            a('v_exp_f32 v%d, v%d' % (S + w, S + w))
        a('v_add_f32 v%d, v%d, v%d' % (T, S, S + 1))
        a('v_add_f32 v%d, v%d, v%d' % (T + 1, S + 2, S + 3))
        a('v_add_f32 v%d, v%d, v%d' % (T, T, T + 1))
        for w in range(4):
            a('v_mul_f32 v%d, v%d, v%d' % (S + w, S + w, RK + 3 - w))
        a('v_add_f32_dpp v%d, v%d, v%d quad_perm:[1,0,3,2] row_mask:0xf bank_mask:0xf' % (T + 1, T, T))
        a('v_rcp_f32 v%d, v%d' % (T + 1, T + 1))
        for w in range(4):
            a('v_mul_f32 v%d, v%d, v%d' % (S + w, S + w, T + 1))
        a('v_cvt_pk_bf16_f32 v%d, v%d, v%d' % (T, S, S + 1))
        a('v_cvt_pk_bf16_f32 v%d, v%d, v%d' % (T + 1, S + 2, S + 3))
        a('v_mov_b32_dpp v%d, v%d quad_perm:[1,0,3,2] row_mask:0xf bank_mask:0xf' % (T + 2, T))
        a('v_mov_b32_dpp v%d, v%d quad_perm:[1,0,3,2] row_mask:0xf bank_mask:0xf' % (T + 3, T + 1))
        PP = 60
        a('v_cndmask_b32 v%d, v%d, v%d, vcc' % (PP, T, T + 2))
        a('v_cndmask_b32 v%d, v%d, v%d, vcc' % (PP + 1, T + 1, T + 3))
        a('v_cndmask_b32 v%d, v%d, v%d, vcc' % (PP + 2, T + 2, T))
        a('v_cndmask_b32 v%d, v%d, v%d, vcc' % (PP + 3, T + 3, T + 1))
        PL = 64
        for pr in range(4):
            a('v_and_b32 v%d, 0xffff, v%d' % (PL + 4 * pr, PP + pr))
            a('v_lshlrev_b32 v%d, 16, v%d' % (PL + 4 * pr + 1, PP + pr))
            a('v_lshrrev_b32 v%d, 16, v%d' % (PL + 4 * pr + 2, PP + pr))
            a('v_and_b32 v%d, 0xffff0000, v%d' % (PL + 4 * pr + 3, PP + pr))
        O = 0
        for w in range(8):
            a('s_waitcnt lgkmcnt(%d)' % (2 * (7 - w)))
            for m in range(5):
                for h in range(2):
                    c = '0' if w == 0 else 'v%d' % (O + 2 * m + h)
                    a('v_dot2_f32_bf16 v%d, v%d, v%d, %s' % (O + 2 * m + h, V + 6 * w + m, PL + 2 * w + h, c))
        for m in range(5):
            a('v_cvt_pk_bf16_f32 v%d, v%d, v%d' % (12 + m, O + 2 * m, O + 2 * m + 1))
        a('s_mov_b32 s%d, 0x55555555' % (sT + 2))
        a('s_mov_b32 s%d, 0x55555555' % (sT + 3))

        def st(sc):
            a('buffer_store_dwordx4 %s, v%d, %s, s%d offen%s' % (vr(12), SA, srd(sWS), sBase, sc))
            a('s_mov_b64 exec, s[%d:%d]' % (sT + 2, sT + 3))
            a('buffer_store_dword v16, v%d, %s, s%d offen%s' % (SA + 1, srd(sWS), sBase, sc))
            a('s_mov_b64 exec, -1')
            self.set_flag(F_QF, sN, 20, add=1)
            Ld = a.uid('Ldefer')
            a('s_mov_b32 s%d, 1' % sPub)
            a('s_cmp_eq_u32 s%d, %d' % (sP, 5 if os.environ.get('NODEFER') else 0))
            a('s_cbranch_scc1 %s' % Ld)
            a('s_mov_b32 s%d, 0' % sPub)
            self.publish_event(0, 24, sc)
            a.label(Ld)
        self.both_modes(st)

    def stage_generic(self):
        a = self.a
        TMP = 88
        AV = 84
        Lc = a.uid('Lnocs')
        a('s_cmp_eq_u32 s%d, 0' % sCs)
        a('s_cbranch_scc1 %s' % Lc)
        a('s_waitcnt vmcnt(0)')
        self.colsum(8)
        a('s_mov_b32 s%d, 0' % sCs)
        a.label(Lc)
        self.m_prep()
        Lne = a.uid('Lnoearly')
        a('s_cmp_eq_u32 s%d, 0' % sP)
        a('s_cbranch_scc1 %s' % Lne)
        a('ds_read_b128 %s, v%d offset:%d' % (vr(TMP), vFlag, F_XF))
        a('s_waitcnt lgkmcnt(0)')
        self.flag_min(TMP)
        a('s_nop 1')
        a('s_cmp_ge_u32 s%d, s%d' % (sT + 8, sN))
        a('s_cbranch_scc1 %s' % Lne)
        self.wo_stage(async_=True)
        a('s_mov_b32 s%d, 1' % sWoP)
        a.label(Lne)
        a('v_lshlrev_b32 v%d, 4, v%d' % (AV, vLane))
        a('s_sub_u32 s%d, s%d, 1' % (sT, sLayer))
        a('s_mul_i32 s%d, s%d, %d' % (sT, sT, LSTR))
        a('s_add_u32 s%d, s%d, %d' % (sT, sT, WS_X))
        a('s_mul_i32 s%d, s%d, %d' % (sT + 1, sP, TILE))
        a('s_add_u32 s%d, s%d, s%d' % (sT, sT, sT + 1))
        a('s_add_u32 s%d, s%d, s%d' % (sBase, sT, sTileW))
        a('s_sub_u32 s%d, s%d, s%d' % (sBase, sBase, sMt))
        a('s_mul_i32 s%d, s%d, 4864' % (sBase2, sWv))
        a('s_add_u32 s%d, s%d, s%d' % (sBase, sBase, sBase2))
        a('s_setprio 0')
        self.wait_flag(F_XF, sN, TMP, 6, sleep=1)
        self.tr(20)
        a('v_lshlrev_b32 v%d, 3, v%d' % (TMP + 2, vLane))
        a('s_lshl_b32 s%d, s%d, 9' % (sT + 2, sP))
        a('s_add_u32 s%d, s%d, s%d' % (sT + 2, sT + 2, sFlW))
        a('s_lshl_b32 s%d, s%d, 7' % (sT + 3, sWv))
        a('s_sub_u32 s%d, s%d, s%d' % (sT + 2, sT + 2, sT + 3))
        a('s_add_u32 s%d, s%d, 1024' % (sT + 2, sT + 2))
        a('s_add_u32 s%d, s%d, s%d' % (sT + 3, sNon, sLayer))
        a('s_mov_b64 vcc, -1')
        for k, mt in enumerate(self.ORDER):
            Lp, Lg = a.uid('Lsp'), a.uid('Lsg')
            half = 'vcc_lo' if mt < 2 else 'vcc_hi'
            msk = 0xffff << (16 * (mt & 1))
            a.label(Lp)
            a('s_and_b32 s%d, %s, 0x%x' % (sT, half, msk))
            a('s_cbranch_scc0 %s' % Lg)
            a('buffer_load_dwordx2 %s, v%d, %s, s%d offen sc1' % (vr(TMP, 2), TMP + 2, srd(sWS), sT + 2))
            self.budget_check(12)
            a('s_waitcnt vmcnt(0)')
            a('v_subrev_u32 v%d, s%d, v%d' % (TMP, sT + 3, TMP))
            a('v_xor_b32 v%d, s%d, v%d' % (TMP + 1, sNon + 1, TMP + 1))
            a('v_lshrrev_b32 v%d, 3, v%d' % (TMP, TMP))
            a('v_or_b32 v%d, v%d, v%d' % (TMP, TMP, TMP + 1))
            a('v_cmp_ne_u32 vcc, 0, v%d' % TMP)
            a('s_branch %s' % Lp)
            a.label(Lg)
            if k == 0:
                self.tr(25)
            a('s_add_u32 s%d, s%d, %d' % (sT, sBase, mt * MT))
            a('s_add_u32 s%d, s%d, %d' % (sT + 1, sBase2, mt * MT))
            a('s_mov_b32 m0, s%d' % (sT + 1))
            for k2 in range(4):
                a('buffer_load_dwordx4 v%d, %s, s%d offen offset:%d sc1 lds' % (AV, srd(sWS), sT, k2 * 1024))
            a('s_add_u32 s%d, s%d, 4096' % (sT, sT))
            a('s_add_u32 s%d, s%d, 4096' % (sT + 1, sT + 1))
            a('s_mov_b32 m0, s%d' % (sT + 1))
            a('s_mov_b32 exec_hi, 0xffff')
            a('buffer_load_dwordx4 v%d, %s, s%d offen sc1 lds' % (AV, srd(sWS), sT))
            a('s_mov_b32 exec_hi, -1')
        a('s_mov_b32 s%d, 1' % sOwn)
        a('s_cmp_eq_u32 s%d, 0' % sP)
        a('s_cbranch_scc1 L_M_GO')
        a('s_mov_b32 s%d, 0' % sOwn)
        a('s_waitcnt vmcnt(10)')
        self.set_flag(F_XR, sG, TMP, add=2)
        Lw1, Lw2 = a.uid('Lwe'), a.uid('Lwf')
        a('s_cmp_lg_u32 s%d, 0' % sWoP)
        a('s_cbranch_scc1 %s' % Lw1)
        self.wo_stage(async_=True)
        a('s_waitcnt vmcnt(11)')
        a('s_branch %s' % Lw2)
        a.label(Lw1)
        a('s_waitcnt vmcnt(0)')
        a.label(Lw2)
        self.set_flag(F_XR, sG, TMP, add=4)
        a('s_mov_b32 s%d, 1' % sWoP)
        self.tr(24)

    def stage_input_issue(self):
        a = self.a
        AV, LV, AT, LT_ = 84, 85, 86, 87
        TMP = 88
        a('s_mov_b32 s%d, s%d' % (sN, sP))
        a('s_lshl_b32 s%d, s%d, 2' % (sG, sN))
        a('v_lshrrev_b32 v%d, 2, v%d' % (TMP + 1, vLane))
        a('v_and_b32 v%d, 3, v%d' % (TMP, vLane))
        self.swz(LV, TMP, TMP + 1, TMP + 2)
        a('v_add_u32 v%d, s%d, v%d' % (LV, sMt, LV))
        a('s_lshl_b32 s%d, s%d, 7' % (sT, sTG))
        a('s_add_u32 s%d, s%d, s%d' % (sT, sT, sP))
        a('s_lshl_b32 s%d, s%d, 5' % (sT + 1, sWv))
        a('s_add_u32 s%d, s%d, s%d' % (sT + 1, sT + 1, sT))
        a('s_mul_i32 s%d, s%d, 1152' % (sT + 1, sT + 1))
        a('v_mul_u32_u24 v%d, 2304, v%d' % (TMP + 2, TMP + 1))
        a('v_add_u32 v%d, s%d, v%d' % (TMP + 2, sT + 1, TMP + 2))
        a('v_lshl_add_u32 v%d, v%d, 4, v%d' % (AV, TMP, TMP + 2))
        a('v_mul_u32_u24 v%d, 72, v%d' % (AT, TMP))
        a('v_add_u32 v%d, v%d, v%d' % (AT, AT, TMP + 2))
        a('v_lshlrev_b32 v%d, 7, v%d' % (LT_, TMP))
        a('v_lshl_add_u32 v%d, v%d, 3, v%d' % (LT_, TMP + 1, LT_))
        a('v_add_u32 v%d, s%d, v%d' % (LT_, sMt, LT_))
        for ks in range(16):
            a('buffer_load_dwordx4 %s, v%d, %s, 0 offen offset:%d' % (vr(4 * ks), AV, srd(sIN), 72 * ks))
        for c in range(4):
            a('buffer_load_dwordx2 %s, v%d, %s, 0 offen offset:%d' % (vr(64 + 2 * c, 2), AT, srd(sIN), 288 * c + 64))

    def stage_input_finish(self, extra_after=0, last_extra=0):
        a = self.a
        AV, LV, AT, LT_ = 84, 85, 86, 87
        TMP = 88
        self.wait_flag(F_XF, sN, TMP, 6)
        rem = [14, 8, 0]
        for seg in range(3):
            a('s_waitcnt vmcnt(%d)' % (rem[seg] + (extra_after if seg < 2 else last_extra)))
            if seg == 0:
                self.tr(21)
            for ks in range(6 * seg, min(6 * seg + 6, 16)):
                a('ds_write_b128 v%d, %s offset:%d' % (LV, vr(4 * ks), ks * 1024))
            if seg == 2:
                for c in range(4):
                    a('ds_write_b64 v%d, %s offset:%d' % (LT_, vr(64 + 2 * c, 2), 16384 + 512 * c))
        for i in range(72):
            a('v_dot2_f32_bf16 v%d, v%d, v%d, %s' % (TMP + (i & 1), i, i, '0' if i < 2 else 'v%d' % (TMP + (i & 1))))
        a('v_add_f32 v%d, v%d, v%d' % (TMP, TMP, TMP + 1))
        a('v_mov_b32 v%d, 0' % (TMP + 1))
        a('v_subrev_u32 v%d, s%d, v%d' % (TMP + 2, sMt, LT_))
        a('v_lshrrev_b32 v%d, 1, v%d' % (TMP + 2, TMP + 2))
        a('v_add_u32 v%d, s%d, v%d' % (TMP + 2, sMt, TMP + 2))
        a('ds_write_b32 v%d, v%d offset:18432' % (TMP + 2, TMP))
        for c in range(1, 4):
            a('ds_write_b32 v%d, v%d offset:%d' % (TMP + 2, TMP + 1, 18432 + 256 * c))
        a('s_waitcnt lgkmcnt(0)')
        self.set_flag(F_XR, sG, TMP, add=4)
        self.tr(24)

    def hb_addr(self, d, tmp):
        a = self.a
        a('v_and_b32 v%d, 7, v%d' % (tmp, vLane))
        a('v_lshrrev_b32 v%d, 4, v%d' % (tmp + 1, vLane))
        a('v_lshlrev_b32 v%d, 4, v%d' % (d, tmp))
        a('v_lshl_add_u32 v%d, v%d, 7, v%d' % (d, tmp + 1, d))
        a('s_lshl_b32 s%d, s%d, 9' % (sT, sHG))
        a('v_add_u32 v%d, s%d, v%d' % (d, sT, d))
        a('s_lshl_b32 s%d, s%d, 6' % (sT, sHG))
        a('s_add_u32 s%d, s%d, 8192' % (sT, sT))
        a('v_lshlrev_b32 v%d, 3, v%d' % (d + 1, tmp))
        a('v_add_u32 v%d, s%d, v%d' % (d + 1, sT, d + 1))

    def hb_store(self, d, data, soff):
        a = self.a
        a('s_mov_b32 s%d, 0xff00ff00' % (sT + 4))
        a('s_mov_b32 s%d, 0xff00ff00' % (sT + 5))
        a('s_mov_b64 exec, s[%d:%d]' % (sT + 4, sT + 5))
        a('buffer_store_dwordx4 %s, v%d, %s, s%d offen sc1' % (vr(data), d, srd(sWS), soff))
        a('s_mov_b64 exec, 0xff00')
        a('buffer_store_dwordx2 %s, v%d, %s, s%d offen sc1' % (vr(data + 4, 2), d + 1, srd(sWS), soff))
        a('s_mov_b64 exec, -1')

    def hb_base(self, dst, layer_add):
        a = self.a
        a('s_add_u32 s%d, s%d, %d' % (dst, sLayer, layer_add))
        a('s_lshl_b32 s%d, s%d, 5' % (dst, dst))
        a('s_lshl_b32 s%d, s%d, 1' % (sT + 1, sTG))
        a('s_add_u32 s%d, s%d, s%d' % (dst, dst, sT + 1))
        a('s_add_u32 s%d, s%d, s%d' % (dst, dst, sP))
        a('s_mul_i32 s%d, s%d, %d' % (dst, dst, HBT))
        a('s_add_u32 s%d, s%d, %d' % (dst, dst, WS_HB))

    def bphase(self):
        a = self.a
        NS = 12
        ACC = 48
        WB = [60, 72, 84]
        LA, LB, VT, TMP1 = 96, 97, 98, 99
        slot = lambda ks: 4 * (ks % NS)
        a('s_mul_i32 s%d, s%d, %d' % (sBase, sLayer, LSTR))
        a('s_mul_i32 s%d, s%d, %d' % (sT, sP, TILE))
        a('s_add_u32 s%d, s%d, s%d' % (sBase, sBase, sT))
        a('s_add_u32 s%d, s%d, s%d' % (sBase, sBase, sTileW))
        a('v_lshlrev_b32 v100, 4, v%d' % vLane)
        a('v_add_u32 v100, s%d, v100' % sTab)
        a('ds_read_b128 %s, v100 offset:3072' % vr(96))
        a('s_waitcnt lgkmcnt(0)')

        def wreads(ks):
            b = WB[ks % 3]
            a('ds_read_b128 %s, v%d offset:%d' % (vr(b), LA, ks * 2304))
            a('ds_read_b128 %s, v%d offset:%d' % (vr(b + 4), LA, ks * 2304 + 1024))
            a('ds_read_b128 %s, v%d offset:%d' % (vr(b + 8), LB, ks * 2304))
        def wread1(ks, t):
            b = WB[ks % 3]
            if t < 2:
                a('ds_read_b128 %s, v%d offset:%d' % (vr(b + 4 * t), LA, ks * 2304 + 1024 * t))
            else:
                a('ds_read_b128 %s, v%d offset:%d' % (vr(b + 8), LB, ks * 2304))
        self.tr(40)
        def hook():
            Lwp = a.uid('Lwop')
            a('s_cmp_eq_u32 s%d, 0' % sWoP)
            a('s_cbranch_scc1 %s' % Lwp)
            self.set_flag(F_WR, sLayer, WB[0], add=1)
            a('s_mov_b32 s%d, 0' % sWoP)
            a.label(Lwp)
        self.poll_event(0, 0, ACC, 13, hook=hook)
        self.tr(44)
        issued = []

        def oload(ks):
            if ks < 16:
                if ks % 4 == 0:
                    a('s_add_u32 s%d, s%d, %d' % (sT + 2, sBase, WS_PAD + ks * 1024 - L_WO))
                a('buffer_load_dwordx4 %s, v%d, %s, s%d offen offset:%d sc1' %
                  (vr(slot(ks)), LA, srd(sWS2), sT + 2, (ks % 4) * 1024))
                issued.append(ks)
            else:
                a('s_add_u32 s%d, s%d, 16384' % (sT + 3, sBase))
                a('buffer_load_dwordx2 %s, v%d, %s, s%d offen offset:%d sc1' %
                  (vr(slot(ks), 2), VT, srd(sWS), sT + 3, (ks - 16) * 1024))
                a('buffer_load_dwordx2 %s, v%d, %s, s%d offen offset:%d sc1' %
                  (vr(slot(ks) + 2, 2), VT, srd(sWS), sT + 3, (ks - 16) * 1024 + 128))
                issued.extend([ks, ks])
        for ks in range(NS):
            oload(ks)
        a('s_add_u32 s%d, s%d, 1' % (sT + 7, sLayer))
        self.wait_flag(F_WR, sT + 7, WB[0], 10)
        for ks in range(3):
            wreads(ks)
        RES = 24
        RA = 32
        for ks in range(18):
            last = max(i for i, t in enumerate(issued) if t == ks)
            a('s_waitcnt vmcnt(%d) lgkmcnt(%d)' % (len(issued) - 1 - last, 3 * min(2, 17 - ks)))
            if ks == 0:
                self.tr(41)
            for t in range(3):
                a(mfma(ACC + 4 * t, WB[ks % 3] + 4 * t, slot(ks), ks == 0))
                if ks + 3 < 18:
                    wread1(ks + 3, t)
            if ks + NS < 18:
                oload(ks + NS)
            if ks == 9:
                a('ds_read_b128 %s, v100 offset:4096' % vr(RA))
            if ks == 10:
                L0, L1 = a.uid('Lres0'), a.uid('Lres1')
                a('s_add_u32 s%d, s%d, %d' % (sBase2, sBase, WS_X))
                a('s_mul_i32 s%d, s%d, 1152' % (sT + 4, sP))
                a('s_waitcnt lgkmcnt(3)')
                a('s_cmp_eq_u32 s%d, 0' % sLayer)
                a.softbranch('s_cbranch_scc1 %s' % L0)
                a('buffer_load_dwordx4 %s, v%d, %s, s%d offen sc1' % (vr(RES), RA, srd(sWS), sBase2))
                a('buffer_load_dwordx2 %s, v%d, %s, s%d offen sc1' % (vr(RES + 4, 2), RA + 1, srd(sWS), sBase2))
                a.softbranch('s_branch %s' % L1)
                a.label(L0, noflush=True)
                a('buffer_load_dwordx4 %s, v%d, %s, s%d offen' % (vr(RES), RA + 2, srd(sIN), sT + 4))
                a('buffer_load_dwordx2 %s, v%d, %s, s%d offen' % (vr(RES + 4, 2), RA + 3, srd(sIN), sT + 4))
                a.label(L1, noflush=True)
                issued.extend(['r', 'r'])
        self.tr(42)
        E = 0
        U = 60
        pairs = [(ACC + r, ACC + 4 + r) for r in range(4)] + [(ACC + 8, ACC + 9), (ACC + 10, ACC + 11)]
        if os.environ.get('ONEROUND'):
            a('s_waitcnt vmcnt(0)')
            for m in range(6):
                a('v_lshlrev_b32 v%d, 16, v%d' % (U + 2 * m, RES + m))
                a('v_and_b32 v%d, 0xffff0000, v%d' % (U + 1 + 2 * m, RES + m))
            for m, (x0, x1) in enumerate(pairs):
                a('v_add_f32 v%d, v%d, v%d' % (U + 2 * m, U + 2 * m, x0))
                a('v_add_f32 v%d, v%d, v%d' % (U + 1 + 2 * m, U + 1 + 2 * m, x1))
            for m in range(6):
                a('v_cvt_pk_bf16_f32 v%d, v%d, v%d' % (E + m, U + 2 * m, U + 1 + 2 * m))
        else:
            for m, (x0, x1) in enumerate(pairs):
                a('v_cvt_pk_bf16_f32 v%d, v%d, v%d' % (E + m, x0, x1))
            a('s_waitcnt vmcnt(0)')
            for m in range(6):
                a('v_lshlrev_b32 v%d, 16, v%d' % (U + 2 * m, E + m))
                a('v_and_b32 v%d, 0xffff0000, v%d' % (U + 1 + 2 * m, E + m))
                a('v_lshlrev_b32 v%d, 16, v%d' % (U + 12 + 2 * m, RES + m))
                a('v_and_b32 v%d, 0xffff0000, v%d' % (U + 13 + 2 * m, RES + m))
            for m in range(12):
                a('v_add_f32 v%d, v%d, v%d' % (U + m, U + m, U + 12 + m))
            for m in range(6):
                a('v_cvt_pk_bf16_f32 v%d, v%d, v%d' % (E + m, U + 2 * m, U + 1 + 2 * m))
        L0, L1 = a.uid('Lst0'), a.uid('Lst1')
        a('s_cmp_eq_u32 s%d, %d' % (sLayer, self.nlayers - 1))
        a('s_cbranch_scc1 %s' % L0)

        def st(sc):
            a('buffer_store_dwordx4 %s, v32, %s, s%d offen%s' % (vr(E), srd(sWS), sBase2, sc))
            a('s_mov_b64 exec, 0xffff')
            a('buffer_store_dwordx2 %s, v33, %s, s%d offen%s' % (vr(E + 4, 2), srd(sWS), sBase2, sc))
            a('s_mov_b64 exec, -1')
            for m in range(4):
                a('v_dot2_f32_bf16 v8, v%d, v%d, %s' % (E + m, E + m, '0' if m == 0 else 'v8'))
            a('v_dot2_f32_bf16 v10, v%d, v%d, 0' % (E + 4, E + 4))
            a('v_dot2_f32_bf16 v10, v%d, v%d, v10' % (E + 5, E + 5))
            a('v_lshrrev_b32 v11, 1, v33')
            a('v_mov_b32 v9, v8')
            a('v_permlane32_swap_b32 v8, v9')
            a('v_add_f32 v8, v8, v9')
            a('v_mov_b32 v9, v8')
            a('v_permlane16_swap_b32 v8, v9')
            a('v_add3_f32 v8, v8, v9, v10') if False else None
            a('v_add_f32 v8, v8, v9')
            a('v_add_f32 v8, v8, v10')
            a('s_add_u32 s%d, s%d, %d' % (sT + 2, sBase2, 18432 - 8192))
            a('s_mov_b64 exec, 0xffff')
            a('buffer_store_dword v8, v11, %s, s%d offen%s' % (srd(sWS), sT + 2, sc))
            a('s_mov_b64 exec, -1')
            self.publish_event(2, 44, sc)
        self.both_modes(st)
        a('s_branch %s' % L1)
        a.label(L0)
        OSC = os.environ.get('OUTSC', '')
        a('buffer_store_dwordx4 %s, v34, %s, s%d offen %s' % (vr(E), srd(sOUT), sT + 4, OSC))
        a('s_mov_b64 exec, 0xffff')
        a('buffer_store_dwordx2 %s, v35, %s, s%d offen %s' % (vr(E + 4, 2), srd(sOUT), sT + 4, OSC))
        a('s_mov_b64 exec, -1')
        a.label(L1)
        a('s_lshl_b32 s%d, s%d, 4' % (sT, sP))
        a('s_lshl_b32 s%d, s%d, 2' % (sT + 1, sWv))
        a('s_sub_u32 s%d, s%d, s%d' % (sT, sT + 1, sT))
        a('v_add_u32 v60, s%d, v%d' % (sT, vFlag))
        a('s_add_u32 s%d, s%d, 1' % (sT, sLayer))
        a('v_mov_b32 v61, s%d' % sT)
        a('ds_write_b32 v60, v61 offset:%d' % F_WG)
        self.tr(43)

    def xaddr_frag(self, d, tmp):
        a = self.a
        a('v_lshrrev_b32 v%d, 4, v%d' % (tmp, vLane))
        a('v_and_b32 v%d, 15, v%d' % (tmp + 1, vLane))
        self.swz(d, tmp, tmp + 1, tmp + 2)
        a('s_lshl_b32 s%d, s%d, 10' % (sT, sHG))
        a('v_add_u32 v%d, s%d, v%d' % (d, sT, d))
        a('s_lshl_b32 s%d, s%d, 7' % (sT, sHG))
        a('s_add_u32 s%d, s%d, 16384' % (sT, sT))
        a('v_lshlrev_b32 v%d, 3, v%d' % (tmp + 1, tmp + 1))
        a('v_add_u32 v%d, s%d, v%d' % (d + 1, sT, tmp + 1))

    def xaddr_nat(self, d, tmp):
        a = self.a
        a('s_lshl_b32 s%d, s%d, 7' % (sT, sTG))
        a('s_add_u32 s%d, s%d, s%d' % (sT, sT, sP))
        a('s_lshl_b32 s%d, s%d, 5' % (sT + 1, sWv))
        a('s_add_u32 s%d, s%d, s%d' % (sT, sT, sT + 1))
        a('s_mul_i32 s%d, s%d, 1152' % (sT, sT))
        a('s_mul_i32 s%d, s%d, 72' % (sT + 1, sHG))
        a('s_add_u32 s%d, s%d, s%d' % (sT, sT, sT + 1))
        a('v_and_b32 v%d, 15, v%d' % (tmp, vLane))
        a('v_mul_u32_u24 v%d, 2304, v%d' % (tmp, tmp))
        a('v_add_u32 v%d, s%d, v%d' % (tmp, sT, tmp))
        a('v_add_u32 v%d, 64, v%d' % (d + 1, tmp))
        a('v_lshrrev_b32 v%d, 4, v%d' % (tmp + 1, vLane))
        a('v_lshl_add_u32 v%d, v%d, 4, v%d' % (d, tmp + 1, tmp))

    def build(self):
        a = self.a
        self.prologue()
        a('s_cmp_eq_u32 s%d, 0' % sSet)
        a('s_cbranch_scc0 L_H0')
        if not os.environ.get('DIRECTA'):
            self.wload_addr(0, 1, 2)
            self.coop_issue(0, 1)
            self.wou_issue(16, 24)
            self.kv_prefill(32)
            a('s_waitcnt vmcnt(12)')
            self.tr(5)
            self.coop_store(2)
            a('s_waitcnt vmcnt(2)')
            self.wou_store(16, 24)
            self.get_nonce(8)
            self.coop_flag(12)
            self.wou_flag(8)
            a('s_mov_b32 s%d, 1' % (sT + 7))
            self.set_flag(F_XH, sT + 7, 12)
            self.tr(6)
            a('s_mov_b32 s%d, 0' % sP)
            self.stage_input_issue()
            self.stage_input_finish()
            self.coop_load(0)
            self.colsum(8, progressive=True)
        else:
            self.wload_addr(99, 100, 92)
            self.kv_prefill(80)
            self.wou_issue(72, 92)
            self.stage_input_issue()
            self.wload_issue(range(0, 18), 99, 100)
            self.tr(5)
            self.stage_input_finish(extra_after=49, last_extra=63)
            self.wou_store(72, 92)
            self.ones_mask(2, 3)
            self.get_nonce(8)
            self.wou_flag(8)
            self.tr(6)
            self.wload_perm(range(18), 2, 4)
            self.colsum(8)
        a('s_mov_b32 s%d, 2' % (sT + 7))
        self.set_flag(F_XH, sT + 7, 12)
        self.tr(2)
        if os.environ.get('ENDT'):
            a('s_memrealtime s[%d:%d]' % (sTm, sTm + 1))
            a('s_waitcnt lgkmcnt(0)')
            a('s_sub_u32 s%d, s%d, s%d' % (sTm, sTm, sNon))
            a('v_mov_b32 v0, s%d' % sTm)
            a('v_mov_b32 v1, 12')
            a('s_mov_b64 exec, 1')
            a('buffer_atomic_umax v0, v1, %s, 0 offen' % srd(sDBG))
            a('s_mov_b64 exec, -1')
        a('s_branch L_M_ROLE')
        a.label('L_H0')
        Ln, Lp = a.uid('Lnn'), a.uid('Lpf0')
        a('s_cmp_lg_u32 s2, 0')
        a('s_cbranch_scc1 %s' % Ln)
        a('s_cmp_lg_u32 s%d, 0' % sWv)
        a('s_cbranch_scc1 %s' % Ln)
        a('s_memrealtime s[%d:%d]' % (sNon, sNon + 1))
        a('s_waitcnt lgkmcnt(0)')
        a('s_or_b32 s%d, s%d, 1' % (sNon, sNon))
        a('s_or_b32 s%d, s%d, 1' % (sNon + 1, sNon + 1))
        a('v_mov_b32 v72, s%d' % sNon)
        a('v_mov_b32 v73, s%d' % (sNon + 1))
        a('v_mov_b32 v74, 0')
        a('buffer_store_dwordx2 v[72:73], v74, %s, 0 offen sc1' % srd(sDBG))
        a.label(Ln)
        self.wload_addr(99, 100, 92)
        self.coop_issue(99, 100)
        self.wou_issue(72, 92)
        self.kv_prefill(80)
        a('s_waitcnt vmcnt(4)')
        self.tr(5)
        self.coop_store(vCS)
        self.wou_store(72, 92)
        self.get_nonce(72)
        a('s_mov_b32 s%d, 1' % (sT + 7))
        self.set_flag(F_XH + 16, sT + 7, 72)
        Lf = a.uid('Lif')
        a('s_cmp_lg_u32 s%d, 3' % sWv)
        a('s_cbranch_scc1 %s' % Lf)
        self.wait_flag(F_XH, sT + 7, 72, 18)
        self.wait_flag(F_XH + 16, sT + 7, 72, 19)
        a('s_lshl_b32 s%d, s%d, 4' % (sT, sTG))
        a('s_add_u32 s%d, s%d, s%d' % (sT, sT, sHG))
        a('s_lshl_b32 s%d, s%d, 4' % (sT, sT))
        a('s_add_u32 s%d, s%d, %d' % (sT, sT, WS_INI))
        a('v_mov_b32 v72, s%d' % sNon)
        a('v_mov_b32 v73, s%d' % (sNon + 1))
        a('v_mov_b32 v74, s%d' % sXcc)
        a('v_mov_b32 v75, s%d' % sNon)
        a('v_mov_b32 v76, 0')
        a('s_mov_b64 exec, 1')
        a('buffer_store_dwordx4 v[72:75], v76, %s, s%d offen sc1' % (srd(sWS), sT))
        a('s_mov_b64 exec, -1')
        a.label(Lf)
        self.coop_flag(78)
        self.wou_flag(92)
        self.tr(6)
        self.build_tables()
        a('s_mov_b32 s%d, 2' % (sT + 7))
        self.set_flag(F_XH + 16, sT + 7, 72)
        self.wait_flag(F_XH, sT + 7, 72, 20, sleep=4)
        a('s_mov_b32 s%d, 1' % sP)
        self.stage_input_issue()
        self.wo_stage()
        self.init_check(72)
        self.coop_load(72)
        self.stage_input_finish(extra_after=36, last_extra=36)
        self.tr(3)
        a('s_mov_b32 s%d, 0' % sP)
        a('s_branch L_BPHASE')
        self.m_role()
        a.label('L_BPHASE')
        self.bphase()
        a('s_add_u32 s%d, s%d, 1' % (sLayer, sLayer))
        a('s_cmp_ge_u32 s%d, %d' % (sLayer, self.nlayers))
        a('s_cbranch_scc1 L_END')
        a.label('L_STAGE')
        self.stage_generic()
        a('s_cmp_eq_u32 s%d, 0' % sP)
        a('s_cbranch_scc1 L_M_ROLE')
        a('s_mov_b32 s%d, 0' % sP)
        a('s_branch L_BPHASE')
        a.label('L_ABORT')
        a('s_mov_b64 exec, -1')
        a('s_lshl_b32 s%d, s%d, 2' % (sT, sT + 9))
        a('s_add_u32 s%d, s%d, 64' % (sT, sT))
        a('v_mov_b32 v0, s2')
        a('v_add_u32 v0, 0x1000, v0')
        a('v_mov_b32 v1, s%d' % sT)
        a('buffer_store_dword v0, v1, %s, 0 offen sc1' % srd(sDBG))
        a.label('L_END')
        if os.environ.get('ENDT'):
            a('s_cmp_ge_u32 s2, 256')
            a('s_cbranch_scc1 L_END3')
            a('s_memrealtime s[%d:%d]' % (sTm, sTm + 1))
            a('s_waitcnt lgkmcnt(0)')
            a('s_sub_u32 s%d, s%d, s%d' % (sTm, sTm, sNon))
            a('v_mov_b32 v0, s%d' % sTm)
            a('v_mov_b32 v1, 8')
            a('s_mov_b64 exec, 1')
            a('buffer_atomic_umax v0, v1, %s, 0 offen' % srd(sDBG))
            a.label('L_END3')
        if self.debug:
            a('s_cmp_ge_u32 s2, 256')
            a('s_cbranch_scc1 L_END2')
            self.tr(63)
            a('s_lshl_b32 s%d, s2, 3' % sT)
            a('s_add_u32 s%d, s%d, s%d' % (sT, sT, sWave))
            a('s_lshl_b32 s%d, s%d, 8' % (sT, sT))
            a('s_add_u32 s%d, s%d, %d' % (sT, sT, WS_TRC))
            a('v_lshlrev_b32 v0, 2, v%d' % vLane)
            a('buffer_store_dword v%d, v0, %s, s%d offen' % (vTr, srd(sWS), sT))
            a.label('L_END2')
        a('s_endpgm')

    def text(self):
        hdr = open(os.path.join(os.path.dirname(os.path.abspath(__file__)), '..', 'cdna_kernels', NAME + '.s.ref')).read()
        out = hdr.split('; Override launch geometry')[0]
        out += '; @launch grid=(256,1,1) block=(512,1,1) lds=%d\n' % LDS_BYTES
        out += '.amdgcn_target "amdgcn-amd-amdhsa--gfx950"\n.text\n'
        out += '.globl %s_kernel\n.p2align 8\n.type %s_kernel,@function\n%s_kernel:\n' % (NAME, NAME, NAME)
        out += self.a.render()
        out += '''.section .rodata,"a"
.p2align 6
.amdhsa_kernel %s_kernel
  .amdhsa_next_free_vgpr 256
  .amdhsa_next_free_sgpr 96
  .amdhsa_accum_offset 256
  .amdhsa_group_segment_fixed_size 0
  .amdhsa_kernarg_size 72
  .amdhsa_user_sgpr_count 2
  .amdhsa_user_sgpr_kernarg_segment_ptr 1
  .amdhsa_system_sgpr_workgroup_id_x 1
.end_amdhsa_kernel
''' % NAME
        return out


if __name__ == '__main__':
    nl = int(sys.argv[2]) if len(sys.argv) > 2 else 4
    g = Gen(nlayers=nl, debug=(len(sys.argv) > 3 and sys.argv[3] == 'trace'))
    g.build()
    path = sys.argv[1] if len(sys.argv) > 1 else os.path.join(os.path.dirname(os.path.abspath(__file__)), '..', 'cdna_kernels', NAME + '.s')
    open(path, 'w').write(g.text())
    print('wrote', path)
```

```python
import sys, os, struct
sys.path.insert(0, os.path.dirname(os.path.abspath(__file__)))
from asmlib import Asm

NAME = 'interleave_layers__sliding_local_dilated__sliding_local_dilated__prompt'

XBYTES = 2048 * 576 * 2
MT = 19456
TILE = 4 * MT
WS_X = 4 * XBYTES
LSTR = 0
WS_KV = 6 * XBYTES
KVT = 2304
WS_FL = 9 * XBYTES
WS_INI = WS_FL + 65536
WS_CFLG = WS_FL + 131072
WS_WFLG = WS_FL + 262144
WS_TRC = 10 * XBYTES
WS_CIMG = 11 * XBYTES
WS_PIMG = 14 * XBYTES
WS_PFLG = WS_FL + 393216
WS_WIMG = 13 * XBYTES
WIS = 41984
WS_SIZE = 80 << 20
WS_PAD = 1 << 20
OOB = 0x7F000000

L_QKV = 4 * MT
QP = 272
L_WO = L_QKV + 80 * QP
L_ST = L_WO + 18 * 2304
L_FLG = L_ST + 320
L_TAB = L_FLG + 256
LDS_BYTES = 162560
F_XR, F_XF, F_QR, F_QF, F_WR, F_WF, F_WG, F_XH = 0, 16, 32, 48, 64, 80, 96, 112

sIN, sWQ, sWO, sOUT, sWS, sDBG = 24, 28, 32, 36, 40, 44
sWave, sWv, sSet, sTG, sHG, sLayer, sP, sN, sBud = 48, 49, 50, 51, 52, 53, 54, 55, 56
sG = 57
sNon = 58
sT = 60
sSelLo, sSelHi = 72, 73
sM1, sM2, sM3, sMD = 74, 76, 78, 80
sPend = 82
sBase = 83
sBase2 = 84
sFast = 85
sTm = 86
sWS2 = 88
sTi = 92
sXcc = 93
sWoOk = 94
sTileW = 95
sMt = 4
sQo = 8
sFlW = 12
sOwn = 13
sCs = 14
sQu = 16
sSt = 18
sKm = 20
sH = 22
sPass = 23
sWoP = 15
sPub = 7
sTab = 8
vTr = 101
vFlag, vLane = 102, 103
vCS = 104
vW = 112


def srd(n):
    return 's[%d:%d]' % (n, n + 3)


def vr(b, n=4):
    return 'v[%d:%d]' % (b, b + n - 1)


def W(t, ks):
    return vW + (ks * 2 + t) * 4


def mfma(d, a_, b_, first):
    return 'v_mfma_f32_16x16x32_bf16 %s, %s, %s, %s' % (vr(d), vr(a_), vr(b_), '0' if first else vr(d))


class Gen:
    def __init__(self, nlayers=4, debug=False):
        self.a = Asm()
        self.nlayers = nlayers
        self.debug = debug

    def budget_check(self, code):
        a = self.a
        a('s_sub_u32 s%d, s%d, 1' % (sBud, sBud))
        a('s_cmp_eq_u32 s%d, 0' % sBud)
        a('s_mov_b32 s%d, %d' % (sT + 9, code))
        a('s_cbranch_scc1 L_ABORT')

    def tr(self, ident):
        if not self.debug:
            return
        if os.environ.get('FINE') and ident in (20, 25, 24, 30, 40, 44, 41, 42, 43, 21, 3):
            return
        a = self.a
        a('%s s[%d:%d]' % ('s_memtime' if os.environ.get('CYC') else 's_memrealtime', sTm, sTm + 1))
        a('s_waitcnt lgkmcnt(0)')
        a('s_lshl_b32 s%d, s%d, 6' % (sTm, sTm))
        a('s_or_b32 s%d, s%d, %d' % (sTm, sTm, ident))
        a('s_mov_b32 m0, s%d' % sTi)
        a('s_nop 0')
        a('v_writelane_b32 v%d, s%d, m0' % (vTr, sTm))
        a('s_add_u32 s%d, s%d, 1' % (sTi, sTi))

    def flag_min(self, tmp):
        a = self.a
        a('v_min3_u32 v%d, v%d, v%d, v%d' % (tmp, tmp, tmp + 1, tmp + 2))
        a('v_min_u32 v%d, v%d, v%d' % (tmp, tmp, tmp + 3))
        a('v_readfirstlane_b32 s%d, v%d' % (sT + 8, tmp))

    def wait_flag(self, off, tgt, tmp, code, add=0, sleep=0):
        a = self.a
        L, Ld = a.uid('Lwf'), a.uid('Lwfd')
        a.label(L)
        a('ds_read_b128 %s, v%d offset:%d' % (vr(tmp), vFlag, off))
        a('s_waitcnt lgkmcnt(0)')
        self.flag_min(tmp)
        a('s_nop 1')
        if add:
            a('s_add_u32 s%d, s%d, %d' % (sT + 8, sT + 8, add))
        a('s_cmp_ge_u32 s%d, s%d' % (sT + 8, tgt))
        a('s_cbranch_scc1 %s' % Ld)
        self.budget_check(code)
        if sleep:
            a('s_sleep %d' % sleep)
        a('s_branch %s' % L)
        a.label(Ld)

    def set_flag(self, off, val_sreg, tmpv, add=0):
        a = self.a
        a('s_lshl_b32 s%d, s%d, 2' % (sT + 8, sWv))
        a('v_add_u32 v%d, s%d, v%d' % (tmpv, sT + 8, vFlag))
        if add:
            a('s_add_u32 s%d, s%d, %d' % (sT + 8, val_sreg, add))
            a('v_mov_b32 v%d, s%d' % (tmpv + 1, sT + 8))
        else:
            a('v_mov_b32 v%d, s%d' % (tmpv + 1, val_sreg))
        a('ds_write_b32 v%d, v%d offset:%d' % (tmpv, tmpv + 1, off))

    def swz(self, dst, q, r, tmp):
        a = self.a
        a('v_and_b32 v%d, 1, v%d' % (tmp, q))
        a('v_lshlrev_b32 v%d, 1, v%d' % (tmp, tmp))
        a('v_lshrrev_b32 v%d, 1, v%d' % (dst, q))
        a('v_mul_u32_u24 v%d, 12, v%d' % (dst, dst))
        a('v_add_u32 v%d, v%d, v%d' % (tmp, tmp, dst))
        a('v_xor_b32 v%d, v%d, v%d' % (tmp, tmp, r))
        a('v_lshlrev_b32 v%d, 4, v%d' % (tmp, tmp))
        a('v_lshl_add_u32 v%d, v%d, 8, v%d' % (dst, q, tmp))

    def sentinel_vcc(self, regs, tmp):
        a = self.a
        regs = list(regs)
        a('v_max3_u32 v%d, v%d, v%d, v%d' % (tmp, regs[0], regs[1], regs[2]))
        i = 3
        while i + 1 < len(regs):
            a('v_max3_u32 v%d, v%d, v%d, v%d' % (tmp, tmp, regs[i], regs[i + 1]))
            i += 2
        if i < len(regs):
            a('v_max_u32 v%d, v%d, v%d' % (tmp, tmp, regs[i]))
        a('v_cmp_eq_u32 vcc, -1, v%d' % tmp)

    def poll_event(self, kind_expr, layer_add, tmp, code, all64=False, hook=None):
        a = self.a
        if all64:
            a('v_lshlrev_b32 v%d, 3, v%d' % (tmp + 2, vLane))
        else:
            a('v_and_b32 v%d, 15, v%d' % (tmp + 2, vLane))
            a('v_lshlrev_b32 v%d, 3, v%d' % (tmp + 2, tmp + 2))
        a('s_lshl_b32 s%d, s%d, 9' % (sT, sP))
        a('s_add_u32 s%d, s%d, s%d' % (sT, sT, sFlW))
        if all64:
            a('s_lshl_b32 s%d, s%d, 7' % (sT + 1, sWv))
            a('s_sub_u32 s%d, s%d, s%d' % (sT, sT, sT + 1))
        if kind_expr:
            a('s_add_u32 s%d, s%d, %d' % (sT, sT, kind_expr * 512))
        a('s_add_u32 s%d, s%d, s%d' % (sT + 1, sNon, sLayer))
        a('s_add_u32 s%d, s%d, %d' % (sT + 1, sT + 1, 1 + layer_add))
        L, Ld = a.uid('Lpoll'), a.uid('Lpolld')
        a('s_setprio 0')
        a.label(L)
        a('buffer_load_dwordx2 %s, v%d, %s, s%d offen sc1' % (vr(tmp, 2), tmp + 2, srd(sWS), sT))
        a('s_waitcnt vmcnt(0)')
        if hook:
            hook()
        a('v_subrev_u32 v%d, s%d, v%d' % (tmp, sT + 1, tmp))
        a('v_xor_b32 v%d, s%d, v%d' % (tmp + 1, sNon + 1, tmp + 1))
        a('v_lshrrev_b32 v%d, 3, v%d' % (tmp, tmp))
        a('v_or_b32 v%d, v%d, v%d' % (tmp, tmp, tmp + 1))
        a('v_cmp_ne_u32 vcc, 0, v%d' % tmp)
        a('s_nop 1')
        a('s_cmp_eq_u64 vcc, 0')
        a('s_cbranch_scc1 %s' % Ld)
        self.budget_check(code)
        a('s_branch %s' % L)
        a.label(Ld)
        a('s_setprio 2')

    def publish_event(self, kind, tmp, sc):
        a = self.a
        a('s_lshl_b32 s%d, s%d, 9' % (sT, sP))
        a('s_add_u32 s%d, s%d, s%d' % (sT, sT, sFlW))
        a('s_lshl_b32 s%d, s%d, 3' % (sT + 1, sHG))
        a('s_add_u32 s%d, s%d, s%d' % (sT, sT, sT + 1))
        if kind:
            a('s_add_u32 s%d, s%d, %d' % (sT, sT, kind * 512))
        a('s_add_u32 s%d, s%d, s%d' % (sT + 1, sNon, sLayer))
        a('s_add_u32 s%d, s%d, 1' % (sT + 1, sT + 1))
        a('v_mov_b32 v%d, s%d' % (tmp, sT + 1))
        a('v_mov_b32 v%d, s%d' % (tmp + 1, sNon + 1))
        a('v_mov_b32 v%d, 0' % (tmp + 2))
        a('s_mov_b64 exec, 1')
        a('s_waitcnt vmcnt(0)')
        a('buffer_store_dwordx2 %s, v%d, %s, s%d offen%s' % (vr(tmp, 2), tmp + 2, srd(sWS), sT, sc))
        a('s_mov_b64 exec, -1')

    def both_modes(self, fn):
        a = self.a
        L0, L1 = a.uid('Lslow'), a.uid('Lmend')
        a('s_cmp_eq_u32 s%d, 0' % sFast)
        a('s_cbranch_scc1 %s' % L0)
        fn('')
        a('s_branch %s' % L1)
        a.label(L0)
        fn(' sc1')
        a.label(L1)

    def store_nonce_flag(self, soff, tmp):
        a = self.a
        a('v_mov_b32 v%d, s%d' % (tmp, sNon))
        a('v_mov_b32 v%d, s%d' % (tmp + 1, sNon + 1))
        a('v_mov_b32 v%d, 0' % (tmp + 2))
        a('s_mov_b64 exec, 1')
        a('buffer_store_dwordx2 %s, v%d, %s, s%d offen sc1' % (vr(tmp, 2), tmp + 2, srd(sWS), soff))
        a('s_mov_b64 exec, -1')

    def poll_nonce_flags(self, soff, vaddr, tmp, code):
        a = self.a
        L, Ld = a.uid('Lpn'), a.uid('Lpnd')
        a.label(L)
        a('buffer_load_dwordx2 %s, v%d, %s, s%d offen sc1' % (vr(tmp, 2), vaddr, srd(sWS), soff))
        a('s_waitcnt vmcnt(0)')
        a('v_xor_b32 v%d, s%d, v%d' % (tmp, sNon, tmp))
        a('v_xor_b32 v%d, s%d, v%d' % (tmp + 1, sNon + 1, tmp + 1))
        a('v_or_b32 v%d, v%d, v%d' % (tmp, tmp, tmp + 1))
        a('v_cmp_ne_u32 vcc, 0, v%d' % tmp)
        a('s_nop 1')
        a('s_cmp_eq_u64 vcc, 0')
        a('s_cbranch_scc1 %s' % Ld)
        self.budget_check(code)
        a('s_sleep 2')
        a('s_branch %s' % L)
        a.label(Ld)

    def get_nonce(self, tmp):
        a = self.a
        L, Ld = a.uid('Lnon'), a.uid('Lnond')
        a('v_mov_b32 v%d, 0' % (tmp + 2))
        a.label(L)
        a('buffer_load_dwordx2 %s, v%d, %s, 0 offen sc1' % (vr(tmp, 2), tmp + 2, srd(sDBG)))
        a('s_waitcnt vmcnt(0)')
        a('v_readfirstlane_b32 s%d, v%d' % (sNon, tmp))
        a('v_readfirstlane_b32 s%d, v%d' % (sNon + 1, tmp + 1))
        a('s_nop 1')
        a('s_min_u32 s%d, s%d, s%d' % (sT + 8, sNon, sNon + 1))
        a('s_cmp_lg_u32 s%d, 0' % (sT + 8))
        a('s_cbranch_scc1 %s' % Ld)
        self.budget_check(7)
        a('s_sleep 2')
        a('s_branch %s' % L)
        a.label(Ld)

    def init_check(self, tmp):
        a = self.a
        a('s_mov_b32 s%d, 2' % (sT + 7))
        self.wait_flag(F_XH + 16, sT + 7, tmp, 21)
        L, Ld = a.uid('Lini'), a.uid('Linid')
        a('v_and_b32 v%d, 15, v%d' % (tmp + 4, vLane))
        a('v_lshlrev_b32 v%d, 4, v%d' % (tmp + 4, tmp + 4))
        a('v_add_u32 v%d, 256, v%d' % (tmp + 5, tmp + 4))
        a('v_and_b32 v%d, 16, v%d' % (tmp + 6, vLane))
        a('s_cmp_eq_u32 s%d, 0' % sTG)
        a('s_cselect_b32 s%d, 0, 16' % sT)
        a('v_and_b32 v%d, s%d, v%d' % (tmp + 6, sT, tmp + 6))
        a('v_cmp_eq_u32 s[%d:%d], 0, v%d' % (sT + 2, sT + 3, tmp + 6))
        a('v_cndmask_b32 v%d, v%d, v%d, s[%d:%d]' % (tmp + 4, tmp + 4, tmp + 5, sT + 2, sT + 3))
        a('s_lshl_b32 s%d, s%d, 8' % (sT, sTG))
        a('s_add_u32 s%d, s%d, %d' % (sT, sT, WS_INI - 256))
        a.label(L)
        a('buffer_load_dwordx4 %s, v%d, %s, s%d offen sc1' % (vr(tmp), tmp + 4, srd(sWS), sT))
        a('s_waitcnt vmcnt(0)')
        a('v_xor_b32 v%d, s%d, v%d' % (tmp, sNon, tmp))
        a('v_xor_b32 v%d, s%d, v%d' % (tmp + 1, sNon + 1, tmp + 1))
        a('v_xor_b32 v%d, s%d, v%d' % (tmp + 3, sNon, tmp + 3))
        a('v_or3_b32 v%d, v%d, v%d, v%d' % (tmp, tmp, tmp + 1, tmp + 3))
        a('v_cmp_ne_u32 vcc, 0, v%d' % tmp)
        a('s_nop 1')
        a('s_cmp_eq_u64 vcc, 0')
        a('s_cbranch_scc1 %s' % Ld)
        self.budget_check(8)
        a('s_sleep 2')
        a('s_branch %s' % L)
        a.label(Ld)
        a('v_cmp_ne_u32 vcc, s%d, v%d' % (sXcc, tmp + 2))
        a('s_nop 1')
        a('s_and_b64 vcc, vcc, s[%d:%d]' % (sT + 2, sT + 3))
        a('s_cmp_eq_u64 vcc, 0')
        a('s_cselect_b32 s%d, 1, 0' % sFast)
        if os.environ.get('FORCE_SLOW'):
            a('s_mov_b32 s%d, 0' % sFast)

    def prologue(self):
        a = self.a
        a('s_cmp_ge_u32 s2, 256')
        a('s_cbranch_scc1 L_END')
        a('s_load_dwordx16 s[4:19], s[0:1], 0')
        a('s_load_dwordx2 s[20:21], s[0:1], 64')
        a('v_and_b32 v%d, 63, v0' % vLane)
        a('v_lshrrev_b32 v1, 6, v0')
        a('v_readfirstlane_b32 s%d, v1' % sWave)
        a('s_getreg_b32 s%d, hwreg(HW_REG_XCC_ID)' % sXcc)
        a('s_and_b32 s%d, s%d, 15' % (sXcc, sXcc))
        a('s_and_b32 s%d, s%d, 3' % (sWv, sWave))
        a('s_lshr_b32 s%d, s%d, 2' % (sSet, sWave))
        a('s_and_b32 s%d, s2, 7' % sT)
        a('s_lshr_b32 s%d, s2, 3' % (sT + 1))
        a('s_and_b32 s%d, s%d, 15' % (sHG, sT + 1))
        a('s_lshr_b32 s%d, s%d, 4' % (sT + 1, sT + 1))
        a('s_lshl_b32 s%d, s%d, 1' % (sTG, sT))
        a('s_add_u32 s%d, s%d, s%d' % (sTG, sTG, sT + 1))
        a('s_mov_b32 s%d, 0x%x' % (sBud, 2000000))
        a('s_mov_b32 s%d, 0x05040100' % sSelLo)
        a('s_mov_b32 s%d, 0x07060302' % sSelHi)
        a('s_mov_b32 s%d, 0' % sLayer)
        a('s_mov_b32 s%d, 0' % sWoOk)
        a('s_mov_b32 s%d, 0' % sFast)
        a('v_mov_b32 v%d, 0x%x' % (vFlag, L_FLG))
        a('v_and_b32 v1, 3, v%d' % vLane)
        a('v_cmp_eq_u32 s[%d:%d], 1, v1' % (sM1, sM1 + 1))
        a('v_cmp_eq_u32 s[%d:%d], 2, v1' % (sM2, sM2 + 1))
        a('v_cmp_eq_u32 s[%d:%d], 3, v1' % (sM3, sM3 + 1))
        a('v_lshrrev_b32 v1, 4, v%d' % vLane)
        a('v_bfe_u32 v2, v%d, 2, 2' % vLane)
        a('v_cmp_eq_u32 s[%d:%d], v1, v2' % (sMD, sMD + 1))
        a('v_mov_b32 v1, 0')
        a('v_lshl_add_u32 v2, v%d, 2, v%d' % (vLane, vFlag))
        a('ds_write_b32 v2, v1')
        a('s_waitcnt lgkmcnt(0)')

        def mk(n, lo, hi, size):
            a('s_mov_b32 s%d, s%d' % (n, lo))
            a('s_and_b32 s%d, s%d, 0xffff' % (n + 1, hi))
            a('s_mov_b32 s%d, 0x%x' % (n + 2, size))
            a('s_mov_b32 s%d, 0x00020000' % (n + 3))
        mk(sIN, 4, 5, XBYTES)
        mk(sOUT, 16, 17, XBYTES)
        mk(sDBG, 18, 19, 256)
        mk(sWS2, 20, 21, WS_SIZE)
        a('s_add_u32 s20, s20, 0x%x' % WS_PAD)
        a('s_addc_u32 s21, s21, 0')
        mk(sWS, 20, 21, WS_SIZE)
        a('s_mov_b32 s%d, 0' % sTi)
        a('s_cmp_eq_u32 s%d, 0' % sSet)
        a('s_cbranch_scc0 L_SETB_SRD')
        mk(sWQ, 6, 7, 576 * 1728 * 2)
        mk(sWO, 14, 15, 576 * 576 * 2)
        a('s_branch L_SRD_DONE')
        a.label('L_SETB_SRD')
        mk(sWQ, 12, 13, 576 * 1728 * 2)
        mk(sWO, 8, 9, 576 * 576 * 2)
        a.label('L_SRD_DONE')
        a('s_mul_i32 s%d, s%d, %d' % (sMt, sWv, MT))
        a('s_mul_i32 s%d, s%d, %d' % (sTileW, sTG, 2 * TILE))
        a('s_mul_i32 s%d, s%d, %d' % (sT, sWv, MT))
        a('s_add_u32 s%d, s%d, s%d' % (sTileW, sTileW, sT))
        a('s_lshl_b32 s%d, s%d, 11' % (sFlW, sTG))
        a('s_lshl_b32 s%d, s%d, 7' % (sT, sWv))
        a('s_add_u32 s%d, s%d, s%d' % (sFlW, sFlW, sT))
        a('s_add_u32 s%d, s%d, %d' % (sFlW, sFlW, WS_FL))
        a('s_mov_b32 s%d, 0' % sOwn)
        a('s_mov_b32 s%d, 0' % sWoP)
        a('s_mov_b32 s%d, 0' % sPub)
        a('s_mul_i32 s%d, s%d, 5120' % (sTab, sWv))
        a('s_add_u32 s%d, s%d, 0x%x' % (sTab, sTab, L_TAB))
        a('s_mov_b32 s%d, s%d' % (sCs, sSet))
        a('s_mul_i32 s%d, s%d, 48' % (sQu, sWv))
        a('s_add_u32 s%d, s%d, 0x%x' % (sQu, sQu, L_QKV))
        a('s_lshl_b32 s%d, s%d, 4' % (sQu + 1, sWv))
        a('s_add_u32 s%d, s%d, 0x%x' % (sQu + 1, sQu + 1, L_QKV + 192 - 48))
        a('s_lshl_b32 s%d, s%d, 6' % (sSt, sWv))
        a('s_add_u32 s%d, s%d, 0x%x' % (sSt, sSt, L_ST + 64 - 192))
        a('s_mov_b32 s%d, 0x%x' % (sSt + 1, L_ST - 192))
        a('s_and_b32 s%d, s%d, 1' % (sH, sTG))
        km = 0xffff & ~sum(1 << self.UNIT[i] for i in (0, 1, 2, 12))
        a('s_mov_b32 s%d, 0x%x' % (sKm, km | (km << 16)))
        a('s_mov_b32 s%d, 0x%x' % (sKm + 1, km | (km << 16)))
        if True:
            a('s_setprio %s' % '2')
        a('s_barrier')
        if self.debug:
            a('v_mov_b32 v%d, 0' % vTr)
        self.tr(1)

    def wload_addr(self, v1, v2, tmp):
        a = self.a
        i, q, oa, rr, t4, t5 = tmp, tmp + 1, tmp + 2, tmp + 3, tmp + 4, tmp + 5
        a('v_and_b32 v%d, 15, v%d' % (i, vLane))
        a('v_lshrrev_b32 v%d, 4, v%d' % (q, vLane))
        a('v_lshrrev_b32 v%d, 2, v%d' % (oa, i))
        a('v_and_b32 v%d, 3, v%d' % (rr, i))
        a('s_mul_i32 s%d, s%d, 3' % (sT, sWv))
        a('v_add_u32 v%d, s%d, v%d' % (t4, sT, oa))
        a('v_lshrrev_b32 v%d, 2, v%d' % (v1, t4))
        a('v_mul_u32_u24 v%d, 576, v%d' % (v1, v1))
        a('v_bfe_u32 v%d, v%d, 1, 1' % (t5, t4))
        a('v_mul_u32_u24 v%d, 18, v%d' % (t5, t5))
        a('v_add_u32 v%d, v%d, v%d' % (v1, v1, t5))
        a('v_and_b32 v%d, 1, v%d' % (t5, t4))
        a('v_lshl_add_u32 v%d, v%d, 3, v%d' % (v1, t5, v1))
        a('v_lshl_add_u32 v%d, v%d, 1, v%d' % (v1, rr, v1))
        a('s_mul_i32 s%d, s%d, 576' % (sT, sWv))
        a('s_add_u32 s%d, s%d, 16' % (sT, sT))
        a('v_mul_u32_u24 v%d, 18, v%d' % (t5, rr))
        a('v_add_u32 v%d, s%d, v%d' % (t5, sT, t5))
        a('v_cmp_eq_u32 vcc, 3, v%d' % oa)
        a('v_cndmask_b32 v%d, v%d, v%d, vcc' % (v1, v1, t5))
        a('s_mul_i32 s%d, s%d, 36' % (sT, sHG))
        a('v_add_u32 v%d, s%d, v%d' % (v1, sT, v1))
        a('v_lshlrev_b32 v%d, 1, v%d' % (v1, v1))
        a('s_cmp_eq_u32 s%d, 3' % sWv)
        a('s_cselect_b32 s%d, 12, 14' % sT)
        a('v_cmp_le_u32 vcc, s%d, v%d' % (sT, i))
        a('v_mov_b32 v%d, 0x%x' % (t5, OOB))
        a('v_cndmask_b32 v%d, v%d, v%d, vcc' % (v1, v1, t5))
        a('s_mov_b32 s%d, %d' % (sT, 72 * 3456))
        a('v_mul_lo_u32 v%d, v%d, s%d' % (t5, q, sT))
        a('v_add_u32 v%d, v%d, v%d' % (v2, v1, t5))
        a('v_mul_u32_u24 v%d, %d, v%d' % (t5, 8 * 3456, q))
        a('v_add_u32 v%d, v%d, v%d' % (v1, v1, t5))

    def wload_issue(self, ks_list, v1, v2):
        a = self.a
        if os.environ.get('NOW'):
            ks_list = list(ks_list)[:1]
        for ks in ks_list:
            for e in range(0, 8, 2):
                if ks < 16:
                    row, vo = 36 * ks + e, v1
                else:
                    row, vo = 288 * (ks - 16) + 36 * (e >> 2) + 32 + (e & 3), v2
                st = sT + (e >> 1) % 2
                a('s_mov_b32 s%d, %d' % (st, row * 3456))
                m = e >> 1
                a('buffer_load_dword v%d, v%d, %s, s%d offen' % (W(0, ks) + m, vo, srd(sWQ), st))
                a('buffer_load_dword v%d, v%d, %s, s%d offen offset:3456' % (W(1, ks) + m, vo, srd(sWQ), st))

    def wload_perm(self, ks_list, ones, tmp):
        a = self.a
        for ks in ks_list:
            for m in range(4):
                r0, r1 = W(0, ks) + m, W(1, ks) + m
                t = tmp + (m & 1)
                a('v_perm_b32 v%d, v%d, v%d, s%d' % (t, r1, r0, sSelLo))
                a('v_perm_b32 v%d, v%d, v%d, s%d' % (r1, r1, r0, sSelHi))
                a('v_or_b32 v%d, v%d, v%d' % (r0, ones, t))

    def pw_issue(self, v1, v2):
        a = self.a
        L1, L2 = a.uid('Lpi'), a.uid('Lpie')
        a('s_cmp_lg_u32 s%d, 0' % sH)
        a('s_cbranch_scc1 %s' % L1)
        self.wload_issue(range(0, 9), v1, v2)
        a('s_branch %s' % L2)
        a.label(L1)
        self.wload_issue(range(9, 18), v1, v2)
        a.label(L2)

    def pw_finish(self, v1, v2, tmp):
        a = self.a
        Ltop, L1, L2, Ldone, Lfb = a.uid('Lpt'), a.uid('Lp1'), a.uid('Lp2'), a.uid('Lpd'), a.uid('Lpfb')
        a('s_mov_b32 s%d, 0' % sPass)
        a.label(Ltop)
        self.ones_mask(tmp, tmp + 1)
        a('v_lshlrev_b32 v%d, 4, v%d' % (tmp + 4, vLane))
        a('s_lshl_b32 s%d, s2, 3' % (sT + 2))
        a('s_add_u32 s%d, s%d, s%d' % (sT + 2, sT + 2, sWave))
        a('s_mul_i32 s%d, s%d, 18432' % (sT + 3, sT + 2))
        a('s_add_u32 s%d, s%d, %d' % (sT + 3, sT + 3, WS_PIMG))
        a('s_waitcnt vmcnt(0)')
        a('s_cmp_lg_u32 s%d, 0' % sH)
        a('s_cbranch_scc1 %s' % L1)
        for h, lab in ((0, None), (1, L1)):
            if lab:
                a.label(lab)
            self.wload_perm(range(9 * h, 9 * h + 9), tmp, tmp + 2)
            a('s_cmp_lg_u32 s%d, 0' % sPass)
            a('s_cbranch_scc1 %s' % Ldone)
            for n in range(18):
                if n % 4 == 0 and n:
                    a('s_add_u32 s%d, s%d, 4096' % (sT + 3, sT + 3))
                a('buffer_store_dwordx4 %s, v%d, %s, s%d offen offset:%d' % (vr(vW + 72 * h + 4 * n), tmp + 4, srd(sWS), sT + 3, (n % 4) * 1024))
            if h == 0:
                a('s_branch %s' % L2)
        a.label(L2)
        a('s_lshl_b32 s%d, s%d, 4' % (sT + 3, sT + 2))
        a('s_add_u32 s%d, s%d, %d' % (sT + 3, sT + 3, WS_PFLG))
        a('v_mov_b32 v%d, s%d' % (tmp, sNon))
        a('v_mov_b32 v%d, s%d' % (tmp + 1, sNon + 1))
        a('v_mov_b32 v%d, s%d' % (tmp + 2, sXcc))
        a('v_mov_b32 v%d, s%d' % (tmp + 3, sNon))
        a('v_mov_b32 v%d, 0' % (tmp + 5))
        a('s_mov_b64 exec, 1')
        a('s_waitcnt vmcnt(0)')
        a('buffer_store_dwordx4 %s, v%d, %s, s%d offen' % (vr(tmp), tmp + 5, srd(sWS), sT + 3))
        a('s_mov_b64 exec, -1')
        a('s_xor_b32 s%d, s%d, 1024' % (sT + 2, sT + 2))
        a('s_lshl_b32 s%d, s%d, 4' % (sT + 3, sT + 2))
        a('s_add_u32 s%d, s%d, %d' % (sT + 3, sT + 3, WS_PFLG))
        a('s_mov_b32 s%d, %d' % (sT + 4, 1 if os.environ.get('FORCE_SLOW') else 200))
        Lp, Lg = a.uid('Lpp'), a.uid('Lpg')
        a.label(Lp)
        a('buffer_load_dwordx4 %s, v%d, %s, s%d offen sc1' % (vr(tmp), tmp + 5, srd(sWS), sT + 3))
        a('s_waitcnt vmcnt(0)')
        a('v_xor_b32 v%d, s%d, v%d' % (tmp, sNon, tmp))
        a('v_xor_b32 v%d, s%d, v%d' % (tmp + 1, sNon + 1, tmp + 1))
        a('v_xor_b32 v%d, s%d, v%d' % (tmp + 2, sXcc, tmp + 2))
        a('v_xor_b32 v%d, s%d, v%d' % (tmp + 3, sNon, tmp + 3))
        a('v_or3_b32 v%d, v%d, v%d, v%d' % (tmp, tmp, tmp + 1, tmp + 2))
        a('v_or_b32 v%d, v%d, v%d' % (tmp, tmp, tmp + 3))
        a('v_cmp_ne_u32 vcc, 0, v%d' % tmp)
        a('s_nop 1')
        a('s_cmp_eq_u64 vcc, 0')
        if not os.environ.get('FORCE_SLOW'):
            a('s_cbranch_scc1 %s' % Lg)
        a('s_sub_u32 s%d, s%d, 1' % (sT + 4, sT + 4))
        a('s_cmp_eq_u32 s%d, 0' % (sT + 4))
        a('s_cbranch_scc1 %s' % Lfb)
        a('s_sleep 1')
        a('s_branch %s' % Lp)
        a.label(Lfb)
        a('s_mov_b32 s%d, 1' % sPass)
        a('s_xor_b32 s%d, s%d, 1' % (sH, sH))
        self.pw_issue(v1, v2)
        a('s_branch %s' % Ltop)
        a.label(Lg)
        a('s_mul_i32 s%d, s%d, 18432' % (sT + 3, sT + 2))
        a('s_add_u32 s%d, s%d, %d' % (sT + 3, sT + 3, WS_PIMG))
        L3 = a.uid('Lp3')
        a('s_cmp_eq_u32 s%d, 0' % sH)
        a('s_cbranch_scc1 %s' % L3)
        for h, lab in ((0, None), (1, L3)):
            if lab:
                a.label(lab)
            for n in range(18):
                if n % 4 == 0 and n:
                    a('s_add_u32 s%d, s%d, 4096' % (sT + 3, sT + 3))
                a('buffer_load_dwordx4 %s, v%d, %s, s%d offen offset:%d sc1' % (vr(vW + 72 * h + 4 * n), tmp + 4, srd(sWS), sT + 3, (n % 4) * 1024))
            if h == 0:
                a('s_branch %s' % Ldone)
        a.label(Ldone)

    def ones_mask(self, dst, tmp):
        a = self.a
        a('v_and_b32 v%d, 15, v%d' % (tmp, vLane))
        a('v_cmp_eq_u32 vcc, 14, v%d' % tmp)
        a('v_mov_b32 v%d, 0x3f803f80' % tmp)
        a('v_cndmask_b32 v%d, 0, v%d, vcc' % (dst, tmp))

    def colsum(self, tmp, progressive=False):
        a = self.a
        for i in range(4):
            a('v_mov_b32 v%d, 0x3f803f80' % (tmp + i))
        for ks in range(18):
            if progressive:
                a('s_waitcnt vmcnt(%d)' % (34 - 2 * ks))
            for t in range(2):
                a(mfma(vCS + 4 * t, W(t, ks), tmp, ks == 0))

    def coop_issue(self, v1, v2):
        a = self.a
        a('s_mul_i32 s%d, s%d, %d' % (sT + 2, sTG, 36 * 3456))
        a('s_and_b32 s%d, s%d, 1' % (sT + 3, sTG))
        a('s_mul_i32 s%d, s%d, %d' % (sT + 3, sT + 3, 288 * 3456))
        for u in range(2):
            for e in range(0, 8, 2):
                row = e if u == 0 else 36 * (e >> 2) + 32 + (e & 3)
                st = sT + (e >> 1) % 2
                a('s_add_u32 s%d, s%d, %d' % (st, sT + 2 + u, row * 3456))
                m = e >> 1
                vo = v1 if u == 0 else v2
                a('buffer_load_dword v%d, v%d, %s, s%d offen' % (W(0, u) + m, vo, srd(sWQ), st))
                a('buffer_load_dword v%d, v%d, %s, s%d offen offset:3456' % (W(1, u) + m, vo, srd(sWQ), st))

    def coop_id(self, dst):
        a = self.a
        a('s_lshl_b32 s%d, s%d, 4' % (dst, sSet))
        a('s_add_u32 s%d, s%d, s%d' % (dst, dst, sHG))
        a('s_lshl_b32 s%d, s%d, 2' % (dst, dst))
        a('s_add_u32 s%d, s%d, s%d' % (dst, dst, sWv))

    def coop_store(self, tmp):
        a = self.a
        self.ones_mask(tmp, tmp + 1)
        self.wload_perm(range(2), tmp, tmp + 2)
        self.coop_id(sT + 2)
        a('s_mul_i32 s%d, s%d, %d' % (sT + 2, sT + 2, 36864))
        a('s_add_u32 s%d, s%d, %d' % (sT + 2, sT + 2, WS_CIMG))
        a('s_lshl_b32 s%d, s%d, 11' % (sT + 3, sTG))
        a('s_add_u32 s%d, s%d, s%d' % (sT + 3, sT + 3, sT + 2))
        a('v_lshlrev_b32 v%d, 4, v%d' % (tmp + 4, vLane))
        a('buffer_store_dwordx4 %s, v%d, %s, s%d offen sc1' % (vr(W(0, 0)), tmp + 4, srd(sWS), sT + 3))
        a('buffer_store_dwordx4 %s, v%d, %s, s%d offen offset:1024 sc1' % (vr(W(1, 0)), tmp + 4, srd(sWS), sT + 3))
        L = a.uid('Lcs')
        a('s_cmp_ge_u32 s%d, 2' % sTG)
        a('s_cbranch_scc1 %s' % L)
        a('s_add_u32 s%d, s%d, %d' % (sT + 3, sT + 3, 16 * 2048))
        a('buffer_store_dwordx4 %s, v%d, %s, s%d offen sc1' % (vr(W(0, 1)), tmp + 4, srd(sWS), sT + 3))
        a('buffer_store_dwordx4 %s, v%d, %s, s%d offen offset:1024 sc1' % (vr(W(1, 1)), tmp + 4, srd(sWS), sT + 3))
        a.label(L)

    def coop_flag(self, tmp):
        a = self.a
        self.coop_id(sT + 2)
        a('s_lshl_b32 s%d, s%d, 4' % (sT + 2, sT + 2))
        a('s_add_u32 s%d, s%d, s%d' % (sT + 2, sT + 2, sTG))
        a('s_lshl_b32 s%d, s%d, 3' % (sT + 2, sT + 2))
        a('s_add_u32 s%d, s%d, %d' % (sT + 2, sT + 2, WS_CFLG))
        self.store_nonce_flag(sT + 2, tmp)

    def coop_load(self, tmp):
        a = self.a
        self.coop_id(sT + 2)
        a('s_lshl_b32 s%d, s%d, 7' % (sT + 3, sT + 2))
        a('s_add_u32 s%d, s%d, %d' % (sT + 3, sT + 3, WS_CFLG))
        a('v_and_b32 v%d, 15, v%d' % (tmp + 2, vLane))
        a('v_lshlrev_b32 v%d, 3, v%d' % (tmp + 2, tmp + 2))
        self.poll_nonce_flags(sT + 3, tmp + 2, tmp, 15)
        a('s_mul_i32 s%d, s%d, %d' % (sT + 2, sT + 2, 36864))
        a('s_add_u32 s%d, s%d, %d' % (sT + 2, sT + 2, WS_CIMG))
        a('v_lshlrev_b32 v%d, 4, v%d' % (tmp + 2, vLane))
        for n in range(36):
            if n % 4 == 0 and n:
                a('s_add_u32 s%d, s%d, 4096' % (sT + 2, sT + 2))
            a('buffer_load_dwordx4 %s, v%d, %s, s%d offen offset:%d sc1' % (vr(vW + 4 * n), tmp + 2, srd(sWS), sT + 2, (n % 4) * 1024))

    def wou_issue(self, D, tmp):
        a = self.a
        i, q, t2, t3, vo, SEL = tmp, tmp + 1, tmp + 2, tmp + 3, tmp + 4, tmp + 5
        a('v_and_b32 v%d, 15, v%d' % (i, vLane))
        a('v_lshrrev_b32 v%d, 4, v%d' % (q, vLane))
        a('v_lshrrev_b32 v%d, 1, v%d' % (t2, q))
        a('v_mul_u32_u24 v%d, 18, v%d' % (t2, t2))
        a('v_and_b32 v%d, 1, v%d' % (t3, q))
        a('v_lshl_add_u32 v%d, v%d, 3, v%d' % (t2, t3, t2))
        a('v_mul_u32_u24 v%d, 72, v%d' % (t3, q))
        a('s_cmp_ge_u32 s%d, 2' % sWv)
        a('s_cselect_b64 vcc, -1, 0')
        a('v_cndmask_b32 v%d, v%d, v%d, vcc' % (t2, t2, t3))
        a('v_mul_u32_u24 v%d, 1152, v%d' % (vo, t2))
        a('v_lshlrev_b32 v%d, 2, v%d' % (t2, i))
        a('v_and_b32 v%d, 2, v%d' % (t3, i))
        a('v_lshlrev_b32 v%d, 1, v%d' % (t3, t3))
        a('v_add_u32 v%d, 64, v%d' % (t3, t3))
        a('s_and_b32 s%d, s%d, 1' % (sT, sWv))
        a('s_cmp_eq_u32 s%d, 1' % sT)
        a('s_cselect_b64 vcc, -1, 0')
        a('v_cndmask_b32 v%d, v%d, v%d, vcc' % (t2, t2, t3))
        a('s_mul_i32 s%d, s%d, 72' % (sT, sHG))
        a('v_add3_u32 v%d, v%d, v%d, s%d' % (vo, vo, t2, sT))
        a('v_and_b32 v%d, 1, v%d' % (t2, i))
        a('v_cmp_eq_u32 vcc, 1, v%d' % t2)
        a('v_mov_b32 v%d, s%d' % (t2, sSelLo))
        a('v_mov_b32 v%d, s%d' % (t3, sSelHi))
        a('v_cndmask_b32 v%d, v%d, v%d, vcc' % (SEL, t2, t3))
        a('s_mul_i32 s%d, s%d, %d' % (sT + 2, sTG, 36 * 1152))
        a('s_and_b32 s%d, s%d, 1' % (sT + 3, sTG))
        a('s_mul_i32 s%d, s%d, %d' % (sT + 3, sT + 3, 288 * 1152))
        a('s_cmp_ge_u32 s%d, 2' % sWv)
        for e in range(0, 8, 2):
            r0 = e * 1152
            r1 = (36 * (e >> 2) + 18 * ((e >> 1) & 1) + 16) * 1152
            a('s_cselect_b32 s%d, s%d, s%d' % (sT, sT + 3, sT + 2))
            a('s_cselect_b32 s%d, %d, %d' % (sT + 1, r1, r0)) if False else None
            a('s_mov_b32 s%d, %d' % (sT + 4, r0))
            a('s_mov_b32 s%d, %d' % (sT + 5, r1))
            a('s_cselect_b32 s%d, s%d, s%d' % (sT + 1, sT + 5, sT + 4))
            a('s_lshl_b32 s%d, s%d, 0' % (sT + 6, sT)) if False else None
            m = e >> 1
            a('s_add_u32 s%d, s%d, s%d' % (sT + 6 + (m & 1), sT, sT + 1))
            a('buffer_load_dword v%d, v%d, %s, s%d offen' % (D + m, vo, srd(sWO), sT + 6 + (m & 1)))
            a('buffer_load_dword v%d, v%d, %s, s%d offen offset:1152' % (D + 4 + m, vo, srd(sWO), sT + 6 + (m & 1)))
            a('s_cmp_ge_u32 s%d, 2' % sWv)

    def wou_ids(self):
        a = self.a
        a('s_lshl_b32 s%d, s%d, 4' % (sT + 2, sSet))
        a('s_add_u32 s%d, s%d, s%d' % (sT + 2, sT + 2, sHG))
        a('s_and_b32 s%d, s%d, 1' % (sT + 3, sTG))
        a('s_add_u32 s%d, s%d, 16' % (sT + 3, sT + 3))
        a('s_cmp_ge_u32 s%d, 2' % sWv)
        a('s_cselect_b32 s%d, s%d, s%d' % (sT + 3, sT + 3, sTG))

    def wou_store(self, D, tmp):
        a = self.a
        SEL = tmp + 5
        Lskip, Lk1 = a.uid('Lwus'), a.uid('Lwuk')
        a('s_lshr_b32 s%d, s%d, 1' % (sT, sWv))
        a('s_lshr_b32 s%d, s%d, 1' % (sT + 1, sTG))
        a('s_min_u32 s%d, s%d, s%d' % (sT, sT, sT + 1))
        a('s_cmp_lg_u32 s%d, 0' % sT)
        a('s_cbranch_scc1 %s' % Lskip)
        self.wou_ids()
        a('s_mul_i32 s%d, s%d, %d' % (sT + 2, sT + 2, WIS))
        a('s_mul_i32 s%d, s%d, 2304' % (sT + 3, sT + 3))
        a('s_add_u32 s%d, s%d, s%d' % (sT + 2, sT + 2, sT + 3))
        a('s_add_u32 s%d, s%d, %d' % (sT + 2, sT + 2, WS_WIMG))
        a('s_and_b32 s%d, s%d, 1' % (sT, sWv))
        a('s_cmp_eq_u32 s%d, 1' % sT)
        a('s_cbranch_scc1 %s' % Lk1)
        for m in range(4):
            r0, r1 = D + m, D + 4 + m
            t = tmp + (m & 1)
            a('v_perm_b32 v%d, v%d, v%d, s%d' % (t, r1, r0, sSelLo))
            a('v_perm_b32 v%d, v%d, v%d, s%d' % (r1, r1, r0, sSelHi))
            a('v_mov_b32 v%d, v%d' % (r0, t))
        a('v_lshlrev_b32 v%d, 4, v%d' % (tmp, vLane))
        a('buffer_store_dwordx4 %s, v%d, %s, s%d offen sc1' % (vr(D), tmp, srd(sWS), sT + 2))
        a('buffer_store_dwordx4 %s, v%d, %s, s%d offen offset:1024 sc1' % (vr(D + 4), tmp, srd(sWS), sT + 2))
        a('s_branch %s' % Lskip)
        a.label(Lk1)
        for m in range(4):
            a('v_perm_b32 v%d, v%d, v%d, v%d' % (D + m, D + 4 + m, D + m, SEL))
        a('v_and_b32 v%d, 15, v%d' % (tmp, vLane))
        a('v_cmp_gt_u32 vcc, 4, v%d' % tmp)
        a('v_lshlrev_b32 v%d, 4, v%d' % (tmp, tmp))
        a('v_lshrrev_b32 v%d, 4, v%d' % (tmp + 1, vLane))
        a('v_lshl_add_u32 v%d, v%d, 6, v%d' % (tmp, tmp + 1, tmp))
        a('s_mov_b64 exec, vcc')
        a('buffer_store_dwordx4 %s, v%d, %s, s%d offen offset:2048 sc1' % (vr(D), tmp, srd(sWS), sT + 2))
        a('s_mov_b64 exec, -1')
        a.label(Lskip)

    def wou_flag(self, tmp):
        a = self.a
        Lskip = a.uid('Lwuf')
        a('s_lshr_b32 s%d, s%d, 1' % (sT, sWv))
        a('s_lshr_b32 s%d, s%d, 1' % (sT + 1, sTG))
        a('s_min_u32 s%d, s%d, s%d' % (sT, sT, sT + 1))
        a('s_cmp_lg_u32 s%d, 0' % sT)
        a('s_cbranch_scc1 %s' % Lskip)
        self.wou_ids()
        a('s_lshl_b32 s%d, s%d, 9' % (sT + 2, sT + 2))
        a('s_and_b32 s%d, s%d, 1' % (sT, sWv))
        a('s_mul_i32 s%d, s%d, 18' % (sT, sT))
        a('s_add_u32 s%d, s%d, s%d' % (sT + 3, sT + 3, sT))
        a('s_lshl_b32 s%d, s%d, 3' % (sT + 3, sT + 3))
        a('s_add_u32 s%d, s%d, s%d' % (sT + 2, sT + 2, sT + 3))
        a('s_add_u32 s%d, s%d, %d' % (sT + 2, sT + 2, WS_WFLG))
        self.store_nonce_flag(sT + 2, tmp)
        a.label(Lskip)

    def wo_stage(self, async_=False):
        a = self.a
        TMP = 88
        Lok = a.uid('Lwook')
        a('s_lshl_b32 s%d, s%d, 4' % (sT + 2, sSet))
        a('s_add_u32 s%d, s%d, s%d' % (sT + 2, sT + 2, sHG))
        a('s_cmp_lg_u32 s%d, 0' % sWoOk)
        a('s_cbranch_scc1 %s' % Lok)
        a('s_lshl_b32 s%d, s%d, 9' % (sT + 3, sT + 2))
        a('s_add_u32 s%d, s%d, %d' % (sT + 3, sT + 3, WS_WFLG))
        a('v_min_u32 v%d, 35, v%d' % (TMP + 2, vLane))
        a('v_lshlrev_b32 v%d, 3, v%d' % (TMP + 2, TMP + 2))
        self.poll_nonce_flags(sT + 3, TMP + 2, TMP, 16)
        a('s_mov_b32 s%d, 1' % sWoOk)
        a.label(Lok)
        a('s_mul_i32 s%d, s%d, %d' % (sT + 2, sT + 2, WIS))
        a('s_mul_i32 s%d, s%d, 10240' % (sT + 3, sWv))
        a('s_add_u32 s%d, s%d, s%d' % (sT + 2, sT + 2, sT + 3))
        a('s_add_u32 s%d, s%d, %d' % (sBase, sT + 2, WS_WIMG))
        a('s_add_u32 s%d, s%d, %d' % (sBase2, sT + 3, L_WO))
        a('v_lshlrev_b32 v%d, 4, v%d' % (TMP + 4, vLane))
        self.wait_flag(F_WF, sLayer, TMP, 9)
        self.wait_flag(F_WG, sLayer, TMP, 14)
        for n in range(11):
            if n % 4 == 0:
                a('s_add_u32 s%d, s%d, %d' % (sT, sBase, n * 1024))
                a('s_add_u32 s%d, s%d, %d' % (sT + 1, sBase2, n * 1024))
                a('s_mov_b32 m0, s%d' % (sT + 1))
            if n == 10:
                a('s_mov_b32 exec_hi, 0')
            a('buffer_load_dwordx4 v%d, %s, s%d offen offset:%d sc1 lds' % (TMP + 4, srd(sWS), sT, (n % 4) * 1024))
        a('s_mov_b64 exec, -1')
        if not async_:
            a('s_waitcnt vmcnt(0)')
            self.set_flag(F_WR, sLayer, TMP, add=1)
        self.tr(30)

    ORDER = [3, 1, 2, 0]
    UNIT = [0, 1, 8, 9, 3, 4, 11, 12, 2, 6, 10, 14, 5, 7, 13, 15]

    def kv_base(self, dst, layer_sreg_or_const, tg_add):
        a = self.a
        if isinstance(layer_sreg_or_const, str):
            a('s_lshl_b32 s%d, %s, 5' % (dst, layer_sreg_or_const))
        else:
            a('s_mov_b32 s%d, %d' % (dst, layer_sreg_or_const * 32))
        a('s_lshl_b32 s%d, s%d, 1' % (sT + 1, sTG))
        a('s_add_u32 s%d, s%d, s%d' % (dst, dst, sT + 1))
        a('s_add_u32 s%d, s%d, s%d' % (dst, dst, sP))
        a('s_lshl_b32 s%d, s%d, 4' % (dst, dst))
        a('s_add_u32 s%d, s%d, s%d' % (dst, dst, sHG))
        a('s_mul_i32 s%d, s%d, %d' % (dst, dst, KVT))
        a('s_add_u32 s%d, s%d, %d' % (dst, dst, WS_KV + tg_add * 32 * KVT))

    def kv_prefill(self, tmp):
        a = self.a
        a('v_lshlrev_b32 v%d, 4, v%d' % (tmp, vLane))
        a('s_mul_i32 s%d, s%d, 576' % (sT, sWv))
        a('v_add_u32 v%d, s%d, v%d' % (tmp, sT, tmp))
        for i in range(4):
            a('v_mov_b32 v%d, -1' % (tmp + 2 + i))
        a('s_mov_b32 s%d, 0' % sP)
        self.kv_base(sT + 2, 's%d' % sSet, 0)
        a('s_mov_b32 exec_lo, -1')
        a('s_mov_b32 exec_hi, 15')
        for l2 in range(2):
            for p_ in range(2):
                a('s_add_u32 s%d, s%d, %d' % (sT + 3, sT + 2, (l2 * 64 + p_) * 16 * KVT))
                a('buffer_store_dwordx4 %s, v%d, %s, s%d offen sc1' % (vr(tmp + 2), tmp, srd(sWS), sT + 3))
        a('s_mov_b64 exec, -1')

    def m_prep(self):
        a = self.a
        XA, TMP = 95, 40
        a('s_lshl_b32 s%d, s%d, 1' % (sN, sLayer))
        a('s_add_u32 s%d, s%d, s%d' % (sN, sN, sP))
        a('s_lshl_b32 s%d, s%d, 2' % (sG, sN))
        a('v_lshrrev_b32 v%d, 4, v%d' % (TMP, vLane))
        a('v_and_b32 v%d, 15, v%d' % (TMP + 1, vLane))
        self.swz(XA, TMP, TMP + 1, TMP + 2)
        a('v_add_u32 v%d, %d, v%d' % (XA + 1, 2 * MT, XA))
        a('v_lshlrev_b32 v%d, 3, v%d' % (TMP + 1, TMP + 1))
        a('v_lshl_add_u32 v%d, v%d, 8, v%d' % (XA + 2, TMP, TMP + 1))
        a('v_add_u32 v%d, 16384, v%d' % (XA + 2, XA + 2))

    def pub_pending(self, tmp, soft=False):
        a = self.a
        Ln = a.uid('Lnopub')
        a('s_cmp_eq_u32 s%d, 0' % sPub)
        if soft:
            a.softbranch('s_cbranch_scc1 %s' % Ln)
        else:
            a('s_cbranch_scc1 %s' % Ln)
        a('s_mov_b32 s%d, 0' % sPub)
        a('s_mov_b32 s%d, 0' % sP)
        self.both_modes(lambda sc: self.publish_event(0, tmp, sc))
        a('s_mov_b32 s%d, 1' % sP)
        a.label(Ln, noflush=soft)

    def m_role(self):
        a = self.a
        a.label('L_M_ROLE')
        a('s_mov_b32 s%d, 0' % sP)
        a.label('L_M_TASK')
        self.m_prep()
        a.label('L_M_GO')
        Lown = a.uid('Lown')
        a('s_cmp_eq_u32 s%d, 0' % sOwn)
        a('s_cbranch_scc1 %s' % Lown)
        a('s_waitcnt vmcnt(15)')
        self.set_flag(F_XR, sG, 40, add=1)
        a.label(Lown)
        self.kv_base(sBase, 's%d' % sLayer, 0)
        a('s_sub_u32 s%d, s%d, %d' % (sBase2, sBase, 32 * KVT))
        a('s_add_u32 s%d, s%d, 1' % (sT + 7, sG))
        Lrdy = a.uid('Lrdy')
        a('ds_read_b128 %s, v%d offset:%d' % (vr(40), vFlag, F_XR))
        a('s_waitcnt lgkmcnt(0)')
        self.flag_min(40)
        a('s_nop 1')
        a('s_cmp_ge_u32 s%d, s%d' % (sT + 8, sT + 7))
        a('s_cbranch_scc1 %s' % Lrdy)
        self.pub_pending(44)
        self.wait_flag(F_XR, sT + 7, 40, 1)
        a.label(Lrdy)
        if True:
            a('s_setprio %s' % os.environ.get('APRIO', '0'))
        self.tr(11)
        for w in range(1, 4):
            a('s_cmp_eq_u32 s%d, %d' % (sWv, w))
            a('s_cbranch_scc1 L_A_W%d' % w)
        for w in range(4):
            a.label('L_A_W%d' % w)
            self.a_phase(w)
            if w < 3:
                a('s_branch L_M_EPI')
        a.label('L_M_EPI')
        if True:
            a('s_setprio %s' % '2')
        self.tr(12)
        self.attention()
        self.tr(15)
        a('s_add_u32 s%d, s%d, 1' % (sP, sP))
        a('s_cmp_lt_u32 s%d, 2' % sP)
        a('s_cbranch_scc1 L_M_TASK')
        a('s_mov_b32 s%d, 1' % sP)
        a('s_branch L_BPHASE')

    def a_phase(self, w):
        a = self.a
        ORDER = self.ORDER
        ACC = lambda s, t: (s * 2 + t) * 4
        G0, FL = 32, 36
        NB = 8
        RB = lambda i: 40 + 4 * (i % NB)
        QB, BPA, T3 = 72, 73, 74
        KD, KA = 76, 88
        XA = 95
        XT = 98
        LT = 99
        lds = []

        def L(tag, text):
            a(text)
            lds.append(tag)

        def wait_for(tag):
            idx = max(i for i, t in enumerate(lds) if t == tag)
            a('s_waitcnt lgkmcnt(%d)' % min(len(lds) - 1 - idx, 15))
        I = lambda text: (lambda: a(text))
        seq = [(u, ks) for u in range(4) for ks in range(18)]

        def rd(i):
            u, ks = seq[i]
            mt = ORDER[u]
            if ks < 16:
                L(('r', i), 'ds_read_b128 %s, v%d offset:%d' % (vr(RB(i)), XA + (mt >> 1), (mt & 1) * MT + ks * 1024))
            else:
                o = 128 * (ks - 16)
                L(('r', i), 'ds_read2_b64 %s, v%d offset0:%d offset1:%d' % (vr(RB(i)), XT, o, o + 16))
        PF = NB - 1
        chains = []

        def put(step, fns, deadline=10 ** 9):
            chains.append([step, deadline, list(fns)])

        def chk(off, tgt_fn, tag, code):
            def fin():
                Lok = a.uid('Lck')
                a('s_cmp_ge_u32 s%d, s%d' % (sT + 8, sT + 7))
                a.softbranch('s_cbranch_scc1 %s' % Lok)
                self.wait_flag(off, sT + 7, FL, code)
                a.label(Lok, noflush=True)
            return [lambda: L(tag, 'ds_read_b128 %s, v%d offset:%d' % (vr(FL), vFlag, off)),
                    I('s_nop 0'), I('s_nop 0'), I('s_nop 0'), tgt_fn,
                    lambda: (wait_for(tag), a('v_min3_u32 v%d, v%d, v%d, v%d' % (FL, FL, FL + 1, FL + 2))),
                    I('v_min_u32 v%d, v%d, v%d' % (FL, FL, FL + 3)),
                    I('s_nop 0'),
                    I('v_readfirstlane_b32 s%d, v%d' % (sT + 8, FL)),
                    I('s_nop 0'), fin]

        def setf_items(off, val, add, own_vm=None):
            def fin():
                if own_vm is None:
                    L('f', 'ds_write_b32 v%d, v%d offset:%d' % (vFlag, LT, off + 4 * w))
                else:
                    Lo = a.uid('Lop')
                    a('s_cmp_eq_u32 s%d, 0' % sOwn)
                    a.softbranch('s_cbranch_scc1 %s' % Lo)
                    a('s_waitcnt vmcnt(%d)' % own_vm)
                    a('ds_write_b32 v%d, v%d offset:%d' % (vFlag, LT, off + 4 * w))
                    a.label(Lo, noflush=True)
            return [I('s_add_u32 s%d, s%d, %d' % (sT + 6, val, add)),
                    I('v_mov_b32 v%d, s%d' % (LT, sT + 6)), fin]

        def epi_items(s):
            mt = ORDER[s]
            nm = T3
            it = [lambda: L(('m', s), 'ds_bpermute_b32 v%d, v%d, v%d' % (nm, BPA, ACC(s, 0) + 2))]
            G = G0
            if s == w:
                it += [I('v_add_u32 v%d, 0x%x, v%d' % (G + 2, L_ST + 64 * (mt + 1) - 192, BPA))]
            it.append(lambda: (wait_for(('m', s)), a('v_mul_f32 v%d, 0xbae38e39, v%d' % (nm, nm))))
            for t in range(2):
                for r in range(4):
                    it.append(I('v_fma_f32 v%d, v%d, v%d, v%d' % (ACC(s, t) + r, nm, vCS + 4 * t + r, ACC(s, t) + r)))
            for r in range(4):
                it.append(I('v_cvt_pk_bf16_f32 v%d, v%d, v%d' % (ACC(s, 0) + r, ACC(s, 0) + r, ACC(s, 1) + r)))
            if s == 0 and w > 0:
                def kvst():
                    a('s_mov_b32 exec_lo, 0xff00ff00')
                    a('s_mov_b32 exec_hi, 0xff00ff00')
                    a('buffer_store_dwordx4 %s, v%d, %s, s%d offen sc1' % (vr(ACC(0, 0)), KA, srd(sWS), sBase))
                    a('s_mov_b64 exec, -1')
                it.append(kvst)
            it.append(lambda: L('w', 'ds_write_b128 v%d, %s offset:%d' % (QB, vr(ACC(s, 0)), 16 * (mt + 1) * QP)))
            if s == w:
                def wr():
                    a('s_mov_b64 exec, 0xffff')
                    L('w', 'ds_write_b32 v%d, v%d' % (G + 2, G))
                    if w == 0:
                        a('s_mov_b64 exec, 0xff00')
                        a('buffer_store_dword v%d, v%d, %s, s%d offen offset:%d sc1' % (G, BPA, srd(sWS), sBase, 2048 - 192 - 32))
                    a('s_mov_b64 exec, -1')
                it += [I('v_fma_f32 v%d, -v%d, v%d, v%d' % (G, nm, nm, G)),
                       I('v_max_f32 v%d, 0, v%d' % (G, G)),
                       I('v_add_f32 v%d, 0x3727c5ac, v%d' % (G, G)),
                       I('v_rsq_f32 v%d, v%d' % (G, G)),
                       wr]
            return it
        pre = [I('v_and_b32 v%d, 15, v%d' % (T3, vLane)),
               I('v_add_u32 v%d, 48, v%d' % (BPA, T3)),
               I('v_lshlrev_b32 v%d, 2, v%d' % (BPA, BPA)),
               I('v_lshrrev_b32 v%d, 4, v%d' % (T3 + 1, vLane)),
               I('v_lshlrev_b32 v%d, 3, v%d' % (T3 + 1, T3 + 1)),
               I('s_mov_b32 s%d, 0x%x' % (sT + 5, sum((16 * self.UNIT[(3 * w + a_) if a_ < 3 else 12 + w]) << (8 * a_) for a_ in range(4)))),
               I('v_bfe_u32 v%d, s%d, v%d, 8' % (QB, sT + 5, T3 + 1))]
        if w > 0:
            pre += [I('v_and_b32 v%d, 7, v%d' % (KA, vLane)),
                    I('v_lshl_add_u32 v%d, v%d, 8, v%d' % (KA, KA, QB))]
        pre += [I('v_mul_u32_u24 v%d, %d, v%d' % (T3, QP, T3)),
                I('v_add_u32 v%d, 0x%x, v%d' % (T3, L_QKV, T3)),
                I('v_add_u32 v%d, v%d, v%d' % (QB, QB, T3))]
        put(0, pre, 10)
        put(int(os.environ.get('PUBSTEP', 5)), [lambda: self.pub_pending(92, soft=True)], int(os.environ.get('PUBSTEP', 5)))
        G = G0
        put(18 * w + 6, [I('v_lshrrev_b32 v%d, 4, v%d' % (G, vLane)),
                         I('v_lshl_add_u32 v%d, v%d, 8, v%d' % (G, G, BPA)),
                         I('v_add_u32 v%d, 0x%x, v%d' % (G, ORDER[w] * MT + 18432 - 192, G)),
                         lambda: L('s2', 'ds_read2_b32 %s, v%d offset0:32 offset1:48' % (vr(G + 2, 2), G)),
                         lambda: L('s1', 'ds_read2_b32 %s, v%d offset0:0 offset1:16' % (vr(G, 2), G)),
                         I('s_nop 0'), I('s_nop 0'), I('s_nop 0'),
                         lambda: (wait_for('s1'), a('v_add_f32 v%d, v%d, v%d' % (G, G, G + 1))),
                         I('v_add_f32 v%d, v%d, v%d' % (G + 2, G + 2, G + 3)),
                         I('v_add_f32 v%d, v%d, v%d' % (G, G, G + 2)),
                         I('v_mov_b32 v%d, v%d' % (G + 1, G)),
                         I('v_permlane32_swap_b32 v%d, v%d' % (G, G + 1)),
                         I('v_add_f32 v%d, v%d, v%d' % (G, G, G + 1)),
                         I('v_mov_b32 v%d, v%d' % (G + 1, G)),
                         I('v_permlane16_swap_b32 v%d, v%d' % (G, G + 1)),
                         I('v_add_f32 v%d, v%d, v%d' % (G, G, G + 1)),
                         I('v_mul_f32 v%d, 0x3ae38e39, v%d' % (G, G))], 18 * w + 17)
        for k in range(1, 4):
            st = 18 * k - PF - 1
            put(6 * k - 5, setf_items(F_XR, sG, k + 1, own_vm=15 - 5 * k), 6 * k - 2)
            put(st - 7 if k > 1 else 5,
                chk(F_XR, I('s_add_u32 s%d, s%d, %d' % (sT + 7, sG, k + 1)), ('xr', k), 2), st)
        put(11, chk(F_QF, I('s_mov_b32 s%d, s%d' % (sT + 7, sN)), 'qf', 3), 17)
        for s_ in range(3):
            put(18 * (s_ + 1) + 3, epi_items(s_), (27 if s_ == 0 else 56) if s_ < 2 else 71)
        if w == 0:
            def kvld():
                a('buffer_load_dwordx4 %s, v%d, %s, s%d offen sc1' % (vr(KD), KA, srd(sWS), sBase2))
                a('buffer_load_dwordx4 %s, v%d, %s, s%d offen offset:1024 sc1' % (vr(KD + 4), KA, srd(sWS), sBase2))
                a('buffer_load_dword v%d, v%d, %s, s%d offen offset:2048 sc1' % (KD + 8, KA + 1, srd(sWS), sBase2))

            def kvaddr2():
                a('s_cmp_eq_u32 s%d, 0' % sTG)
                a('s_cselect_b64 vcc, -1, 0')
                a('v_cndmask_b32 v%d, v%d, v%d, vcc' % (KA, KA, KA + 2))
                a('v_cndmask_b32 v%d, v%d, v%d, vcc' % (KA + 1, KA + 1, KA + 2))

            def kvchk():
                Lrt, Lok, Lnf = a.uid('Lkrt'), a.uid('Lkok'), a.uid('Lknf')
                a('s_cmp_lg_u32 s%d, 0' % sN)
                a.softbranch('s_cbranch_scc1 %s' % Lnf)
                self.init_check(40)
                a('s_branch %s' % Lrt)
                a.label(Lnf, noflush=True)
                a('s_and_b64 vcc, vcc, s[%d:%d]' % (sKm, sKm + 1))
                a.softbranch('s_cbranch_scc0 %s' % Lok)
                a.label(Lrt)
                self.budget_check(5)
                kvld()
                a('s_waitcnt vmcnt(0)')
                self.sentinel_vcc(range(KD, KD + 9), FL)
                a('s_nop 1')
                a('s_and_b64 vcc, vcc, s[%d:%d]' % (sKm, sKm + 1))
                a('s_cbranch_scc1 %s' % Lrt)
                a.label(Lok, noflush=True)
            kv = [I('v_lshlrev_b32 v%d, 4, v%d' % (KA, vLane)),
                  I('v_and_b32 v%d, 7, v%d' % (KA + 1, vLane)),
                  I('v_lshlrev_b32 v%d, 2, v%d' % (KA + 1, KA + 1)),
                  I('v_add_u32 v%d, 0x%x, v%d' % (KA + 3, L_ST + 32, KA + 1)),
                  I('v_mov_b32 v%d, 0x%x' % (KA + 2, OOB)),
                  kvaddr2]
            put(30, kv, 46)
            put(60, [kvld], 60)
            kv2 = [I('v_lshrrev_b32 v%d, 4, v%d' % (KA + 2, vLane)),
                   I('v_mul_u32_u24 v%d, %d, v%d' % (KA + 2, QP, KA + 2)),
                   I('v_and_b32 v%d, 15, v%d' % (KD + 9, vLane)),
                   I('v_lshl_add_u32 v%d, v%d, 4, v%d' % (KA + 2, KD + 9, KA + 2)),
                   I('v_add_u32 v%d, 0x%x, v%d' % (KA + 2, L_QKV + 8 * QP, KA + 2))]
            put(61, kv2, 68)
            kv3 = [I('s_waitcnt vmcnt(0)'),
                   I('v_max3_u32 v%d, v%d, v%d, v%d' % (FL, KD, KD + 1, KD + 2)),
                   I('v_max3_u32 v%d, v%d, v%d, v%d' % (FL, FL, KD + 3, KD + 4)),
                   I('v_max3_u32 v%d, v%d, v%d, v%d' % (FL, FL, KD + 5, KD + 6)),
                   I('v_max3_u32 v%d, v%d, v%d, v%d' % (FL, FL, KD + 7, KD + 8)),
                   I('v_cmp_eq_u32 vcc, -1, v%d' % FL),
                   I('s_nop 0'), I('s_nop 0')]
            post = kv3 + [kvchk,
                    lambda: L('w', 'ds_write_b128 v%d, %s' % (KA + 2, vr(KD))),
                    lambda: L('w', 'ds_write_b128 v%d, %s offset:%d' % (KA + 2, vr(KD + 4), 4 * QP)),
                    lambda: L('w', 'ds_write_b32 v%d, v%d' % (KA + 3, KD + 8))]
        else:
            def ini():
                Lnf = a.uid('Lknf')
                a('s_cmp_lg_u32 s%d, 0' % sN)
                a('s_cbranch_scc1 %s' % Lnf)
                self.init_check(40)
                a.label(Lnf)
            post = [ini]
        a('v_add_u32 v%d, %d, v%d' % (XT, ORDER[0] * MT, XA + 2))
        for i in range(PF):
            rd(i)
        done_upto = [-1]

        def need(i):
            idx = max(k for k, t in enumerate(lds) if t == ('r', i))
            if idx <= done_upto[0]:
                return
            tgt = ('r', i + 1) if ('r', i + 1) in lds else ('r', i)
            idx2 = max(k for k, t in enumerate(lds) if t == tgt)
            a('s_waitcnt lgkmcnt(%d)' % min(len(lds) - 1 - idx2, 15))
            done_upto[0] = idx2

        def fill(step, n):
            cnt = 0
            while True:
                cand = [c for c in chains if c[2] and c[0] <= step]
                if not cand:
                    return
                c = min(cand, key=lambda c: (c[1] - step) * 3 - len(c[2]))
                if cnt >= n and (c[1] - step) * 3 >= len(c[2]):
                    return
                c[2].pop(0)()
                cnt += 1
        for i in range(72):
            u, ks = seq[i]
            if os.environ.get('FINE') and ks == 0 and u > 0:
                self.tr(50 + u)
            need(i)
            a(mfma(ACC(u, 0), W(0, ks), RB(i), ks == 0))
            fill(i, 2)
            a(mfma(ACC(u, 1), W(1, ks), RB(i), ks == 0))
            used = 0
            j = i + PF
            if j < 72:
                if seq[j][1] == 16 and seq[j][0] > 0:
                    a('v_add_u32 v%d, %d, v%d' % (XT, ORDER[seq[j][0]] * MT, XA + 2))
                    used += 1
                rd(j)
                used += 1
            nxt = 0
            if i + 1 < 72:
                idx = max(k for k, t in enumerate(lds) if t == ('r', i + 1))
                nxt = 1 if idx > done_upto[0] else 0
            fill(i, max(0, 2 - used - nxt))
        for c in chains:
            for fn in c[2]:
                fn()
        a('s_mov_b32 s%d, 0' % sOwn)
        if os.environ.get('FINE'):
            self.tr(54)
        a('s_setprio 2')
        for fn in setf_items(F_XF, sN, 1) + epi_items(3):
            fn()
        a('s_waitcnt lgkmcnt(0)')
        for fn in setf_items(F_QR, sN, 1) + post:
            fn()

    def build_tables(self):
        a = self.a
        AD = 70
        T = 76
        il, hh, j, R = 84, 85, 86, 87
        SA = 88
        a('v_lshrrev_b32 v%d, 2, v%d' % (il, vLane))
        a('v_bfe_u32 v%d, v%d, 1, 1' % (hh, vLane))
        a('v_and_b32 v%d, 1, v%d' % (j, vLane))
        a('s_lshl_b32 s%d, s%d, 4' % (sT, sWv))
        a('s_add_u32 s%d, s%d, 16' % (sT, sT))
        a('v_add_u32 v%d, s%d, v%d' % (R, sT, il))
        a('v_mul_u32_u24 v%d, %d, v%d' % (T, QP, R))
        a('v_add_u32 v%d, 0x%x, v%d' % (T, L_QKV, T))
        a('v_lshl_add_u32 v%d, v%d, 7, v%d' % (AD, hh, T))
        a('v_lshl_add_u32 v%d, v%d, 2, v%d' % (AD + 1, hh, T))
        a('v_mul_u32_u24 v%d, %d, v%d' % (T + 1, 4 * QP, j))
        a('v_add_u32 v%d, %d, v%d' % (T + 1, 3 * QP, T + 1))
        a('v_sub_u32 v%d, v%d, v%d' % (AD + 2, AD, T + 1))
        a('v_sub_u32 v%d, v%d, v%d' % (AD + 3, AD + 1, T + 1))
        a('v_lshlrev_b32 v%d, 2, v%d' % (T + 2, R))
        a('v_add_u32 v%d, 0x%x, v%d' % (T + 2, L_ST, T + 2))
        a('v_lshlrev_b32 v%d, 4, v%d' % (T + 3, j))
        a('v_add_u32 v%d, 12, v%d' % (T + 3, T + 3))
        a('v_sub_u32 v%d, v%d, v%d' % (T + 3, T + 2, T + 3))
        a('v_lshl_add_u32 v%d, v%d, 6, v%d' % (AD + 4, j, AD))
        a('v_subrev_u32 v%d, %d, v%d' % (AD + 4, 7 * QP, AD + 4))
        a('v_subrev_u32 v%d, %d, v%d' % (AD + 5, 7 * QP, AD + 1))
        a('v_lshl_add_u32 v%d, v%d, 1, v%d' % (T + 4, hh, j))
        a('v_lshlrev_b32 v%d, 8, v%d' % (T + 4, T + 4))
        a('v_lshl_add_u32 v%d, v%d, 4, v%d' % (SA, il, T + 4))
        a('s_lshl_b32 s%d, s%d, 10' % (sT, sHG))
        a('v_add_u32 v%d, s%d, v%d' % (SA, sT, SA))
        a('s_lshl_b32 s%d, s%d, 7' % (sT, sHG))
        a('s_add_u32 s%d, s%d, 16384' % (sT, sT))
        a('v_lshlrev_b32 v%d, 3, v%d' % (T + 4, il))
        a('v_lshl_add_u32 v%d, v%d, 2, v%d' % (T + 4, hh, T + 4))
        a('v_add_u32 v%d, s%d, v%d' % (SA + 1, sT, T + 4))
        a('v_mov_b32 v76, v%d' % (T + 2))
        a('v_mov_b32 v77, v%d' % (T + 3))
        a('v_mov_b32 v90, v%d' % il)
        a('v_mov_b32 v91, v%d' % j)
        a('v_lshlrev_b32 v92, 4, v%d' % vLane)
        a('v_add_u32 v92, s%d, v92' % sTab)
        a('ds_write_b128 v92, %s' % vr(70))
        a('ds_write_b128 v92, %s offset:1024' % vr(74))
        a('ds_write_b128 v92, %s offset:2048' % vr(88))
        LA, LB, VT, TMP1 = 72, 73, 74, 75
        a('v_lshlrev_b32 v%d, 4, v%d' % (LA, vLane))
        a('v_add_u32 v%d, 0x%x, v%d' % (LA, L_WO, LA))
        a('v_and_b32 v%d, 3, v%d' % (LB, vLane))
        a('v_lshlrev_b32 v%d, 4, v%d' % (LB, LB))
        a('v_lshrrev_b32 v%d, 4, v%d' % (TMP1, vLane))
        a('v_lshl_add_u32 v%d, v%d, 6, v%d' % (LB, TMP1, LB))
        a('v_add_u32 v%d, 0x%x, v%d' % (LB, L_WO + 2048, LB))
        a('v_and_b32 v%d, 15, v%d' % (VT, vLane))
        a('v_lshlrev_b32 v%d, 3, v%d' % (VT, VT))
        a('v_lshl_add_u32 v%d, v%d, 8, v%d' % (VT, TMP1, VT))
        a('s_mov_b32 s%d, 0' % sP)
        self.xaddr_frag(76, 80)
        self.xaddr_nat(78, 80)
        a('ds_write_b128 v92, %s offset:3072' % vr(72))
        a('ds_write_b128 v92, %s offset:4096' % vr(76))
        a('s_waitcnt lgkmcnt(0)')

    def attention(self):
        a = self.a
        Q = 0
        K = 12
        RK = 60
        RO = 64
        S = 65
        AD = 70
        T = 76
        SA, il, j = 84, 86, 87
        a('v_lshlrev_b32 v%d, 4, v%d' % (92, vLane))
        a('v_add_u32 v%d, s%d, v%d' % (92, sTab, 92))
        a('ds_read_b128 %s, v92' % vr(70))
        a('ds_read_b128 %s, v92 offset:1024' % vr(74))
        a('ds_read_b128 %s, v92 offset:2048' % vr(84))
        a('s_mul_i32 s%d, s%d, %d' % (sBase, sLayer, LSTR))
        a('s_mul_i32 s%d, s%d, %d' % (sT, sP, TILE))
        a('s_add_u32 s%d, s%d, s%d' % (sBase, sBase, sT))
        a('s_add_u32 s%d, s%d, s%d' % (sBase, sBase, sTileW))
        a('s_add_u32 s%d, s%d, 1' % (sT + 7, sN))
        self.wait_flag(F_QR, sT + 7, 92, 4)
        self.tr(14)
        a('ds_read_b128 %s, v%d' % (vr(Q), AD))
        a('ds_read_b128 %s, v%d offset:16' % (vr(Q + 4), AD))
        a('ds_read_b32 v%d, v%d offset:80' % (Q + 8, AD + 1))
        for w in range(4):
            o = (3 - w) * QP
            a('ds_read_b128 %s, v%d offset:%d' % (vr(K + 12 * w), AD + 2, o + 48))
        for w in range(4):
            o = (3 - w) * QP
            a('ds_read_b128 %s, v%d offset:%d' % (vr(K + 12 * w + 4), AD + 2, o + 64))
        for w in range(4):
            o = (3 - w) * QP
            a('ds_read_b32 v%d, v%d offset:%d' % (K + 12 * w + 8, AD + 3, o + 112))
        a('ds_read_b32 v%d, v%d' % (RO, T))
        a('ds_read2_b32 %s, v%d offset0:0 offset1:1' % (vr(RK, 2), T + 1))
        a('ds_read2_b32 %s, v%d offset0:2 offset1:3' % (vr(RK + 2, 2), T + 1))
        a('s_waitcnt lgkmcnt(11)')
        for d in range(9):
            if d == 4:
                a('s_waitcnt lgkmcnt(7)')
            if d == 8:
                a('s_waitcnt lgkmcnt(3)')
            for w in range(4):
                c = '0' if d == 0 else 'v%d' % (S + w)
                a('v_dot2_f32_bf16 v%d, v%d, v%d, %s' % (S + w, Q + d, K + 12 * w + d, c))
        a('s_waitcnt lgkmcnt(0)')
        V = 12
        for w in range(8):
            o = (7 - w) * QP
            a('ds_read_b128 %s, v%d offset:%d' % (vr(V + 6 * w), AD + 4, o + 32))
            a('ds_read_b32 v%d, v%d offset:%d' % (V + 6 * w + 4, AD + 5, o + 208))
        c = struct.unpack('<I', struct.pack('<f', (18 ** -0.5) * 1.4426950408889634))[0]
        a('v_mul_f32 v%d, 0x%x, v%d' % (RO, c, RO))
        for w in range(4):
            a('v_mul_f32 v%d, v%d, v%d' % (S + w, S + w, RK + 3 - w))
        for w in range(4):
            a('v_mul_f32 v%d, v%d, v%d' % (S + w, S + w, RO))
        Lnm = a.uid('Lnomask')
        a('s_or_b32 s%d, s%d, s%d' % (sT, sTG, sWv))
        a('s_cmp_lg_u32 s%d, 0' % sT)
        a('s_cbranch_scc1 %s' % Lnm)
        a('v_lshlrev_b32 v%d, 2, v%d' % (T, j))
        a('v_mov_b32 v%d, 0xf149f2ca' % (T + 2))
        for w in range(4):
            a('v_add_u32 v%d, %d, v%d' % (T + 1, w, T))
            a('v_cmp_lt_u32 vcc, v%d, v%d' % (il, T + 1))
            a('v_cndmask_b32 v%d, v%d, v%d, vcc' % (S + w, S + w, T + 2))
        a.label(Lnm)
        a('v_max3_f32 v%d, v%d, v%d, v%d' % (T, S, S + 1, S + 2))
        a('v_max_f32 v%d, v%d, v%d' % (T, T, S + 3))
        a('v_cmp_eq_u32 vcc, 1, v%d' % j)
        a('v_max_f32_dpp v%d, v%d, v%d quad_perm:[1,0,3,2] row_mask:0xf bank_mask:0xf' % (T + 1, T, T))
        for w in range(4):
            a('v_sub_f32 v%d, v%d, v%d' % (S + w, S + w, T + 1))
        for w in range(4):
            a('v_exp_f32 v%d, v%d' % (S + w, S + w))
        a('v_add_f32 v%d, v%d, v%d' % (T, S, S + 1))
        a('v_add_f32 v%d, v%d, v%d' % (T + 1, S + 2, S + 3))
        a('v_add_f32 v%d, v%d, v%d' % (T, T, T + 1))
        for w in range(4):
            a('v_mul_f32 v%d, v%d, v%d' % (S + w, S + w, RK + 3 - w))
        a('v_add_f32_dpp v%d, v%d, v%d quad_perm:[1,0,3,2] row_mask:0xf bank_mask:0xf' % (T + 1, T, T))
        a('v_rcp_f32 v%d, v%d' % (T + 1, T + 1))
        for w in range(4):
            a('v_mul_f32 v%d, v%d, v%d' % (S + w, S + w, T + 1))
        a('v_cvt_pk_bf16_f32 v%d, v%d, v%d' % (T, S, S + 1))
        a('v_cvt_pk_bf16_f32 v%d, v%d, v%d' % (T + 1, S + 2, S + 3))
        a('v_mov_b32_dpp v%d, v%d quad_perm:[1,0,3,2] row_mask:0xf bank_mask:0xf' % (T + 2, T))
        a('v_mov_b32_dpp v%d, v%d quad_perm:[1,0,3,2] row_mask:0xf bank_mask:0xf' % (T + 3, T + 1))
        PP = 60
        a('v_cndmask_b32 v%d, v%d, v%d, vcc' % (PP, T, T + 2))
        a('v_cndmask_b32 v%d, v%d, v%d, vcc' % (PP + 1, T + 1, T + 3))
        a('v_cndmask_b32 v%d, v%d, v%d, vcc' % (PP + 2, T + 2, T))
        a('v_cndmask_b32 v%d, v%d, v%d, vcc' % (PP + 3, T + 3, T + 1))
        PL = 64
        for pr in range(4):
            a('v_and_b32 v%d, 0xffff, v%d' % (PL + 4 * pr, PP + pr))
            a('v_lshlrev_b32 v%d, 16, v%d' % (PL + 4 * pr + 1, PP + pr))
            a('v_lshrrev_b32 v%d, 16, v%d' % (PL + 4 * pr + 2, PP + pr))
            a('v_and_b32 v%d, 0xffff0000, v%d' % (PL + 4 * pr + 3, PP + pr))
        O = 0
        for w in range(8):
            a('s_waitcnt lgkmcnt(%d)' % (2 * (7 - w)))
            for m in range(5):
                for h in range(2):
                    c = '0' if w == 0 else 'v%d' % (O + 2 * m + h)
                    a('v_dot2_f32_bf16 v%d, v%d, v%d, %s' % (O + 2 * m + h, V + 6 * w + m, PL + 2 * w + h, c))
        for m in range(5):
            a('v_cvt_pk_bf16_f32 v%d, v%d, v%d' % (12 + m, O + 2 * m, O + 2 * m + 1))
        a('s_mov_b32 s%d, 0x55555555' % (sT + 2))
        a('s_mov_b32 s%d, 0x55555555' % (sT + 3))

        def st(sc):
            a('buffer_store_dwordx4 %s, v%d, %s, s%d offen%s' % (vr(12), SA, srd(sWS), sBase, sc))
            a('s_mov_b64 exec, s[%d:%d]' % (sT + 2, sT + 3))
            a('buffer_store_dword v16, v%d, %s, s%d offen%s' % (SA + 1, srd(sWS), sBase, sc))
            a('s_mov_b64 exec, -1')
            self.set_flag(F_QF, sN, 20, add=1)
            Ld = a.uid('Ldefer')
            a('s_mov_b32 s%d, 1' % sPub)
            a('s_cmp_eq_u32 s%d, %d' % (sP, 5 if os.environ.get('NODEFER') else 0))
            a('s_cbranch_scc1 %s' % Ld)
            a('s_mov_b32 s%d, 0' % sPub)
            self.publish_event(0, 24, sc)
            a.label(Ld)
        self.both_modes(st)

    def stage_generic(self):
        a = self.a
        TMP = 88
        AV = 84
        Lc = a.uid('Lnocs')
        a('s_cmp_eq_u32 s%d, 0' % sCs)
        a('s_cbranch_scc1 %s' % Lc)
        a('s_waitcnt vmcnt(0)')
        self.colsum(8)
        a('s_mov_b32 s%d, 0' % sCs)
        a.label(Lc)
        self.m_prep()
        Lne = a.uid('Lnoearly')
        a('s_cmp_eq_u32 s%d, 0' % sP)
        a('s_cbranch_scc1 %s' % Lne)
        a('ds_read_b128 %s, v%d offset:%d' % (vr(TMP), vFlag, F_XF))
        a('s_waitcnt lgkmcnt(0)')
        self.flag_min(TMP)
        a('s_nop 1')
        a('s_cmp_ge_u32 s%d, s%d' % (sT + 8, sN))
        a('s_cbranch_scc1 %s' % Lne)
        self.wo_stage(async_=True)
        a('s_mov_b32 s%d, 1' % sWoP)
        a.label(Lne)
        a('v_lshlrev_b32 v%d, 4, v%d' % (AV, vLane))
        a('s_sub_u32 s%d, s%d, 1' % (sT, sLayer))
        a('s_mul_i32 s%d, s%d, %d' % (sT, sT, LSTR))
        a('s_add_u32 s%d, s%d, %d' % (sT, sT, WS_X))
        a('s_mul_i32 s%d, s%d, %d' % (sT + 1, sP, TILE))
        a('s_add_u32 s%d, s%d, s%d' % (sT, sT, sT + 1))
        a('s_add_u32 s%d, s%d, s%d' % (sBase, sT, sTileW))
        a('s_sub_u32 s%d, s%d, s%d' % (sBase, sBase, sMt))
        a('s_mul_i32 s%d, s%d, 4864' % (sBase2, sWv))
        a('s_add_u32 s%d, s%d, s%d' % (sBase, sBase, sBase2))
        a('s_setprio 0')
        self.wait_flag(F_XF, sN, TMP, 6, sleep=1)
        self.tr(20)
        a('v_lshlrev_b32 v%d, 3, v%d' % (TMP + 2, vLane))
        a('s_lshl_b32 s%d, s%d, 9' % (sT + 2, sP))
        a('s_add_u32 s%d, s%d, s%d' % (sT + 2, sT + 2, sFlW))
        a('s_lshl_b32 s%d, s%d, 7' % (sT + 3, sWv))
        a('s_sub_u32 s%d, s%d, s%d' % (sT + 2, sT + 2, sT + 3))
        a('s_add_u32 s%d, s%d, 1024' % (sT + 2, sT + 2))
        a('s_add_u32 s%d, s%d, s%d' % (sT + 3, sNon, sLayer))
        a('s_mov_b64 vcc, -1')
        for k, mt in enumerate(self.ORDER):
            Lp, Lg = a.uid('Lsp'), a.uid('Lsg')
            half = 'vcc_lo' if mt < 2 else 'vcc_hi'
            msk = 0xffff << (16 * (mt & 1))
            a.label(Lp)
            a('s_and_b32 s%d, %s, 0x%x' % (sT, half, msk))
            a('s_cbranch_scc0 %s' % Lg)
            a('buffer_load_dwordx2 %s, v%d, %s, s%d offen sc1' % (vr(TMP, 2), TMP + 2, srd(sWS), sT + 2))
            self.budget_check(12)
            a('s_waitcnt vmcnt(0)')
            a('v_subrev_u32 v%d, s%d, v%d' % (TMP, sT + 3, TMP))
            a('v_xor_b32 v%d, s%d, v%d' % (TMP + 1, sNon + 1, TMP + 1))
            a('v_lshrrev_b32 v%d, 3, v%d' % (TMP, TMP))
            a('v_or_b32 v%d, v%d, v%d' % (TMP, TMP, TMP + 1))
            a('v_cmp_ne_u32 vcc, 0, v%d' % TMP)
            a('s_branch %s' % Lp)
            a.label(Lg)
            if k == 0:
                self.tr(25)
            a('s_add_u32 s%d, s%d, %d' % (sT, sBase, mt * MT))
            a('s_add_u32 s%d, s%d, %d' % (sT + 1, sBase2, mt * MT))
            a('s_mov_b32 m0, s%d' % (sT + 1))
            for k2 in range(4):
                a('buffer_load_dwordx4 v%d, %s, s%d offen offset:%d sc1 lds' % (AV, srd(sWS), sT, k2 * 1024))
            a('s_add_u32 s%d, s%d, 4096' % (sT, sT))
            a('s_add_u32 s%d, s%d, 4096' % (sT + 1, sT + 1))
            a('s_mov_b32 m0, s%d' % (sT + 1))
            a('s_mov_b32 exec_hi, 0xffff')
            a('buffer_load_dwordx4 v%d, %s, s%d offen sc1 lds' % (AV, srd(sWS), sT))
            a('s_mov_b32 exec_hi, -1')
        a('s_mov_b32 s%d, 1' % sOwn)
        a('s_cmp_eq_u32 s%d, 0' % sP)
        a('s_cbranch_scc1 L_M_GO')
        a('s_mov_b32 s%d, 0' % sOwn)
        a('s_waitcnt vmcnt(10)')
        self.set_flag(F_XR, sG, TMP, add=2)
        Lw1, Lw2 = a.uid('Lwe'), a.uid('Lwf')
        a('s_cmp_lg_u32 s%d, 0' % sWoP)
        a('s_cbranch_scc1 %s' % Lw1)
        self.wo_stage(async_=True)
        a('s_waitcnt vmcnt(11)')
        a('s_branch %s' % Lw2)
        a.label(Lw1)
        a('s_waitcnt vmcnt(0)')
        a.label(Lw2)
        self.set_flag(F_XR, sG, TMP, add=4)
        a('s_mov_b32 s%d, 1' % sWoP)
        self.tr(24)

    def stage_input_issue(self):
        a = self.a
        AV, LV, AT, LT_ = 84, 85, 86, 87
        TMP = 88
        a('s_mov_b32 s%d, s%d' % (sN, sP))
        a('s_lshl_b32 s%d, s%d, 2' % (sG, sN))
        a('v_lshrrev_b32 v%d, 2, v%d' % (TMP + 1, vLane))
        a('v_and_b32 v%d, 3, v%d' % (TMP, vLane))
        self.swz(LV, TMP, TMP + 1, TMP + 2)
        a('v_add_u32 v%d, s%d, v%d' % (LV, sMt, LV))
        a('s_lshl_b32 s%d, s%d, 7' % (sT, sTG))
        a('s_add_u32 s%d, s%d, s%d' % (sT, sT, sP))
        a('s_lshl_b32 s%d, s%d, 5' % (sT + 1, sWv))
        a('s_add_u32 s%d, s%d, s%d' % (sT + 1, sT + 1, sT))
        a('s_mul_i32 s%d, s%d, 1152' % (sT + 1, sT + 1))
        a('v_mul_u32_u24 v%d, 2304, v%d' % (TMP + 2, TMP + 1))
        a('v_add_u32 v%d, s%d, v%d' % (TMP + 2, sT + 1, TMP + 2))
        a('v_lshl_add_u32 v%d, v%d, 4, v%d' % (AV, TMP, TMP + 2))
        a('v_mul_u32_u24 v%d, 72, v%d' % (AT, TMP))
        a('v_add_u32 v%d, v%d, v%d' % (AT, AT, TMP + 2))
        a('v_lshlrev_b32 v%d, 7, v%d' % (LT_, TMP))
        a('v_lshl_add_u32 v%d, v%d, 3, v%d' % (LT_, TMP + 1, LT_))
        a('v_add_u32 v%d, s%d, v%d' % (LT_, sMt, LT_))
        for ks in range(16):
            a('buffer_load_dwordx4 %s, v%d, %s, 0 offen offset:%d' % (vr(4 * ks), AV, srd(sIN), 72 * ks))
        for c in range(4):
            a('buffer_load_dwordx2 %s, v%d, %s, 0 offen offset:%d' % (vr(64 + 2 * c, 2), AT, srd(sIN), 288 * c + 64))

    def stage_input_finish(self, extra_after=0, last_extra=0):
        a = self.a
        AV, LV, AT, LT_ = 84, 85, 86, 87
        TMP = 88
        self.wait_flag(F_XF, sN, TMP, 6)
        rem = [14, 8, 0]
        for seg in range(3):
            a('s_waitcnt vmcnt(%d)' % (rem[seg] + (extra_after if seg < 2 else last_extra)))
            if seg == 0:
                self.tr(21)
            for ks in range(6 * seg, min(6 * seg + 6, 16)):
                a('ds_write_b128 v%d, %s offset:%d' % (LV, vr(4 * ks), ks * 1024))
            if seg == 2:
                for c in range(4):
                    a('ds_write_b64 v%d, %s offset:%d' % (LT_, vr(64 + 2 * c, 2), 16384 + 512 * c))
        for i in range(72):
            a('v_dot2_f32_bf16 v%d, v%d, v%d, %s' % (TMP + (i & 1), i, i, '0' if i < 2 else 'v%d' % (TMP + (i & 1))))
        a('v_add_f32 v%d, v%d, v%d' % (TMP, TMP, TMP + 1))
        a('v_mov_b32 v%d, 0' % (TMP + 1))
        a('v_subrev_u32 v%d, s%d, v%d' % (TMP + 2, sMt, LT_))
        a('v_lshrrev_b32 v%d, 1, v%d' % (TMP + 2, TMP + 2))
        a('v_add_u32 v%d, s%d, v%d' % (TMP + 2, sMt, TMP + 2))
        a('ds_write_b32 v%d, v%d offset:18432' % (TMP + 2, TMP))
        for c in range(1, 4):
            a('ds_write_b32 v%d, v%d offset:%d' % (TMP + 2, TMP + 1, 18432 + 256 * c))
        a('s_waitcnt lgkmcnt(0)')
        self.set_flag(F_XR, sG, TMP, add=4)
        self.tr(24)

    def hb_addr(self, d, tmp):
        a = self.a
        a('v_and_b32 v%d, 7, v%d' % (tmp, vLane))
        a('v_lshrrev_b32 v%d, 4, v%d' % (tmp + 1, vLane))
        a('v_lshlrev_b32 v%d, 4, v%d' % (d, tmp))
        a('v_lshl_add_u32 v%d, v%d, 7, v%d' % (d, tmp + 1, d))
        a('s_lshl_b32 s%d, s%d, 9' % (sT, sHG))
        a('v_add_u32 v%d, s%d, v%d' % (d, sT, d))
        a('s_lshl_b32 s%d, s%d, 6' % (sT, sHG))
        a('s_add_u32 s%d, s%d, 8192' % (sT, sT))
        a('v_lshlrev_b32 v%d, 3, v%d' % (d + 1, tmp))
        a('v_add_u32 v%d, s%d, v%d' % (d + 1, sT, d + 1))

    def hb_store(self, d, data, soff):
        a = self.a
        a('s_mov_b32 s%d, 0xff00ff00' % (sT + 4))
        a('s_mov_b32 s%d, 0xff00ff00' % (sT + 5))
        a('s_mov_b64 exec, s[%d:%d]' % (sT + 4, sT + 5))
        a('buffer_store_dwordx4 %s, v%d, %s, s%d offen sc1' % (vr(data), d, srd(sWS), soff))
        a('s_mov_b64 exec, 0xff00')
        a('buffer_store_dwordx2 %s, v%d, %s, s%d offen sc1' % (vr(data + 4, 2), d + 1, srd(sWS), soff))
        a('s_mov_b64 exec, -1')

    def hb_base(self, dst, layer_add):
        a = self.a
        a('s_add_u32 s%d, s%d, %d' % (dst, sLayer, layer_add))
        a('s_lshl_b32 s%d, s%d, 5' % (dst, dst))
        a('s_lshl_b32 s%d, s%d, 1' % (sT + 1, sTG))
        a('s_add_u32 s%d, s%d, s%d' % (dst, dst, sT + 1))
        a('s_add_u32 s%d, s%d, s%d' % (dst, dst, sP))
        a('s_mul_i32 s%d, s%d, %d' % (dst, dst, HBT))
        a('s_add_u32 s%d, s%d, %d' % (dst, dst, WS_HB))

    def bphase(self):
        a = self.a
        NS = 12
        ACC = 48
        WB = [60, 72, 84]
        LA, LB, VT, TMP1 = 96, 97, 98, 99
        slot = lambda ks: 4 * (ks % NS)
        a('s_mul_i32 s%d, s%d, %d' % (sBase, sLayer, LSTR))
        a('s_mul_i32 s%d, s%d, %d' % (sT, sP, TILE))
        a('s_add_u32 s%d, s%d, s%d' % (sBase, sBase, sT))
        a('s_add_u32 s%d, s%d, s%d' % (sBase, sBase, sTileW))
        a('v_lshlrev_b32 v100, 4, v%d' % vLane)
        a('v_add_u32 v100, s%d, v100' % sTab)
        a('ds_read_b128 %s, v100 offset:3072' % vr(96))
        a('s_waitcnt lgkmcnt(0)')

        def wreads(ks):
            b = WB[ks % 3]
            a('ds_read_b128 %s, v%d offset:%d' % (vr(b), LA, ks * 2304))
            a('ds_read_b128 %s, v%d offset:%d' % (vr(b + 4), LA, ks * 2304 + 1024))
            a('ds_read_b128 %s, v%d offset:%d' % (vr(b + 8), LB, ks * 2304))
        def wread1(ks, t):
            b = WB[ks % 3]
            if t < 2:
                a('ds_read_b128 %s, v%d offset:%d' % (vr(b + 4 * t), LA, ks * 2304 + 1024 * t))
            else:
                a('ds_read_b128 %s, v%d offset:%d' % (vr(b + 8), LB, ks * 2304))
        self.tr(40)
        def hook():
            Lwp = a.uid('Lwop')
            a('s_cmp_eq_u32 s%d, 0' % sWoP)
            a('s_cbranch_scc1 %s' % Lwp)
            self.set_flag(F_WR, sLayer, WB[0], add=1)
            a('s_mov_b32 s%d, 0' % sWoP)
            a.label(Lwp)
        self.poll_event(0, 0, ACC, 13, hook=hook)
        self.tr(44)
        issued = []

        def oload(ks):
            if ks < 16:
                if ks % 4 == 0:
                    a('s_add_u32 s%d, s%d, %d' % (sT + 2, sBase, WS_PAD + ks * 1024 - L_WO))
                a('buffer_load_dwordx4 %s, v%d, %s, s%d offen offset:%d sc1' %
                  (vr(slot(ks)), LA, srd(sWS2), sT + 2, (ks % 4) * 1024))
                issued.append(ks)
            else:
                a('s_add_u32 s%d, s%d, 16384' % (sT + 3, sBase))
                a('buffer_load_dwordx2 %s, v%d, %s, s%d offen offset:%d sc1' %
                  (vr(slot(ks), 2), VT, srd(sWS), sT + 3, (ks - 16) * 1024))
                a('buffer_load_dwordx2 %s, v%d, %s, s%d offen offset:%d sc1' %
                  (vr(slot(ks) + 2, 2), VT, srd(sWS), sT + 3, (ks - 16) * 1024 + 128))
                issued.extend([ks, ks])
        for ks in range(NS):
            oload(ks)
        a('s_add_u32 s%d, s%d, 1' % (sT + 7, sLayer))
        self.wait_flag(F_WR, sT + 7, WB[0], 10)
        for ks in range(3):
            wreads(ks)
        RES = 24
        RA = 32
        if os.environ.get('BPRIO'):
            a('s_setprio %s' % os.environ['BPRIO'])
        for ks in range(18):
            last = max(i for i, t in enumerate(issued) if t == ks)
            a('s_waitcnt vmcnt(%d) lgkmcnt(%d)' % (len(issued) - 1 - last, 3 * min(2, 17 - ks)))
            if ks == 0:
                self.tr(41)
            for t in range(3):
                a(mfma(ACC + 4 * t, WB[ks % 3] + 4 * t, slot(ks), ks == 0))
                if ks + 3 < 18:
                    wread1(ks + 3, t)
            if ks + NS < 18:
                oload(ks + NS)
            if ks == 9:
                a('ds_read_b128 %s, v100 offset:4096' % vr(RA))
            if ks == 10:
                L0, L1 = a.uid('Lres0'), a.uid('Lres1')
                a('s_add_u32 s%d, s%d, %d' % (sBase2, sBase, WS_X))
                a('s_mul_i32 s%d, s%d, 1152' % (sT + 4, sP))
                a('s_waitcnt lgkmcnt(3)')
                a('s_cmp_eq_u32 s%d, 0' % sLayer)
                a.softbranch('s_cbranch_scc1 %s' % L0)
                a('buffer_load_dwordx4 %s, v%d, %s, s%d offen sc1' % (vr(RES), RA, srd(sWS), sBase2))
                a('buffer_load_dwordx2 %s, v%d, %s, s%d offen sc1' % (vr(RES + 4, 2), RA + 1, srd(sWS), sBase2))
                a.softbranch('s_branch %s' % L1)
                a.label(L0, noflush=True)
                a('buffer_load_dwordx4 %s, v%d, %s, s%d offen' % (vr(RES), RA + 2, srd(sIN), sT + 4))
                a('buffer_load_dwordx2 %s, v%d, %s, s%d offen' % (vr(RES + 4, 2), RA + 3, srd(sIN), sT + 4))
                a.label(L1, noflush=True)
                issued.extend(['r', 'r'])
        self.tr(42)
        if os.environ.get('BPRIO'):
            a('s_setprio 2')
        E = 0
        U = 60
        pairs = [(ACC + r, ACC + 4 + r) for r in range(4)] + [(ACC + 8, ACC + 9), (ACC + 10, ACC + 11)]
        if os.environ.get('ONEROUND'):
            a('s_waitcnt vmcnt(0)')
            for m in range(6):
                a('v_lshlrev_b32 v%d, 16, v%d' % (U + 2 * m, RES + m))
                a('v_and_b32 v%d, 0xffff0000, v%d' % (U + 1 + 2 * m, RES + m))
            for m, (x0, x1) in enumerate(pairs):
                a('v_add_f32 v%d, v%d, v%d' % (U + 2 * m, U + 2 * m, x0))
                a('v_add_f32 v%d, v%d, v%d' % (U + 1 + 2 * m, U + 1 + 2 * m, x1))
            for m in range(6):
                a('v_cvt_pk_bf16_f32 v%d, v%d, v%d' % (E + m, U + 2 * m, U + 1 + 2 * m))
        else:
            for m, (x0, x1) in enumerate(pairs):
                a('v_cvt_pk_bf16_f32 v%d, v%d, v%d' % (E + m, x0, x1))
            a('s_waitcnt vmcnt(0)')
            for m in range(6):
                a('v_lshlrev_b32 v%d, 16, v%d' % (U + 2 * m, E + m))
                a('v_and_b32 v%d, 0xffff0000, v%d' % (U + 1 + 2 * m, E + m))
                a('v_lshlrev_b32 v%d, 16, v%d' % (U + 12 + 2 * m, RES + m))
                a('v_and_b32 v%d, 0xffff0000, v%d' % (U + 13 + 2 * m, RES + m))
            for m in range(12):
                a('v_add_f32 v%d, v%d, v%d' % (U + m, U + m, U + 12 + m))
            for m in range(6):
                a('v_cvt_pk_bf16_f32 v%d, v%d, v%d' % (E + m, U + 2 * m, U + 1 + 2 * m))
        L0, L1 = a.uid('Lst0'), a.uid('Lst1')
        a('s_cmp_eq_u32 s%d, %d' % (sLayer, self.nlayers - 1))
        a('s_cbranch_scc1 %s' % L0)

        def st(sc):
            a('buffer_store_dwordx4 %s, v32, %s, s%d offen%s' % (vr(E), srd(sWS), sBase2, sc))
            a('s_mov_b64 exec, 0xffff')
            a('buffer_store_dwordx2 %s, v33, %s, s%d offen%s' % (vr(E + 4, 2), srd(sWS), sBase2, sc))
            a('s_mov_b64 exec, -1')
            for m in range(4):
                a('v_dot2_f32_bf16 v8, v%d, v%d, %s' % (E + m, E + m, '0' if m == 0 else 'v8'))
            a('v_dot2_f32_bf16 v10, v%d, v%d, 0' % (E + 4, E + 4))
            a('v_dot2_f32_bf16 v10, v%d, v%d, v10' % (E + 5, E + 5))
            a('v_lshrrev_b32 v11, 1, v33')
            a('v_mov_b32 v9, v8')
            a('v_permlane32_swap_b32 v8, v9')
            a('v_add_f32 v8, v8, v9')
            a('v_mov_b32 v9, v8')
            a('v_permlane16_swap_b32 v8, v9')
            a('v_add3_f32 v8, v8, v9, v10') if False else None
            a('v_add_f32 v8, v8, v9')
            a('v_add_f32 v8, v8, v10')
            a('s_add_u32 s%d, s%d, %d' % (sT + 2, sBase2, 18432 - 8192))
            a('s_mov_b64 exec, 0xffff')
            a('buffer_store_dword v8, v11, %s, s%d offen%s' % (srd(sWS), sT + 2, sc))
            a('s_mov_b64 exec, -1')
            self.publish_event(2, 44, sc)
        self.both_modes(st)
        a('s_branch %s' % L1)
        a.label(L0)
        OSC = os.environ.get('OUTSC', '')
        a('buffer_store_dwordx4 %s, v34, %s, s%d offen %s' % (vr(E), srd(sOUT), sT + 4, OSC))
        a('s_mov_b64 exec, 0xffff')
        a('buffer_store_dwordx2 %s, v35, %s, s%d offen %s' % (vr(E + 4, 2), srd(sOUT), sT + 4, OSC))
        a('s_mov_b64 exec, -1')
        a.label(L1)
        a('s_lshl_b32 s%d, s%d, 4' % (sT, sP))
        a('s_lshl_b32 s%d, s%d, 2' % (sT + 1, sWv))
        a('s_sub_u32 s%d, s%d, s%d' % (sT, sT + 1, sT))
        a('v_add_u32 v60, s%d, v%d' % (sT, vFlag))
        a('s_add_u32 s%d, s%d, 1' % (sT, sLayer))
        a('v_mov_b32 v61, s%d' % sT)
        a('ds_write_b32 v60, v61 offset:%d' % F_WG)
        self.tr(43)

    def xaddr_frag(self, d, tmp):
        a = self.a
        a('v_lshrrev_b32 v%d, 4, v%d' % (tmp, vLane))
        a('v_and_b32 v%d, 15, v%d' % (tmp + 1, vLane))
        self.swz(d, tmp, tmp + 1, tmp + 2)
        a('s_lshl_b32 s%d, s%d, 10' % (sT, sHG))
        a('v_add_u32 v%d, s%d, v%d' % (d, sT, d))
        a('s_lshl_b32 s%d, s%d, 7' % (sT, sHG))
        a('s_add_u32 s%d, s%d, 16384' % (sT, sT))
        a('v_lshlrev_b32 v%d, 3, v%d' % (tmp + 1, tmp + 1))
        a('v_add_u32 v%d, s%d, v%d' % (d + 1, sT, tmp + 1))

    def xaddr_nat(self, d, tmp):
        a = self.a
        a('s_lshl_b32 s%d, s%d, 7' % (sT, sTG))
        a('s_add_u32 s%d, s%d, s%d' % (sT, sT, sP))
        a('s_lshl_b32 s%d, s%d, 5' % (sT + 1, sWv))
        a('s_add_u32 s%d, s%d, s%d' % (sT, sT, sT + 1))
        a('s_mul_i32 s%d, s%d, 1152' % (sT, sT))
        a('s_mul_i32 s%d, s%d, 72' % (sT + 1, sHG))
        a('s_add_u32 s%d, s%d, s%d' % (sT, sT, sT + 1))
        a('v_and_b32 v%d, 15, v%d' % (tmp, vLane))
        a('v_mul_u32_u24 v%d, 2304, v%d' % (tmp, tmp))
        a('v_add_u32 v%d, s%d, v%d' % (tmp, sT, tmp))
        a('v_add_u32 v%d, 64, v%d' % (d + 1, tmp))
        a('v_lshrrev_b32 v%d, 4, v%d' % (tmp + 1, vLane))
        a('v_lshl_add_u32 v%d, v%d, 4, v%d' % (d, tmp + 1, tmp))

    def build(self):
        a = self.a
        self.prologue()
        a('s_cmp_eq_u32 s%d, 0' % sSet)
        a('s_cbranch_scc0 L_H0')
        if not os.environ.get('DIRECTA'):
            self.wload_addr(0, 1, 2)
            self.coop_issue(0, 1)
            self.wou_issue(16, 24)
            self.kv_prefill(32)
            a('s_waitcnt vmcnt(12)')
            self.tr(5)
            self.coop_store(2)
            a('s_waitcnt vmcnt(2)')
            self.wou_store(16, 24)
            self.get_nonce(8)
            self.coop_flag(12)
            self.wou_flag(8)
            a('s_mov_b32 s%d, 1' % (sT + 7))
            self.set_flag(F_XH, sT + 7, 12)
            self.tr(6)
            a('s_mov_b32 s%d, 0' % sP)
            self.stage_input_issue()
            self.stage_input_finish()
            self.coop_load(0)
            self.colsum(8, progressive=True)
        else:
            self.wload_addr(99, 100, 92)
            self.kv_prefill(80)
            self.wou_issue(72, 92)
            self.stage_input_issue()
            self.wload_issue(range(0, 18), 99, 100)
            self.tr(5)
            self.stage_input_finish(extra_after=49, last_extra=63)
            self.wou_store(72, 92)
            self.ones_mask(2, 3)
            self.get_nonce(8)
            self.wou_flag(8)
            self.tr(6)
            self.wload_perm(range(18), 2, 4)
            self.colsum(8)
        a('s_mov_b32 s%d, 2' % (sT + 7))
        self.set_flag(F_XH, sT + 7, 12)
        self.tr(2)
        if os.environ.get('ENDT'):
            a('s_memrealtime s[%d:%d]' % (sTm, sTm + 1))
            a('s_waitcnt lgkmcnt(0)')
            a('s_sub_u32 s%d, s%d, s%d' % (sTm, sTm, sNon))
            a('v_mov_b32 v0, s%d' % sTm)
            a('v_mov_b32 v1, 12')
            a('s_mov_b64 exec, 1')
            a('buffer_atomic_umax v0, v1, %s, 0 offen' % srd(sDBG))
            a('s_mov_b64 exec, -1')
        a('s_branch L_M_ROLE')
        a.label('L_H0')
        Ln, Lp = a.uid('Lnn'), a.uid('Lpf0')
        a('s_cmp_lg_u32 s2, 0')
        a('s_cbranch_scc1 %s' % Ln)
        a('s_cmp_lg_u32 s%d, 0' % sWv)
        a('s_cbranch_scc1 %s' % Ln)
        a('s_memrealtime s[%d:%d]' % (sNon, sNon + 1))
        a('s_waitcnt lgkmcnt(0)')
        a('s_or_b32 s%d, s%d, 1' % (sNon, sNon))
        a('s_or_b32 s%d, s%d, 1' % (sNon + 1, sNon + 1))
        a('v_mov_b32 v72, s%d' % sNon)
        a('v_mov_b32 v73, s%d' % (sNon + 1))
        a('v_mov_b32 v74, 0')
        a('buffer_store_dwordx2 v[72:73], v74, %s, 0 offen sc1' % srd(sDBG))
        a.label(Ln)
        self.wload_addr(99, 100, 92)
        self.coop_issue(99, 100)
        self.wou_issue(72, 92)
        self.kv_prefill(80)
        a('s_waitcnt vmcnt(4)')
        self.tr(5)
        self.coop_store(vCS)
        self.wou_store(72, 92)
        self.get_nonce(72)
        a('s_mov_b32 s%d, 1' % (sT + 7))
        self.set_flag(F_XH + 16, sT + 7, 72)
        Lf = a.uid('Lif')
        a('s_cmp_lg_u32 s%d, 3' % sWv)
        a('s_cbranch_scc1 %s' % Lf)
        self.wait_flag(F_XH, sT + 7, 72, 18)
        self.wait_flag(F_XH + 16, sT + 7, 72, 19)
        a('s_lshl_b32 s%d, s%d, 4' % (sT, sTG))
        a('s_add_u32 s%d, s%d, s%d' % (sT, sT, sHG))
        a('s_lshl_b32 s%d, s%d, 4' % (sT, sT))
        a('s_add_u32 s%d, s%d, %d' % (sT, sT, WS_INI))
        a('v_mov_b32 v72, s%d' % sNon)
        a('v_mov_b32 v73, s%d' % (sNon + 1))
        a('v_mov_b32 v74, s%d' % sXcc)
        a('v_mov_b32 v75, s%d' % sNon)
        a('v_mov_b32 v76, 0')
        a('s_mov_b64 exec, 1')
        a('buffer_store_dwordx4 v[72:75], v76, %s, s%d offen sc1' % (srd(sWS), sT))
        a('s_mov_b64 exec, -1')
        a.label(Lf)
        self.coop_flag(78)
        self.wou_flag(92)
        self.tr(6)
        self.build_tables()
        a('s_mov_b32 s%d, 2' % (sT + 7))
        self.set_flag(F_XH + 16, sT + 7, 72)
        self.wait_flag(F_XH, sT + 7, 72, 20, sleep=4)
        a('s_mov_b32 s%d, 1' % sP)
        self.stage_input_issue()
        self.wo_stage()
        self.init_check(72)
        self.coop_load(72)
        self.stage_input_finish(extra_after=36, last_extra=36)
        self.tr(3)
        a('s_mov_b32 s%d, 0' % sP)
        a('s_branch L_BPHASE')
        self.m_role()
        a.label('L_BPHASE')
        self.bphase()
        a('s_add_u32 s%d, s%d, 1' % (sLayer, sLayer))
        a('s_cmp_ge_u32 s%d, %d' % (sLayer, self.nlayers))
        a('s_cbranch_scc1 L_END')
        a.label('L_STAGE')
        self.stage_generic()
        a('s_cmp_eq_u32 s%d, 0' % sP)
        a('s_cbranch_scc1 L_M_ROLE')
        a('s_mov_b32 s%d, 0' % sP)
        a('s_branch L_BPHASE')
        a.label('L_ABORT')
        a('s_mov_b64 exec, -1')
        a('s_lshl_b32 s%d, s%d, 2' % (sT, sT + 9))
        a('s_add_u32 s%d, s%d, 64' % (sT, sT))
        a('v_mov_b32 v0, s2')
        a('v_add_u32 v0, 0x1000, v0')
        a('v_mov_b32 v1, s%d' % sT)
        a('buffer_store_dword v0, v1, %s, 0 offen sc1' % srd(sDBG))
        a.label('L_END')
        if os.environ.get('ENDT'):
            a('s_cmp_ge_u32 s2, 256')
            a('s_cbranch_scc1 L_END3')
            a('s_memrealtime s[%d:%d]' % (sTm, sTm + 1))
            a('s_waitcnt lgkmcnt(0)')
            a('s_sub_u32 s%d, s%d, s%d' % (sTm, sTm, sNon))
            a('v_mov_b32 v0, s%d' % sTm)
            a('v_mov_b32 v1, 8')
            a('s_mov_b64 exec, 1')
            a('buffer_atomic_umax v0, v1, %s, 0 offen' % srd(sDBG))
            a.label('L_END3')
        if self.debug:
            a('s_cmp_ge_u32 s2, 256')
            a('s_cbranch_scc1 L_END2')
            self.tr(63)
            a('s_lshl_b32 s%d, s2, 3' % sT)
            a('s_add_u32 s%d, s%d, s%d' % (sT, sT, sWave))
            a('s_lshl_b32 s%d, s%d, 8' % (sT, sT))
            a('s_add_u32 s%d, s%d, %d' % (sT, sT, WS_TRC))
            a('v_lshlrev_b32 v0, 2, v%d' % vLane)
            a('buffer_store_dword v%d, v0, %s, s%d offen' % (vTr, srd(sWS), sT))
            a.label('L_END2')
        a('s_endpgm')

    def text(self):
        hdr = open(os.path.join(os.path.dirname(os.path.abspath(__file__)), '..', 'cdna_kernels', NAME + '.s.ref')).read()
        out = hdr.split('; Override launch geometry')[0]
        out += '; @launch grid=(256,1,1) block=(512,1,1) lds=%d\n' % LDS_BYTES
        out += '.amdgcn_target "amdgcn-amd-amdhsa--gfx950"\n.text\n'
        out += '.globl %s_kernel\n.p2align 8\n.type %s_kernel,@function\n%s_kernel:\n' % (NAME, NAME, NAME)
        out += self.a.render()
        out += '''.section .rodata,"a"
.p2align 6
.amdhsa_kernel %s_kernel
  .amdhsa_next_free_vgpr 256
  .amdhsa_next_free_sgpr 96
  .amdhsa_accum_offset 256
  .amdhsa_group_segment_fixed_size 0
  .amdhsa_kernarg_size 72
  .amdhsa_user_sgpr_count 2
  .amdhsa_user_sgpr_kernarg_segment_ptr 1
  .amdhsa_system_sgpr_workgroup_id_x 1
.end_amdhsa_kernel
''' % NAME
        return out


if __name__ == '__main__':
    nl = int(sys.argv[2]) if len(sys.argv) > 2 else 4
    g = Gen(nlayers=nl, debug=(len(sys.argv) > 3 and sys.argv[3] == 'trace'))
    g.build()
    path = sys.argv[1] if len(sys.argv) > 1 else os.path.join(os.path.dirname(os.path.abspath(__file__)), '..', 'cdna_kernels', NAME + '.s')
    open(path, 'w').write(g.text())
    print('wrote', path)
```

```python
import sys, os, struct
sys.path.insert(0, os.path.dirname(os.path.abspath(__file__)))
from asmlib import Asm

NAME = 'interleave_layers__sliding_local_dilated__sliding_local_dilated__prompt'

XBYTES = 2048 * 576 * 2
MT = 19456
TILE = 4 * MT
WS_X = 4 * XBYTES
LSTR = 0
WS_KV = 6 * XBYTES
KVT = 2304
WS_FL = 9 * XBYTES
WS_INI = WS_FL + 65536
WS_CFLG = WS_FL + 131072
WS_WFLG = WS_FL + 262144
WS_TRC = 10 * XBYTES
WS_CIMG = 11 * XBYTES
WS_PIMG = 14 * XBYTES
WS_PFLG = WS_FL + 393216
WS_WIMG = 13 * XBYTES
WIS = 41984
WS_SIZE = 80 << 20
WS_PAD = 1 << 20
OOB = 0x7F000000

L_QKV = 4 * MT
QP = 272
L_WO = L_QKV + 80 * QP
L_ST = L_WO + 18 * 2304
L_FLG = L_ST + 320
L_TAB = L_FLG + 256
LDS_BYTES = 162560
F_XR, F_XF, F_QR, F_QF, F_WR, F_WF, F_WG, F_XH = 0, 16, 32, 48, 64, 80, 96, 112

sIN, sWQ, sWO, sOUT, sWS, sDBG = 24, 28, 32, 36, 40, 44
sWave, sWv, sSet, sTG, sHG, sLayer, sP, sN, sBud = 48, 49, 50, 51, 52, 53, 54, 55, 56
sG = 57
sNon = 58
sT = 60
sSelLo, sSelHi = 72, 73
sM1, sM2, sM3, sMD = 74, 76, 78, 80
sPend = 82
sBase = 83
sBase2 = 84
sFast = 85
sTm = 86
sWS2 = 88
sTi = 92
sXcc = 93
sWoOk = 94
sTileW = 95
sMt = 4
sQo = 8
sFlW = 12
sOwn = 13
sCs = 14
sQu = 16
sSt = 18
sKm = 20
sH = 22
sPass = 23
sWoP = 15
sPub = 7
sTab = 8
vTr = 101
vFlag, vLane = 102, 103
vCS = 104
vW = 112


def srd(n):
    return 's[%d:%d]' % (n, n + 3)


def vr(b, n=4):
    return 'v[%d:%d]' % (b, b + n - 1)


def W(t, ks):
    return vW + (ks * 2 + t) * 4


def mfma(d, a_, b_, first):
    return 'v_mfma_f32_16x16x32_bf16 %s, %s, %s, %s' % (vr(d), vr(a_), vr(b_), '0' if first else vr(d))


class Gen:
    def __init__(self, nlayers=4, debug=False):
        self.a = Asm()
        self.nlayers = nlayers
        self.debug = debug

    def budget_check(self, code):
        a = self.a
        a('s_sub_u32 s%d, s%d, 1' % (sBud, sBud))
        a('s_cmp_eq_u32 s%d, 0' % sBud)
        a('s_mov_b32 s%d, %d' % (sT + 9, code))
        a('s_cbranch_scc1 L_ABORT')

    def tr(self, ident):
        if not self.debug:
            return
        if os.environ.get('FINE') and ident in (20, 25, 24, 30, 40, 44, 41, 42, 43, 21, 3):
            return
        a = self.a
        a('%s s[%d:%d]' % ('s_memtime' if os.environ.get('CYC') else 's_memrealtime', sTm, sTm + 1))
        a('s_waitcnt lgkmcnt(0)')
        a('s_lshl_b32 s%d, s%d, 6' % (sTm, sTm))
        a('s_or_b32 s%d, s%d, %d' % (sTm, sTm, ident))
        a('s_mov_b32 m0, s%d' % sTi)
        a('s_nop 0')
        a('v_writelane_b32 v%d, s%d, m0' % (vTr, sTm))
        a('s_add_u32 s%d, s%d, 1' % (sTi, sTi))

    def flag_min(self, tmp):
        a = self.a
        a('v_min3_u32 v%d, v%d, v%d, v%d' % (tmp, tmp, tmp + 1, tmp + 2))
        a('v_min_u32 v%d, v%d, v%d' % (tmp, tmp, tmp + 3))
        a('v_readfirstlane_b32 s%d, v%d' % (sT + 8, tmp))

    def wait_flag(self, off, tgt, tmp, code, add=0, sleep=0):
        a = self.a
        L, Ld = a.uid('Lwf'), a.uid('Lwfd')
        a.label(L)
        a('ds_read_b128 %s, v%d offset:%d' % (vr(tmp), vFlag, off))
        a('s_waitcnt lgkmcnt(0)')
        self.flag_min(tmp)
        a('s_nop 1')
        if add:
            a('s_add_u32 s%d, s%d, %d' % (sT + 8, sT + 8, add))
        a('s_cmp_ge_u32 s%d, s%d' % (sT + 8, tgt))
        a('s_cbranch_scc1 %s' % Ld)
        self.budget_check(code)
        if sleep:
            a('s_sleep %d' % sleep)
        a('s_branch %s' % L)
        a.label(Ld)

    def set_flag(self, off, val_sreg, tmpv, add=0):
        a = self.a
        a('s_lshl_b32 s%d, s%d, 2' % (sT + 8, sWv))
        a('v_add_u32 v%d, s%d, v%d' % (tmpv, sT + 8, vFlag))
        if add:
            a('s_add_u32 s%d, s%d, %d' % (sT + 8, val_sreg, add))
            a('v_mov_b32 v%d, s%d' % (tmpv + 1, sT + 8))
        else:
            a('v_mov_b32 v%d, s%d' % (tmpv + 1, val_sreg))
        a('ds_write_b32 v%d, v%d offset:%d' % (tmpv, tmpv + 1, off))

    def swz(self, dst, q, r, tmp):
        a = self.a
        a('v_and_b32 v%d, 1, v%d' % (tmp, q))
        a('v_lshlrev_b32 v%d, 1, v%d' % (tmp, tmp))
        a('v_lshrrev_b32 v%d, 1, v%d' % (dst, q))
        a('v_mul_u32_u24 v%d, 12, v%d' % (dst, dst))
        a('v_add_u32 v%d, v%d, v%d' % (tmp, tmp, dst))
        a('v_xor_b32 v%d, v%d, v%d' % (tmp, tmp, r))
        a('v_lshlrev_b32 v%d, 4, v%d' % (tmp, tmp))
        a('v_lshl_add_u32 v%d, v%d, 8, v%d' % (dst, q, tmp))

    def sentinel_vcc(self, regs, tmp):
        a = self.a
        regs = list(regs)
        a('v_max3_u32 v%d, v%d, v%d, v%d' % (tmp, regs[0], regs[1], regs[2]))
        i = 3
        while i + 1 < len(regs):
            a('v_max3_u32 v%d, v%d, v%d, v%d' % (tmp, tmp, regs[i], regs[i + 1]))
            i += 2
        if i < len(regs):
            a('v_max_u32 v%d, v%d, v%d' % (tmp, tmp, regs[i]))
        a('v_cmp_eq_u32 vcc, -1, v%d' % tmp)

    def poll_event(self, kind_expr, layer_add, tmp, code, all64=False, hook=None):
        a = self.a
        if all64:
            a('v_lshlrev_b32 v%d, 3, v%d' % (tmp + 2, vLane))
        else:
            a('v_and_b32 v%d, 15, v%d' % (tmp + 2, vLane))
            a('v_lshlrev_b32 v%d, 3, v%d' % (tmp + 2, tmp + 2))
        a('s_lshl_b32 s%d, s%d, 9' % (sT, sP))
        a('s_add_u32 s%d, s%d, s%d' % (sT, sT, sFlW))
        if all64:
            a('s_lshl_b32 s%d, s%d, 7' % (sT + 1, sWv))
            a('s_sub_u32 s%d, s%d, s%d' % (sT, sT, sT + 1))
        if kind_expr:
            a('s_add_u32 s%d, s%d, %d' % (sT, sT, kind_expr * 512))
        a('s_add_u32 s%d, s%d, s%d' % (sT + 1, sNon, sLayer))
        a('s_add_u32 s%d, s%d, %d' % (sT + 1, sT + 1, 1 + layer_add))
        L, Ld = a.uid('Lpoll'), a.uid('Lpolld')
        a('s_setprio 0')
        a.label(L)
        a('buffer_load_dwordx2 %s, v%d, %s, s%d offen sc1' % (vr(tmp, 2), tmp + 2, srd(sWS), sT))
        a('s_waitcnt vmcnt(0)')
        if hook:
            hook()
        a('v_subrev_u32 v%d, s%d, v%d' % (tmp, sT + 1, tmp))
        a('v_xor_b32 v%d, s%d, v%d' % (tmp + 1, sNon + 1, tmp + 1))
        a('v_lshrrev_b32 v%d, 3, v%d' % (tmp, tmp))
        a('v_or_b32 v%d, v%d, v%d' % (tmp, tmp, tmp + 1))
        a('v_cmp_ne_u32 vcc, 0, v%d' % tmp)
        a('s_nop 1')
        a('s_cmp_eq_u64 vcc, 0')
        a('s_cbranch_scc1 %s' % Ld)
        self.budget_check(code)
        a('s_branch %s' % L)
        a.label(Ld)
        a('s_setprio 2')

    def publish_event(self, kind, tmp, sc):
        a = self.a
        a('s_lshl_b32 s%d, s%d, 9' % (sT, sP))
        a('s_add_u32 s%d, s%d, s%d' % (sT, sT, sFlW))
        a('s_lshl_b32 s%d, s%d, 3' % (sT + 1, sHG))
        a('s_add_u32 s%d, s%d, s%d' % (sT, sT, sT + 1))
        if kind:
            a('s_add_u32 s%d, s%d, %d' % (sT, sT, kind * 512))
        a('s_add_u32 s%d, s%d, s%d' % (sT + 1, sNon, sLayer))
        a('s_add_u32 s%d, s%d, 1' % (sT + 1, sT + 1))
        a('v_mov_b32 v%d, s%d' % (tmp, sT + 1))
        a('v_mov_b32 v%d, s%d' % (tmp + 1, sNon + 1))
        a('v_mov_b32 v%d, 0' % (tmp + 2))
        a('s_mov_b64 exec, 1')
        a('s_waitcnt vmcnt(0)')
        a('buffer_store_dwordx2 %s, v%d, %s, s%d offen%s' % (vr(tmp, 2), tmp + 2, srd(sWS), sT, sc))
        a('s_mov_b64 exec, -1')

    def both_modes(self, fn):
        a = self.a
        L0, L1 = a.uid('Lslow'), a.uid('Lmend')
        a('s_cmp_eq_u32 s%d, 0' % sFast)
        a('s_cbranch_scc1 %s' % L0)
        fn('')
        a('s_branch %s' % L1)
        a.label(L0)
        fn(' sc1')
        a.label(L1)

    def store_nonce_flag(self, soff, tmp):
        a = self.a
        a('v_mov_b32 v%d, s%d' % (tmp, sNon))
        a('v_mov_b32 v%d, s%d' % (tmp + 1, sNon + 1))
        a('v_mov_b32 v%d, 0' % (tmp + 2))
        a('s_mov_b64 exec, 1')
        a('buffer_store_dwordx2 %s, v%d, %s, s%d offen sc1' % (vr(tmp, 2), tmp + 2, srd(sWS), soff))
        a('s_mov_b64 exec, -1')

    def poll_nonce_flags(self, soff, vaddr, tmp, code):
        a = self.a
        L, Ld = a.uid('Lpn'), a.uid('Lpnd')
        a.label(L)
        a('buffer_load_dwordx2 %s, v%d, %s, s%d offen sc1' % (vr(tmp, 2), vaddr, srd(sWS), soff))
        a('s_waitcnt vmcnt(0)')
        a('v_xor_b32 v%d, s%d, v%d' % (tmp, sNon, tmp))
        a('v_xor_b32 v%d, s%d, v%d' % (tmp + 1, sNon + 1, tmp + 1))
        a('v_or_b32 v%d, v%d, v%d' % (tmp, tmp, tmp + 1))
        a('v_cmp_ne_u32 vcc, 0, v%d' % tmp)
        a('s_nop 1')
        a('s_cmp_eq_u64 vcc, 0')
        a('s_cbranch_scc1 %s' % Ld)
        self.budget_check(code)
        a('s_sleep 2')
        a('s_branch %s' % L)
        a.label(Ld)

    def get_nonce(self, tmp):
        a = self.a
        L, Ld = a.uid('Lnon'), a.uid('Lnond')
        a('v_mov_b32 v%d, 0' % (tmp + 2))
        a.label(L)
        a('buffer_load_dwordx2 %s, v%d, %s, 0 offen sc1' % (vr(tmp, 2), tmp + 2, srd(sDBG)))
        a('s_waitcnt vmcnt(0)')
        a('v_readfirstlane_b32 s%d, v%d' % (sNon, tmp))
        a('v_readfirstlane_b32 s%d, v%d' % (sNon + 1, tmp + 1))
        a('s_nop 1')
        a('s_min_u32 s%d, s%d, s%d' % (sT + 8, sNon, sNon + 1))
        a('s_cmp_lg_u32 s%d, 0' % (sT + 8))
        a('s_cbranch_scc1 %s' % Ld)
        self.budget_check(7)
        a('s_sleep 2')
        a('s_branch %s' % L)
        a.label(Ld)

    def init_check(self, tmp):
        a = self.a
        a('s_mov_b32 s%d, 2' % (sT + 7))
        self.wait_flag(F_XH + 16, sT + 7, tmp, 21)
        L, Ld = a.uid('Lini'), a.uid('Linid')
        a('v_and_b32 v%d, 15, v%d' % (tmp + 4, vLane))
        a('v_lshlrev_b32 v%d, 4, v%d' % (tmp + 4, tmp + 4))
        a('v_add_u32 v%d, 256, v%d' % (tmp + 5, tmp + 4))
        a('v_and_b32 v%d, 16, v%d' % (tmp + 6, vLane))
        a('s_cmp_eq_u32 s%d, 0' % sTG)
        a('s_cselect_b32 s%d, 0, 16' % sT)
        a('v_and_b32 v%d, s%d, v%d' % (tmp + 6, sT, tmp + 6))
        a('v_cmp_eq_u32 s[%d:%d], 0, v%d' % (sT + 2, sT + 3, tmp + 6))
        a('v_cndmask_b32 v%d, v%d, v%d, s[%d:%d]' % (tmp + 4, tmp + 4, tmp + 5, sT + 2, sT + 3))
        a('s_lshl_b32 s%d, s%d, 8' % (sT, sTG))
        a('s_add_u32 s%d, s%d, %d' % (sT, sT, WS_INI - 256))
        a.label(L)
        a('buffer_load_dwordx4 %s, v%d, %s, s%d offen sc1' % (vr(tmp), tmp + 4, srd(sWS), sT))
        a('s_waitcnt vmcnt(0)')
        a('v_xor_b32 v%d, s%d, v%d' % (tmp, sNon, tmp))
        a('v_xor_b32 v%d, s%d, v%d' % (tmp + 1, sNon + 1, tmp + 1))
        a('v_xor_b32 v%d, s%d, v%d' % (tmp + 3, sNon, tmp + 3))
        a('v_or3_b32 v%d, v%d, v%d, v%d' % (tmp, tmp, tmp + 1, tmp + 3))
        a('v_cmp_ne_u32 vcc, 0, v%d' % tmp)
        a('s_nop 1')
        a('s_cmp_eq_u64 vcc, 0')
        a('s_cbranch_scc1 %s' % Ld)
        self.budget_check(8)
        a('s_sleep 2')
        a('s_branch %s' % L)
        a.label(Ld)
        a('v_cmp_ne_u32 vcc, s%d, v%d' % (sXcc, tmp + 2))
        a('s_nop 1')
        a('s_and_b64 vcc, vcc, s[%d:%d]' % (sT + 2, sT + 3))
        a('s_cmp_eq_u64 vcc, 0')
        a('s_cselect_b32 s%d, 1, 0' % sFast)
        if os.environ.get('FORCE_SLOW'):
            a('s_mov_b32 s%d, 0' % sFast)

    def prologue(self):
        a = self.a
        a('s_cmp_ge_u32 s2, 256')
        a('s_cbranch_scc1 L_END')
        a('s_load_dwordx16 s[4:19], s[0:1], 0')
        a('s_load_dwordx2 s[20:21], s[0:1], 64')
        a('v_and_b32 v%d, 63, v0' % vLane)
        a('v_lshrrev_b32 v1, 6, v0')
        a('v_readfirstlane_b32 s%d, v1' % sWave)
        a('s_getreg_b32 s%d, hwreg(HW_REG_XCC_ID)' % sXcc)
        a('s_and_b32 s%d, s%d, 15' % (sXcc, sXcc))
        a('s_and_b32 s%d, s%d, 3' % (sWv, sWave))
        a('s_lshr_b32 s%d, s%d, 2' % (sSet, sWave))
        a('s_and_b32 s%d, s2, 7' % sT)
        a('s_lshr_b32 s%d, s2, 3' % (sT + 1))
        a('s_and_b32 s%d, s%d, 15' % (sHG, sT + 1))
        a('s_lshr_b32 s%d, s%d, 4' % (sT + 1, sT + 1))
        a('s_lshl_b32 s%d, s%d, 1' % (sTG, sT))
        a('s_add_u32 s%d, s%d, s%d' % (sTG, sTG, sT + 1))
        a('s_mov_b32 s%d, 0x%x' % (sBud, 2000000))
        a('s_mov_b32 s%d, 0x05040100' % sSelLo)
        a('s_mov_b32 s%d, 0x07060302' % sSelHi)
        a('s_mov_b32 s%d, 0' % sLayer)
        a('s_mov_b32 s%d, 0' % sWoOk)
        a('s_mov_b32 s%d, 0' % sFast)
        a('v_mov_b32 v%d, 0x%x' % (vFlag, L_FLG))
        a('v_and_b32 v1, 3, v%d' % vLane)
        a('v_cmp_eq_u32 s[%d:%d], 1, v1' % (sM1, sM1 + 1))
        a('v_cmp_eq_u32 s[%d:%d], 2, v1' % (sM2, sM2 + 1))
        a('v_cmp_eq_u32 s[%d:%d], 3, v1' % (sM3, sM3 + 1))
        a('v_lshrrev_b32 v1, 4, v%d' % vLane)
        a('v_bfe_u32 v2, v%d, 2, 2' % vLane)
        a('v_cmp_eq_u32 s[%d:%d], v1, v2' % (sMD, sMD + 1))
        a('v_mov_b32 v1, 0')
        a('v_lshl_add_u32 v2, v%d, 2, v%d' % (vLane, vFlag))
        a('ds_write_b32 v2, v1')
        a('s_waitcnt lgkmcnt(0)')

        def mk(n, lo, hi, size):
            a('s_mov_b32 s%d, s%d' % (n, lo))
            a('s_and_b32 s%d, s%d, 0xffff' % (n + 1, hi))
            a('s_mov_b32 s%d, 0x%x' % (n + 2, size))
            a('s_mov_b32 s%d, 0x00020000' % (n + 3))
        mk(sIN, 4, 5, XBYTES)
        mk(sOUT, 16, 17, XBYTES)
        mk(sDBG, 18, 19, 256)
        mk(sWS2, 20, 21, WS_SIZE)
        a('s_add_u32 s20, s20, 0x%x' % WS_PAD)
        a('s_addc_u32 s21, s21, 0')
        mk(sWS, 20, 21, WS_SIZE)
        a('s_mov_b32 s%d, 0' % sTi)
        a('s_cmp_eq_u32 s%d, 0' % sSet)
        a('s_cbranch_scc0 L_SETB_SRD')
        mk(sWQ, 6, 7, 576 * 1728 * 2)
        mk(sWO, 14, 15, 576 * 576 * 2)
        a('s_branch L_SRD_DONE')
        a.label('L_SETB_SRD')
        mk(sWQ, 12, 13, 576 * 1728 * 2)
        mk(sWO, 8, 9, 576 * 576 * 2)
        a.label('L_SRD_DONE')
        a('s_mul_i32 s%d, s%d, %d' % (sMt, sWv, MT))
        a('s_mul_i32 s%d, s%d, %d' % (sTileW, sTG, 2 * TILE))
        a('s_mul_i32 s%d, s%d, %d' % (sT, sWv, MT))
        a('s_add_u32 s%d, s%d, s%d' % (sTileW, sTileW, sT))
        a('s_lshl_b32 s%d, s%d, 11' % (sFlW, sTG))
        a('s_lshl_b32 s%d, s%d, 7' % (sT, sWv))
        a('s_add_u32 s%d, s%d, s%d' % (sFlW, sFlW, sT))
        a('s_add_u32 s%d, s%d, %d' % (sFlW, sFlW, WS_FL))
        a('s_mov_b32 s%d, 0' % sOwn)
        a('s_mov_b32 s%d, 0' % sWoP)
        a('s_mov_b32 s%d, 0' % sPub)
        a('s_mul_i32 s%d, s%d, 5120' % (sTab, sWv))
        a('s_add_u32 s%d, s%d, 0x%x' % (sTab, sTab, L_TAB))
        a('s_mov_b32 s%d, s%d' % (sCs, sSet))
        a('s_mul_i32 s%d, s%d, 48' % (sQu, sWv))
        a('s_add_u32 s%d, s%d, 0x%x' % (sQu, sQu, L_QKV))
        a('s_lshl_b32 s%d, s%d, 4' % (sQu + 1, sWv))
        a('s_add_u32 s%d, s%d, 0x%x' % (sQu + 1, sQu + 1, L_QKV + 192 - 48))
        a('s_lshl_b32 s%d, s%d, 6' % (sSt, sWv))
        a('s_add_u32 s%d, s%d, 0x%x' % (sSt, sSt, L_ST + 64 - 192))
        a('s_mov_b32 s%d, 0x%x' % (sSt + 1, L_ST - 192))
        a('s_and_b32 s%d, s%d, 1' % (sH, sTG))
        km = 0xffff & ~sum(1 << self.UNIT[i] for i in (0, 1, 2, 12))
        a('s_mov_b32 s%d, 0x%x' % (sKm, km | (km << 16)))
        a('s_mov_b32 s%d, 0x%x' % (sKm + 1, km | (km << 16)))
        if True:
            a('s_setprio %s' % '2')
        a('s_barrier')
        if self.debug:
            a('v_mov_b32 v%d, 0' % vTr)
        self.tr(1)

    def wload_addr(self, v1, v2, tmp):
        a = self.a
        i, q, oa, rr, t4, t5 = tmp, tmp + 1, tmp + 2, tmp + 3, tmp + 4, tmp + 5
        a('v_and_b32 v%d, 15, v%d' % (i, vLane))
        a('v_lshrrev_b32 v%d, 4, v%d' % (q, vLane))
        a('v_lshrrev_b32 v%d, 2, v%d' % (oa, i))
        a('v_and_b32 v%d, 3, v%d' % (rr, i))
        a('s_mul_i32 s%d, s%d, 3' % (sT, sWv))
        a('v_add_u32 v%d, s%d, v%d' % (t4, sT, oa))
        a('v_lshrrev_b32 v%d, 2, v%d' % (v1, t4))
        a('v_mul_u32_u24 v%d, 576, v%d' % (v1, v1))
        a('v_bfe_u32 v%d, v%d, 1, 1' % (t5, t4))
        a('v_mul_u32_u24 v%d, 18, v%d' % (t5, t5))
        a('v_add_u32 v%d, v%d, v%d' % (v1, v1, t5))
        a('v_and_b32 v%d, 1, v%d' % (t5, t4))
        a('v_lshl_add_u32 v%d, v%d, 3, v%d' % (v1, t5, v1))
        a('v_lshl_add_u32 v%d, v%d, 1, v%d' % (v1, rr, v1))
        a('s_mul_i32 s%d, s%d, 576' % (sT, sWv))
        a('s_add_u32 s%d, s%d, 16' % (sT, sT))
        a('v_mul_u32_u24 v%d, 18, v%d' % (t5, rr))
        a('v_add_u32 v%d, s%d, v%d' % (t5, sT, t5))
        a('v_cmp_eq_u32 vcc, 3, v%d' % oa)
        a('v_cndmask_b32 v%d, v%d, v%d, vcc' % (v1, v1, t5))
        a('s_mul_i32 s%d, s%d, 36' % (sT, sHG))
        a('v_add_u32 v%d, s%d, v%d' % (v1, sT, v1))
        a('v_lshlrev_b32 v%d, 1, v%d' % (v1, v1))
        a('s_cmp_eq_u32 s%d, 3' % sWv)
        a('s_cselect_b32 s%d, 12, 14' % sT)
        a('v_cmp_le_u32 vcc, s%d, v%d' % (sT, i))
        a('v_mov_b32 v%d, 0x%x' % (t5, OOB))
        a('v_cndmask_b32 v%d, v%d, v%d, vcc' % (v1, v1, t5))
        a('s_mov_b32 s%d, %d' % (sT, 72 * 3456))
        a('v_mul_lo_u32 v%d, v%d, s%d' % (t5, q, sT))
        a('v_add_u32 v%d, v%d, v%d' % (v2, v1, t5))
        a('v_mul_u32_u24 v%d, %d, v%d' % (t5, 8 * 3456, q))
        a('v_add_u32 v%d, v%d, v%d' % (v1, v1, t5))

    def wload_issue(self, ks_list, v1, v2):
        a = self.a
        if os.environ.get('NOW'):
            ks_list = list(ks_list)[:1]
        for ks in ks_list:
            for e in range(0, 8, 2):
                if ks < 16:
                    row, vo = 36 * ks + e, v1
                else:
                    row, vo = 288 * (ks - 16) + 36 * (e >> 2) + 32 + (e & 3), v2
                st = sT + (e >> 1) % 2
                a('s_mov_b32 s%d, %d' % (st, row * 3456))
                m = e >> 1
                a('buffer_load_dword v%d, v%d, %s, s%d offen' % (W(0, ks) + m, vo, srd(sWQ), st))
                a('buffer_load_dword v%d, v%d, %s, s%d offen offset:3456' % (W(1, ks) + m, vo, srd(sWQ), st))

    def wload_perm(self, ks_list, ones, tmp):
        a = self.a
        for ks in ks_list:
            for m in range(4):
                r0, r1 = W(0, ks) + m, W(1, ks) + m
                t = tmp + (m & 1)
                a('v_perm_b32 v%d, v%d, v%d, s%d' % (t, r1, r0, sSelLo))
                a('v_perm_b32 v%d, v%d, v%d, s%d' % (r1, r1, r0, sSelHi))
                a('v_or_b32 v%d, v%d, v%d' % (r0, ones, t))

    def pw_issue(self, v1, v2):
        a = self.a
        L1, L2 = a.uid('Lpi'), a.uid('Lpie')
        a('s_cmp_lg_u32 s%d, 0' % sH)
        a('s_cbranch_scc1 %s' % L1)
        self.wload_issue(range(0, 9), v1, v2)
        a('s_branch %s' % L2)
        a.label(L1)
        self.wload_issue(range(9, 18), v1, v2)
        a.label(L2)

    def pw_finish(self, v1, v2, tmp):
        a = self.a
        Ltop, L1, L2, Ldone, Lfb = a.uid('Lpt'), a.uid('Lp1'), a.uid('Lp2'), a.uid('Lpd'), a.uid('Lpfb')
        a('s_mov_b32 s%d, 0' % sPass)
        a.label(Ltop)
        self.ones_mask(tmp, tmp + 1)
        a('v_lshlrev_b32 v%d, 4, v%d' % (tmp + 4, vLane))
        a('s_lshl_b32 s%d, s2, 3' % (sT + 2))
        a('s_add_u32 s%d, s%d, s%d' % (sT + 2, sT + 2, sWave))
        a('s_mul_i32 s%d, s%d, 18432' % (sT + 3, sT + 2))
        a('s_add_u32 s%d, s%d, %d' % (sT + 3, sT + 3, WS_PIMG))
        a('s_waitcnt vmcnt(0)')
        a('s_cmp_lg_u32 s%d, 0' % sH)
        a('s_cbranch_scc1 %s' % L1)
        for h, lab in ((0, None), (1, L1)):
            if lab:
                a.label(lab)
            self.wload_perm(range(9 * h, 9 * h + 9), tmp, tmp + 2)
            a('s_cmp_lg_u32 s%d, 0' % sPass)
            a('s_cbranch_scc1 %s' % Ldone)
            for n in range(18):
                if n % 4 == 0 and n:
                    a('s_add_u32 s%d, s%d, 4096' % (sT + 3, sT + 3))
                a('buffer_store_dwordx4 %s, v%d, %s, s%d offen offset:%d' % (vr(vW + 72 * h + 4 * n), tmp + 4, srd(sWS), sT + 3, (n % 4) * 1024))
            if h == 0:
                a('s_branch %s' % L2)
        a.label(L2)
        a('s_lshl_b32 s%d, s%d, 4' % (sT + 3, sT + 2))
        a('s_add_u32 s%d, s%d, %d' % (sT + 3, sT + 3, WS_PFLG))
        a('v_mov_b32 v%d, s%d' % (tmp, sNon))
        a('v_mov_b32 v%d, s%d' % (tmp + 1, sNon + 1))
        a('v_mov_b32 v%d, s%d' % (tmp + 2, sXcc))
        a('v_mov_b32 v%d, s%d' % (tmp + 3, sNon))
        a('v_mov_b32 v%d, 0' % (tmp + 5))
        a('s_mov_b64 exec, 1')
        a('s_waitcnt vmcnt(0)')
        a('buffer_store_dwordx4 %s, v%d, %s, s%d offen' % (vr(tmp), tmp + 5, srd(sWS), sT + 3))
        a('s_mov_b64 exec, -1')
        a('s_xor_b32 s%d, s%d, 1024' % (sT + 2, sT + 2))
        a('s_lshl_b32 s%d, s%d, 4' % (sT + 3, sT + 2))
        a('s_add_u32 s%d, s%d, %d' % (sT + 3, sT + 3, WS_PFLG))
        a('s_mov_b32 s%d, %d' % (sT + 4, 1 if os.environ.get('FORCE_SLOW') else 200))
        Lp, Lg = a.uid('Lpp'), a.uid('Lpg')
        a.label(Lp)
        a('buffer_load_dwordx4 %s, v%d, %s, s%d offen sc1' % (vr(tmp), tmp + 5, srd(sWS), sT + 3))
        a('s_waitcnt vmcnt(0)')
        a('v_xor_b32 v%d, s%d, v%d' % (tmp, sNon, tmp))
        a('v_xor_b32 v%d, s%d, v%d' % (tmp + 1, sNon + 1, tmp + 1))
        a('v_xor_b32 v%d, s%d, v%d' % (tmp + 2, sXcc, tmp + 2))
        a('v_xor_b32 v%d, s%d, v%d' % (tmp + 3, sNon, tmp + 3))
        a('v_or3_b32 v%d, v%d, v%d, v%d' % (tmp, tmp, tmp + 1, tmp + 2))
        a('v_or_b32 v%d, v%d, v%d' % (tmp, tmp, tmp + 3))
        a('v_cmp_ne_u32 vcc, 0, v%d' % tmp)
        a('s_nop 1')
        a('s_cmp_eq_u64 vcc, 0')
        if not os.environ.get('FORCE_SLOW'):
            a('s_cbranch_scc1 %s' % Lg)
        a('s_sub_u32 s%d, s%d, 1' % (sT + 4, sT + 4))
        a('s_cmp_eq_u32 s%d, 0' % (sT + 4))
        a('s_cbranch_scc1 %s' % Lfb)
        a('s_sleep 1')
        a('s_branch %s' % Lp)
        a.label(Lfb)
        a('s_mov_b32 s%d, 1' % sPass)
        a('s_xor_b32 s%d, s%d, 1' % (sH, sH))
        self.pw_issue(v1, v2)
        a('s_branch %s' % Ltop)
        a.label(Lg)
        a('s_mul_i32 s%d, s%d, 18432' % (sT + 3, sT + 2))
        a('s_add_u32 s%d, s%d, %d' % (sT + 3, sT + 3, WS_PIMG))
        L3 = a.uid('Lp3')
        a('s_cmp_eq_u32 s%d, 0' % sH)
        a('s_cbranch_scc1 %s' % L3)
        for h, lab in ((0, None), (1, L3)):
            if lab:
                a.label(lab)
            for n in range(18):
                if n % 4 == 0 and n:
                    a('s_add_u32 s%d, s%d, 4096' % (sT + 3, sT + 3))
                a('buffer_load_dwordx4 %s, v%d, %s, s%d offen offset:%d sc1' % (vr(vW + 72 * h + 4 * n), tmp + 4, srd(sWS), sT + 3, (n % 4) * 1024))
            if h == 0:
                a('s_branch %s' % Ldone)
        a.label(Ldone)

    def ones_mask(self, dst, tmp):
        a = self.a
        a('v_and_b32 v%d, 15, v%d' % (tmp, vLane))
        a('v_cmp_eq_u32 vcc, 14, v%d' % tmp)
        a('v_mov_b32 v%d, 0x3f803f80' % tmp)
        a('v_cndmask_b32 v%d, 0, v%d, vcc' % (dst, tmp))

    def colsum(self, tmp, progressive=False):
        a = self.a
        for i in range(4):
            a('v_mov_b32 v%d, 0x3f803f80' % (tmp + i))
        for ks in range(18):
            if progressive:
                a('s_waitcnt vmcnt(%d)' % (34 - 2 * ks))
            for t in range(2):
                a(mfma(vCS + 4 * t, W(t, ks), tmp, ks == 0))

    def coop_issue(self, v1, v2):
        a = self.a
        a('s_mul_i32 s%d, s%d, %d' % (sT + 2, sTG, 36 * 3456))
        a('s_and_b32 s%d, s%d, 1' % (sT + 3, sTG))
        a('s_mul_i32 s%d, s%d, %d' % (sT + 3, sT + 3, 288 * 3456))
        for u in range(2):
            for e in range(0, 8, 2):
                row = e if u == 0 else 36 * (e >> 2) + 32 + (e & 3)
                st = sT + (e >> 1) % 2
                a('s_add_u32 s%d, s%d, %d' % (st, sT + 2 + u, row * 3456))
                m = e >> 1
                vo = v1 if u == 0 else v2
                a('buffer_load_dword v%d, v%d, %s, s%d offen' % (W(0, u) + m, vo, srd(sWQ), st))
                a('buffer_load_dword v%d, v%d, %s, s%d offen offset:3456' % (W(1, u) + m, vo, srd(sWQ), st))

    def coop_id(self, dst):
        a = self.a
        a('s_lshl_b32 s%d, s%d, 4' % (dst, sSet))
        a('s_add_u32 s%d, s%d, s%d' % (dst, dst, sHG))
        a('s_lshl_b32 s%d, s%d, 2' % (dst, dst))
        a('s_add_u32 s%d, s%d, s%d' % (dst, dst, sWv))

    def coop_store(self, tmp):
        a = self.a
        self.ones_mask(tmp, tmp + 1)
        self.wload_perm(range(2), tmp, tmp + 2)
        self.coop_id(sT + 2)
        a('s_mul_i32 s%d, s%d, %d' % (sT + 2, sT + 2, 36864))
        a('s_add_u32 s%d, s%d, %d' % (sT + 2, sT + 2, WS_CIMG))
        a('s_lshl_b32 s%d, s%d, 11' % (sT + 3, sTG))
        a('s_add_u32 s%d, s%d, s%d' % (sT + 3, sT + 3, sT + 2))
        a('v_lshlrev_b32 v%d, 4, v%d' % (tmp + 4, vLane))
        a('buffer_store_dwordx4 %s, v%d, %s, s%d offen sc1' % (vr(W(0, 0)), tmp + 4, srd(sWS), sT + 3))
        a('buffer_store_dwordx4 %s, v%d, %s, s%d offen offset:1024 sc1' % (vr(W(1, 0)), tmp + 4, srd(sWS), sT + 3))
        L = a.uid('Lcs')
        a('s_cmp_ge_u32 s%d, 2' % sTG)
        a('s_cbranch_scc1 %s' % L)
        a('s_add_u32 s%d, s%d, %d' % (sT + 3, sT + 3, 16 * 2048))
        a('buffer_store_dwordx4 %s, v%d, %s, s%d offen sc1' % (vr(W(0, 1)), tmp + 4, srd(sWS), sT + 3))
        a('buffer_store_dwordx4 %s, v%d, %s, s%d offen offset:1024 sc1' % (vr(W(1, 1)), tmp + 4, srd(sWS), sT + 3))
        a.label(L)

    def coop_flag(self, tmp):
        a = self.a
        self.coop_id(sT + 2)
        a('s_lshl_b32 s%d, s%d, 4' % (sT + 2, sT + 2))
        a('s_add_u32 s%d, s%d, s%d' % (sT + 2, sT + 2, sTG))
        a('s_lshl_b32 s%d, s%d, 3' % (sT + 2, sT + 2))
        a('s_add_u32 s%d, s%d, %d' % (sT + 2, sT + 2, WS_CFLG))
        self.store_nonce_flag(sT + 2, tmp)

    def coop_load(self, tmp):
        a = self.a
        self.coop_id(sT + 2)
        a('s_lshl_b32 s%d, s%d, 7' % (sT + 3, sT + 2))
        a('s_add_u32 s%d, s%d, %d' % (sT + 3, sT + 3, WS_CFLG))
        a('v_and_b32 v%d, 15, v%d' % (tmp + 2, vLane))
        a('v_lshlrev_b32 v%d, 3, v%d' % (tmp + 2, tmp + 2))
        self.poll_nonce_flags(sT + 3, tmp + 2, tmp, 15)
        a('s_mul_i32 s%d, s%d, %d' % (sT + 2, sT + 2, 36864))
        a('s_add_u32 s%d, s%d, %d' % (sT + 2, sT + 2, WS_CIMG))
        a('v_lshlrev_b32 v%d, 4, v%d' % (tmp + 2, vLane))
        for n in range(36):
            if n % 4 == 0 and n:
                a('s_add_u32 s%d, s%d, 4096' % (sT + 2, sT + 2))
            a('buffer_load_dwordx4 %s, v%d, %s, s%d offen offset:%d sc1' % (vr(vW + 4 * n), tmp + 2, srd(sWS), sT + 2, (n % 4) * 1024))

    def wou_issue(self, D, tmp):
        a = self.a
        i, q, t2, t3, vo, SEL = tmp, tmp + 1, tmp + 2, tmp + 3, tmp + 4, tmp + 5
        a('v_and_b32 v%d, 15, v%d' % (i, vLane))
        a('v_lshrrev_b32 v%d, 4, v%d' % (q, vLane))
        a('v_lshrrev_b32 v%d, 1, v%d' % (t2, q))
        a('v_mul_u32_u24 v%d, 18, v%d' % (t2, t2))
        a('v_and_b32 v%d, 1, v%d' % (t3, q))
        a('v_lshl_add_u32 v%d, v%d, 3, v%d' % (t2, t3, t2))
        a('v_mul_u32_u24 v%d, 72, v%d' % (t3, q))
        a('s_cmp_ge_u32 s%d, 2' % sWv)
        a('s_cselect_b64 vcc, -1, 0')
        a('v_cndmask_b32 v%d, v%d, v%d, vcc' % (t2, t2, t3))
        a('v_mul_u32_u24 v%d, 1152, v%d' % (vo, t2))
        a('v_lshlrev_b32 v%d, 2, v%d' % (t2, i))
        a('v_and_b32 v%d, 2, v%d' % (t3, i))
        a('v_lshlrev_b32 v%d, 1, v%d' % (t3, t3))
        a('v_add_u32 v%d, 64, v%d' % (t3, t3))
        a('s_and_b32 s%d, s%d, 1' % (sT, sWv))
        a('s_cmp_eq_u32 s%d, 1' % sT)
        a('s_cselect_b64 vcc, -1, 0')
        a('v_cndmask_b32 v%d, v%d, v%d, vcc' % (t2, t2, t3))
        a('s_mul_i32 s%d, s%d, 72' % (sT, sHG))
        a('v_add3_u32 v%d, v%d, v%d, s%d' % (vo, vo, t2, sT))
        a('v_and_b32 v%d, 1, v%d' % (t2, i))
        a('v_cmp_eq_u32 vcc, 1, v%d' % t2)
        a('v_mov_b32 v%d, s%d' % (t2, sSelLo))
        a('v_mov_b32 v%d, s%d' % (t3, sSelHi))
        a('v_cndmask_b32 v%d, v%d, v%d, vcc' % (SEL, t2, t3))
        a('s_mul_i32 s%d, s%d, %d' % (sT + 2, sTG, 36 * 1152))
        a('s_and_b32 s%d, s%d, 1' % (sT + 3, sTG))
        a('s_mul_i32 s%d, s%d, %d' % (sT + 3, sT + 3, 288 * 1152))
        a('s_cmp_ge_u32 s%d, 2' % sWv)
        for e in range(0, 8, 2):
            r0 = e * 1152
            r1 = (36 * (e >> 2) + 18 * ((e >> 1) & 1) + 16) * 1152
            a('s_cselect_b32 s%d, s%d, s%d' % (sT, sT + 3, sT + 2))
            a('s_cselect_b32 s%d, %d, %d' % (sT + 1, r1, r0)) if False else None
            a('s_mov_b32 s%d, %d' % (sT + 4, r0))
            a('s_mov_b32 s%d, %d' % (sT + 5, r1))
            a('s_cselect_b32 s%d, s%d, s%d' % (sT + 1, sT + 5, sT + 4))
            a('s_lshl_b32 s%d, s%d, 0' % (sT + 6, sT)) if False else None
            m = e >> 1
            a('s_add_u32 s%d, s%d, s%d' % (sT + 6 + (m & 1), sT, sT + 1))
            a('buffer_load_dword v%d, v%d, %s, s%d offen' % (D + m, vo, srd(sWO), sT + 6 + (m & 1)))
            a('buffer_load_dword v%d, v%d, %s, s%d offen offset:1152' % (D + 4 + m, vo, srd(sWO), sT + 6 + (m & 1)))
            a('s_cmp_ge_u32 s%d, 2' % sWv)

    def wou_ids(self):
        a = self.a
        a('s_lshl_b32 s%d, s%d, 4' % (sT + 2, sSet))
        a('s_add_u32 s%d, s%d, s%d' % (sT + 2, sT + 2, sHG))
        a('s_and_b32 s%d, s%d, 1' % (sT + 3, sTG))
        a('s_add_u32 s%d, s%d, 16' % (sT + 3, sT + 3))
        a('s_cmp_ge_u32 s%d, 2' % sWv)
        a('s_cselect_b32 s%d, s%d, s%d' % (sT + 3, sT + 3, sTG))

    def wou_store(self, D, tmp):
        a = self.a
        SEL = tmp + 5
        Lskip, Lk1 = a.uid('Lwus'), a.uid('Lwuk')
        a('s_lshr_b32 s%d, s%d, 1' % (sT, sWv))
        a('s_lshr_b32 s%d, s%d, 1' % (sT + 1, sTG))
        a('s_min_u32 s%d, s%d, s%d' % (sT, sT, sT + 1))
        a('s_cmp_lg_u32 s%d, 0' % sT)
        a('s_cbranch_scc1 %s' % Lskip)
        self.wou_ids()
        a('s_mul_i32 s%d, s%d, %d' % (sT + 2, sT + 2, WIS))
        a('s_mul_i32 s%d, s%d, 2304' % (sT + 3, sT + 3))
        a('s_add_u32 s%d, s%d, s%d' % (sT + 2, sT + 2, sT + 3))
        a('s_add_u32 s%d, s%d, %d' % (sT + 2, sT + 2, WS_WIMG))
        a('s_and_b32 s%d, s%d, 1' % (sT, sWv))
        a('s_cmp_eq_u32 s%d, 1' % sT)
        a('s_cbranch_scc1 %s' % Lk1)
        for m in range(4):
            r0, r1 = D + m, D + 4 + m
            t = tmp + (m & 1)
            a('v_perm_b32 v%d, v%d, v%d, s%d' % (t, r1, r0, sSelLo))
            a('v_perm_b32 v%d, v%d, v%d, s%d' % (r1, r1, r0, sSelHi))
            a('v_mov_b32 v%d, v%d' % (r0, t))
        a('v_lshlrev_b32 v%d, 4, v%d' % (tmp, vLane))
        a('buffer_store_dwordx4 %s, v%d, %s, s%d offen sc1' % (vr(D), tmp, srd(sWS), sT + 2))
        a('buffer_store_dwordx4 %s, v%d, %s, s%d offen offset:1024 sc1' % (vr(D + 4), tmp, srd(sWS), sT + 2))
        a('s_branch %s' % Lskip)
        a.label(Lk1)
        for m in range(4):
            a('v_perm_b32 v%d, v%d, v%d, v%d' % (D + m, D + 4 + m, D + m, SEL))
        a('v_and_b32 v%d, 15, v%d' % (tmp, vLane))
        a('v_cmp_gt_u32 vcc, 4, v%d' % tmp)
        a('v_lshlrev_b32 v%d, 4, v%d' % (tmp, tmp))
        a('v_lshrrev_b32 v%d, 4, v%d' % (tmp + 1, vLane))
        a('v_lshl_add_u32 v%d, v%d, 6, v%d' % (tmp, tmp + 1, tmp))
        a('s_mov_b64 exec, vcc')
        a('buffer_store_dwordx4 %s, v%d, %s, s%d offen offset:2048 sc1' % (vr(D), tmp, srd(sWS), sT + 2))
        a('s_mov_b64 exec, -1')
        a.label(Lskip)

    def wou_flag(self, tmp):
        a = self.a
        Lskip = a.uid('Lwuf')
        a('s_lshr_b32 s%d, s%d, 1' % (sT, sWv))
        a('s_lshr_b32 s%d, s%d, 1' % (sT + 1, sTG))
        a('s_min_u32 s%d, s%d, s%d' % (sT, sT, sT + 1))
        a('s_cmp_lg_u32 s%d, 0' % sT)
        a('s_cbranch_scc1 %s' % Lskip)
        self.wou_ids()
        a('s_lshl_b32 s%d, s%d, 9' % (sT + 2, sT + 2))
        a('s_and_b32 s%d, s%d, 1' % (sT, sWv))
        a('s_mul_i32 s%d, s%d, 18' % (sT, sT))
        a('s_add_u32 s%d, s%d, s%d' % (sT + 3, sT + 3, sT))
        a('s_lshl_b32 s%d, s%d, 3' % (sT + 3, sT + 3))
        a('s_add_u32 s%d, s%d, s%d' % (sT + 2, sT + 2, sT + 3))
        a('s_add_u32 s%d, s%d, %d' % (sT + 2, sT + 2, WS_WFLG))
        self.store_nonce_flag(sT + 2, tmp)
        a.label(Lskip)

    def wo_stage(self, async_=False):
        a = self.a
        TMP = 88
        Lok = a.uid('Lwook')
        a('s_lshl_b32 s%d, s%d, 4' % (sT + 2, sSet))
        a('s_add_u32 s%d, s%d, s%d' % (sT + 2, sT + 2, sHG))
        a('s_cmp_lg_u32 s%d, 0' % sWoOk)
        a('s_cbranch_scc1 %s' % Lok)
        a('s_lshl_b32 s%d, s%d, 9' % (sT + 3, sT + 2))
        a('s_add_u32 s%d, s%d, %d' % (sT + 3, sT + 3, WS_WFLG))
        a('v_min_u32 v%d, 35, v%d' % (TMP + 2, vLane))
        a('v_lshlrev_b32 v%d, 3, v%d' % (TMP + 2, TMP + 2))
        self.poll_nonce_flags(sT + 3, TMP + 2, TMP, 16)
        a('s_mov_b32 s%d, 1' % sWoOk)
        a.label(Lok)
        a('s_mul_i32 s%d, s%d, %d' % (sT + 2, sT + 2, WIS))
        a('s_mul_i32 s%d, s%d, 10240' % (sT + 3, sWv))
        a('s_add_u32 s%d, s%d, s%d' % (sT + 2, sT + 2, sT + 3))
        a('s_add_u32 s%d, s%d, %d' % (sBase, sT + 2, WS_WIMG))
        a('s_add_u32 s%d, s%d, %d' % (sBase2, sT + 3, L_WO))
        a('v_lshlrev_b32 v%d, 4, v%d' % (TMP + 4, vLane))
        self.wait_flag(F_WF, sLayer, TMP, 9)
        self.wait_flag(F_WG, sLayer, TMP, 14)
        for n in range(11):
            if n % 4 == 0:
                a('s_add_u32 s%d, s%d, %d' % (sT, sBase, n * 1024))
                a('s_add_u32 s%d, s%d, %d' % (sT + 1, sBase2, n * 1024))
                a('s_mov_b32 m0, s%d' % (sT + 1))
            if n == 10:
                a('s_mov_b32 exec_hi, 0')
            a('buffer_load_dwordx4 v%d, %s, s%d offen offset:%d sc1 lds' % (TMP + 4, srd(sWS), sT, (n % 4) * 1024))
        a('s_mov_b64 exec, -1')
        if not async_:
            a('s_waitcnt vmcnt(0)')
            self.set_flag(F_WR, sLayer, TMP, add=1)
        self.tr(30)

    ORDER = [3, 1, 2, 0]
    UNIT = [0, 1, 8, 9, 3, 4, 11, 12, 2, 6, 10, 14, 5, 7, 13, 15]

    def kv_base(self, dst, layer_sreg_or_const, tg_add):
        a = self.a
        if isinstance(layer_sreg_or_const, str):
            a('s_lshl_b32 s%d, %s, 5' % (dst, layer_sreg_or_const))
        else:
            a('s_mov_b32 s%d, %d' % (dst, layer_sreg_or_const * 32))
        a('s_lshl_b32 s%d, s%d, 1' % (sT + 1, sTG))
        a('s_add_u32 s%d, s%d, s%d' % (dst, dst, sT + 1))
        a('s_add_u32 s%d, s%d, s%d' % (dst, dst, sP))
        a('s_lshl_b32 s%d, s%d, 4' % (dst, dst))
        a('s_add_u32 s%d, s%d, s%d' % (dst, dst, sHG))
        a('s_mul_i32 s%d, s%d, %d' % (dst, dst, KVT))
        a('s_add_u32 s%d, s%d, %d' % (dst, dst, WS_KV + tg_add * 32 * KVT))

    def kv_prefill(self, tmp):
        a = self.a
        a('v_lshlrev_b32 v%d, 4, v%d' % (tmp, vLane))
        a('s_mul_i32 s%d, s%d, 576' % (sT, sWv))
        a('v_add_u32 v%d, s%d, v%d' % (tmp, sT, tmp))
        for i in range(4):
            a('v_mov_b32 v%d, -1' % (tmp + 2 + i))
        a('s_mov_b32 s%d, 0' % sP)
        self.kv_base(sT + 2, 's%d' % sSet, 0)
        a('s_mov_b32 exec_lo, -1')
        a('s_mov_b32 exec_hi, 15')
        for l2 in range(2):
            for p_ in range(2):
                a('s_add_u32 s%d, s%d, %d' % (sT + 3, sT + 2, (l2 * 64 + p_) * 16 * KVT))
                a('buffer_store_dwordx4 %s, v%d, %s, s%d offen sc1' % (vr(tmp + 2), tmp, srd(sWS), sT + 3))
        a('s_mov_b64 exec, -1')

    def m_prep(self):
        a = self.a
        XA, TMP = 95, 40
        a('s_lshl_b32 s%d, s%d, 1' % (sN, sLayer))
        a('s_add_u32 s%d, s%d, s%d' % (sN, sN, sP))
        a('s_lshl_b32 s%d, s%d, 2' % (sG, sN))
        a('v_lshrrev_b32 v%d, 4, v%d' % (TMP, vLane))
        a('v_and_b32 v%d, 15, v%d' % (TMP + 1, vLane))
        self.swz(XA, TMP, TMP + 1, TMP + 2)
        a('v_add_u32 v%d, %d, v%d' % (XA + 1, 2 * MT, XA))
        a('v_lshlrev_b32 v%d, 3, v%d' % (TMP + 1, TMP + 1))
        a('v_lshl_add_u32 v%d, v%d, 8, v%d' % (XA + 2, TMP, TMP + 1))
        a('v_add_u32 v%d, 16384, v%d' % (XA + 2, XA + 2))

    def pub_pending(self, tmp, soft=False):
        a = self.a
        Ln = a.uid('Lnopub')
        a('s_cmp_eq_u32 s%d, 0' % sPub)
        if soft:
            a.softbranch('s_cbranch_scc1 %s' % Ln)
        else:
            a('s_cbranch_scc1 %s' % Ln)
        a('s_mov_b32 s%d, 0' % sPub)
        a('s_mov_b32 s%d, 0' % sP)
        self.both_modes(lambda sc: self.publish_event(0, tmp, sc))
        a('s_mov_b32 s%d, 1' % sP)
        a.label(Ln, noflush=soft)

    def m_role(self):
        a = self.a
        a.label('L_M_ROLE')
        a('s_mov_b32 s%d, 0' % sP)
        a.label('L_M_TASK')
        self.m_prep()
        a.label('L_M_GO')
        Lown = a.uid('Lown')
        a('s_cmp_eq_u32 s%d, 0' % sOwn)
        a('s_cbranch_scc1 %s' % Lown)
        a('s_waitcnt vmcnt(15)')
        self.set_flag(F_XR, sG, 40, add=1)
        a.label(Lown)
        self.kv_base(sBase, 's%d' % sLayer, 0)
        a('s_sub_u32 s%d, s%d, %d' % (sBase2, sBase, 32 * KVT))
        a('s_add_u32 s%d, s%d, 1' % (sT + 7, sG))
        Lrdy = a.uid('Lrdy')
        a('ds_read_b128 %s, v%d offset:%d' % (vr(40), vFlag, F_XR))
        a('s_waitcnt lgkmcnt(0)')
        self.flag_min(40)
        a('s_nop 1')
        a('s_cmp_ge_u32 s%d, s%d' % (sT + 8, sT + 7))
        a('s_cbranch_scc1 %s' % Lrdy)
        self.pub_pending(44)
        self.wait_flag(F_XR, sT + 7, 40, 1)
        a.label(Lrdy)
        if True:
            a('s_setprio %s' % os.environ.get('APRIO', '0'))
        self.tr(11)
        for w in range(1, 4):
            a('s_cmp_eq_u32 s%d, %d' % (sWv, w))
            a('s_cbranch_scc1 L_A_W%d' % w)
        for w in range(4):
            a.label('L_A_W%d' % w)
            self.a_phase(w)
            if w < 3:
                a('s_branch L_M_EPI')
        a.label('L_M_EPI')
        if True:
            a('s_setprio %s' % '2')
        self.tr(12)
        self.attention()
        self.tr(15)
        a('s_add_u32 s%d, s%d, 1' % (sP, sP))
        a('s_cmp_lt_u32 s%d, 2' % sP)
        a('s_cbranch_scc1 L_M_TASK')
        a('s_mov_b32 s%d, 1' % sP)
        a('s_branch L_BPHASE')

    def a_phase(self, w):
        a = self.a
        ORDER = self.ORDER
        ACC = lambda s, t: (s * 2 + t) * 4
        G0, FL = 32, 36
        NB = 8
        RB = lambda i: 40 + 4 * (i % NB)
        QB, BPA, T3 = 72, 73, 74
        KD, KA = 76, 88
        XA = 95
        XT = 98
        LT = 99
        lds = []

        def L(tag, text):
            a(text)
            lds.append(tag)

        def wait_for(tag):
            idx = max(i for i, t in enumerate(lds) if t == tag)
            a('s_waitcnt lgkmcnt(%d)' % min(len(lds) - 1 - idx, 15))
        I = lambda text: (lambda: a(text))
        NOP = lambda: None
        seq = [(u, ks) for u in range(4) for ks in range(18)]

        def rd(i):
            u, ks = seq[i]
            mt = ORDER[u]
            if ks < 16:
                L(('r', i), 'ds_read_b128 %s, v%d offset:%d' % (vr(RB(i)), XA + (mt >> 1), (mt & 1) * MT + ks * 1024))
            else:
                o = 128 * (ks - 16)
                L(('r', i), 'ds_read2_b64 %s, v%d offset0:%d offset1:%d' % (vr(RB(i)), XT, o, o + 16))
        PF = NB - 1
        chains = []

        def put(step, fns, deadline=10 ** 9):
            chains.append([step, deadline, list(fns)])

        def chk(off, tgt_fn, tag, code):
            def fin():
                Lok = a.uid('Lck')
                a('s_cmp_ge_u32 s%d, s%d' % (sT + 8, sT + 7))
                a.softbranch('s_cbranch_scc1 %s' % Lok)
                self.wait_flag(off, sT + 7, FL, code)
                a.label(Lok, noflush=True)
            return [lambda: L(tag, 'ds_read_b128 %s, v%d offset:%d' % (vr(FL), vFlag, off)),
                    NOP, NOP, NOP, tgt_fn,
                    lambda: (wait_for(tag), a('v_min3_u32 v%d, v%d, v%d, v%d' % (FL, FL, FL + 1, FL + 2))),
                    I('v_min_u32 v%d, v%d, v%d' % (FL, FL, FL + 3)),
                    NOP,
                    I('v_readfirstlane_b32 s%d, v%d' % (sT + 8, FL)),
                    NOP, fin]

        def setf_items(off, val, add, own_vm=None):
            def fin():
                if own_vm is None:
                    L('f', 'ds_write_b32 v%d, v%d offset:%d' % (vFlag, LT, off + 4 * w))
                else:
                    Lo = a.uid('Lop')
                    a('s_cmp_eq_u32 s%d, 0' % sOwn)
                    a.softbranch('s_cbranch_scc1 %s' % Lo)
                    a('s_waitcnt vmcnt(%d)' % own_vm)
                    a('ds_write_b32 v%d, v%d offset:%d' % (vFlag, LT, off + 4 * w))
                    a.label(Lo, noflush=True)
            return [I('s_add_u32 s%d, s%d, %d' % (sT + 6, val, add)),
                    I('v_mov_b32 v%d, s%d' % (LT, sT + 6)), fin]

        def epi_items(s):
            mt = ORDER[s]
            nm = T3
            it = [lambda: L(('m', s), 'ds_bpermute_b32 v%d, v%d, v%d' % (nm, BPA, ACC(s, 0) + 2))]
            if s < 3:
                it += [NOP] * int(os.environ.get('BPSP', 6))
            G = G0
            if s == w:
                it += [I('v_add_u32 v%d, 0x%x, v%d' % (G + 2, L_ST + 64 * (mt + 1) - 192, BPA))]
            it.append(lambda: (wait_for(('m', s)), a('v_mul_f32 v%d, 0xbae38e39, v%d' % (nm, nm))))
            for t in range(2):
                for r in range(4):
                    it.append(I('v_fma_f32 v%d, v%d, v%d, v%d' % (ACC(s, t) + r, nm, vCS + 4 * t + r, ACC(s, t) + r)))
            for r in range(4):
                it.append(I('v_cvt_pk_bf16_f32 v%d, v%d, v%d' % (ACC(s, 0) + r, ACC(s, 0) + r, ACC(s, 1) + r)))
            if s == 0 and w > 0:
                def kvst():
                    a('s_mov_b32 exec_lo, 0xff00ff00')
                    a('s_mov_b32 exec_hi, 0xff00ff00')
                    a('buffer_store_dwordx4 %s, v%d, %s, s%d offen sc1' % (vr(ACC(0, 0)), KA, srd(sWS), sBase))
                    a('s_mov_b64 exec, -1')
                it.append(kvst)
            it.append(lambda: L('w', 'ds_write_b128 v%d, %s offset:%d' % (QB, vr(ACC(s, 0)), 16 * (mt + 1) * QP)))
            if s == w:
                def wr():
                    a('s_mov_b64 exec, 0xffff')
                    L('w', 'ds_write_b32 v%d, v%d' % (G + 2, G))
                    if w == 0:
                        a('s_mov_b64 exec, 0xff00')
                        a('buffer_store_dword v%d, v%d, %s, s%d offen offset:%d sc1' % (G, BPA, srd(sWS), sBase, 2048 - 192 - 32))
                    a('s_mov_b64 exec, -1')
                it += [I('v_fma_f32 v%d, -v%d, v%d, v%d' % (G, nm, nm, G)),
                       I('v_max_f32 v%d, 0, v%d' % (G, G)),
                       I('v_add_f32 v%d, 0x3727c5ac, v%d' % (G, G)),
                       I('v_rsq_f32 v%d, v%d' % (G, G)),
                       wr]
            return it
        pre = [I('v_and_b32 v%d, 15, v%d' % (T3, vLane)),
               I('v_add_u32 v%d, 48, v%d' % (BPA, T3)),
               I('v_lshlrev_b32 v%d, 2, v%d' % (BPA, BPA)),
               I('v_lshrrev_b32 v%d, 4, v%d' % (T3 + 1, vLane)),
               I('v_lshlrev_b32 v%d, 3, v%d' % (T3 + 1, T3 + 1)),
               I('s_mov_b32 s%d, 0x%x' % (sT + 5, sum((16 * self.UNIT[(3 * w + a_) if a_ < 3 else 12 + w]) << (8 * a_) for a_ in range(4)))),
               I('v_bfe_u32 v%d, s%d, v%d, 8' % (QB, sT + 5, T3 + 1))]
        if w > 0:
            pre += [I('v_and_b32 v%d, 7, v%d' % (KA, vLane)),
                    I('v_lshl_add_u32 v%d, v%d, 8, v%d' % (KA, KA, QB))]
        pre += [I('v_mul_u32_u24 v%d, %d, v%d' % (T3, QP, T3)),
                I('v_add_u32 v%d, 0x%x, v%d' % (T3, L_QKV, T3)),
                I('v_add_u32 v%d, v%d, v%d' % (QB, QB, T3))]
        put(0, pre, 10)
        put(int(os.environ.get('PUBSTEP', 5)), [lambda: self.pub_pending(92, soft=True)], int(os.environ.get('PUBSTEP', 5)))
        G = G0
        put(18 * w + 6, [I('v_lshrrev_b32 v%d, 4, v%d' % (G, vLane)),
                         I('v_lshl_add_u32 v%d, v%d, 8, v%d' % (G, G, BPA)),
                         I('v_add_u32 v%d, 0x%x, v%d' % (G, ORDER[w] * MT + 18432 - 192, G)),
                         lambda: L('s2', 'ds_read2_b32 %s, v%d offset0:32 offset1:48' % (vr(G + 2, 2), G)),
                         lambda: L('s1', 'ds_read2_b32 %s, v%d offset0:0 offset1:16' % (vr(G, 2), G)),
                         NOP, NOP, NOP,
                         lambda: (wait_for('s1'), a('v_add_f32 v%d, v%d, v%d' % (G, G, G + 1))),
                         I('v_add_f32 v%d, v%d, v%d' % (G + 2, G + 2, G + 3)),
                         I('v_add_f32 v%d, v%d, v%d' % (G, G, G + 2)),
                         I('v_mov_b32 v%d, v%d' % (G + 1, G)),
                         I('v_permlane32_swap_b32 v%d, v%d' % (G, G + 1)),
                         I('v_add_f32 v%d, v%d, v%d' % (G, G, G + 1)),
                         I('v_mov_b32 v%d, v%d' % (G + 1, G)),
                         I('v_permlane16_swap_b32 v%d, v%d' % (G, G + 1)),
                         I('v_add_f32 v%d, v%d, v%d' % (G, G, G + 1)),
                         I('v_mul_f32 v%d, 0x3ae38e39, v%d' % (G, G))], 18 * w + 17)
        for k in range(1, 4):
            st = 18 * k - PF - 1
            put(6 * k - 5, setf_items(F_XR, sG, k + 1, own_vm=15 - 5 * k), 6 * k - 2)
            put(st - 7 if k > 1 else 5,
                chk(F_XR, I('s_add_u32 s%d, s%d, %d' % (sT + 7, sG, k + 1)), ('xr', k), 2), st)
        put(11, chk(F_QF, I('s_mov_b32 s%d, s%d' % (sT + 7, sN)), 'qf', 3), 17)
        for s_ in range(3):
            put(18 * (s_ + 1) + 3, epi_items(s_), (27 if s_ == 0 else 56) if s_ < 2 else 71)
        if w == 0:
            def kvld():
                a('buffer_load_dwordx4 %s, v%d, %s, s%d offen sc1' % (vr(KD), KA, srd(sWS), sBase2))
                a('buffer_load_dwordx4 %s, v%d, %s, s%d offen offset:1024 sc1' % (vr(KD + 4), KA, srd(sWS), sBase2))
                a('buffer_load_dword v%d, v%d, %s, s%d offen offset:2048 sc1' % (KD + 8, KA + 1, srd(sWS), sBase2))

            def kvaddr2():
                a('s_cmp_eq_u32 s%d, 0' % sTG)
                a('s_cselect_b64 vcc, -1, 0')
                a('v_cndmask_b32 v%d, v%d, v%d, vcc' % (KA, KA, KA + 2))
                a('v_cndmask_b32 v%d, v%d, v%d, vcc' % (KA + 1, KA + 1, KA + 2))

            def kvchk():
                Lrt, Lok, Lnf = a.uid('Lkrt'), a.uid('Lkok'), a.uid('Lknf')
                a('s_cmp_lg_u32 s%d, 0' % sN)
                a.softbranch('s_cbranch_scc1 %s' % Lnf)
                self.init_check(40)
                a('s_branch %s' % Lrt)
                a.label(Lnf, noflush=True)
                a('s_and_b64 vcc, vcc, s[%d:%d]' % (sKm, sKm + 1))
                a.softbranch('s_cbranch_scc0 %s' % Lok)
                a.label(Lrt)
                self.budget_check(5)
                kvld()
                a('s_waitcnt vmcnt(0)')
                self.sentinel_vcc(range(KD, KD + 9), FL)
                a('s_nop 1')
                a('s_and_b64 vcc, vcc, s[%d:%d]' % (sKm, sKm + 1))
                a('s_cbranch_scc1 %s' % Lrt)
                a.label(Lok, noflush=True)
            kv = [I('v_lshlrev_b32 v%d, 4, v%d' % (KA, vLane)),
                  I('v_and_b32 v%d, 7, v%d' % (KA + 1, vLane)),
                  I('v_lshlrev_b32 v%d, 2, v%d' % (KA + 1, KA + 1)),
                  I('v_add_u32 v%d, 0x%x, v%d' % (KA + 3, L_ST + 32, KA + 1)),
                  I('v_mov_b32 v%d, 0x%x' % (KA + 2, OOB)),
                  kvaddr2]
            put(30, kv, 46)
            put(60, [kvld], 60)
            kv2 = [I('v_lshrrev_b32 v%d, 4, v%d' % (KA + 2, vLane)),
                   I('v_mul_u32_u24 v%d, %d, v%d' % (KA + 2, QP, KA + 2)),
                   I('v_and_b32 v%d, 15, v%d' % (KD + 9, vLane)),
                   I('v_lshl_add_u32 v%d, v%d, 4, v%d' % (KA + 2, KD + 9, KA + 2)),
                   I('v_add_u32 v%d, 0x%x, v%d' % (KA + 2, L_QKV + 8 * QP, KA + 2))]
            put(61, kv2, 68)
            kv3 = [I('s_waitcnt vmcnt(0)'),
                   I('v_max3_u32 v%d, v%d, v%d, v%d' % (FL, KD, KD + 1, KD + 2)),
                   I('v_max3_u32 v%d, v%d, v%d, v%d' % (FL, FL, KD + 3, KD + 4)),
                   I('v_max3_u32 v%d, v%d, v%d, v%d' % (FL, FL, KD + 5, KD + 6)),
                   I('v_max3_u32 v%d, v%d, v%d, v%d' % (FL, FL, KD + 7, KD + 8)),
                   I('v_cmp_eq_u32 vcc, -1, v%d' % FL),
                   NOP, NOP]
            post = kv3 + [kvchk,
                    lambda: L('w', 'ds_write_b128 v%d, %s' % (KA + 2, vr(KD))),
                    lambda: L('w', 'ds_write_b128 v%d, %s offset:%d' % (KA + 2, vr(KD + 4), 4 * QP)),
                    lambda: L('w', 'ds_write_b32 v%d, v%d' % (KA + 3, KD + 8))]
        else:
            def ini():
                Lnf = a.uid('Lknf')
                a('s_cmp_lg_u32 s%d, 0' % sN)
                a('s_cbranch_scc1 %s' % Lnf)
                self.init_check(40)
                a.label(Lnf)
            post = [ini]
        a('v_add_u32 v%d, %d, v%d' % (XT, ORDER[0] * MT, XA + 2))
        for i in range(PF):
            rd(i)
        done_upto = [-1]

        def need(i):
            idx = max(k for k, t in enumerate(lds) if t == ('r', i))
            if idx <= done_upto[0]:
                return
            tgt = ('r', i + 1) if ('r', i + 1) in lds else ('r', i)
            idx2 = max(k for k, t in enumerate(lds) if t == tgt)
            a('s_waitcnt lgkmcnt(%d)' % min(len(lds) - 1 - idx2, 15))
            done_upto[0] = idx2

        def fill(step, n):
            cnt = 0
            while True:
                cand = [c for c in chains if c[2] and c[0] <= step]
                if not cand:
                    return
                c = min(cand, key=lambda c: (c[1] - step) * 3 - len(c[2]))
                if cnt >= n and (c[1] - step) * 3 >= len(c[2]):
                    return
                c[2].pop(0)()
                cnt += 1
        for i in range(72):
            u, ks = seq[i]
            if os.environ.get('FINE') and ks == 0 and u > 0:
                self.tr(50 + u)
            need(i)
            a(mfma(ACC(u, 0), W(0, ks), RB(i), ks == 0))
            fill(i, 2)
            a(mfma(ACC(u, 1), W(1, ks), RB(i), ks == 0))
            used = 0
            j = i + PF
            if j < 72:
                if seq[j][1] == 16 and seq[j][0] > 0:
                    a('v_add_u32 v%d, %d, v%d' % (XT, ORDER[seq[j][0]] * MT, XA + 2))
                    used += 1
                rd(j)
                used += 1
            nxt = 0
            if i + 1 < 72:
                idx = max(k for k, t in enumerate(lds) if t == ('r', i + 1))
                nxt = 1 if idx > done_upto[0] else 0
            fill(i, max(0, 2 - used - nxt))
        for c in chains:
            for fn in c[2]:
                fn()
        a('s_mov_b32 s%d, 0' % sOwn)
        if os.environ.get('FINE'):
            self.tr(54)
        a('s_setprio 2')
        for fn in setf_items(F_XF, sN, 1) + epi_items(3):
            fn()
        a('s_waitcnt lgkmcnt(0)')
        for fn in setf_items(F_QR, sN, 1) + post:
            fn()

    def build_tables(self):
        a = self.a
        AD = 70
        T = 76
        il, hh, j, R = 84, 85, 86, 87
        SA = 88
        a('v_lshrrev_b32 v%d, 2, v%d' % (il, vLane))
        a('v_bfe_u32 v%d, v%d, 1, 1' % (hh, vLane))
        a('v_and_b32 v%d, 1, v%d' % (j, vLane))
        a('s_lshl_b32 s%d, s%d, 4' % (sT, sWv))
        a('s_add_u32 s%d, s%d, 16' % (sT, sT))
        a('v_add_u32 v%d, s%d, v%d' % (R, sT, il))
        a('v_mul_u32_u24 v%d, %d, v%d' % (T, QP, R))
        a('v_add_u32 v%d, 0x%x, v%d' % (T, L_QKV, T))
        a('v_lshl_add_u32 v%d, v%d, 7, v%d' % (AD, hh, T))
        a('v_lshl_add_u32 v%d, v%d, 2, v%d' % (AD + 1, hh, T))
        a('v_mul_u32_u24 v%d, %d, v%d' % (T + 1, 4 * QP, j))
        a('v_add_u32 v%d, %d, v%d' % (T + 1, 3 * QP, T + 1))
        a('v_sub_u32 v%d, v%d, v%d' % (AD + 2, AD, T + 1))
        a('v_sub_u32 v%d, v%d, v%d' % (AD + 3, AD + 1, T + 1))
        a('v_lshlrev_b32 v%d, 2, v%d' % (T + 2, R))
        a('v_add_u32 v%d, 0x%x, v%d' % (T + 2, L_ST, T + 2))
        a('v_lshlrev_b32 v%d, 4, v%d' % (T + 3, j))
        a('v_add_u32 v%d, 12, v%d' % (T + 3, T + 3))
        a('v_sub_u32 v%d, v%d, v%d' % (T + 3, T + 2, T + 3))
        a('v_lshl_add_u32 v%d, v%d, 6, v%d' % (AD + 4, j, AD))
        a('v_subrev_u32 v%d, %d, v%d' % (AD + 4, 7 * QP, AD + 4))
        a('v_subrev_u32 v%d, %d, v%d' % (AD + 5, 7 * QP, AD + 1))
        a('v_lshl_add_u32 v%d, v%d, 1, v%d' % (T + 4, hh, j))
        a('v_lshlrev_b32 v%d, 8, v%d' % (T + 4, T + 4))
        a('v_lshl_add_u32 v%d, v%d, 4, v%d' % (SA, il, T + 4))
        a('s_lshl_b32 s%d, s%d, 10' % (sT, sHG))
        a('v_add_u32 v%d, s%d, v%d' % (SA, sT, SA))
        a('s_lshl_b32 s%d, s%d, 7' % (sT, sHG))
        a('s_add_u32 s%d, s%d, 16384' % (sT, sT))
        a('v_lshlrev_b32 v%d, 3, v%d' % (T + 4, il))
        a('v_lshl_add_u32 v%d, v%d, 2, v%d' % (T + 4, hh, T + 4))
        a('v_add_u32 v%d, s%d, v%d' % (SA + 1, sT, T + 4))
        a('v_mov_b32 v76, v%d' % (T + 2))
        a('v_mov_b32 v77, v%d' % (T + 3))
        a('v_mov_b32 v90, v%d' % il)
        a('v_mov_b32 v91, v%d' % j)
        a('v_lshlrev_b32 v92, 4, v%d' % vLane)
        a('v_add_u32 v92, s%d, v92' % sTab)
        a('ds_write_b128 v92, %s' % vr(70))
        a('ds_write_b128 v92, %s offset:1024' % vr(74))
        a('ds_write_b128 v92, %s offset:2048' % vr(88))
        LA, LB, VT, TMP1 = 72, 73, 74, 75
        a('v_lshlrev_b32 v%d, 4, v%d' % (LA, vLane))
        a('v_add_u32 v%d, 0x%x, v%d' % (LA, L_WO, LA))
        a('v_and_b32 v%d, 3, v%d' % (LB, vLane))
        a('v_lshlrev_b32 v%d, 4, v%d' % (LB, LB))
        a('v_lshrrev_b32 v%d, 4, v%d' % (TMP1, vLane))
        a('v_lshl_add_u32 v%d, v%d, 6, v%d' % (LB, TMP1, LB))
        a('v_add_u32 v%d, 0x%x, v%d' % (LB, L_WO + 2048, LB))
        a('v_and_b32 v%d, 15, v%d' % (VT, vLane))
        a('v_lshlrev_b32 v%d, 3, v%d' % (VT, VT))
        a('v_lshl_add_u32 v%d, v%d, 8, v%d' % (VT, TMP1, VT))
        a('s_mov_b32 s%d, 0' % sP)
        self.xaddr_frag(76, 80)
        self.xaddr_nat(78, 80)
        a('ds_write_b128 v92, %s offset:3072' % vr(72))
        a('ds_write_b128 v92, %s offset:4096' % vr(76))
        a('s_waitcnt lgkmcnt(0)')

    def attention(self):
        a = self.a
        Q = 0
        K = 12
        RK = 60
        RO = 64
        S = 65
        AD = 70
        T = 76
        SA, il, j = 84, 86, 87
        a('v_lshlrev_b32 v%d, 4, v%d' % (92, vLane))
        a('v_add_u32 v%d, s%d, v%d' % (92, sTab, 92))
        a('ds_read_b128 %s, v92' % vr(70))
        a('ds_read_b128 %s, v92 offset:1024' % vr(74))
        a('ds_read_b128 %s, v92 offset:2048' % vr(84))
        a('s_mul_i32 s%d, s%d, %d' % (sBase, sLayer, LSTR))
        a('s_mul_i32 s%d, s%d, %d' % (sT, sP, TILE))
        a('s_add_u32 s%d, s%d, s%d' % (sBase, sBase, sT))
        a('s_add_u32 s%d, s%d, s%d' % (sBase, sBase, sTileW))
        a('s_add_u32 s%d, s%d, 1' % (sT + 7, sN))
        self.wait_flag(F_QR, sT + 7, 92, 4)
        self.tr(14)
        a('ds_read_b128 %s, v%d' % (vr(Q), AD))
        a('ds_read_b128 %s, v%d offset:16' % (vr(Q + 4), AD))
        a('ds_read_b32 v%d, v%d offset:80' % (Q + 8, AD + 1))
        for w in range(4):
            o = (3 - w) * QP
            a('ds_read_b128 %s, v%d offset:%d' % (vr(K + 12 * w), AD + 2, o + 48))
        for w in range(4):
            o = (3 - w) * QP
            a('ds_read_b128 %s, v%d offset:%d' % (vr(K + 12 * w + 4), AD + 2, o + 64))
        for w in range(4):
            o = (3 - w) * QP
            a('ds_read_b32 v%d, v%d offset:%d' % (K + 12 * w + 8, AD + 3, o + 112))
        a('ds_read_b32 v%d, v%d' % (RO, T))
        a('ds_read2_b32 %s, v%d offset0:0 offset1:1' % (vr(RK, 2), T + 1))
        a('ds_read2_b32 %s, v%d offset0:2 offset1:3' % (vr(RK + 2, 2), T + 1))
        a('s_waitcnt lgkmcnt(11)')
        for d in range(9):
            if d == 4:
                a('s_waitcnt lgkmcnt(7)')
            if d == 8:
                a('s_waitcnt lgkmcnt(3)')
            for w in range(4):
                c = '0' if d == 0 else 'v%d' % (S + w)
                a('v_dot2_f32_bf16 v%d, v%d, v%d, %s' % (S + w, Q + d, K + 12 * w + d, c))
        a('s_waitcnt lgkmcnt(0)')
        V = 12
        for w in range(8):
            o = (7 - w) * QP
            a('ds_read_b128 %s, v%d offset:%d' % (vr(V + 6 * w), AD + 4, o + 32))
            a('ds_read_b32 v%d, v%d offset:%d' % (V + 6 * w + 4, AD + 5, o + 208))
        c = struct.unpack('<I', struct.pack('<f', (18 ** -0.5) * 1.4426950408889634))[0]
        a('v_mul_f32 v%d, 0x%x, v%d' % (RO, c, RO))
        for w in range(4):
            a('v_mul_f32 v%d, v%d, v%d' % (S + w, S + w, RK + 3 - w))
        for w in range(4):
            a('v_mul_f32 v%d, v%d, v%d' % (S + w, S + w, RO))
        Lnm = a.uid('Lnomask')
        a('s_or_b32 s%d, s%d, s%d' % (sT, sTG, sWv))
        a('s_cmp_lg_u32 s%d, 0' % sT)
        a('s_cbranch_scc1 %s' % Lnm)
        a('v_lshlrev_b32 v%d, 2, v%d' % (T, j))
        a('v_mov_b32 v%d, 0xf149f2ca' % (T + 2))
        for w in range(4):
            a('v_add_u32 v%d, %d, v%d' % (T + 1, w, T))
            a('v_cmp_lt_u32 vcc, v%d, v%d' % (il, T + 1))
            a('v_cndmask_b32 v%d, v%d, v%d, vcc' % (S + w, S + w, T + 2))
        a.label(Lnm)
        a('v_max3_f32 v%d, v%d, v%d, v%d' % (T, S, S + 1, S + 2))
        a('v_max_f32 v%d, v%d, v%d' % (T, T, S + 3))
        a('v_cmp_eq_u32 vcc, 1, v%d' % j)
        a('v_max_f32_dpp v%d, v%d, v%d quad_perm:[1,0,3,2] row_mask:0xf bank_mask:0xf' % (T + 1, T, T))
        for w in range(4):
            a('v_sub_f32 v%d, v%d, v%d' % (S + w, S + w, T + 1))
        for w in range(4):
            a('v_exp_f32 v%d, v%d' % (S + w, S + w))
        a('v_add_f32 v%d, v%d, v%d' % (T, S, S + 1))
        a('v_add_f32 v%d, v%d, v%d' % (T + 1, S + 2, S + 3))
        a('v_add_f32 v%d, v%d, v%d' % (T, T, T + 1))
        for w in range(4):
            a('v_mul_f32 v%d, v%d, v%d' % (S + w, S + w, RK + 3 - w))
        a('v_add_f32_dpp v%d, v%d, v%d quad_perm:[1,0,3,2] row_mask:0xf bank_mask:0xf' % (T + 1, T, T))
        a('v_rcp_f32 v%d, v%d' % (T + 1, T + 1))
        for w in range(4):
            a('v_mul_f32 v%d, v%d, v%d' % (S + w, S + w, T + 1))
        a('v_cvt_pk_bf16_f32 v%d, v%d, v%d' % (T, S, S + 1))
        a('v_cvt_pk_bf16_f32 v%d, v%d, v%d' % (T + 1, S + 2, S + 3))
        a('v_mov_b32_dpp v%d, v%d quad_perm:[1,0,3,2] row_mask:0xf bank_mask:0xf' % (T + 2, T))
        a('v_mov_b32_dpp v%d, v%d quad_perm:[1,0,3,2] row_mask:0xf bank_mask:0xf' % (T + 3, T + 1))
        PP = 60
        a('v_cndmask_b32 v%d, v%d, v%d, vcc' % (PP, T, T + 2))
        a('v_cndmask_b32 v%d, v%d, v%d, vcc' % (PP + 1, T + 1, T + 3))
        a('v_cndmask_b32 v%d, v%d, v%d, vcc' % (PP + 2, T + 2, T))
        a('v_cndmask_b32 v%d, v%d, v%d, vcc' % (PP + 3, T + 3, T + 1))
        PL = 64
        for pr in range(4):
            a('v_and_b32 v%d, 0xffff, v%d' % (PL + 4 * pr, PP + pr))
            a('v_lshlrev_b32 v%d, 16, v%d' % (PL + 4 * pr + 1, PP + pr))
            a('v_lshrrev_b32 v%d, 16, v%d' % (PL + 4 * pr + 2, PP + pr))
            a('v_and_b32 v%d, 0xffff0000, v%d' % (PL + 4 * pr + 3, PP + pr))
        O = 0
        for w in range(8):
            a('s_waitcnt lgkmcnt(%d)' % (2 * (7 - w)))
            for m in range(5):
                for h in range(2):
                    c = '0' if w == 0 else 'v%d' % (O + 2 * m + h)
                    a('v_dot2_f32_bf16 v%d, v%d, v%d, %s' % (O + 2 * m + h, V + 6 * w + m, PL + 2 * w + h, c))
        for m in range(5):
            a('v_cvt_pk_bf16_f32 v%d, v%d, v%d' % (12 + m, O + 2 * m, O + 2 * m + 1))
        a('s_mov_b32 s%d, 0x55555555' % (sT + 2))
        a('s_mov_b32 s%d, 0x55555555' % (sT + 3))

        def st(sc):
            a('buffer_store_dwordx4 %s, v%d, %s, s%d offen%s' % (vr(12), SA, srd(sWS), sBase, sc))
            a('s_mov_b64 exec, s[%d:%d]' % (sT + 2, sT + 3))
            a('buffer_store_dword v16, v%d, %s, s%d offen%s' % (SA + 1, srd(sWS), sBase, sc))
            a('s_mov_b64 exec, -1')
            self.set_flag(F_QF, sN, 20, add=1)
            Ld = a.uid('Ldefer')
            a('s_mov_b32 s%d, 1' % sPub)
            a('s_cmp_eq_u32 s%d, %d' % (sP, 5 if os.environ.get('NODEFER') else 0))
            a('s_cbranch_scc1 %s' % Ld)
            a('s_mov_b32 s%d, 0' % sPub)
            self.publish_event(0, 24, sc)
            a.label(Ld)
        self.both_modes(st)

    def stage_generic(self):
        a = self.a
        TMP = 88
        AV = 84
        Lc = a.uid('Lnocs')
        a('s_cmp_eq_u32 s%d, 0' % sCs)
        a('s_cbranch_scc1 %s' % Lc)
        a('s_waitcnt vmcnt(0)')
        self.colsum(8)
        a('s_mov_b32 s%d, 0' % sCs)
        a.label(Lc)
        self.m_prep()
        Lne = a.uid('Lnoearly')
        a('s_cmp_eq_u32 s%d, 0' % sP)
        a('s_cbranch_scc1 %s' % Lne)
        a('ds_read_b128 %s, v%d offset:%d' % (vr(TMP), vFlag, F_XF))
        a('s_waitcnt lgkmcnt(0)')
        self.flag_min(TMP)
        a('s_nop 1')
        a('s_cmp_ge_u32 s%d, s%d' % (sT + 8, sN))
        a('s_cbranch_scc1 %s' % Lne)
        self.wo_stage(async_=True)
        a('s_mov_b32 s%d, 1' % sWoP)
        a.label(Lne)
        a('v_lshlrev_b32 v%d, 4, v%d' % (AV, vLane))
        a('s_sub_u32 s%d, s%d, 1' % (sT, sLayer))
        a('s_mul_i32 s%d, s%d, %d' % (sT, sT, LSTR))
        a('s_add_u32 s%d, s%d, %d' % (sT, sT, WS_X))
        a('s_mul_i32 s%d, s%d, %d' % (sT + 1, sP, TILE))
        a('s_add_u32 s%d, s%d, s%d' % (sT, sT, sT + 1))
        a('s_add_u32 s%d, s%d, s%d' % (sBase, sT, sTileW))
        a('s_sub_u32 s%d, s%d, s%d' % (sBase, sBase, sMt))
        a('s_mul_i32 s%d, s%d, 4864' % (sBase2, sWv))
        a('s_add_u32 s%d, s%d, s%d' % (sBase, sBase, sBase2))
        a('s_setprio 0')
        self.wait_flag(F_XF, sN, TMP, 6, sleep=1)
        self.tr(20)
        a('v_lshlrev_b32 v%d, 3, v%d' % (TMP + 2, vLane))
        a('s_lshl_b32 s%d, s%d, 9' % (sT + 2, sP))
        a('s_add_u32 s%d, s%d, s%d' % (sT + 2, sT + 2, sFlW))
        a('s_lshl_b32 s%d, s%d, 7' % (sT + 3, sWv))
        a('s_sub_u32 s%d, s%d, s%d' % (sT + 2, sT + 2, sT + 3))
        a('s_add_u32 s%d, s%d, 1024' % (sT + 2, sT + 2))
        a('s_add_u32 s%d, s%d, s%d' % (sT + 3, sNon, sLayer))
        a('s_mov_b64 vcc, -1')
        for k, mt in enumerate(self.ORDER):
            Lp, Lg = a.uid('Lsp'), a.uid('Lsg')
            half = 'vcc_lo' if mt < 2 else 'vcc_hi'
            msk = 0xffff << (16 * (mt & 1))
            a.label(Lp)
            a('s_and_b32 s%d, %s, 0x%x' % (sT, half, msk))
            a('s_cbranch_scc0 %s' % Lg)
            a('buffer_load_dwordx2 %s, v%d, %s, s%d offen sc1' % (vr(TMP, 2), TMP + 2, srd(sWS), sT + 2))
            self.budget_check(12)
            a('s_waitcnt vmcnt(0)')
            a('v_subrev_u32 v%d, s%d, v%d' % (TMP, sT + 3, TMP))
            a('v_xor_b32 v%d, s%d, v%d' % (TMP + 1, sNon + 1, TMP + 1))
            a('v_lshrrev_b32 v%d, 3, v%d' % (TMP, TMP))
            a('v_or_b32 v%d, v%d, v%d' % (TMP, TMP, TMP + 1))
            a('v_cmp_ne_u32 vcc, 0, v%d' % TMP)
            a('s_branch %s' % Lp)
            a.label(Lg)
            if k == 0:
                self.tr(25)
            a('s_add_u32 s%d, s%d, %d' % (sT, sBase, mt * MT))
            a('s_add_u32 s%d, s%d, %d' % (sT + 1, sBase2, mt * MT))
            a('s_mov_b32 m0, s%d' % (sT + 1))
            for k2 in range(4):
                a('buffer_load_dwordx4 v%d, %s, s%d offen offset:%d sc1 lds' % (AV, srd(sWS), sT, k2 * 1024))
            a('s_add_u32 s%d, s%d, 4096' % (sT, sT))
            a('s_add_u32 s%d, s%d, 4096' % (sT + 1, sT + 1))
            a('s_mov_b32 m0, s%d' % (sT + 1))
            a('s_mov_b32 exec_hi, 0xffff')
            a('buffer_load_dwordx4 v%d, %s, s%d offen sc1 lds' % (AV, srd(sWS), sT))
            a('s_mov_b32 exec_hi, -1')
        a('s_mov_b32 s%d, 1' % sOwn)
        a('s_cmp_eq_u32 s%d, 0' % sP)
        a('s_cbranch_scc1 L_M_GO')
        a('s_mov_b32 s%d, 0' % sOwn)
        a('s_waitcnt vmcnt(10)')
        self.set_flag(F_XR, sG, TMP, add=2)
        Lw1, Lw2 = a.uid('Lwe'), a.uid('Lwf')
        a('s_cmp_lg_u32 s%d, 0' % sWoP)
        a('s_cbranch_scc1 %s' % Lw1)
        self.wo_stage(async_=True)
        a('s_waitcnt vmcnt(11)')
        a('s_branch %s' % Lw2)
        a.label(Lw1)
        a('s_waitcnt vmcnt(0)')
        a.label(Lw2)
        self.set_flag(F_XR, sG, TMP, add=4)
        a('s_mov_b32 s%d, 1' % sWoP)
        self.tr(24)

    def stage_input_issue(self):
        a = self.a
        AV, LV, AT, LT_ = 84, 85, 86, 87
        TMP = 88
        a('s_mov_b32 s%d, s%d' % (sN, sP))
        a('s_lshl_b32 s%d, s%d, 2' % (sG, sN))
        a('v_lshrrev_b32 v%d, 2, v%d' % (TMP + 1, vLane))
        a('v_and_b32 v%d, 3, v%d' % (TMP, vLane))
        self.swz(LV, TMP, TMP + 1, TMP + 2)
        a('v_add_u32 v%d, s%d, v%d' % (LV, sMt, LV))
        a('s_lshl_b32 s%d, s%d, 7' % (sT, sTG))
        a('s_add_u32 s%d, s%d, s%d' % (sT, sT, sP))
        a('s_lshl_b32 s%d, s%d, 5' % (sT + 1, sWv))
        a('s_add_u32 s%d, s%d, s%d' % (sT + 1, sT + 1, sT))
        a('s_mul_i32 s%d, s%d, 1152' % (sT + 1, sT + 1))
        a('v_mul_u32_u24 v%d, 2304, v%d' % (TMP + 2, TMP + 1))
        a('v_add_u32 v%d, s%d, v%d' % (TMP + 2, sT + 1, TMP + 2))
        a('v_lshl_add_u32 v%d, v%d, 4, v%d' % (AV, TMP, TMP + 2))
        a('v_mul_u32_u24 v%d, 72, v%d' % (AT, TMP))
        a('v_add_u32 v%d, v%d, v%d' % (AT, AT, TMP + 2))
        a('v_lshlrev_b32 v%d, 7, v%d' % (LT_, TMP))
        a('v_lshl_add_u32 v%d, v%d, 3, v%d' % (LT_, TMP + 1, LT_))
        a('v_add_u32 v%d, s%d, v%d' % (LT_, sMt, LT_))
        for ks in range(16):
            a('buffer_load_dwordx4 %s, v%d, %s, 0 offen offset:%d' % (vr(4 * ks), AV, srd(sIN), 72 * ks))
        for c in range(4):
            a('buffer_load_dwordx2 %s, v%d, %s, 0 offen offset:%d' % (vr(64 + 2 * c, 2), AT, srd(sIN), 288 * c + 64))

    def stage_input_finish(self, extra_after=0, last_extra=0):
        a = self.a
        AV, LV, AT, LT_ = 84, 85, 86, 87
        TMP = 88
        self.wait_flag(F_XF, sN, TMP, 6)
        rem = [14, 8, 0]
        for seg in range(3):
            a('s_waitcnt vmcnt(%d)' % (rem[seg] + (extra_after if seg < 2 else last_extra)))
            if seg == 0:
                self.tr(21)
            for ks in range(6 * seg, min(6 * seg + 6, 16)):
                a('ds_write_b128 v%d, %s offset:%d' % (LV, vr(4 * ks), ks * 1024))
            if seg == 2:
                for c in range(4):
                    a('ds_write_b64 v%d, %s offset:%d' % (LT_, vr(64 + 2 * c, 2), 16384 + 512 * c))
        for i in range(72):
            a('v_dot2_f32_bf16 v%d, v%d, v%d, %s' % (TMP + (i & 1), i, i, '0' if i < 2 else 'v%d' % (TMP + (i & 1))))
        a('v_add_f32 v%d, v%d, v%d' % (TMP, TMP, TMP + 1))
        a('v_mov_b32 v%d, 0' % (TMP + 1))
        a('v_subrev_u32 v%d, s%d, v%d' % (TMP + 2, sMt, LT_))
        a('v_lshrrev_b32 v%d, 1, v%d' % (TMP + 2, TMP + 2))
        a('v_add_u32 v%d, s%d, v%d' % (TMP + 2, sMt, TMP + 2))
        a('ds_write_b32 v%d, v%d offset:18432' % (TMP + 2, TMP))
        for c in range(1, 4):
            a('ds_write_b32 v%d, v%d offset:%d' % (TMP + 2, TMP + 1, 18432 + 256 * c))
        a('s_waitcnt lgkmcnt(0)')
        self.set_flag(F_XR, sG, TMP, add=4)
        self.tr(24)

    def hb_addr(self, d, tmp):
        a = self.a
        a('v_and_b32 v%d, 7, v%d' % (tmp, vLane))
        a('v_lshrrev_b32 v%d, 4, v%d' % (tmp + 1, vLane))
        a('v_lshlrev_b32 v%d, 4, v%d' % (d, tmp))
        a('v_lshl_add_u32 v%d, v%d, 7, v%d' % (d, tmp + 1, d))
        a('s_lshl_b32 s%d, s%d, 9' % (sT, sHG))
        a('v_add_u32 v%d, s%d, v%d' % (d, sT, d))
        a('s_lshl_b32 s%d, s%d, 6' % (sT, sHG))
        a('s_add_u32 s%d, s%d, 8192' % (sT, sT))
        a('v_lshlrev_b32 v%d, 3, v%d' % (d + 1, tmp))
        a('v_add_u32 v%d, s%d, v%d' % (d + 1, sT, d + 1))

    def hb_store(self, d, data, soff):
        a = self.a
        a('s_mov_b32 s%d, 0xff00ff00' % (sT + 4))
        a('s_mov_b32 s%d, 0xff00ff00' % (sT + 5))
        a('s_mov_b64 exec, s[%d:%d]' % (sT + 4, sT + 5))
        a('buffer_store_dwordx4 %s, v%d, %s, s%d offen sc1' % (vr(data), d, srd(sWS), soff))
        a('s_mov_b64 exec, 0xff00')
        a('buffer_store_dwordx2 %s, v%d, %s, s%d offen sc1' % (vr(data + 4, 2), d + 1, srd(sWS), soff))
        a('s_mov_b64 exec, -1')

    def hb_base(self, dst, layer_add):
        a = self.a
        a('s_add_u32 s%d, s%d, %d' % (dst, sLayer, layer_add))
        a('s_lshl_b32 s%d, s%d, 5' % (dst, dst))
        a('s_lshl_b32 s%d, s%d, 1' % (sT + 1, sTG))
        a('s_add_u32 s%d, s%d, s%d' % (dst, dst, sT + 1))
        a('s_add_u32 s%d, s%d, s%d' % (dst, dst, sP))
        a('s_mul_i32 s%d, s%d, %d' % (dst, dst, HBT))
        a('s_add_u32 s%d, s%d, %d' % (dst, dst, WS_HB))

    def bphase(self):
        a = self.a
        NS = 12
        ACC = 48
        WB = [60, 72, 84]
        LA, LB, VT, TMP1 = 96, 97, 98, 99
        slot = lambda ks: 4 * (ks % NS)
        a('s_mul_i32 s%d, s%d, %d' % (sBase, sLayer, LSTR))
        a('s_mul_i32 s%d, s%d, %d' % (sT, sP, TILE))
        a('s_add_u32 s%d, s%d, s%d' % (sBase, sBase, sT))
        a('s_add_u32 s%d, s%d, s%d' % (sBase, sBase, sTileW))
        a('v_lshlrev_b32 v100, 4, v%d' % vLane)
        a('v_add_u32 v100, s%d, v100' % sTab)
        a('ds_read_b128 %s, v100 offset:3072' % vr(96))
        a('s_waitcnt lgkmcnt(0)')

        def wreads(ks):
            b = WB[ks % 3]
            a('ds_read_b128 %s, v%d offset:%d' % (vr(b), LA, ks * 2304))
            a('ds_read_b128 %s, v%d offset:%d' % (vr(b + 4), LA, ks * 2304 + 1024))
            a('ds_read_b128 %s, v%d offset:%d' % (vr(b + 8), LB, ks * 2304))
        def wread1(ks, t):
            b = WB[ks % 3]
            if t < 2:
                a('ds_read_b128 %s, v%d offset:%d' % (vr(b + 4 * t), LA, ks * 2304 + 1024 * t))
            else:
                a('ds_read_b128 %s, v%d offset:%d' % (vr(b + 8), LB, ks * 2304))
        self.tr(40)
        def hook():
            Lwp = a.uid('Lwop')
            a('s_cmp_eq_u32 s%d, 0' % sWoP)
            a('s_cbranch_scc1 %s' % Lwp)
            self.set_flag(F_WR, sLayer, WB[0], add=1)
            a('s_mov_b32 s%d, 0' % sWoP)
            a.label(Lwp)
        self.poll_event(0, 0, ACC, 13, hook=hook)
        self.tr(44)
        issued = []

        def oload(ks):
            if ks < 16:
                if ks % 4 == 0:
                    a('s_add_u32 s%d, s%d, %d' % (sT + 2, sBase, WS_PAD + ks * 1024 - L_WO))
                a('buffer_load_dwordx4 %s, v%d, %s, s%d offen offset:%d sc1' %
                  (vr(slot(ks)), LA, srd(sWS2), sT + 2, (ks % 4) * 1024))
                issued.append(ks)
            else:
                a('s_add_u32 s%d, s%d, 16384' % (sT + 3, sBase))
                a('buffer_load_dwordx2 %s, v%d, %s, s%d offen offset:%d sc1' %
                  (vr(slot(ks), 2), VT, srd(sWS), sT + 3, (ks - 16) * 1024))
                a('buffer_load_dwordx2 %s, v%d, %s, s%d offen offset:%d sc1' %
                  (vr(slot(ks) + 2, 2), VT, srd(sWS), sT + 3, (ks - 16) * 1024 + 128))
                issued.extend([ks, ks])
        for ks in range(NS):
            oload(ks)
        a('s_add_u32 s%d, s%d, 1' % (sT + 7, sLayer))
        self.wait_flag(F_WR, sT + 7, WB[0], 10)
        for ks in range(3):
            wreads(ks)
        RES = 24
        RA = 32
        if os.environ.get('BPRIO'):
            a('s_setprio %s' % os.environ['BPRIO'])
        for ks in range(18):
            last = max(i for i, t in enumerate(issued) if t == ks)
            a('s_waitcnt vmcnt(%d) lgkmcnt(%d)' % (len(issued) - 1 - last, 3 * min(2, 17 - ks)))
            if ks == 0:
                self.tr(41)
            for t in range(3):
                a(mfma(ACC + 4 * t, WB[ks % 3] + 4 * t, slot(ks), ks == 0))
                if ks + 3 < 18:
                    wread1(ks + 3, t)
            if ks + NS < 18:
                oload(ks + NS)
            if ks == 9:
                a('ds_read_b128 %s, v100 offset:4096' % vr(RA))
            if ks == 10:
                L0, L1 = a.uid('Lres0'), a.uid('Lres1')
                a('s_add_u32 s%d, s%d, %d' % (sBase2, sBase, WS_X))
                a('s_mul_i32 s%d, s%d, 1152' % (sT + 4, sP))
                a('s_waitcnt lgkmcnt(3)')
                a('s_cmp_eq_u32 s%d, 0' % sLayer)
                a.softbranch('s_cbranch_scc1 %s' % L0)
                a('buffer_load_dwordx4 %s, v%d, %s, s%d offen sc1' % (vr(RES), RA, srd(sWS), sBase2))
                a('buffer_load_dwordx2 %s, v%d, %s, s%d offen sc1' % (vr(RES + 4, 2), RA + 1, srd(sWS), sBase2))
                a.softbranch('s_branch %s' % L1)
                a.label(L0, noflush=True)
                a('buffer_load_dwordx4 %s, v%d, %s, s%d offen' % (vr(RES), RA + 2, srd(sIN), sT + 4))
                a('buffer_load_dwordx2 %s, v%d, %s, s%d offen' % (vr(RES + 4, 2), RA + 3, srd(sIN), sT + 4))
                a.label(L1, noflush=True)
                issued.extend(['r', 'r'])
        self.tr(42)
        if os.environ.get('BPRIO'):
            a('s_setprio 2')
        E = 0
        U = 60
        pairs = [(ACC + r, ACC + 4 + r) for r in range(4)] + [(ACC + 8, ACC + 9), (ACC + 10, ACC + 11)]
        if os.environ.get('ONEROUND'):
            a('s_waitcnt vmcnt(0)')
            for m in range(6):
                a('v_lshlrev_b32 v%d, 16, v%d' % (U + 2 * m, RES + m))
                a('v_and_b32 v%d, 0xffff0000, v%d' % (U + 1 + 2 * m, RES + m))
            for m, (x0, x1) in enumerate(pairs):
                a('v_add_f32 v%d, v%d, v%d' % (U + 2 * m, U + 2 * m, x0))
                a('v_add_f32 v%d, v%d, v%d' % (U + 1 + 2 * m, U + 1 + 2 * m, x1))
            for m in range(6):
                a('v_cvt_pk_bf16_f32 v%d, v%d, v%d' % (E + m, U + 2 * m, U + 1 + 2 * m))
        else:
            for m, (x0, x1) in enumerate(pairs):
                a('v_cvt_pk_bf16_f32 v%d, v%d, v%d' % (E + m, x0, x1))
            a('s_waitcnt vmcnt(0)')
            for m in range(6):
                a('v_lshlrev_b32 v%d, 16, v%d' % (U + 2 * m, E + m))
                a('v_and_b32 v%d, 0xffff0000, v%d' % (U + 1 + 2 * m, E + m))
                a('v_lshlrev_b32 v%d, 16, v%d' % (U + 12 + 2 * m, RES + m))
                a('v_and_b32 v%d, 0xffff0000, v%d' % (U + 13 + 2 * m, RES + m))
            for m in range(12):
                a('v_add_f32 v%d, v%d, v%d' % (U + m, U + m, U + 12 + m))
            for m in range(6):
                a('v_cvt_pk_bf16_f32 v%d, v%d, v%d' % (E + m, U + 2 * m, U + 1 + 2 * m))
        L0, L1 = a.uid('Lst0'), a.uid('Lst1')
        a('s_cmp_eq_u32 s%d, %d' % (sLayer, self.nlayers - 1))
        a('s_cbranch_scc1 %s' % L0)

        def st(sc):
            a('buffer_store_dwordx4 %s, v32, %s, s%d offen%s' % (vr(E), srd(sWS), sBase2, sc))
            a('s_mov_b64 exec, 0xffff')
            a('buffer_store_dwordx2 %s, v33, %s, s%d offen%s' % (vr(E + 4, 2), srd(sWS), sBase2, sc))
            a('s_mov_b64 exec, -1')
            for m in range(4):
                a('v_dot2_f32_bf16 v8, v%d, v%d, %s' % (E + m, E + m, '0' if m == 0 else 'v8'))
            a('v_dot2_f32_bf16 v10, v%d, v%d, 0' % (E + 4, E + 4))
            a('v_dot2_f32_bf16 v10, v%d, v%d, v10' % (E + 5, E + 5))
            a('v_lshrrev_b32 v11, 1, v33')
            a('v_mov_b32 v9, v8')
            a('v_permlane32_swap_b32 v8, v9')
            a('v_add_f32 v8, v8, v9')
            a('v_mov_b32 v9, v8')
            a('v_permlane16_swap_b32 v8, v9')
            a('v_add3_f32 v8, v8, v9, v10') if False else None
            a('v_add_f32 v8, v8, v9')
            a('v_add_f32 v8, v8, v10')
            a('s_add_u32 s%d, s%d, %d' % (sT + 2, sBase2, 18432 - 8192))
            a('s_mov_b64 exec, 0xffff')
            a('buffer_store_dword v8, v11, %s, s%d offen%s' % (srd(sWS), sT + 2, sc))
            a('s_mov_b64 exec, -1')
            self.publish_event(2, 44, sc)
        self.both_modes(st)
        a('s_branch %s' % L1)
        a.label(L0)
        OSC = os.environ.get('OUTSC', '')
        a('buffer_store_dwordx4 %s, v34, %s, s%d offen %s' % (vr(E), srd(sOUT), sT + 4, OSC))
        a('s_mov_b64 exec, 0xffff')
        a('buffer_store_dwordx2 %s, v35, %s, s%d offen %s' % (vr(E + 4, 2), srd(sOUT), sT + 4, OSC))
        a('s_mov_b64 exec, -1')
        a.label(L1)
        a('s_lshl_b32 s%d, s%d, 4' % (sT, sP))
        a('s_lshl_b32 s%d, s%d, 2' % (sT + 1, sWv))
        a('s_sub_u32 s%d, s%d, s%d' % (sT, sT + 1, sT))
        a('v_add_u32 v60, s%d, v%d' % (sT, vFlag))
        a('s_add_u32 s%d, s%d, 1' % (sT, sLayer))
        a('v_mov_b32 v61, s%d' % sT)
        a('ds_write_b32 v60, v61 offset:%d' % F_WG)
        self.tr(43)

    def xaddr_frag(self, d, tmp):
        a = self.a
        a('v_lshrrev_b32 v%d, 4, v%d' % (tmp, vLane))
        a('v_and_b32 v%d, 15, v%d' % (tmp + 1, vLane))
        self.swz(d, tmp, tmp + 1, tmp + 2)
        a('s_lshl_b32 s%d, s%d, 10' % (sT, sHG))
        a('v_add_u32 v%d, s%d, v%d' % (d, sT, d))
        a('s_lshl_b32 s%d, s%d, 7' % (sT, sHG))
        a('s_add_u32 s%d, s%d, 16384' % (sT, sT))
        a('v_lshlrev_b32 v%d, 3, v%d' % (tmp + 1, tmp + 1))
        a('v_add_u32 v%d, s%d, v%d' % (d + 1, sT, tmp + 1))

    def xaddr_nat(self, d, tmp):
        a = self.a
        a('s_lshl_b32 s%d, s%d, 7' % (sT, sTG))
        a('s_add_u32 s%d, s%d, s%d' % (sT, sT, sP))
        a('s_lshl_b32 s%d, s%d, 5' % (sT + 1, sWv))
        a('s_add_u32 s%d, s%d, s%d' % (sT, sT, sT + 1))
        a('s_mul_i32 s%d, s%d, 1152' % (sT, sT))
        a('s_mul_i32 s%d, s%d, 72' % (sT + 1, sHG))
        a('s_add_u32 s%d, s%d, s%d' % (sT, sT, sT + 1))
        a('v_and_b32 v%d, 15, v%d' % (tmp, vLane))
        a('v_mul_u32_u24 v%d, 2304, v%d' % (tmp, tmp))
        a('v_add_u32 v%d, s%d, v%d' % (tmp, sT, tmp))
        a('v_add_u32 v%d, 64, v%d' % (d + 1, tmp))
        a('v_lshrrev_b32 v%d, 4, v%d' % (tmp + 1, vLane))
        a('v_lshl_add_u32 v%d, v%d, 4, v%d' % (d, tmp + 1, tmp))

    def build(self):
        a = self.a
        self.prologue()
        a('s_cmp_eq_u32 s%d, 0' % sSet)
        a('s_cbranch_scc0 L_H0')
        if not os.environ.get('DIRECTA'):
            self.wload_addr(0, 1, 2)
            self.coop_issue(0, 1)
            self.wou_issue(16, 24)
            self.kv_prefill(32)
            a('s_waitcnt vmcnt(12)')
            self.tr(5)
            self.coop_store(2)
            a('s_waitcnt vmcnt(2)')
            self.wou_store(16, 24)
            self.get_nonce(8)
            self.coop_flag(12)
            self.wou_flag(8)
            a('s_mov_b32 s%d, 1' % (sT + 7))
            self.set_flag(F_XH, sT + 7, 12)
            self.tr(6)
            a('s_mov_b32 s%d, 0' % sP)
            self.stage_input_issue()
            self.stage_input_finish()
            self.coop_load(0)
            self.colsum(8, progressive=True)
        else:
            self.wload_addr(99, 100, 92)
            self.kv_prefill(80)
            self.wou_issue(72, 92)
            self.stage_input_issue()
            self.wload_issue(range(0, 18), 99, 100)
            self.tr(5)
            self.stage_input_finish(extra_after=49, last_extra=63)
            self.wou_store(72, 92)
            self.ones_mask(2, 3)
            self.get_nonce(8)
            self.wou_flag(8)
            self.tr(6)
            self.wload_perm(range(18), 2, 4)
            self.colsum(8)
        a('s_mov_b32 s%d, 2' % (sT + 7))
        self.set_flag(F_XH, sT + 7, 12)
        self.tr(2)
        if os.environ.get('ENDT'):
            a('s_memrealtime s[%d:%d]' % (sTm, sTm + 1))
            a('s_waitcnt lgkmcnt(0)')
            a('s_sub_u32 s%d, s%d, s%d' % (sTm, sTm, sNon))
            a('v_mov_b32 v0, s%d' % sTm)
            a('v_mov_b32 v1, 12')
            a('s_mov_b64 exec, 1')
            a('buffer_atomic_umax v0, v1, %s, 0 offen' % srd(sDBG))
            a('s_mov_b64 exec, -1')
        a('s_branch L_M_ROLE')
        a.label('L_H0')
        Ln, Lp = a.uid('Lnn'), a.uid('Lpf0')
        a('s_cmp_lg_u32 s2, 0')
        a('s_cbranch_scc1 %s' % Ln)
        a('s_cmp_lg_u32 s%d, 0' % sWv)
        a('s_cbranch_scc1 %s' % Ln)
        a('s_memrealtime s[%d:%d]' % (sNon, sNon + 1))
        a('s_waitcnt lgkmcnt(0)')
        a('s_or_b32 s%d, s%d, 1' % (sNon, sNon))
        a('s_or_b32 s%d, s%d, 1' % (sNon + 1, sNon + 1))
        a('v_mov_b32 v72, s%d' % sNon)
        a('v_mov_b32 v73, s%d' % (sNon + 1))
        a('v_mov_b32 v74, 0')
        a('buffer_store_dwordx2 v[72:73], v74, %s, 0 offen sc1' % srd(sDBG))
        a.label(Ln)
        self.wload_addr(99, 100, 92)
        self.coop_issue(99, 100)
        self.wou_issue(72, 92)
        self.kv_prefill(80)
        a('s_waitcnt vmcnt(4)')
        self.tr(5)
        self.coop_store(vCS)
        self.wou_store(72, 92)
        self.get_nonce(72)
        a('s_mov_b32 s%d, 1' % (sT + 7))
        self.set_flag(F_XH + 16, sT + 7, 72)
        Lf = a.uid('Lif')
        a('s_cmp_lg_u32 s%d, 3' % sWv)
        a('s_cbranch_scc1 %s' % Lf)
        self.wait_flag(F_XH, sT + 7, 72, 18)
        self.wait_flag(F_XH + 16, sT + 7, 72, 19)
        a('s_lshl_b32 s%d, s%d, 4' % (sT, sTG))
        a('s_add_u32 s%d, s%d, s%d' % (sT, sT, sHG))
        a('s_lshl_b32 s%d, s%d, 4' % (sT, sT))
        a('s_add_u32 s%d, s%d, %d' % (sT, sT, WS_INI))
        a('v_mov_b32 v72, s%d' % sNon)
        a('v_mov_b32 v73, s%d' % (sNon + 1))
        a('v_mov_b32 v74, s%d' % sXcc)
        a('v_mov_b32 v75, s%d' % sNon)
        a('v_mov_b32 v76, 0')
        a('s_mov_b64 exec, 1')
        a('buffer_store_dwordx4 v[72:75], v76, %s, s%d offen sc1' % (srd(sWS), sT))
        a('s_mov_b64 exec, -1')
        a.label(Lf)
        self.coop_flag(78)
        self.wou_flag(92)
        self.tr(6)
        self.build_tables()
        a('s_mov_b32 s%d, 2' % (sT + 7))
        self.set_flag(F_XH + 16, sT + 7, 72)
        self.wait_flag(F_XH, sT + 7, 72, 20, sleep=4)
        a('s_mov_b32 s%d, 1' % sP)
        self.stage_input_issue()
        self.wo_stage()
        self.init_check(72)
        self.coop_load(72)
        self.stage_input_finish(extra_after=36, last_extra=36)
        self.tr(3)
        a('s_mov_b32 s%d, 0' % sP)
        a('s_branch L_BPHASE')
        self.m_role()
        a.label('L_BPHASE')
        self.bphase()
        a('s_add_u32 s%d, s%d, 1' % (sLayer, sLayer))
        a('s_cmp_ge_u32 s%d, %d' % (sLayer, self.nlayers))
        a('s_cbranch_scc1 L_END')
        a.label('L_STAGE')
        self.stage_generic()
        a('s_cmp_eq_u32 s%d, 0' % sP)
        a('s_cbranch_scc1 L_M_ROLE')
        a('s_mov_b32 s%d, 0' % sP)
        a('s_branch L_BPHASE')
        a.label('L_ABORT')
        a('s_mov_b64 exec, -1')
        a('s_lshl_b32 s%d, s%d, 2' % (sT, sT + 9))
        a('s_add_u32 s%d, s%d, 64' % (sT, sT))
        a('v_mov_b32 v0, s2')
        a('v_add_u32 v0, 0x1000, v0')
        a('v_mov_b32 v1, s%d' % sT)
        a('buffer_store_dword v0, v1, %s, 0 offen sc1' % srd(sDBG))
        a.label('L_END')
        if os.environ.get('ENDT'):
            a('s_cmp_ge_u32 s2, 256')
            a('s_cbranch_scc1 L_END3')
            a('s_memrealtime s[%d:%d]' % (sTm, sTm + 1))
            a('s_waitcnt lgkmcnt(0)')
            a('s_sub_u32 s%d, s%d, s%d' % (sTm, sTm, sNon))
            a('v_mov_b32 v0, s%d' % sTm)
            a('v_mov_b32 v1, 8')
            a('s_mov_b64 exec, 1')
            a('buffer_atomic_umax v0, v1, %s, 0 offen' % srd(sDBG))
            a.label('L_END3')
        if self.debug:
            a('s_cmp_ge_u32 s2, 256')
            a('s_cbranch_scc1 L_END2')
            self.tr(63)
            a('s_lshl_b32 s%d, s2, 3' % sT)
            a('s_add_u32 s%d, s%d, s%d' % (sT, sT, sWave))
            a('s_lshl_b32 s%d, s%d, 8' % (sT, sT))
            a('s_add_u32 s%d, s%d, %d' % (sT, sT, WS_TRC))
            a('v_lshlrev_b32 v0, 2, v%d' % vLane)
            a('buffer_store_dword v%d, v0, %s, s%d offen' % (vTr, srd(sWS), sT))
            a.label('L_END2')
        a('s_endpgm')

    def text(self):
        hdr = open(os.path.join(os.path.dirname(os.path.abspath(__file__)), '..', 'cdna_kernels', NAME + '.s.ref')).read()
        out = hdr.split('; Override launch geometry')[0]
        out += '; @launch grid=(256,1,1) block=(512,1,1) lds=%d\n' % LDS_BYTES
        out += '.amdgcn_target "amdgcn-amd-amdhsa--gfx950"\n.text\n'
        out += '.globl %s_kernel\n.p2align 8\n.type %s_kernel,@function\n%s_kernel:\n' % (NAME, NAME, NAME)
        out += self.a.render()
        out += '''.section .rodata,"a"
.p2align 6
.amdhsa_kernel %s_kernel
  .amdhsa_next_free_vgpr 256
  .amdhsa_next_free_sgpr 96
  .amdhsa_accum_offset 256
  .amdhsa_group_segment_fixed_size 0
  .amdhsa_kernarg_size 72
  .amdhsa_user_sgpr_count 2
  .amdhsa_user_sgpr_kernarg_segment_ptr 1
  .amdhsa_system_sgpr_workgroup_id_x 1
.end_amdhsa_kernel
''' % NAME
        return out


if __name__ == '__main__':
    nl = int(sys.argv[2]) if len(sys.argv) > 2 else 4
    g = Gen(nlayers=nl, debug=(len(sys.argv) > 3 and sys.argv[3] == 'trace'))
    g.build()
    path = sys.argv[1] if len(sys.argv) > 1 else os.path.join(os.path.dirname(os.path.abspath(__file__)), '..', 'cdna_kernels', NAME + '.s')
    open(path, 'w').write(g.text())
    print('wrote', path)
```

```python
import sys, os, struct
sys.path.insert(0, os.path.dirname(os.path.abspath(__file__)))
from asmlib import Asm

NAME = 'interleave_layers__sliding_local_dilated__sliding_local_dilated__prompt'

XBYTES = 2048 * 576 * 2
MT = 19456
TILE = 4 * MT
WS_X = 4 * XBYTES
LSTR = 0
WS_KV = 6 * XBYTES
KVT = 2304
WS_FL = 9 * XBYTES
WS_INI = WS_FL + 65536
WS_CFLG = WS_FL + 131072
WS_WFLG = WS_FL + 262144
WS_TRC = 10 * XBYTES
WS_CIMG = 11 * XBYTES
WS_PIMG = 14 * XBYTES
WS_PFLG = WS_FL + 393216
WS_WIMG = 13 * XBYTES
WIS = 41984
WS_SIZE = 80 << 20
WS_PAD = 1 << 20
OOB = 0x7F000000

L_QKV = 4 * MT
QP = 272
L_WO = L_QKV + 80 * QP
L_ST = L_WO + 18 * 2304
L_FLG = L_ST + 320
L_TAB = L_FLG + 256
LDS_BYTES = 162560
F_XR, F_XF, F_QR, F_QF, F_WR, F_WF, F_WG, F_XH = 0, 16, 32, 48, 64, 80, 96, 112

sIN, sWQ, sWO, sOUT, sWS, sDBG = 24, 28, 32, 36, 40, 44
sWave, sWv, sSet, sTG, sHG, sLayer, sP, sN, sBud = 48, 49, 50, 51, 52, 53, 54, 55, 56
sG = 57
sNon = 58
sT = 60
sSelLo, sSelHi = 72, 73
sM1, sM2, sM3, sMD = 74, 76, 78, 80
sPend = 82
sBase = 83
sBase2 = 84
sFast = 85
sTm = 86
sWS2 = 88
sTi = 92
sXcc = 93
sWoOk = 94
sTileW = 95
sMt = 4
sQo = 8
sFlW = 12
sOwn = 13
sCs = 14
sQu = 16
sSt = 18
sKm = 20
sH = 22
sPass = 23
sWoP = 15
sPub = 7
sTab = 8
vTr = 101
vFlag, vLane = 102, 103
vCS = 104
vW = 112


def srd(n):
    return 's[%d:%d]' % (n, n + 3)


def vr(b, n=4):
    return 'v[%d:%d]' % (b, b + n - 1)


def W(t, ks):
    return vW + (ks * 2 + t) * 4


def mfma(d, a_, b_, first):
    return 'v_mfma_f32_16x16x32_bf16 %s, %s, %s, %s' % (vr(d), vr(a_), vr(b_), '0' if first else vr(d))


class Gen:
    def __init__(self, nlayers=4, debug=False):
        self.a = Asm()
        self.nlayers = nlayers
        self.debug = debug

    def budget_check(self, code):
        a = self.a
        a('s_sub_u32 s%d, s%d, 1' % (sBud, sBud))
        a('s_cmp_eq_u32 s%d, 0' % sBud)
        a('s_mov_b32 s%d, %d' % (sT + 9, code))
        a('s_cbranch_scc1 L_ABORT')

    def tr(self, ident):
        if not self.debug:
            return
        if os.environ.get('FINE') and ident in (20, 25, 24, 30, 40, 44, 41, 42, 43, 21, 3):
            return
        a = self.a
        a('%s s[%d:%d]' % ('s_memtime' if os.environ.get('CYC') else 's_memrealtime', sTm, sTm + 1))
        a('s_waitcnt lgkmcnt(0)')
        a('s_lshl_b32 s%d, s%d, 6' % (sTm, sTm))
        a('s_or_b32 s%d, s%d, %d' % (sTm, sTm, ident))
        a('s_mov_b32 m0, s%d' % sTi)
        a('s_nop 0')
        a('v_writelane_b32 v%d, s%d, m0' % (vTr, sTm))
        a('s_add_u32 s%d, s%d, 1' % (sTi, sTi))

    def flag_min(self, tmp):
        a = self.a
        a('v_min3_u32 v%d, v%d, v%d, v%d' % (tmp, tmp, tmp + 1, tmp + 2))
        a('v_min_u32 v%d, v%d, v%d' % (tmp, tmp, tmp + 3))
        a('v_readfirstlane_b32 s%d, v%d' % (sT + 8, tmp))

    def wait_flag(self, off, tgt, tmp, code, add=0, sleep=0):
        a = self.a
        L, Ld = a.uid('Lwf'), a.uid('Lwfd')
        a.label(L)
        a('ds_read_b128 %s, v%d offset:%d' % (vr(tmp), vFlag, off))
        a('s_waitcnt lgkmcnt(0)')
        self.flag_min(tmp)
        a('s_nop 1')
        if add:
            a('s_add_u32 s%d, s%d, %d' % (sT + 8, sT + 8, add))
        a('s_cmp_ge_u32 s%d, s%d' % (sT + 8, tgt))
        a('s_cbranch_scc1 %s' % Ld)
        self.budget_check(code)
        if sleep:
            a('s_sleep %d' % sleep)
        a('s_branch %s' % L)
        a.label(Ld)

    def set_flag(self, off, val_sreg, tmpv, add=0):
        a = self.a
        a('s_lshl_b32 s%d, s%d, 2' % (sT + 8, sWv))
        a('v_add_u32 v%d, s%d, v%d' % (tmpv, sT + 8, vFlag))
        if add:
            a('s_add_u32 s%d, s%d, %d' % (sT + 8, val_sreg, add))
            a('v_mov_b32 v%d, s%d' % (tmpv + 1, sT + 8))
        else:
            a('v_mov_b32 v%d, s%d' % (tmpv + 1, val_sreg))
        a('ds_write_b32 v%d, v%d offset:%d' % (tmpv, tmpv + 1, off))

    def swz(self, dst, q, r, tmp):
        a = self.a
        a('v_and_b32 v%d, 1, v%d' % (tmp, q))
        a('v_lshlrev_b32 v%d, 1, v%d' % (tmp, tmp))
        a('v_lshrrev_b32 v%d, 1, v%d' % (dst, q))
        a('v_mul_u32_u24 v%d, 12, v%d' % (dst, dst))
        a('v_add_u32 v%d, v%d, v%d' % (tmp, tmp, dst))
        a('v_xor_b32 v%d, v%d, v%d' % (tmp, tmp, r))
        a('v_lshlrev_b32 v%d, 4, v%d' % (tmp, tmp))
        a('v_lshl_add_u32 v%d, v%d, 8, v%d' % (dst, q, tmp))

    def sentinel_vcc(self, regs, tmp):
        a = self.a
        regs = list(regs)
        a('v_max3_u32 v%d, v%d, v%d, v%d' % (tmp, regs[0], regs[1], regs[2]))
        i = 3
        while i + 1 < len(regs):
            a('v_max3_u32 v%d, v%d, v%d, v%d' % (tmp, tmp, regs[i], regs[i + 1]))
            i += 2
        if i < len(regs):
            a('v_max_u32 v%d, v%d, v%d' % (tmp, tmp, regs[i]))
        a('v_cmp_eq_u32 vcc, -1, v%d' % tmp)

    def poll_event(self, kind_expr, layer_add, tmp, code, all64=False, hook=None):
        a = self.a
        if all64:
            a('v_lshlrev_b32 v%d, 3, v%d' % (tmp + 2, vLane))
        else:
            a('v_and_b32 v%d, 15, v%d' % (tmp + 2, vLane))
            a('v_lshlrev_b32 v%d, 3, v%d' % (tmp + 2, tmp + 2))
        a('s_lshl_b32 s%d, s%d, 9' % (sT, sP))
        a('s_add_u32 s%d, s%d, s%d' % (sT, sT, sFlW))
        if all64:
            a('s_lshl_b32 s%d, s%d, 7' % (sT + 1, sWv))
            a('s_sub_u32 s%d, s%d, s%d' % (sT, sT, sT + 1))
        if kind_expr:
            a('s_add_u32 s%d, s%d, %d' % (sT, sT, kind_expr * 512))
        a('s_add_u32 s%d, s%d, s%d' % (sT + 1, sNon, sLayer))
        a('s_add_u32 s%d, s%d, %d' % (sT + 1, sT + 1, 1 + layer_add))
        L, Ld = a.uid('Lpoll'), a.uid('Lpolld')
        a('s_setprio 0')
        a.label(L)
        a('buffer_load_dwordx2 %s, v%d, %s, s%d offen sc1' % (vr(tmp, 2), tmp + 2, srd(sWS), sT))
        a('s_waitcnt vmcnt(0)')
        if hook:
            hook()
        a('v_subrev_u32 v%d, s%d, v%d' % (tmp, sT + 1, tmp))
        a('v_xor_b32 v%d, s%d, v%d' % (tmp + 1, sNon + 1, tmp + 1))
        a('v_lshrrev_b32 v%d, 3, v%d' % (tmp, tmp))
        a('v_or_b32 v%d, v%d, v%d' % (tmp, tmp, tmp + 1))
        a('v_cmp_ne_u32 vcc, 0, v%d' % tmp)
        a('s_nop 1')
        a('s_cmp_eq_u64 vcc, 0')
        a('s_cbranch_scc1 %s' % Ld)
        self.budget_check(code)
        a('s_branch %s' % L)
        a.label(Ld)
        a('s_setprio 2')

    def publish_event(self, kind, tmp, sc):
        a = self.a
        a('s_lshl_b32 s%d, s%d, 9' % (sT, sP))
        a('s_add_u32 s%d, s%d, s%d' % (sT, sT, sFlW))
        a('s_lshl_b32 s%d, s%d, 3' % (sT + 1, sHG))
        a('s_add_u32 s%d, s%d, s%d' % (sT, sT, sT + 1))
        if kind:
            a('s_add_u32 s%d, s%d, %d' % (sT, sT, kind * 512))
        a('s_add_u32 s%d, s%d, s%d' % (sT + 1, sNon, sLayer))
        a('s_add_u32 s%d, s%d, 1' % (sT + 1, sT + 1))
        a('v_mov_b32 v%d, s%d' % (tmp, sT + 1))
        a('v_mov_b32 v%d, s%d' % (tmp + 1, sNon + 1))
        a('v_mov_b32 v%d, 0' % (tmp + 2))
        a('s_mov_b64 exec, 1')
        a('s_waitcnt vmcnt(0)')
        a('buffer_store_dwordx2 %s, v%d, %s, s%d offen%s' % (vr(tmp, 2), tmp + 2, srd(sWS), sT, sc))
        a('s_mov_b64 exec, -1')

    def both_modes(self, fn):
        a = self.a
        L0, L1 = a.uid('Lslow'), a.uid('Lmend')
        a('s_cmp_eq_u32 s%d, 0' % sFast)
        a('s_cbranch_scc1 %s' % L0)
        fn('')
        a('s_branch %s' % L1)
        a.label(L0)
        fn(' sc1')
        a.label(L1)

    def store_nonce_flag(self, soff, tmp):
        a = self.a
        a('v_mov_b32 v%d, s%d' % (tmp, sNon))
        a('v_mov_b32 v%d, s%d' % (tmp + 1, sNon + 1))
        a('v_mov_b32 v%d, 0' % (tmp + 2))
        a('s_mov_b64 exec, 1')
        a('buffer_store_dwordx2 %s, v%d, %s, s%d offen sc1' % (vr(tmp, 2), tmp + 2, srd(sWS), soff))
        a('s_mov_b64 exec, -1')

    def poll_nonce_flags(self, soff, vaddr, tmp, code):
        a = self.a
        L, Ld = a.uid('Lpn'), a.uid('Lpnd')
        a.label(L)
        a('buffer_load_dwordx2 %s, v%d, %s, s%d offen sc1' % (vr(tmp, 2), vaddr, srd(sWS), soff))
        a('s_waitcnt vmcnt(0)')
        a('v_xor_b32 v%d, s%d, v%d' % (tmp, sNon, tmp))
        a('v_xor_b32 v%d, s%d, v%d' % (tmp + 1, sNon + 1, tmp + 1))
        a('v_or_b32 v%d, v%d, v%d' % (tmp, tmp, tmp + 1))
        a('v_cmp_ne_u32 vcc, 0, v%d' % tmp)
        a('s_nop 1')
        a('s_cmp_eq_u64 vcc, 0')
        a('s_cbranch_scc1 %s' % Ld)
        self.budget_check(code)
        a('s_sleep 2')
        a('s_branch %s' % L)
        a.label(Ld)

    def get_nonce(self, tmp):
        a = self.a
        L, Ld = a.uid('Lnon'), a.uid('Lnond')
        a('v_mov_b32 v%d, 0' % (tmp + 2))
        a.label(L)
        a('buffer_load_dwordx2 %s, v%d, %s, 0 offen sc1' % (vr(tmp, 2), tmp + 2, srd(sDBG)))
        a('s_waitcnt vmcnt(0)')
        a('v_readfirstlane_b32 s%d, v%d' % (sNon, tmp))
        a('v_readfirstlane_b32 s%d, v%d' % (sNon + 1, tmp + 1))
        a('s_nop 1')
        a('s_min_u32 s%d, s%d, s%d' % (sT + 8, sNon, sNon + 1))
        a('s_cmp_lg_u32 s%d, 0' % (sT + 8))
        a('s_cbranch_scc1 %s' % Ld)
        self.budget_check(7)
        a('s_sleep 2')
        a('s_branch %s' % L)
        a.label(Ld)

    def init_check(self, tmp):
        a = self.a
        a('s_mov_b32 s%d, 2' % (sT + 7))
        self.wait_flag(F_XH + 16, sT + 7, tmp, 21)
        L, Ld = a.uid('Lini'), a.uid('Linid')
        a('v_and_b32 v%d, 15, v%d' % (tmp + 4, vLane))
        a('v_lshlrev_b32 v%d, 4, v%d' % (tmp + 4, tmp + 4))
        a('v_add_u32 v%d, 256, v%d' % (tmp + 5, tmp + 4))
        a('v_and_b32 v%d, 16, v%d' % (tmp + 6, vLane))
        a('s_cmp_eq_u32 s%d, 0' % sTG)
        a('s_cselect_b32 s%d, 0, 16' % sT)
        a('v_and_b32 v%d, s%d, v%d' % (tmp + 6, sT, tmp + 6))
        a('v_cmp_eq_u32 s[%d:%d], 0, v%d' % (sT + 2, sT + 3, tmp + 6))
        a('v_cndmask_b32 v%d, v%d, v%d, s[%d:%d]' % (tmp + 4, tmp + 4, tmp + 5, sT + 2, sT + 3))
        a('s_lshl_b32 s%d, s%d, 8' % (sT, sTG))
        a('s_add_u32 s%d, s%d, %d' % (sT, sT, WS_INI - 256))
        a.label(L)
        a('buffer_load_dwordx4 %s, v%d, %s, s%d offen sc1' % (vr(tmp), tmp + 4, srd(sWS), sT))
        a('s_waitcnt vmcnt(0)')
        a('v_xor_b32 v%d, s%d, v%d' % (tmp, sNon, tmp))
        a('v_xor_b32 v%d, s%d, v%d' % (tmp + 1, sNon + 1, tmp + 1))
        a('v_xor_b32 v%d, s%d, v%d' % (tmp + 3, sNon, tmp + 3))
        a('v_or3_b32 v%d, v%d, v%d, v%d' % (tmp, tmp, tmp + 1, tmp + 3))
        a('v_cmp_ne_u32 vcc, 0, v%d' % tmp)
        a('s_nop 1')
        a('s_cmp_eq_u64 vcc, 0')
        a('s_cbranch_scc1 %s' % Ld)
        self.budget_check(8)
        a('s_sleep 2')
        a('s_branch %s' % L)
        a.label(Ld)
        a('v_cmp_ne_u32 vcc, s%d, v%d' % (sXcc, tmp + 2))
        a('s_nop 1')
        a('s_and_b64 vcc, vcc, s[%d:%d]' % (sT + 2, sT + 3))
        a('s_cmp_eq_u64 vcc, 0')
        a('s_cselect_b32 s%d, 1, 0' % sFast)
        if os.environ.get('FORCE_SLOW'):
            a('s_mov_b32 s%d, 0' % sFast)

    def prologue(self):
        a = self.a
        a('s_cmp_ge_u32 s2, 256')
        a('s_cbranch_scc1 L_END')
        a('s_load_dwordx16 s[4:19], s[0:1], 0')
        a('s_load_dwordx2 s[20:21], s[0:1], 64')
        a('v_and_b32 v%d, 63, v0' % vLane)
        a('v_lshrrev_b32 v1, 6, v0')
        a('v_readfirstlane_b32 s%d, v1' % sWave)
        a('s_getreg_b32 s%d, hwreg(HW_REG_XCC_ID)' % sXcc)
        a('s_and_b32 s%d, s%d, 15' % (sXcc, sXcc))
        a('s_and_b32 s%d, s%d, 3' % (sWv, sWave))
        a('s_lshr_b32 s%d, s%d, 2' % (sSet, sWave))
        a('s_and_b32 s%d, s2, 7' % sT)
        a('s_lshr_b32 s%d, s2, 3' % (sT + 1))
        a('s_and_b32 s%d, s%d, 15' % (sHG, sT + 1))
        a('s_lshr_b32 s%d, s%d, 4' % (sT + 1, sT + 1))
        a('s_lshl_b32 s%d, s%d, 1' % (sTG, sT))
        a('s_add_u32 s%d, s%d, s%d' % (sTG, sTG, sT + 1))
        a('s_mov_b32 s%d, 0x%x' % (sBud, 2000000))
        a('s_mov_b32 s%d, 0x05040100' % sSelLo)
        a('s_mov_b32 s%d, 0x07060302' % sSelHi)
        a('s_mov_b32 s%d, 0' % sLayer)
        a('s_mov_b32 s%d, 0' % sWoOk)
        a('s_mov_b32 s%d, 0' % sFast)
        a('v_mov_b32 v%d, 0x%x' % (vFlag, L_FLG))
        a('v_and_b32 v1, 3, v%d' % vLane)
        a('v_cmp_eq_u32 s[%d:%d], 1, v1' % (sM1, sM1 + 1))
        a('v_cmp_eq_u32 s[%d:%d], 2, v1' % (sM2, sM2 + 1))
        a('v_cmp_eq_u32 s[%d:%d], 3, v1' % (sM3, sM3 + 1))
        a('v_lshrrev_b32 v1, 4, v%d' % vLane)
        a('v_bfe_u32 v2, v%d, 2, 2' % vLane)
        a('v_cmp_eq_u32 s[%d:%d], v1, v2' % (sMD, sMD + 1))
        a('v_mov_b32 v1, 0')
        a('v_lshl_add_u32 v2, v%d, 2, v%d' % (vLane, vFlag))
        a('ds_write_b32 v2, v1')
        a('s_waitcnt lgkmcnt(0)')

        def mk(n, lo, hi, size):
            a('s_mov_b32 s%d, s%d' % (n, lo))
            a('s_and_b32 s%d, s%d, 0xffff' % (n + 1, hi))
            a('s_mov_b32 s%d, 0x%x' % (n + 2, size))
            a('s_mov_b32 s%d, 0x00020000' % (n + 3))
        mk(sIN, 4, 5, XBYTES)
        mk(sOUT, 16, 17, XBYTES)
        mk(sDBG, 18, 19, 256)
        mk(sWS2, 20, 21, WS_SIZE)
        a('s_add_u32 s20, s20, 0x%x' % WS_PAD)
        a('s_addc_u32 s21, s21, 0')
        mk(sWS, 20, 21, WS_SIZE)
        a('s_mov_b32 s%d, 0' % sTi)
        a('s_cmp_eq_u32 s%d, 0' % sSet)
        a('s_cbranch_scc0 L_SETB_SRD')
        mk(sWQ, 6, 7, 576 * 1728 * 2)
        mk(sWO, 14, 15, 576 * 576 * 2)
        a('s_branch L_SRD_DONE')
        a.label('L_SETB_SRD')
        mk(sWQ, 12, 13, 576 * 1728 * 2)
        mk(sWO, 8, 9, 576 * 576 * 2)
        a.label('L_SRD_DONE')
        a('s_mul_i32 s%d, s%d, %d' % (sMt, sWv, MT))
        a('s_mul_i32 s%d, s%d, %d' % (sTileW, sTG, 2 * TILE))
        a('s_mul_i32 s%d, s%d, %d' % (sT, sWv, MT))
        a('s_add_u32 s%d, s%d, s%d' % (sTileW, sTileW, sT))
        a('s_lshl_b32 s%d, s%d, 11' % (sFlW, sTG))
        a('s_lshl_b32 s%d, s%d, 7' % (sT, sWv))
        a('s_add_u32 s%d, s%d, s%d' % (sFlW, sFlW, sT))
        a('s_add_u32 s%d, s%d, %d' % (sFlW, sFlW, WS_FL))
        a('s_mov_b32 s%d, 0' % sOwn)
        a('s_mov_b32 s%d, 0' % sWoP)
        a('s_mov_b32 s%d, 0' % sPub)
        a('s_mul_i32 s%d, s%d, 5120' % (sTab, sWv))
        a('s_add_u32 s%d, s%d, 0x%x' % (sTab, sTab, L_TAB))
        a('s_mov_b32 s%d, s%d' % (sCs, sSet))
        a('s_mul_i32 s%d, s%d, 48' % (sQu, sWv))
        a('s_add_u32 s%d, s%d, 0x%x' % (sQu, sQu, L_QKV))
        a('s_lshl_b32 s%d, s%d, 4' % (sQu + 1, sWv))
        a('s_add_u32 s%d, s%d, 0x%x' % (sQu + 1, sQu + 1, L_QKV + 192 - 48))
        a('s_lshl_b32 s%d, s%d, 6' % (sSt, sWv))
        a('s_add_u32 s%d, s%d, 0x%x' % (sSt, sSt, L_ST + 64 - 192))
        a('s_mov_b32 s%d, 0x%x' % (sSt + 1, L_ST - 192))
        a('s_and_b32 s%d, s%d, 1' % (sH, sTG))
        km = 0xffff & ~sum(1 << self.UNIT[i] for i in (0, 1, 2, 12))
        a('s_mov_b32 s%d, 0x%x' % (sKm, km | (km << 16)))
        a('s_mov_b32 s%d, 0x%x' % (sKm + 1, km | (km << 16)))
        if True:
            a('s_setprio %s' % '2')
        a('s_barrier')
        if self.debug:
            a('v_mov_b32 v%d, 0' % vTr)
        self.tr(1)

    def wload_addr(self, v1, v2, tmp):
        a = self.a
        i, q, oa, rr, t4, t5 = tmp, tmp + 1, tmp + 2, tmp + 3, tmp + 4, tmp + 5
        a('v_and_b32 v%d, 15, v%d' % (i, vLane))
        a('v_lshrrev_b32 v%d, 4, v%d' % (q, vLane))
        a('v_lshrrev_b32 v%d, 2, v%d' % (oa, i))
        a('v_and_b32 v%d, 3, v%d' % (rr, i))
        a('s_mul_i32 s%d, s%d, 3' % (sT, sWv))
        a('v_add_u32 v%d, s%d, v%d' % (t4, sT, oa))
        a('v_lshrrev_b32 v%d, 2, v%d' % (v1, t4))
        a('v_mul_u32_u24 v%d, 576, v%d' % (v1, v1))
        a('v_bfe_u32 v%d, v%d, 1, 1' % (t5, t4))
        a('v_mul_u32_u24 v%d, 18, v%d' % (t5, t5))
        a('v_add_u32 v%d, v%d, v%d' % (v1, v1, t5))
        a('v_and_b32 v%d, 1, v%d' % (t5, t4))
        a('v_lshl_add_u32 v%d, v%d, 3, v%d' % (v1, t5, v1))
        a('v_lshl_add_u32 v%d, v%d, 1, v%d' % (v1, rr, v1))
        a('s_mul_i32 s%d, s%d, 576' % (sT, sWv))
        a('s_add_u32 s%d, s%d, 16' % (sT, sT))
        a('v_mul_u32_u24 v%d, 18, v%d' % (t5, rr))
        a('v_add_u32 v%d, s%d, v%d' % (t5, sT, t5))
        a('v_cmp_eq_u32 vcc, 3, v%d' % oa)
        a('v_cndmask_b32 v%d, v%d, v%d, vcc' % (v1, v1, t5))
        a('s_mul_i32 s%d, s%d, 36' % (sT, sHG))
        a('v_add_u32 v%d, s%d, v%d' % (v1, sT, v1))
        a('v_lshlrev_b32 v%d, 1, v%d' % (v1, v1))
        a('s_cmp_eq_u32 s%d, 3' % sWv)
        a('s_cselect_b32 s%d, 12, 14' % sT)
        a('v_cmp_le_u32 vcc, s%d, v%d' % (sT, i))
        a('v_mov_b32 v%d, 0x%x' % (t5, OOB))
        a('v_cndmask_b32 v%d, v%d, v%d, vcc' % (v1, v1, t5))
        a('s_mov_b32 s%d, %d' % (sT, 72 * 3456))
        a('v_mul_lo_u32 v%d, v%d, s%d' % (t5, q, sT))
        a('v_add_u32 v%d, v%d, v%d' % (v2, v1, t5))
        a('v_mul_u32_u24 v%d, %d, v%d' % (t5, 8 * 3456, q))
        a('v_add_u32 v%d, v%d, v%d' % (v1, v1, t5))

    def wload_issue(self, ks_list, v1, v2):
        a = self.a
        if os.environ.get('NOW'):
            ks_list = list(ks_list)[:1]
        for ks in ks_list:
            for e in range(0, 8, 2):
                if ks < 16:
                    row, vo = 36 * ks + e, v1
                else:
                    row, vo = 288 * (ks - 16) + 36 * (e >> 2) + 32 + (e & 3), v2
                st = sT + (e >> 1) % 2
                a('s_mov_b32 s%d, %d' % (st, row * 3456))
                m = e >> 1
                a('buffer_load_dword v%d, v%d, %s, s%d offen' % (W(0, ks) + m, vo, srd(sWQ), st))
                a('buffer_load_dword v%d, v%d, %s, s%d offen offset:3456' % (W(1, ks) + m, vo, srd(sWQ), st))

    def wload_perm(self, ks_list, ones, tmp):
        a = self.a
        for ks in ks_list:
            for m in range(4):
                r0, r1 = W(0, ks) + m, W(1, ks) + m
                t = tmp + (m & 1)
                a('v_perm_b32 v%d, v%d, v%d, s%d' % (t, r1, r0, sSelLo))
                a('v_perm_b32 v%d, v%d, v%d, s%d' % (r1, r1, r0, sSelHi))
                a('v_or_b32 v%d, v%d, v%d' % (r0, ones, t))

    def pw_issue(self, v1, v2):
        a = self.a
        L1, L2 = a.uid('Lpi'), a.uid('Lpie')
        a('s_cmp_lg_u32 s%d, 0' % sH)
        a('s_cbranch_scc1 %s' % L1)
        self.wload_issue(range(0, 9), v1, v2)
        a('s_branch %s' % L2)
        a.label(L1)
        self.wload_issue(range(9, 18), v1, v2)
        a.label(L2)

    def pw_finish(self, v1, v2, tmp):
        a = self.a
        Ltop, L1, L2, Ldone, Lfb = a.uid('Lpt'), a.uid('Lp1'), a.uid('Lp2'), a.uid('Lpd'), a.uid('Lpfb')
        a('s_mov_b32 s%d, 0' % sPass)
        a.label(Ltop)
        self.ones_mask(tmp, tmp + 1)
        a('v_lshlrev_b32 v%d, 4, v%d' % (tmp + 4, vLane))
        a('s_lshl_b32 s%d, s2, 3' % (sT + 2))
        a('s_add_u32 s%d, s%d, s%d' % (sT + 2, sT + 2, sWave))
        a('s_mul_i32 s%d, s%d, 18432' % (sT + 3, sT + 2))
        a('s_add_u32 s%d, s%d, %d' % (sT + 3, sT + 3, WS_PIMG))
        a('s_waitcnt vmcnt(0)')
        a('s_cmp_lg_u32 s%d, 0' % sH)
        a('s_cbranch_scc1 %s' % L1)
        for h, lab in ((0, None), (1, L1)):
            if lab:
                a.label(lab)
            self.wload_perm(range(9 * h, 9 * h + 9), tmp, tmp + 2)
            a('s_cmp_lg_u32 s%d, 0' % sPass)
            a('s_cbranch_scc1 %s' % Ldone)
            for n in range(18):
                if n % 4 == 0 and n:
                    a('s_add_u32 s%d, s%d, 4096' % (sT + 3, sT + 3))
                a('buffer_store_dwordx4 %s, v%d, %s, s%d offen offset:%d' % (vr(vW + 72 * h + 4 * n), tmp + 4, srd(sWS), sT + 3, (n % 4) * 1024))
            if h == 0:
                a('s_branch %s' % L2)
        a.label(L2)
        a('s_lshl_b32 s%d, s%d, 4' % (sT + 3, sT + 2))
        a('s_add_u32 s%d, s%d, %d' % (sT + 3, sT + 3, WS_PFLG))
        a('v_mov_b32 v%d, s%d' % (tmp, sNon))
        a('v_mov_b32 v%d, s%d' % (tmp + 1, sNon + 1))
        a('v_mov_b32 v%d, s%d' % (tmp + 2, sXcc))
        a('v_mov_b32 v%d, s%d' % (tmp + 3, sNon))
        a('v_mov_b32 v%d, 0' % (tmp + 5))
        a('s_mov_b64 exec, 1')
        a('s_waitcnt vmcnt(0)')
        a('buffer_store_dwordx4 %s, v%d, %s, s%d offen' % (vr(tmp), tmp + 5, srd(sWS), sT + 3))
        a('s_mov_b64 exec, -1')
        a('s_xor_b32 s%d, s%d, 1024' % (sT + 2, sT + 2))
        a('s_lshl_b32 s%d, s%d, 4' % (sT + 3, sT + 2))
        a('s_add_u32 s%d, s%d, %d' % (sT + 3, sT + 3, WS_PFLG))
        a('s_mov_b32 s%d, %d' % (sT + 4, 1 if os.environ.get('FORCE_SLOW') else 200))
        Lp, Lg = a.uid('Lpp'), a.uid('Lpg')
        a.label(Lp)
        a('buffer_load_dwordx4 %s, v%d, %s, s%d offen sc1' % (vr(tmp), tmp + 5, srd(sWS), sT + 3))
        a('s_waitcnt vmcnt(0)')
        a('v_xor_b32 v%d, s%d, v%d' % (tmp, sNon, tmp))
        a('v_xor_b32 v%d, s%d, v%d' % (tmp + 1, sNon + 1, tmp + 1))
        a('v_xor_b32 v%d, s%d, v%d' % (tmp + 2, sXcc, tmp + 2))
        a('v_xor_b32 v%d, s%d, v%d' % (tmp + 3, sNon, tmp + 3))
        a('v_or3_b32 v%d, v%d, v%d, v%d' % (tmp, tmp, tmp + 1, tmp + 2))
        a('v_or_b32 v%d, v%d, v%d' % (tmp, tmp, tmp + 3))
        a('v_cmp_ne_u32 vcc, 0, v%d' % tmp)
        a('s_nop 1')
        a('s_cmp_eq_u64 vcc, 0')
        if not os.environ.get('FORCE_SLOW'):
            a('s_cbranch_scc1 %s' % Lg)
        a('s_sub_u32 s%d, s%d, 1' % (sT + 4, sT + 4))
        a('s_cmp_eq_u32 s%d, 0' % (sT + 4))
        a('s_cbranch_scc1 %s' % Lfb)
        a('s_sleep 1')
        a('s_branch %s' % Lp)
        a.label(Lfb)
        a('s_mov_b32 s%d, 1' % sPass)
        a('s_xor_b32 s%d, s%d, 1' % (sH, sH))
        self.pw_issue(v1, v2)
        a('s_branch %s' % Ltop)
        a.label(Lg)
        a('s_mul_i32 s%d, s%d, 18432' % (sT + 3, sT + 2))
        a('s_add_u32 s%d, s%d, %d' % (sT + 3, sT + 3, WS_PIMG))
        L3 = a.uid('Lp3')
        a('s_cmp_eq_u32 s%d, 0' % sH)
        a('s_cbranch_scc1 %s' % L3)
        for h, lab in ((0, None), (1, L3)):
            if lab:
                a.label(lab)
            for n in range(18):
                if n % 4 == 0 and n:
                    a('s_add_u32 s%d, s%d, 4096' % (sT + 3, sT + 3))
                a('buffer_load_dwordx4 %s, v%d, %s, s%d offen offset:%d sc1' % (vr(vW + 72 * h + 4 * n), tmp + 4, srd(sWS), sT + 3, (n % 4) * 1024))
            if h == 0:
                a('s_branch %s' % Ldone)
        a.label(Ldone)

    def ones_mask(self, dst, tmp):
        a = self.a
        a('v_and_b32 v%d, 15, v%d' % (tmp, vLane))
        a('v_cmp_eq_u32 vcc, 14, v%d' % tmp)
        a('v_mov_b32 v%d, 0x3f803f80' % tmp)
        a('v_cndmask_b32 v%d, 0, v%d, vcc' % (dst, tmp))

    def colsum(self, tmp, progressive=False):
        a = self.a
        for i in range(4):
            a('v_mov_b32 v%d, 0x3f803f80' % (tmp + i))
        for ks in range(18):
            if progressive:
                a('s_waitcnt vmcnt(%d)' % (34 - 2 * ks))
            for t in range(2):
                a(mfma(vCS + 4 * t, W(t, ks), tmp, ks == 0))

    def coop_issue(self, v1, v2):
        a = self.a
        a('s_mul_i32 s%d, s%d, %d' % (sT + 2, sTG, 36 * 3456))
        a('s_and_b32 s%d, s%d, 1' % (sT + 3, sTG))
        a('s_mul_i32 s%d, s%d, %d' % (sT + 3, sT + 3, 288 * 3456))
        for u in range(2):
            for e in range(0, 8, 2):
                row = e if u == 0 else 36 * (e >> 2) + 32 + (e & 3)
                st = sT + (e >> 1) % 2
                a('s_add_u32 s%d, s%d, %d' % (st, sT + 2 + u, row * 3456))
                m = e >> 1
                vo = v1 if u == 0 else v2
                a('buffer_load_dword v%d, v%d, %s, s%d offen' % (W(0, u) + m, vo, srd(sWQ), st))
                a('buffer_load_dword v%d, v%d, %s, s%d offen offset:3456' % (W(1, u) + m, vo, srd(sWQ), st))

    def coop_id(self, dst):
        a = self.a
        a('s_lshl_b32 s%d, s%d, 4' % (dst, sSet))
        a('s_add_u32 s%d, s%d, s%d' % (dst, dst, sHG))
        a('s_lshl_b32 s%d, s%d, 2' % (dst, dst))
        a('s_add_u32 s%d, s%d, s%d' % (dst, dst, sWv))

    def coop_store(self, tmp):
        a = self.a
        self.ones_mask(tmp, tmp + 1)
        self.wload_perm(range(2), tmp, tmp + 2)
        self.coop_id(sT + 2)
        a('s_mul_i32 s%d, s%d, %d' % (sT + 2, sT + 2, 36864))
        a('s_add_u32 s%d, s%d, %d' % (sT + 2, sT + 2, WS_CIMG))
        a('s_lshl_b32 s%d, s%d, 11' % (sT + 3, sTG))
        a('s_add_u32 s%d, s%d, s%d' % (sT + 3, sT + 3, sT + 2))
        a('v_lshlrev_b32 v%d, 4, v%d' % (tmp + 4, vLane))
        a('buffer_store_dwordx4 %s, v%d, %s, s%d offen sc1' % (vr(W(0, 0)), tmp + 4, srd(sWS), sT + 3))
        a('buffer_store_dwordx4 %s, v%d, %s, s%d offen offset:1024 sc1' % (vr(W(1, 0)), tmp + 4, srd(sWS), sT + 3))
        L = a.uid('Lcs')
        a('s_cmp_ge_u32 s%d, 2' % sTG)
        a('s_cbranch_scc1 %s' % L)
        a('s_add_u32 s%d, s%d, %d' % (sT + 3, sT + 3, 16 * 2048))
        a('buffer_store_dwordx4 %s, v%d, %s, s%d offen sc1' % (vr(W(0, 1)), tmp + 4, srd(sWS), sT + 3))
        a('buffer_store_dwordx4 %s, v%d, %s, s%d offen offset:1024 sc1' % (vr(W(1, 1)), tmp + 4, srd(sWS), sT + 3))
        a.label(L)

    def coop_flag(self, tmp):
        a = self.a
        self.coop_id(sT + 2)
        a('s_lshl_b32 s%d, s%d, 4' % (sT + 2, sT + 2))
        a('s_add_u32 s%d, s%d, s%d' % (sT + 2, sT + 2, sTG))
        a('s_lshl_b32 s%d, s%d, 3' % (sT + 2, sT + 2))
        a('s_add_u32 s%d, s%d, %d' % (sT + 2, sT + 2, WS_CFLG))
        self.store_nonce_flag(sT + 2, tmp)

    def coop_load(self, tmp):
        a = self.a
        self.coop_id(sT + 2)
        a('s_lshl_b32 s%d, s%d, 7' % (sT + 3, sT + 2))
        a('s_add_u32 s%d, s%d, %d' % (sT + 3, sT + 3, WS_CFLG))
        a('v_and_b32 v%d, 15, v%d' % (tmp + 2, vLane))
        a('v_lshlrev_b32 v%d, 3, v%d' % (tmp + 2, tmp + 2))
        self.poll_nonce_flags(sT + 3, tmp + 2, tmp, 15)
        a('s_mul_i32 s%d, s%d, %d' % (sT + 2, sT + 2, 36864))
        a('s_add_u32 s%d, s%d, %d' % (sT + 2, sT + 2, WS_CIMG))
        a('v_lshlrev_b32 v%d, 4, v%d' % (tmp + 2, vLane))
        for n in range(36):
            if n % 4 == 0 and n:
                a('s_add_u32 s%d, s%d, 4096' % (sT + 2, sT + 2))
            a('buffer_load_dwordx4 %s, v%d, %s, s%d offen offset:%d sc1' % (vr(vW + 4 * n), tmp + 2, srd(sWS), sT + 2, (n % 4) * 1024))

    def coop_load_prog(self, tmp):
        a = self.a
        self.coop_id(sT + 2)
        a('s_lshl_b32 s%d, s%d, 7' % (sT + 3, sT + 2))
        a('s_add_u32 s%d, s%d, %d' % (sT + 3, sT + 3, WS_CFLG))
        a('v_and_b32 v%d, 15, v%d' % (tmp + 2, vLane))
        a('v_lshlrev_b32 v%d, 3, v%d' % (tmp + 2, tmp + 2))
        a('s_mul_i32 s%d, s%d, %d' % (sT + 2, sT + 2, 36864))
        a('s_add_u32 s%d, s%d, %d' % (sT + 2, sT + 2, WS_CIMG))
        a('v_lshlrev_b32 v%d, 4, v%d' % (tmp + 3, vLane))
        a('s_mov_b32 s%d, 0xffff' % (sT + 4))
        L, Ld = a.uid('Lcp'), a.uid('Lcpd')
        a.label(L)
        a('buffer_load_dwordx2 %s, v%d, %s, s%d offen sc1' % (vr(tmp, 2), tmp + 2, srd(sWS), sT + 3))
        a('s_waitcnt vmcnt(0)')
        a('v_xor_b32 v%d, s%d, v%d' % (tmp, sNon, tmp))
        a('v_xor_b32 v%d, s%d, v%d' % (tmp + 1, sNon + 1, tmp + 1))
        a('v_or_b32 v%d, v%d, v%d' % (tmp, tmp, tmp + 1))
        a('v_cmp_eq_u32 vcc, 0, v%d' % tmp)
        a('s_nop 1')
        a('s_and_b32 s%d, vcc_lo, s%d' % (sT + 5, sT + 4))
        a('s_andn2_b32 s%d, s%d, s%d' % (sT + 4, sT + 4, sT + 5))
        for ks in range(16):
            Ls = a.uid('Lcs')
            a('s_bitcmp1_b32 s%d, %d' % (sT + 5, ks))
            a.softbranch('s_cbranch_scc0 %s' % Ls)
            for k2 in ([ks] if ks >= 2 else [ks, 16 + ks]):
                a('s_add_u32 s%d, s%d, %d' % (sT + 6, sT + 2, k2 * 2048))
                a('buffer_load_dwordx4 %s, v%d, %s, s%d offen sc1' % (vr(W(0, k2)), tmp + 3, srd(sWS), sT + 6))
                a('buffer_load_dwordx4 %s, v%d, %s, s%d offen offset:1024 sc1' % (vr(W(1, k2)), tmp + 3, srd(sWS), sT + 6))
            a.label(Ls, noflush=True)
        a('s_cmp_eq_u32 s%d, 0' % (sT + 4))
        a('s_cbranch_scc1 %s' % Ld)
        self.budget_check(15)
        a('s_branch %s' % L)
        a.label(Ld)

    def wou_issue(self, D, tmp):
        a = self.a
        i, q, t2, t3, vo, SEL = tmp, tmp + 1, tmp + 2, tmp + 3, tmp + 4, tmp + 5
        a('v_and_b32 v%d, 15, v%d' % (i, vLane))
        a('v_lshrrev_b32 v%d, 4, v%d' % (q, vLane))
        a('v_lshrrev_b32 v%d, 1, v%d' % (t2, q))
        a('v_mul_u32_u24 v%d, 18, v%d' % (t2, t2))
        a('v_and_b32 v%d, 1, v%d' % (t3, q))
        a('v_lshl_add_u32 v%d, v%d, 3, v%d' % (t2, t3, t2))
        a('v_mul_u32_u24 v%d, 72, v%d' % (t3, q))
        a('s_cmp_ge_u32 s%d, 2' % sWv)
        a('s_cselect_b64 vcc, -1, 0')
        a('v_cndmask_b32 v%d, v%d, v%d, vcc' % (t2, t2, t3))
        a('v_mul_u32_u24 v%d, 1152, v%d' % (vo, t2))
        a('v_lshlrev_b32 v%d, 2, v%d' % (t2, i))
        a('v_and_b32 v%d, 2, v%d' % (t3, i))
        a('v_lshlrev_b32 v%d, 1, v%d' % (t3, t3))
        a('v_add_u32 v%d, 64, v%d' % (t3, t3))
        a('s_and_b32 s%d, s%d, 1' % (sT, sWv))
        a('s_cmp_eq_u32 s%d, 1' % sT)
        a('s_cselect_b64 vcc, -1, 0')
        a('v_cndmask_b32 v%d, v%d, v%d, vcc' % (t2, t2, t3))
        a('s_mul_i32 s%d, s%d, 72' % (sT, sHG))
        a('v_add3_u32 v%d, v%d, v%d, s%d' % (vo, vo, t2, sT))
        a('v_and_b32 v%d, 1, v%d' % (t2, i))
        a('v_cmp_eq_u32 vcc, 1, v%d' % t2)
        a('v_mov_b32 v%d, s%d' % (t2, sSelLo))
        a('v_mov_b32 v%d, s%d' % (t3, sSelHi))
        a('v_cndmask_b32 v%d, v%d, v%d, vcc' % (SEL, t2, t3))
        a('s_mul_i32 s%d, s%d, %d' % (sT + 2, sTG, 36 * 1152))
        a('s_and_b32 s%d, s%d, 1' % (sT + 3, sTG))
        a('s_mul_i32 s%d, s%d, %d' % (sT + 3, sT + 3, 288 * 1152))
        a('s_cmp_ge_u32 s%d, 2' % sWv)
        for e in range(0, 8, 2):
            r0 = e * 1152
            r1 = (36 * (e >> 2) + 18 * ((e >> 1) & 1) + 16) * 1152
            a('s_cselect_b32 s%d, s%d, s%d' % (sT, sT + 3, sT + 2))
            a('s_cselect_b32 s%d, %d, %d' % (sT + 1, r1, r0)) if False else None
            a('s_mov_b32 s%d, %d' % (sT + 4, r0))
            a('s_mov_b32 s%d, %d' % (sT + 5, r1))
            a('s_cselect_b32 s%d, s%d, s%d' % (sT + 1, sT + 5, sT + 4))
            a('s_lshl_b32 s%d, s%d, 0' % (sT + 6, sT)) if False else None
            m = e >> 1
            a('s_add_u32 s%d, s%d, s%d' % (sT + 6 + (m & 1), sT, sT + 1))
            a('buffer_load_dword v%d, v%d, %s, s%d offen' % (D + m, vo, srd(sWO), sT + 6 + (m & 1)))
            a('buffer_load_dword v%d, v%d, %s, s%d offen offset:1152' % (D + 4 + m, vo, srd(sWO), sT + 6 + (m & 1)))
            a('s_cmp_ge_u32 s%d, 2' % sWv)

    def wou_ids(self):
        a = self.a
        a('s_lshl_b32 s%d, s%d, 4' % (sT + 2, sSet))
        a('s_add_u32 s%d, s%d, s%d' % (sT + 2, sT + 2, sHG))
        a('s_and_b32 s%d, s%d, 1' % (sT + 3, sTG))
        a('s_add_u32 s%d, s%d, 16' % (sT + 3, sT + 3))
        a('s_cmp_ge_u32 s%d, 2' % sWv)
        a('s_cselect_b32 s%d, s%d, s%d' % (sT + 3, sT + 3, sTG))

    def wou_store(self, D, tmp):
        a = self.a
        SEL = tmp + 5
        Lskip, Lk1 = a.uid('Lwus'), a.uid('Lwuk')
        a('s_lshr_b32 s%d, s%d, 1' % (sT, sWv))
        a('s_lshr_b32 s%d, s%d, 1' % (sT + 1, sTG))
        a('s_min_u32 s%d, s%d, s%d' % (sT, sT, sT + 1))
        a('s_cmp_lg_u32 s%d, 0' % sT)
        a('s_cbranch_scc1 %s' % Lskip)
        self.wou_ids()
        a('s_mul_i32 s%d, s%d, %d' % (sT + 2, sT + 2, WIS))
        a('s_mul_i32 s%d, s%d, 2304' % (sT + 3, sT + 3))
        a('s_add_u32 s%d, s%d, s%d' % (sT + 2, sT + 2, sT + 3))
        a('s_add_u32 s%d, s%d, %d' % (sT + 2, sT + 2, WS_WIMG))
        a('s_and_b32 s%d, s%d, 1' % (sT, sWv))
        a('s_cmp_eq_u32 s%d, 1' % sT)
        a('s_cbranch_scc1 %s' % Lk1)
        for m in range(4):
            r0, r1 = D + m, D + 4 + m
            t = tmp + (m & 1)
            a('v_perm_b32 v%d, v%d, v%d, s%d' % (t, r1, r0, sSelLo))
            a('v_perm_b32 v%d, v%d, v%d, s%d' % (r1, r1, r0, sSelHi))
            a('v_mov_b32 v%d, v%d' % (r0, t))
        a('v_lshlrev_b32 v%d, 4, v%d' % (tmp, vLane))
        a('buffer_store_dwordx4 %s, v%d, %s, s%d offen sc1' % (vr(D), tmp, srd(sWS), sT + 2))
        a('buffer_store_dwordx4 %s, v%d, %s, s%d offen offset:1024 sc1' % (vr(D + 4), tmp, srd(sWS), sT + 2))
        a('s_branch %s' % Lskip)
        a.label(Lk1)
        for m in range(4):
            a('v_perm_b32 v%d, v%d, v%d, v%d' % (D + m, D + 4 + m, D + m, SEL))
        a('v_and_b32 v%d, 15, v%d' % (tmp, vLane))
        a('v_cmp_gt_u32 vcc, 4, v%d' % tmp)
        a('v_lshlrev_b32 v%d, 4, v%d' % (tmp, tmp))
        a('v_lshrrev_b32 v%d, 4, v%d' % (tmp + 1, vLane))
        a('v_lshl_add_u32 v%d, v%d, 6, v%d' % (tmp, tmp + 1, tmp))
        a('s_mov_b64 exec, vcc')
        a('buffer_store_dwordx4 %s, v%d, %s, s%d offen offset:2048 sc1' % (vr(D), tmp, srd(sWS), sT + 2))
        a('s_mov_b64 exec, -1')
        a.label(Lskip)

    def wou_flag(self, tmp):
        a = self.a
        Lskip = a.uid('Lwuf')
        a('s_lshr_b32 s%d, s%d, 1' % (sT, sWv))
        a('s_lshr_b32 s%d, s%d, 1' % (sT + 1, sTG))
        a('s_min_u32 s%d, s%d, s%d' % (sT, sT, sT + 1))
        a('s_cmp_lg_u32 s%d, 0' % sT)
        a('s_cbranch_scc1 %s' % Lskip)
        self.wou_ids()
        a('s_lshl_b32 s%d, s%d, 9' % (sT + 2, sT + 2))
        a('s_and_b32 s%d, s%d, 1' % (sT, sWv))
        a('s_mul_i32 s%d, s%d, 18' % (sT, sT))
        a('s_add_u32 s%d, s%d, s%d' % (sT + 3, sT + 3, sT))
        a('s_lshl_b32 s%d, s%d, 3' % (sT + 3, sT + 3))
        a('s_add_u32 s%d, s%d, s%d' % (sT + 2, sT + 2, sT + 3))
        a('s_add_u32 s%d, s%d, %d' % (sT + 2, sT + 2, WS_WFLG))
        self.store_nonce_flag(sT + 2, tmp)
        a.label(Lskip)

    def wo_stage(self, async_=False):
        a = self.a
        TMP = 88
        Lok = a.uid('Lwook')
        a('s_lshl_b32 s%d, s%d, 4' % (sT + 2, sSet))
        a('s_add_u32 s%d, s%d, s%d' % (sT + 2, sT + 2, sHG))
        a('s_cmp_lg_u32 s%d, 0' % sWoOk)
        a('s_cbranch_scc1 %s' % Lok)
        a('s_lshl_b32 s%d, s%d, 9' % (sT + 3, sT + 2))
        a('s_add_u32 s%d, s%d, %d' % (sT + 3, sT + 3, WS_WFLG))
        a('v_min_u32 v%d, 35, v%d' % (TMP + 2, vLane))
        a('v_lshlrev_b32 v%d, 3, v%d' % (TMP + 2, TMP + 2))
        self.poll_nonce_flags(sT + 3, TMP + 2, TMP, 16)
        a('s_mov_b32 s%d, 1' % sWoOk)
        a.label(Lok)
        a('s_mul_i32 s%d, s%d, %d' % (sT + 2, sT + 2, WIS))
        a('s_mul_i32 s%d, s%d, 10240' % (sT + 3, sWv))
        a('s_add_u32 s%d, s%d, s%d' % (sT + 2, sT + 2, sT + 3))
        a('s_add_u32 s%d, s%d, %d' % (sBase, sT + 2, WS_WIMG))
        a('s_add_u32 s%d, s%d, %d' % (sBase2, sT + 3, L_WO))
        a('v_lshlrev_b32 v%d, 4, v%d' % (TMP + 4, vLane))
        self.wait_flag(F_WF, sLayer, TMP, 9)
        self.wait_flag(F_WG, sLayer, TMP, 14)
        for n in range(11):
            if n % 4 == 0:
                a('s_add_u32 s%d, s%d, %d' % (sT, sBase, n * 1024))
                a('s_add_u32 s%d, s%d, %d' % (sT + 1, sBase2, n * 1024))
                a('s_mov_b32 m0, s%d' % (sT + 1))
            if n == 10:
                a('s_mov_b32 exec_hi, 0')
            a('buffer_load_dwordx4 v%d, %s, s%d offen offset:%d sc1 lds' % (TMP + 4, srd(sWS), sT, (n % 4) * 1024))
        a('s_mov_b64 exec, -1')
        if not async_:
            a('s_waitcnt vmcnt(0)')
            self.set_flag(F_WR, sLayer, TMP, add=1)
        self.tr(30)

    ORDER = [3, 1, 2, 0]
    UNIT = [0, 1, 8, 9, 3, 4, 11, 12, 2, 6, 10, 14, 5, 7, 13, 15]

    def kv_base(self, dst, layer_sreg_or_const, tg_add):
        a = self.a
        if isinstance(layer_sreg_or_const, str):
            a('s_lshl_b32 s%d, %s, 5' % (dst, layer_sreg_or_const))
        else:
            a('s_mov_b32 s%d, %d' % (dst, layer_sreg_or_const * 32))
        a('s_lshl_b32 s%d, s%d, 1' % (sT + 1, sTG))
        a('s_add_u32 s%d, s%d, s%d' % (dst, dst, sT + 1))
        a('s_add_u32 s%d, s%d, s%d' % (dst, dst, sP))
        a('s_lshl_b32 s%d, s%d, 4' % (dst, dst))
        a('s_add_u32 s%d, s%d, s%d' % (dst, dst, sHG))
        a('s_mul_i32 s%d, s%d, %d' % (dst, dst, KVT))
        a('s_add_u32 s%d, s%d, %d' % (dst, dst, WS_KV + tg_add * 32 * KVT))

    def kv_prefill(self, tmp):
        a = self.a
        a('v_lshlrev_b32 v%d, 4, v%d' % (tmp, vLane))
        a('s_mul_i32 s%d, s%d, 576' % (sT, sWv))
        a('v_add_u32 v%d, s%d, v%d' % (tmp, sT, tmp))
        for i in range(4):
            a('v_mov_b32 v%d, -1' % (tmp + 2 + i))
        a('s_mov_b32 s%d, 0' % sP)
        self.kv_base(sT + 2, 's%d' % sSet, 0)
        a('s_mov_b32 exec_lo, -1')
        a('s_mov_b32 exec_hi, 15')
        for l2 in range(2):
            for p_ in range(2):
                a('s_add_u32 s%d, s%d, %d' % (sT + 3, sT + 2, (l2 * 64 + p_) * 16 * KVT))
                a('buffer_store_dwordx4 %s, v%d, %s, s%d offen sc1' % (vr(tmp + 2), tmp, srd(sWS), sT + 3))
        a('s_mov_b64 exec, -1')

    def m_prep(self):
        a = self.a
        XA, TMP = 95, 40
        a('s_lshl_b32 s%d, s%d, 1' % (sN, sLayer))
        a('s_add_u32 s%d, s%d, s%d' % (sN, sN, sP))
        a('s_lshl_b32 s%d, s%d, 2' % (sG, sN))
        a('v_lshrrev_b32 v%d, 4, v%d' % (TMP, vLane))
        a('v_and_b32 v%d, 15, v%d' % (TMP + 1, vLane))
        self.swz(XA, TMP, TMP + 1, TMP + 2)
        a('v_add_u32 v%d, %d, v%d' % (XA + 1, 2 * MT, XA))
        a('v_lshlrev_b32 v%d, 3, v%d' % (TMP + 1, TMP + 1))
        a('v_lshl_add_u32 v%d, v%d, 8, v%d' % (XA + 2, TMP, TMP + 1))
        a('v_add_u32 v%d, 16384, v%d' % (XA + 2, XA + 2))

    def pub_pending(self, tmp, soft=False):
        a = self.a
        Ln = a.uid('Lnopub')
        a('s_cmp_eq_u32 s%d, 0' % sPub)
        if soft:
            a.softbranch('s_cbranch_scc1 %s' % Ln)
        else:
            a('s_cbranch_scc1 %s' % Ln)
        a('s_mov_b32 s%d, 0' % sPub)
        a('s_mov_b32 s%d, 0' % sP)
        self.both_modes(lambda sc: self.publish_event(0, tmp, sc))
        a('s_mov_b32 s%d, 1' % sP)
        a.label(Ln, noflush=soft)

    def m_role(self):
        a = self.a
        a.label('L_M_ROLE')
        a('s_mov_b32 s%d, 0' % sP)
        a.label('L_M_TASK')
        self.m_prep()
        a.label('L_M_GO')
        Lown = a.uid('Lown')
        a('s_cmp_eq_u32 s%d, 0' % sOwn)
        a('s_cbranch_scc1 %s' % Lown)
        a('s_waitcnt vmcnt(15)')
        self.set_flag(F_XR, sG, 40, add=1)
        a.label(Lown)
        self.kv_base(sBase, 's%d' % sLayer, 0)
        a('s_sub_u32 s%d, s%d, %d' % (sBase2, sBase, 32 * KVT))
        a('s_add_u32 s%d, s%d, 1' % (sT + 7, sG))
        Lrdy = a.uid('Lrdy')
        a('ds_read_b128 %s, v%d offset:%d' % (vr(40), vFlag, F_XR))
        a('s_waitcnt lgkmcnt(0)')
        self.flag_min(40)
        a('s_nop 1')
        a('s_cmp_ge_u32 s%d, s%d' % (sT + 8, sT + 7))
        a('s_cbranch_scc1 %s' % Lrdy)
        self.pub_pending(44)
        self.wait_flag(F_XR, sT + 7, 40, 1)
        a.label(Lrdy)
        if True:
            a('s_setprio %s' % os.environ.get('APRIO', '0'))
        self.tr(11)
        for w in range(1, 4):
            a('s_cmp_eq_u32 s%d, %d' % (sWv, w))
            a('s_cbranch_scc1 L_A_W%d' % w)
        for w in range(4):
            a.label('L_A_W%d' % w)
            self.a_phase(w)
            if w < 3:
                a('s_branch L_M_EPI')
        a.label('L_M_EPI')
        if True:
            a('s_setprio %s' % '2')
        self.tr(12)
        self.attention()
        self.tr(15)
        a('s_add_u32 s%d, s%d, 1' % (sP, sP))
        a('s_cmp_lt_u32 s%d, 2' % sP)
        a('s_cbranch_scc1 L_M_TASK')
        a('s_mov_b32 s%d, 1' % sP)
        a('s_branch L_BPHASE')

    def a_phase(self, w):
        a = self.a
        ORDER = self.ORDER
        ACC = lambda s, t: (s * 2 + t) * 4
        G0, FL = 32, 36
        NB = 8
        RB = lambda i: 40 + 4 * (i % NB)
        QB, BPA, T3 = 72, 73, 74
        KD, KA = 76, 88
        XA = 95
        XT = 98
        LT = 99
        lds = []

        def L(tag, text):
            a(text)
            lds.append(tag)

        def wait_for(tag):
            idx = max(i for i, t in enumerate(lds) if t == tag)
            a('s_waitcnt lgkmcnt(%d)' % min(len(lds) - 1 - idx, 15))
        I = lambda text: (lambda: a(text))
        NOP = lambda: None
        seq = [(u, ks) for u in range(4) for ks in range(18)]

        def rd(i):
            u, ks = seq[i]
            mt = ORDER[u]
            if ks < 16:
                L(('r', i), 'ds_read_b128 %s, v%d offset:%d' % (vr(RB(i)), XA + (mt >> 1), (mt & 1) * MT + ks * 1024))
            else:
                o = 128 * (ks - 16)
                L(('r', i), 'ds_read2_b64 %s, v%d offset0:%d offset1:%d' % (vr(RB(i)), XT, o, o + 16))
        PF = NB - 1
        chains = []

        def put(step, fns, deadline=10 ** 9):
            chains.append([step, deadline, list(fns)])

        def chk(off, tgt_fn, tag, code):
            def fin():
                Lok = a.uid('Lck')
                a('s_cmp_ge_u32 s%d, s%d' % (sT + 8, sT + 7))
                a.softbranch('s_cbranch_scc1 %s' % Lok)
                self.wait_flag(off, sT + 7, FL, code)
                a.label(Lok, noflush=True)
            return [lambda: L(tag, 'ds_read_b128 %s, v%d offset:%d' % (vr(FL), vFlag, off)),
                    NOP, NOP, NOP, tgt_fn,
                    lambda: (wait_for(tag), a('v_min3_u32 v%d, v%d, v%d, v%d' % (FL, FL, FL + 1, FL + 2))),
                    I('v_min_u32 v%d, v%d, v%d' % (FL, FL, FL + 3)),
                    NOP,
                    I('v_readfirstlane_b32 s%d, v%d' % (sT + 8, FL)),
                    NOP, fin]

        def setf_items(off, val, add, own_vm=None):
            def fin():
                if own_vm is None:
                    L('f', 'ds_write_b32 v%d, v%d offset:%d' % (vFlag, LT, off + 4 * w))
                else:
                    Lo = a.uid('Lop')
                    a('s_cmp_eq_u32 s%d, 0' % sOwn)
                    a.softbranch('s_cbranch_scc1 %s' % Lo)
                    a('s_waitcnt vmcnt(%d)' % own_vm)
                    a('ds_write_b32 v%d, v%d offset:%d' % (vFlag, LT, off + 4 * w))
                    a.label(Lo, noflush=True)
            return [I('s_add_u32 s%d, s%d, %d' % (sT + 6, val, add)),
                    I('v_mov_b32 v%d, s%d' % (LT, sT + 6)), fin]

        def epi_items(s):
            mt = ORDER[s]
            nm = T3
            it = [lambda: L(('m', s), 'ds_bpermute_b32 v%d, v%d, v%d' % (nm, BPA, ACC(s, 0) + 2))]
            if s < 3:
                it += [NOP] * int(os.environ.get('BPSP', 4))
            G = G0
            if s == w:
                it += [I('v_add_u32 v%d, 0x%x, v%d' % (G + 2, L_ST + 64 * (mt + 1) - 192, BPA))]
            it.append(lambda: (wait_for(('m', s)), a('v_mul_f32 v%d, 0xbae38e39, v%d' % (nm, nm))))
            for t in range(2):
                for r in range(4):
                    it.append(I('v_fma_f32 v%d, v%d, v%d, v%d' % (ACC(s, t) + r, nm, vCS + 4 * t + r, ACC(s, t) + r)))
            for r in range(4):
                it.append(I('v_cvt_pk_bf16_f32 v%d, v%d, v%d' % (ACC(s, 0) + r, ACC(s, 0) + r, ACC(s, 1) + r)))
            if s == 0 and w > 0:
                def kvst():
                    a('s_mov_b32 exec_lo, 0xff00ff00')
                    a('s_mov_b32 exec_hi, 0xff00ff00')
                    a('buffer_store_dwordx4 %s, v%d, %s, s%d offen sc1' % (vr(ACC(0, 0)), KA, srd(sWS), sBase))
                    a('s_mov_b64 exec, -1')
                it.append(kvst)
            it.append(lambda: L('w', 'ds_write_b128 v%d, %s offset:%d' % (QB, vr(ACC(s, 0)), 16 * (mt + 1) * QP)))
            if s == w:
                def wr():
                    a('s_mov_b64 exec, 0xffff')
                    L('w', 'ds_write_b32 v%d, v%d' % (G + 2, G))
                    if w == 0:
                        a('s_mov_b64 exec, 0xff00')
                        a('buffer_store_dword v%d, v%d, %s, s%d offen offset:%d sc1' % (G, BPA, srd(sWS), sBase, 2048 - 192 - 32))
                    a('s_mov_b64 exec, -1')
                it += [I('v_fma_f32 v%d, -v%d, v%d, v%d' % (G, nm, nm, G)),
                       I('v_max_f32 v%d, 0, v%d' % (G, G)),
                       I('v_add_f32 v%d, 0x3727c5ac, v%d' % (G, G)),
                       I('v_rsq_f32 v%d, v%d' % (G, G)),
                       wr]
            return it
        pre = [I('v_and_b32 v%d, 15, v%d' % (T3, vLane)),
               I('v_add_u32 v%d, 48, v%d' % (BPA, T3)),
               I('v_lshlrev_b32 v%d, 2, v%d' % (BPA, BPA)),
               I('v_lshrrev_b32 v%d, 4, v%d' % (T3 + 1, vLane)),
               I('v_lshlrev_b32 v%d, 3, v%d' % (T3 + 1, T3 + 1)),
               I('s_mov_b32 s%d, 0x%x' % (sT + 5, sum((16 * self.UNIT[(3 * w + a_) if a_ < 3 else 12 + w]) << (8 * a_) for a_ in range(4)))),
               I('v_bfe_u32 v%d, s%d, v%d, 8' % (QB, sT + 5, T3 + 1))]
        if w > 0:
            pre += [I('v_and_b32 v%d, 7, v%d' % (KA, vLane)),
                    I('v_lshl_add_u32 v%d, v%d, 8, v%d' % (KA, KA, QB))]
        pre += [I('v_mul_u32_u24 v%d, %d, v%d' % (T3, QP, T3)),
                I('v_add_u32 v%d, 0x%x, v%d' % (T3, L_QKV, T3)),
                I('v_add_u32 v%d, v%d, v%d' % (QB, QB, T3))]
        put(0, pre, 10)
        put(int(os.environ.get('PUBSTEP', 5)), [lambda: self.pub_pending(92, soft=True)], int(os.environ.get('PUBSTEP', 5)))
        G = G0
        put(18 * w + 6, [I('v_lshrrev_b32 v%d, 4, v%d' % (G, vLane)),
                         I('v_lshl_add_u32 v%d, v%d, 8, v%d' % (G, G, BPA)),
                         I('v_add_u32 v%d, 0x%x, v%d' % (G, ORDER[w] * MT + 18432 - 192, G)),
                         lambda: L('s2', 'ds_read2_b32 %s, v%d offset0:32 offset1:48' % (vr(G + 2, 2), G)),
                         lambda: L('s1', 'ds_read2_b32 %s, v%d offset0:0 offset1:16' % (vr(G, 2), G)),
                         NOP, NOP, NOP,
                         lambda: (wait_for('s1'), a('v_add_f32 v%d, v%d, v%d' % (G, G, G + 1))),
                         I('v_add_f32 v%d, v%d, v%d' % (G + 2, G + 2, G + 3)),
                         I('v_add_f32 v%d, v%d, v%d' % (G, G, G + 2)),
                         I('v_mov_b32 v%d, v%d' % (G + 1, G)),
                         I('v_permlane32_swap_b32 v%d, v%d' % (G, G + 1)),
                         I('v_add_f32 v%d, v%d, v%d' % (G, G, G + 1)),
                         I('v_mov_b32 v%d, v%d' % (G + 1, G)),
                         I('v_permlane16_swap_b32 v%d, v%d' % (G, G + 1)),
                         I('v_add_f32 v%d, v%d, v%d' % (G, G, G + 1)),
                         I('v_mul_f32 v%d, 0x3ae38e39, v%d' % (G, G))], 18 * w + 17)
        for k in range(1, 4):
            st = 18 * k - PF - 1
            put(6 * k - 5, setf_items(F_XR, sG, k + 1, own_vm=15 - 5 * k), 6 * k - 2)
            put(st - 7 if k > 1 else 5,
                chk(F_XR, I('s_add_u32 s%d, s%d, %d' % (sT + 7, sG, k + 1)), ('xr', k), 2), st)
        put(11, chk(F_QF, I('s_mov_b32 s%d, s%d' % (sT + 7, sN)), 'qf', 3), 17)
        for s_ in range(3):
            put(18 * (s_ + 1) + 3, epi_items(s_), (27 if s_ == 0 else 56) if s_ < 2 else 71)
        if w == 0:
            def kvld():
                a('buffer_load_dwordx4 %s, v%d, %s, s%d offen sc1' % (vr(KD), KA, srd(sWS), sBase2))
                a('buffer_load_dwordx4 %s, v%d, %s, s%d offen offset:1024 sc1' % (vr(KD + 4), KA, srd(sWS), sBase2))
                a('buffer_load_dword v%d, v%d, %s, s%d offen offset:2048 sc1' % (KD + 8, KA + 1, srd(sWS), sBase2))

            def kvaddr2():
                a('s_cmp_eq_u32 s%d, 0' % sTG)
                a('s_cselect_b64 vcc, -1, 0')
                a('v_cndmask_b32 v%d, v%d, v%d, vcc' % (KA, KA, KA + 2))
                a('v_cndmask_b32 v%d, v%d, v%d, vcc' % (KA + 1, KA + 1, KA + 2))

            def kvchk():
                Lrt, Lok, Lnf = a.uid('Lkrt'), a.uid('Lkok'), a.uid('Lknf')
                a('s_cmp_lg_u32 s%d, 0' % sN)
                a.softbranch('s_cbranch_scc1 %s' % Lnf)
                self.init_check(40)
                a('s_branch %s' % Lrt)
                a.label(Lnf, noflush=True)
                a('s_and_b64 vcc, vcc, s[%d:%d]' % (sKm, sKm + 1))
                a.softbranch('s_cbranch_scc0 %s' % Lok)
                a.label(Lrt)
                self.budget_check(5)
                kvld()
                a('s_waitcnt vmcnt(0)')
                self.sentinel_vcc(range(KD, KD + 9), FL)
                a('s_nop 1')
                a('s_and_b64 vcc, vcc, s[%d:%d]' % (sKm, sKm + 1))
                a('s_cbranch_scc1 %s' % Lrt)
                a.label(Lok, noflush=True)
            kv = [I('v_lshlrev_b32 v%d, 4, v%d' % (KA, vLane)),
                  I('v_and_b32 v%d, 7, v%d' % (KA + 1, vLane)),
                  I('v_lshlrev_b32 v%d, 2, v%d' % (KA + 1, KA + 1)),
                  I('v_add_u32 v%d, 0x%x, v%d' % (KA + 3, L_ST + 32, KA + 1)),
                  I('v_mov_b32 v%d, 0x%x' % (KA + 2, OOB)),
                  kvaddr2]
            put(30, kv, 46)
            put(60, [kvld], 60)
            kv2 = [I('v_lshrrev_b32 v%d, 4, v%d' % (KA + 2, vLane)),
                   I('v_mul_u32_u24 v%d, %d, v%d' % (KA + 2, QP, KA + 2)),
                   I('v_and_b32 v%d, 15, v%d' % (KD + 9, vLane)),
                   I('v_lshl_add_u32 v%d, v%d, 4, v%d' % (KA + 2, KD + 9, KA + 2)),
                   I('v_add_u32 v%d, 0x%x, v%d' % (KA + 2, L_QKV + 8 * QP, KA + 2))]
            put(61, kv2, 68)
            kv3 = [I('s_waitcnt vmcnt(0)'),
                   I('v_max3_u32 v%d, v%d, v%d, v%d' % (FL, KD, KD + 1, KD + 2)),
                   I('v_max3_u32 v%d, v%d, v%d, v%d' % (FL, FL, KD + 3, KD + 4)),
                   I('v_max3_u32 v%d, v%d, v%d, v%d' % (FL, FL, KD + 5, KD + 6)),
                   I('v_max3_u32 v%d, v%d, v%d, v%d' % (FL, FL, KD + 7, KD + 8)),
                   I('v_cmp_eq_u32 vcc, -1, v%d' % FL),
                   NOP, NOP]
            post = kv3 + [kvchk,
                    lambda: L('w', 'ds_write_b128 v%d, %s' % (KA + 2, vr(KD))),
                    lambda: L('w', 'ds_write_b128 v%d, %s offset:%d' % (KA + 2, vr(KD + 4), 4 * QP)),
                    lambda: L('w', 'ds_write_b32 v%d, v%d' % (KA + 3, KD + 8))]
        else:
            def ini():
                Lnf = a.uid('Lknf')
                a('s_cmp_lg_u32 s%d, 0' % sN)
                a('s_cbranch_scc1 %s' % Lnf)
                self.init_check(40)
                a.label(Lnf)
            post = [ini]
        a('v_add_u32 v%d, %d, v%d' % (XT, ORDER[0] * MT, XA + 2))
        for i in range(PF):
            rd(i)
        done_upto = [-1]

        def need(i):
            idx = max(k for k, t in enumerate(lds) if t == ('r', i))
            if idx <= done_upto[0]:
                return
            tgt = ('r', i + 1) if ('r', i + 1) in lds else ('r', i)
            idx2 = max(k for k, t in enumerate(lds) if t == tgt)
            a('s_waitcnt lgkmcnt(%d)' % min(len(lds) - 1 - idx2, 15))
            done_upto[0] = idx2

        def fill(step, n):
            cnt = 0
            while True:
                cand = [c for c in chains if c[2] and c[0] <= step]
                if not cand:
                    return
                c = min(cand, key=lambda c: (c[1] - step) * 3 - len(c[2]))
                if cnt >= n and (c[1] - step) * 3 >= len(c[2]):
                    return
                c[2].pop(0)()
                cnt += 1
        for i in range(72):
            u, ks = seq[i]
            if os.environ.get('FINE') and ks == 0 and u > 0:
                self.tr(50 + u)
            need(i)
            a(mfma(ACC(u, 0), W(0, ks), RB(i), ks == 0))
            fill(i, 2)
            a(mfma(ACC(u, 1), W(1, ks), RB(i), ks == 0))
            used = 0
            j = i + PF
            if j < 72:
                if seq[j][1] == 16 and seq[j][0] > 0:
                    a('v_add_u32 v%d, %d, v%d' % (XT, ORDER[seq[j][0]] * MT, XA + 2))
                    used += 1
                rd(j)
                used += 1
            nxt = 0
            if i + 1 < 72:
                idx = max(k for k, t in enumerate(lds) if t == ('r', i + 1))
                nxt = 1 if idx > done_upto[0] else 0
            fill(i, max(0, 2 - used - nxt))
        for c in chains:
            for fn in c[2]:
                fn()
        a('s_mov_b32 s%d, 0' % sOwn)
        if os.environ.get('FINE'):
            self.tr(54)
        a('s_setprio 2')
        for fn in setf_items(F_XF, sN, 1) + epi_items(3):
            fn()
        a('s_waitcnt lgkmcnt(0)')
        for fn in setf_items(F_QR, sN, 1) + post:
            fn()

    def build_tables(self):
        a = self.a
        AD = 70
        T = 76
        il, hh, j, R = 84, 85, 86, 87
        SA = 88
        a('v_lshrrev_b32 v%d, 2, v%d' % (il, vLane))
        a('v_bfe_u32 v%d, v%d, 1, 1' % (hh, vLane))
        a('v_and_b32 v%d, 1, v%d' % (j, vLane))
        a('s_lshl_b32 s%d, s%d, 4' % (sT, sWv))
        a('s_add_u32 s%d, s%d, 16' % (sT, sT))
        a('v_add_u32 v%d, s%d, v%d' % (R, sT, il))
        a('v_mul_u32_u24 v%d, %d, v%d' % (T, QP, R))
        a('v_add_u32 v%d, 0x%x, v%d' % (T, L_QKV, T))
        a('v_lshl_add_u32 v%d, v%d, 7, v%d' % (AD, hh, T))
        a('v_lshl_add_u32 v%d, v%d, 2, v%d' % (AD + 1, hh, T))
        a('v_mul_u32_u24 v%d, %d, v%d' % (T + 1, 4 * QP, j))
        a('v_add_u32 v%d, %d, v%d' % (T + 1, 3 * QP, T + 1))
        a('v_sub_u32 v%d, v%d, v%d' % (AD + 2, AD, T + 1))
        a('v_sub_u32 v%d, v%d, v%d' % (AD + 3, AD + 1, T + 1))
        a('v_lshlrev_b32 v%d, 2, v%d' % (T + 2, R))
        a('v_add_u32 v%d, 0x%x, v%d' % (T + 2, L_ST, T + 2))
        a('v_lshlrev_b32 v%d, 4, v%d' % (T + 3, j))
        a('v_add_u32 v%d, 12, v%d' % (T + 3, T + 3))
        a('v_sub_u32 v%d, v%d, v%d' % (T + 3, T + 2, T + 3))
        a('v_lshl_add_u32 v%d, v%d, 6, v%d' % (AD + 4, j, AD))
        a('v_subrev_u32 v%d, %d, v%d' % (AD + 4, 7 * QP, AD + 4))
        a('v_subrev_u32 v%d, %d, v%d' % (AD + 5, 7 * QP, AD + 1))
        a('v_lshl_add_u32 v%d, v%d, 1, v%d' % (T + 4, hh, j))
        a('v_lshlrev_b32 v%d, 8, v%d' % (T + 4, T + 4))
        a('v_lshl_add_u32 v%d, v%d, 4, v%d' % (SA, il, T + 4))
        a('s_lshl_b32 s%d, s%d, 10' % (sT, sHG))
        a('v_add_u32 v%d, s%d, v%d' % (SA, sT, SA))
        a('s_lshl_b32 s%d, s%d, 7' % (sT, sHG))
        a('s_add_u32 s%d, s%d, 16384' % (sT, sT))
        a('v_lshlrev_b32 v%d, 3, v%d' % (T + 4, il))
        a('v_lshl_add_u32 v%d, v%d, 2, v%d' % (T + 4, hh, T + 4))
        a('v_add_u32 v%d, s%d, v%d' % (SA + 1, sT, T + 4))
        a('v_mov_b32 v76, v%d' % (T + 2))
        a('v_mov_b32 v77, v%d' % (T + 3))
        a('v_mov_b32 v90, v%d' % il)
        a('v_mov_b32 v91, v%d' % j)
        a('v_lshlrev_b32 v92, 4, v%d' % vLane)
        a('v_add_u32 v92, s%d, v92' % sTab)
        a('ds_write_b128 v92, %s' % vr(70))
        a('ds_write_b128 v92, %s offset:1024' % vr(74))
        a('ds_write_b128 v92, %s offset:2048' % vr(88))
        LA, LB, VT, TMP1 = 72, 73, 74, 75
        a('v_lshlrev_b32 v%d, 4, v%d' % (LA, vLane))
        a('v_add_u32 v%d, 0x%x, v%d' % (LA, L_WO, LA))
        a('v_and_b32 v%d, 3, v%d' % (LB, vLane))
        a('v_lshlrev_b32 v%d, 4, v%d' % (LB, LB))
        a('v_lshrrev_b32 v%d, 4, v%d' % (TMP1, vLane))
        a('v_lshl_add_u32 v%d, v%d, 6, v%d' % (LB, TMP1, LB))
        a('v_add_u32 v%d, 0x%x, v%d' % (LB, L_WO + 2048, LB))
        a('v_and_b32 v%d, 15, v%d' % (VT, vLane))
        a('v_lshlrev_b32 v%d, 3, v%d' % (VT, VT))
        a('v_lshl_add_u32 v%d, v%d, 8, v%d' % (VT, TMP1, VT))
        a('s_mov_b32 s%d, 0' % sP)
        self.xaddr_frag(76, 80)
        self.xaddr_nat(78, 80)
        a('ds_write_b128 v92, %s offset:3072' % vr(72))
        a('ds_write_b128 v92, %s offset:4096' % vr(76))
        a('s_waitcnt lgkmcnt(0)')

    def attention(self):
        a = self.a
        Q = 0
        K = 12
        RK = 60
        RO = 64
        S = 65
        AD = 70
        T = 76
        SA, il, j = 84, 86, 87
        a('v_lshlrev_b32 v%d, 4, v%d' % (92, vLane))
        a('v_add_u32 v%d, s%d, v%d' % (92, sTab, 92))
        a('ds_read_b128 %s, v92' % vr(70))
        a('ds_read_b128 %s, v92 offset:1024' % vr(74))
        a('ds_read_b128 %s, v92 offset:2048' % vr(84))
        a('s_mul_i32 s%d, s%d, %d' % (sBase, sLayer, LSTR))
        a('s_mul_i32 s%d, s%d, %d' % (sT, sP, TILE))
        a('s_add_u32 s%d, s%d, s%d' % (sBase, sBase, sT))
        a('s_add_u32 s%d, s%d, s%d' % (sBase, sBase, sTileW))
        a('s_add_u32 s%d, s%d, 1' % (sT + 7, sN))
        self.wait_flag(F_QR, sT + 7, 92, 4)
        self.tr(14)
        a('ds_read_b128 %s, v%d' % (vr(Q), AD))
        a('ds_read_b128 %s, v%d offset:16' % (vr(Q + 4), AD))
        a('ds_read_b32 v%d, v%d offset:80' % (Q + 8, AD + 1))
        for w in range(4):
            o = (3 - w) * QP
            a('ds_read_b128 %s, v%d offset:%d' % (vr(K + 12 * w), AD + 2, o + 48))
        for w in range(4):
            o = (3 - w) * QP
            a('ds_read_b128 %s, v%d offset:%d' % (vr(K + 12 * w + 4), AD + 2, o + 64))
        for w in range(4):
            o = (3 - w) * QP
            a('ds_read_b32 v%d, v%d offset:%d' % (K + 12 * w + 8, AD + 3, o + 112))
        a('ds_read_b32 v%d, v%d' % (RO, T))
        a('ds_read2_b32 %s, v%d offset0:0 offset1:1' % (vr(RK, 2), T + 1))
        a('ds_read2_b32 %s, v%d offset0:2 offset1:3' % (vr(RK + 2, 2), T + 1))
        a('s_waitcnt lgkmcnt(11)')
        for d in range(9):
            if d == 4:
                a('s_waitcnt lgkmcnt(7)')
            if d == 8:
                a('s_waitcnt lgkmcnt(3)')
            for w in range(4):
                c = '0' if d == 0 else 'v%d' % (S + w)
                a('v_dot2_f32_bf16 v%d, v%d, v%d, %s' % (S + w, Q + d, K + 12 * w + d, c))
        a('s_waitcnt lgkmcnt(0)')
        V = 12
        for w in range(8):
            o = (7 - w) * QP
            a('ds_read_b128 %s, v%d offset:%d' % (vr(V + 6 * w), AD + 4, o + 32))
            a('ds_read_b32 v%d, v%d offset:%d' % (V + 6 * w + 4, AD + 5, o + 208))
        c = struct.unpack('<I', struct.pack('<f', (18 ** -0.5) * 1.4426950408889634))[0]
        a('v_mul_f32 v%d, 0x%x, v%d' % (RO, c, RO))
        for w in range(4):
            a('v_mul_f32 v%d, v%d, v%d' % (S + w, S + w, RK + 3 - w))
        for w in range(4):
            a('v_mul_f32 v%d, v%d, v%d' % (S + w, S + w, RO))
        Lnm = a.uid('Lnomask')
        a('s_or_b32 s%d, s%d, s%d' % (sT, sTG, sWv))
        a('s_cmp_lg_u32 s%d, 0' % sT)
        a('s_cbranch_scc1 %s' % Lnm)
        a('v_lshlrev_b32 v%d, 2, v%d' % (T, j))
        a('v_mov_b32 v%d, 0xf149f2ca' % (T + 2))
        for w in range(4):
            a('v_add_u32 v%d, %d, v%d' % (T + 1, w, T))
            a('v_cmp_lt_u32 vcc, v%d, v%d' % (il, T + 1))
            a('v_cndmask_b32 v%d, v%d, v%d, vcc' % (S + w, S + w, T + 2))
        a.label(Lnm)
        a('v_max3_f32 v%d, v%d, v%d, v%d' % (T, S, S + 1, S + 2))
        a('v_max_f32 v%d, v%d, v%d' % (T, T, S + 3))
        a('v_cmp_eq_u32 vcc, 1, v%d' % j)
        a('v_max_f32_dpp v%d, v%d, v%d quad_perm:[1,0,3,2] row_mask:0xf bank_mask:0xf' % (T + 1, T, T))
        for w in range(4):
            a('v_sub_f32 v%d, v%d, v%d' % (S + w, S + w, T + 1))
        for w in range(4):
            a('v_exp_f32 v%d, v%d' % (S + w, S + w))
        a('v_add_f32 v%d, v%d, v%d' % (T, S, S + 1))
        a('v_add_f32 v%d, v%d, v%d' % (T + 1, S + 2, S + 3))
        a('v_add_f32 v%d, v%d, v%d' % (T, T, T + 1))
        for w in range(4):
            a('v_mul_f32 v%d, v%d, v%d' % (S + w, S + w, RK + 3 - w))
        a('v_add_f32_dpp v%d, v%d, v%d quad_perm:[1,0,3,2] row_mask:0xf bank_mask:0xf' % (T + 1, T, T))
        a('v_rcp_f32 v%d, v%d' % (T + 1, T + 1))
        for w in range(4):
            a('v_mul_f32 v%d, v%d, v%d' % (S + w, S + w, T + 1))
        a('v_cvt_pk_bf16_f32 v%d, v%d, v%d' % (T, S, S + 1))
        a('v_cvt_pk_bf16_f32 v%d, v%d, v%d' % (T + 1, S + 2, S + 3))
        a('v_mov_b32_dpp v%d, v%d quad_perm:[1,0,3,2] row_mask:0xf bank_mask:0xf' % (T + 2, T))
        a('v_mov_b32_dpp v%d, v%d quad_perm:[1,0,3,2] row_mask:0xf bank_mask:0xf' % (T + 3, T + 1))
        PP = 60
        a('v_cndmask_b32 v%d, v%d, v%d, vcc' % (PP, T, T + 2))
        a('v_cndmask_b32 v%d, v%d, v%d, vcc' % (PP + 1, T + 1, T + 3))
        a('v_cndmask_b32 v%d, v%d, v%d, vcc' % (PP + 2, T + 2, T))
        a('v_cndmask_b32 v%d, v%d, v%d, vcc' % (PP + 3, T + 3, T + 1))
        PL = 64
        for pr in range(4):
            a('v_and_b32 v%d, 0xffff, v%d' % (PL + 4 * pr, PP + pr))
            a('v_lshlrev_b32 v%d, 16, v%d' % (PL + 4 * pr + 1, PP + pr))
            a('v_lshrrev_b32 v%d, 16, v%d' % (PL + 4 * pr + 2, PP + pr))
            a('v_and_b32 v%d, 0xffff0000, v%d' % (PL + 4 * pr + 3, PP + pr))
        O = 0
        for w in range(8):
            a('s_waitcnt lgkmcnt(%d)' % (2 * (7 - w)))
            for m in range(5):
                for h in range(2):
                    c = '0' if w == 0 else 'v%d' % (O + 2 * m + h)
                    a('v_dot2_f32_bf16 v%d, v%d, v%d, %s' % (O + 2 * m + h, V + 6 * w + m, PL + 2 * w + h, c))
        for m in range(5):
            a('v_cvt_pk_bf16_f32 v%d, v%d, v%d' % (12 + m, O + 2 * m, O + 2 * m + 1))
        a('s_mov_b32 s%d, 0x55555555' % (sT + 2))
        a('s_mov_b32 s%d, 0x55555555' % (sT + 3))

        def st(sc):
            a('buffer_store_dwordx4 %s, v%d, %s, s%d offen%s' % (vr(12), SA, srd(sWS), sBase, sc))
            a('s_mov_b64 exec, s[%d:%d]' % (sT + 2, sT + 3))
            a('buffer_store_dword v16, v%d, %s, s%d offen%s' % (SA + 1, srd(sWS), sBase, sc))
            a('s_mov_b64 exec, -1')
            self.set_flag(F_QF, sN, 20, add=1)
            Ld = a.uid('Ldefer')
            a('s_mov_b32 s%d, 1' % sPub)
            a('s_cmp_eq_u32 s%d, %d' % (sP, 5 if os.environ.get('NODEFER') else 0))
            a('s_cbranch_scc1 %s' % Ld)
            a('s_mov_b32 s%d, 0' % sPub)
            self.publish_event(0, 24, sc)
            a.label(Ld)
        self.both_modes(st)

    def stage_generic(self):
        a = self.a
        TMP = 88
        AV = 84
        Lc = a.uid('Lnocs')
        a('s_cmp_eq_u32 s%d, 0' % sCs)
        a('s_cbranch_scc1 %s' % Lc)
        a('s_waitcnt vmcnt(0)')
        self.colsum(8)
        a('s_mov_b32 s%d, 0' % sCs)
        a.label(Lc)
        self.m_prep()
        Lne = a.uid('Lnoearly')
        a('s_cmp_eq_u32 s%d, 0' % sP)
        a('s_cbranch_scc1 %s' % Lne)
        a('ds_read_b128 %s, v%d offset:%d' % (vr(TMP), vFlag, F_XF))
        a('s_waitcnt lgkmcnt(0)')
        self.flag_min(TMP)
        a('s_nop 1')
        a('s_cmp_ge_u32 s%d, s%d' % (sT + 8, sN))
        a('s_cbranch_scc1 %s' % Lne)
        self.wo_stage(async_=True)
        a('s_mov_b32 s%d, 1' % sWoP)
        a.label(Lne)
        a('v_lshlrev_b32 v%d, 4, v%d' % (AV, vLane))
        a('s_sub_u32 s%d, s%d, 1' % (sT, sLayer))
        a('s_mul_i32 s%d, s%d, %d' % (sT, sT, LSTR))
        a('s_add_u32 s%d, s%d, %d' % (sT, sT, WS_X))
        a('s_mul_i32 s%d, s%d, %d' % (sT + 1, sP, TILE))
        a('s_add_u32 s%d, s%d, s%d' % (sT, sT, sT + 1))
        a('s_add_u32 s%d, s%d, s%d' % (sBase, sT, sTileW))
        a('s_sub_u32 s%d, s%d, s%d' % (sBase, sBase, sMt))
        a('s_mul_i32 s%d, s%d, 4864' % (sBase2, sWv))
        a('s_add_u32 s%d, s%d, s%d' % (sBase, sBase, sBase2))
        a('s_setprio 0')
        self.wait_flag(F_XF, sN, TMP, 6, sleep=1)
        self.tr(20)
        a('v_lshlrev_b32 v%d, 3, v%d' % (TMP + 2, vLane))
        a('s_lshl_b32 s%d, s%d, 9' % (sT + 2, sP))
        a('s_add_u32 s%d, s%d, s%d' % (sT + 2, sT + 2, sFlW))
        a('s_lshl_b32 s%d, s%d, 7' % (sT + 3, sWv))
        a('s_sub_u32 s%d, s%d, s%d' % (sT + 2, sT + 2, sT + 3))
        a('s_add_u32 s%d, s%d, 1024' % (sT + 2, sT + 2))
        a('s_add_u32 s%d, s%d, s%d' % (sT + 3, sNon, sLayer))
        a('s_mov_b64 vcc, -1')
        for k, mt in enumerate(self.ORDER):
            Lp, Lg = a.uid('Lsp'), a.uid('Lsg')
            half = 'vcc_lo' if mt < 2 else 'vcc_hi'
            msk = 0xffff << (16 * (mt & 1))
            a.label(Lp)
            a('s_and_b32 s%d, %s, 0x%x' % (sT, half, msk))
            a('s_cbranch_scc0 %s' % Lg)
            a('buffer_load_dwordx2 %s, v%d, %s, s%d offen sc1' % (vr(TMP, 2), TMP + 2, srd(sWS), sT + 2))
            self.budget_check(12)
            a('s_waitcnt vmcnt(0)')
            a('v_subrev_u32 v%d, s%d, v%d' % (TMP, sT + 3, TMP))
            a('v_xor_b32 v%d, s%d, v%d' % (TMP + 1, sNon + 1, TMP + 1))
            a('v_lshrrev_b32 v%d, 3, v%d' % (TMP, TMP))
            a('v_or_b32 v%d, v%d, v%d' % (TMP, TMP, TMP + 1))
            a('v_cmp_ne_u32 vcc, 0, v%d' % TMP)
            a('s_branch %s' % Lp)
            a.label(Lg)
            if k == 0:
                self.tr(25)
            a('s_add_u32 s%d, s%d, %d' % (sT, sBase, mt * MT))
            a('s_add_u32 s%d, s%d, %d' % (sT + 1, sBase2, mt * MT))
            a('s_mov_b32 m0, s%d' % (sT + 1))
            for k2 in range(4):
                a('buffer_load_dwordx4 v%d, %s, s%d offen offset:%d sc1 lds' % (AV, srd(sWS), sT, k2 * 1024))
            a('s_add_u32 s%d, s%d, 4096' % (sT, sT))
            a('s_add_u32 s%d, s%d, 4096' % (sT + 1, sT + 1))
            a('s_mov_b32 m0, s%d' % (sT + 1))
            a('s_mov_b32 exec_hi, 0xffff')
            a('buffer_load_dwordx4 v%d, %s, s%d offen sc1 lds' % (AV, srd(sWS), sT))
            a('s_mov_b32 exec_hi, -1')
        a('s_mov_b32 s%d, 1' % sOwn)
        a('s_cmp_eq_u32 s%d, 0' % sP)
        a('s_cbranch_scc1 L_M_GO')
        a('s_mov_b32 s%d, 0' % sOwn)
        a('s_waitcnt vmcnt(10)')
        self.set_flag(F_XR, sG, TMP, add=2)
        Lw1, Lw2 = a.uid('Lwe'), a.uid('Lwf')
        a('s_cmp_lg_u32 s%d, 0' % sWoP)
        a('s_cbranch_scc1 %s' % Lw1)
        self.wo_stage(async_=True)
        a('s_waitcnt vmcnt(11)')
        a('s_branch %s' % Lw2)
        a.label(Lw1)
        a('s_waitcnt vmcnt(0)')
        a.label(Lw2)
        self.set_flag(F_XR, sG, TMP, add=4)
        a('s_mov_b32 s%d, 1' % sWoP)
        self.tr(24)

    def stage_input_issue(self):
        a = self.a
        AV, LV, AT, LT_ = 84, 85, 86, 87
        TMP = 88
        a('s_mov_b32 s%d, s%d' % (sN, sP))
        a('s_lshl_b32 s%d, s%d, 2' % (sG, sN))
        a('v_lshrrev_b32 v%d, 2, v%d' % (TMP + 1, vLane))
        a('v_and_b32 v%d, 3, v%d' % (TMP, vLane))
        self.swz(LV, TMP, TMP + 1, TMP + 2)
        a('v_add_u32 v%d, s%d, v%d' % (LV, sMt, LV))
        a('s_lshl_b32 s%d, s%d, 7' % (sT, sTG))
        a('s_add_u32 s%d, s%d, s%d' % (sT, sT, sP))
        a('s_lshl_b32 s%d, s%d, 5' % (sT + 1, sWv))
        a('s_add_u32 s%d, s%d, s%d' % (sT + 1, sT + 1, sT))
        a('s_mul_i32 s%d, s%d, 1152' % (sT + 1, sT + 1))
        a('v_mul_u32_u24 v%d, 2304, v%d' % (TMP + 2, TMP + 1))
        a('v_add_u32 v%d, s%d, v%d' % (TMP + 2, sT + 1, TMP + 2))
        a('v_lshl_add_u32 v%d, v%d, 4, v%d' % (AV, TMP, TMP + 2))
        a('v_mul_u32_u24 v%d, 72, v%d' % (AT, TMP))
        a('v_add_u32 v%d, v%d, v%d' % (AT, AT, TMP + 2))
        a('v_lshlrev_b32 v%d, 7, v%d' % (LT_, TMP))
        a('v_lshl_add_u32 v%d, v%d, 3, v%d' % (LT_, TMP + 1, LT_))
        a('v_add_u32 v%d, s%d, v%d' % (LT_, sMt, LT_))
        for ks in range(16):
            a('buffer_load_dwordx4 %s, v%d, %s, 0 offen offset:%d' % (vr(4 * ks), AV, srd(sIN), 72 * ks))
        for c in range(4):
            a('buffer_load_dwordx2 %s, v%d, %s, 0 offen offset:%d' % (vr(64 + 2 * c, 2), AT, srd(sIN), 288 * c + 64))

    def stage_input_finish(self, extra_after=0, last_extra=0):
        a = self.a
        AV, LV, AT, LT_ = 84, 85, 86, 87
        TMP = 88
        self.wait_flag(F_XF, sN, TMP, 6)
        rem = [14, 8, 0]
        for seg in range(3):
            a('s_waitcnt vmcnt(%d)' % (rem[seg] + (extra_after if seg < 2 else last_extra)))
            if seg == 0:
                self.tr(21)
            for ks in range(6 * seg, min(6 * seg + 6, 16)):
                a('ds_write_b128 v%d, %s offset:%d' % (LV, vr(4 * ks), ks * 1024))
            if seg == 2:
                for c in range(4):
                    a('ds_write_b64 v%d, %s offset:%d' % (LT_, vr(64 + 2 * c, 2), 16384 + 512 * c))
        for i in range(72):
            a('v_dot2_f32_bf16 v%d, v%d, v%d, %s' % (TMP + (i & 1), i, i, '0' if i < 2 else 'v%d' % (TMP + (i & 1))))
        a('v_add_f32 v%d, v%d, v%d' % (TMP, TMP, TMP + 1))
        a('v_mov_b32 v%d, 0' % (TMP + 1))
        a('v_subrev_u32 v%d, s%d, v%d' % (TMP + 2, sMt, LT_))
        a('v_lshrrev_b32 v%d, 1, v%d' % (TMP + 2, TMP + 2))
        a('v_add_u32 v%d, s%d, v%d' % (TMP + 2, sMt, TMP + 2))
        a('ds_write_b32 v%d, v%d offset:18432' % (TMP + 2, TMP))
        for c in range(1, 4):
            a('ds_write_b32 v%d, v%d offset:%d' % (TMP + 2, TMP + 1, 18432 + 256 * c))
        a('s_waitcnt lgkmcnt(0)')
        self.set_flag(F_XR, sG, TMP, add=4)
        self.tr(24)

    def hb_addr(self, d, tmp):
        a = self.a
        a('v_and_b32 v%d, 7, v%d' % (tmp, vLane))
        a('v_lshrrev_b32 v%d, 4, v%d' % (tmp + 1, vLane))
        a('v_lshlrev_b32 v%d, 4, v%d' % (d, tmp))
        a('v_lshl_add_u32 v%d, v%d, 7, v%d' % (d, tmp + 1, d))
        a('s_lshl_b32 s%d, s%d, 9' % (sT, sHG))
        a('v_add_u32 v%d, s%d, v%d' % (d, sT, d))
        a('s_lshl_b32 s%d, s%d, 6' % (sT, sHG))
        a('s_add_u32 s%d, s%d, 8192' % (sT, sT))
        a('v_lshlrev_b32 v%d, 3, v%d' % (d + 1, tmp))
        a('v_add_u32 v%d, s%d, v%d' % (d + 1, sT, d + 1))

    def hb_store(self, d, data, soff):
        a = self.a
        a('s_mov_b32 s%d, 0xff00ff00' % (sT + 4))
        a('s_mov_b32 s%d, 0xff00ff00' % (sT + 5))
        a('s_mov_b64 exec, s[%d:%d]' % (sT + 4, sT + 5))
        a('buffer_store_dwordx4 %s, v%d, %s, s%d offen sc1' % (vr(data), d, srd(sWS), soff))
        a('s_mov_b64 exec, 0xff00')
        a('buffer_store_dwordx2 %s, v%d, %s, s%d offen sc1' % (vr(data + 4, 2), d + 1, srd(sWS), soff))
        a('s_mov_b64 exec, -1')

    def hb_base(self, dst, layer_add):
        a = self.a
        a('s_add_u32 s%d, s%d, %d' % (dst, sLayer, layer_add))
        a('s_lshl_b32 s%d, s%d, 5' % (dst, dst))
        a('s_lshl_b32 s%d, s%d, 1' % (sT + 1, sTG))
        a('s_add_u32 s%d, s%d, s%d' % (dst, dst, sT + 1))
        a('s_add_u32 s%d, s%d, s%d' % (dst, dst, sP))
        a('s_mul_i32 s%d, s%d, %d' % (dst, dst, HBT))
        a('s_add_u32 s%d, s%d, %d' % (dst, dst, WS_HB))

    def bphase(self):
        a = self.a
        NS = 12
        ACC = 48
        WB = [60, 72, 84]
        LA, LB, VT, TMP1 = 96, 97, 98, 99
        slot = lambda ks: 4 * (ks % NS)
        a('s_mul_i32 s%d, s%d, %d' % (sBase, sLayer, LSTR))
        a('s_mul_i32 s%d, s%d, %d' % (sT, sP, TILE))
        a('s_add_u32 s%d, s%d, s%d' % (sBase, sBase, sT))
        a('s_add_u32 s%d, s%d, s%d' % (sBase, sBase, sTileW))
        a('v_lshlrev_b32 v100, 4, v%d' % vLane)
        a('v_add_u32 v100, s%d, v100' % sTab)
        a('ds_read_b128 %s, v100 offset:3072' % vr(96))
        a('s_waitcnt lgkmcnt(0)')

        def wreads(ks):
            b = WB[ks % 3]
            a('ds_read_b128 %s, v%d offset:%d' % (vr(b), LA, ks * 2304))
            a('ds_read_b128 %s, v%d offset:%d' % (vr(b + 4), LA, ks * 2304 + 1024))
            a('ds_read_b128 %s, v%d offset:%d' % (vr(b + 8), LB, ks * 2304))
        def wread1(ks, t):
            b = WB[ks % 3]
            if t < 2:
                a('ds_read_b128 %s, v%d offset:%d' % (vr(b + 4 * t), LA, ks * 2304 + 1024 * t))
            else:
                a('ds_read_b128 %s, v%d offset:%d' % (vr(b + 8), LB, ks * 2304))
        self.tr(40)
        def hook():
            Lwp = a.uid('Lwop')
            a('s_cmp_eq_u32 s%d, 0' % sWoP)
            a('s_cbranch_scc1 %s' % Lwp)
            self.set_flag(F_WR, sLayer, WB[0], add=1)
            a('s_mov_b32 s%d, 0' % sWoP)
            a.label(Lwp)
        self.poll_event(0, 0, ACC, 13, hook=hook)
        self.tr(44)
        issued = []

        def oload(ks):
            if ks < 16:
                if ks % 4 == 0:
                    a('s_add_u32 s%d, s%d, %d' % (sT + 2, sBase, WS_PAD + ks * 1024 - L_WO))
                a('buffer_load_dwordx4 %s, v%d, %s, s%d offen offset:%d sc1' %
                  (vr(slot(ks)), LA, srd(sWS2), sT + 2, (ks % 4) * 1024))
                issued.append(ks)
            else:
                a('s_add_u32 s%d, s%d, 16384' % (sT + 3, sBase))
                a('buffer_load_dwordx2 %s, v%d, %s, s%d offen offset:%d sc1' %
                  (vr(slot(ks), 2), VT, srd(sWS), sT + 3, (ks - 16) * 1024))
                a('buffer_load_dwordx2 %s, v%d, %s, s%d offen offset:%d sc1' %
                  (vr(slot(ks) + 2, 2), VT, srd(sWS), sT + 3, (ks - 16) * 1024 + 128))
                issued.extend([ks, ks])
        for ks in range(NS):
            oload(ks)
        a('s_add_u32 s%d, s%d, 1' % (sT + 7, sLayer))
        self.wait_flag(F_WR, sT + 7, WB[0], 10)
        for ks in range(3):
            wreads(ks)
        RES = 24
        RA = 32
        if os.environ.get('BPRIO'):
            a('s_setprio %s' % os.environ['BPRIO'])
        for ks in range(18):
            last = max(i for i, t in enumerate(issued) if t == ks)
            a('s_waitcnt vmcnt(%d) lgkmcnt(%d)' % (len(issued) - 1 - last, 3 * min(2, 17 - ks)))
            if ks == 0:
                self.tr(41)
            for t in range(3):
                a(mfma(ACC + 4 * t, WB[ks % 3] + 4 * t, slot(ks), ks == 0))
                if ks + 3 < 18:
                    wread1(ks + 3, t)
            if ks + NS < 18:
                oload(ks + NS)
            if ks == 9:
                a('ds_read_b128 %s, v100 offset:4096' % vr(RA))
            if ks == 10:
                L0, L1 = a.uid('Lres0'), a.uid('Lres1')
                a('s_add_u32 s%d, s%d, %d' % (sBase2, sBase, WS_X))
                a('s_mul_i32 s%d, s%d, 1152' % (sT + 4, sP))
                a('s_waitcnt lgkmcnt(3)')
                a('s_cmp_eq_u32 s%d, 0' % sLayer)
                a.softbranch('s_cbranch_scc1 %s' % L0)
                a('buffer_load_dwordx4 %s, v%d, %s, s%d offen sc1' % (vr(RES), RA, srd(sWS), sBase2))
                a('buffer_load_dwordx2 %s, v%d, %s, s%d offen sc1' % (vr(RES + 4, 2), RA + 1, srd(sWS), sBase2))
                a.softbranch('s_branch %s' % L1)
                a.label(L0, noflush=True)
                a('buffer_load_dwordx4 %s, v%d, %s, s%d offen' % (vr(RES), RA + 2, srd(sIN), sT + 4))
                a('buffer_load_dwordx2 %s, v%d, %s, s%d offen' % (vr(RES + 4, 2), RA + 3, srd(sIN), sT + 4))
                a.label(L1, noflush=True)
                issued.extend(['r', 'r'])
        self.tr(42)
        if os.environ.get('BPRIO'):
            a('s_setprio 2')
        E = 0
        U = 60
        pairs = [(ACC + r, ACC + 4 + r) for r in range(4)] + [(ACC + 8, ACC + 9), (ACC + 10, ACC + 11)]
        if os.environ.get('ONEROUND'):
            a('s_waitcnt vmcnt(0)')
            for m in range(6):
                a('v_lshlrev_b32 v%d, 16, v%d' % (U + 2 * m, RES + m))
                a('v_and_b32 v%d, 0xffff0000, v%d' % (U + 1 + 2 * m, RES + m))
            for m, (x0, x1) in enumerate(pairs):
                a('v_add_f32 v%d, v%d, v%d' % (U + 2 * m, U + 2 * m, x0))
                a('v_add_f32 v%d, v%d, v%d' % (U + 1 + 2 * m, U + 1 + 2 * m, x1))
            for m in range(6):
                a('v_cvt_pk_bf16_f32 v%d, v%d, v%d' % (E + m, U + 2 * m, U + 1 + 2 * m))
        else:
            for m, (x0, x1) in enumerate(pairs):
                a('v_cvt_pk_bf16_f32 v%d, v%d, v%d' % (E + m, x0, x1))
            a('s_waitcnt vmcnt(0)')
            for m in range(6):
                a('v_lshlrev_b32 v%d, 16, v%d' % (U + 2 * m, E + m))
                a('v_and_b32 v%d, 0xffff0000, v%d' % (U + 1 + 2 * m, E + m))
                a('v_lshlrev_b32 v%d, 16, v%d' % (U + 12 + 2 * m, RES + m))
                a('v_and_b32 v%d, 0xffff0000, v%d' % (U + 13 + 2 * m, RES + m))
            for m in range(12):
                a('v_add_f32 v%d, v%d, v%d' % (U + m, U + m, U + 12 + m))
            for m in range(6):
                a('v_cvt_pk_bf16_f32 v%d, v%d, v%d' % (E + m, U + 2 * m, U + 1 + 2 * m))
        L0, L1 = a.uid('Lst0'), a.uid('Lst1')
        a('s_cmp_eq_u32 s%d, %d' % (sLayer, self.nlayers - 1))
        a('s_cbranch_scc1 %s' % L0)

        def st(sc):
            a('buffer_store_dwordx4 %s, v32, %s, s%d offen%s' % (vr(E), srd(sWS), sBase2, sc))
            a('s_mov_b64 exec, 0xffff')
            a('buffer_store_dwordx2 %s, v33, %s, s%d offen%s' % (vr(E + 4, 2), srd(sWS), sBase2, sc))
            a('s_mov_b64 exec, -1')
            for m in range(4):
                a('v_dot2_f32_bf16 v8, v%d, v%d, %s' % (E + m, E + m, '0' if m == 0 else 'v8'))
            a('v_dot2_f32_bf16 v10, v%d, v%d, 0' % (E + 4, E + 4))
            a('v_dot2_f32_bf16 v10, v%d, v%d, v10' % (E + 5, E + 5))
            a('v_lshrrev_b32 v11, 1, v33')
            a('v_mov_b32 v9, v8')
            a('v_permlane32_swap_b32 v8, v9')
            a('v_add_f32 v8, v8, v9')
            a('v_mov_b32 v9, v8')
            a('v_permlane16_swap_b32 v8, v9')
            a('v_add3_f32 v8, v8, v9, v10') if False else None
            a('v_add_f32 v8, v8, v9')
            a('v_add_f32 v8, v8, v10')
            a('s_add_u32 s%d, s%d, %d' % (sT + 2, sBase2, 18432 - 8192))
            a('s_mov_b64 exec, 0xffff')
            a('buffer_store_dword v8, v11, %s, s%d offen%s' % (srd(sWS), sT + 2, sc))
            a('s_mov_b64 exec, -1')
            self.publish_event(2, 44, sc)
        self.both_modes(st)
        a('s_branch %s' % L1)
        a.label(L0)
        OSC = os.environ.get('OUTSC', '')
        a('buffer_store_dwordx4 %s, v34, %s, s%d offen %s' % (vr(E), srd(sOUT), sT + 4, OSC))
        a('s_mov_b64 exec, 0xffff')
        a('buffer_store_dwordx2 %s, v35, %s, s%d offen %s' % (vr(E + 4, 2), srd(sOUT), sT + 4, OSC))
        a('s_mov_b64 exec, -1')
        a.label(L1)
        a('s_lshl_b32 s%d, s%d, 4' % (sT, sP))
        a('s_lshl_b32 s%d, s%d, 2' % (sT + 1, sWv))
        a('s_sub_u32 s%d, s%d, s%d' % (sT, sT + 1, sT))
        a('v_add_u32 v60, s%d, v%d' % (sT, vFlag))
        a('s_add_u32 s%d, s%d, 1' % (sT, sLayer))
        a('v_mov_b32 v61, s%d' % sT)
        a('ds_write_b32 v60, v61 offset:%d' % F_WG)
        self.tr(43)

    def xaddr_frag(self, d, tmp):
        a = self.a
        a('v_lshrrev_b32 v%d, 4, v%d' % (tmp, vLane))
        a('v_and_b32 v%d, 15, v%d' % (tmp + 1, vLane))
        self.swz(d, tmp, tmp + 1, tmp + 2)
        a('s_lshl_b32 s%d, s%d, 10' % (sT, sHG))
        a('v_add_u32 v%d, s%d, v%d' % (d, sT, d))
        a('s_lshl_b32 s%d, s%d, 7' % (sT, sHG))
        a('s_add_u32 s%d, s%d, 16384' % (sT, sT))
        a('v_lshlrev_b32 v%d, 3, v%d' % (tmp + 1, tmp + 1))
        a('v_add_u32 v%d, s%d, v%d' % (d + 1, sT, tmp + 1))

    def xaddr_nat(self, d, tmp):
        a = self.a
        a('s_lshl_b32 s%d, s%d, 7' % (sT, sTG))
        a('s_add_u32 s%d, s%d, s%d' % (sT, sT, sP))
        a('s_lshl_b32 s%d, s%d, 5' % (sT + 1, sWv))
        a('s_add_u32 s%d, s%d, s%d' % (sT, sT, sT + 1))
        a('s_mul_i32 s%d, s%d, 1152' % (sT, sT))
        a('s_mul_i32 s%d, s%d, 72' % (sT + 1, sHG))
        a('s_add_u32 s%d, s%d, s%d' % (sT, sT, sT + 1))
        a('v_and_b32 v%d, 15, v%d' % (tmp, vLane))
        a('v_mul_u32_u24 v%d, 2304, v%d' % (tmp, tmp))
        a('v_add_u32 v%d, s%d, v%d' % (tmp, sT, tmp))
        a('v_add_u32 v%d, 64, v%d' % (d + 1, tmp))
        a('v_lshrrev_b32 v%d, 4, v%d' % (tmp + 1, vLane))
        a('v_lshl_add_u32 v%d, v%d, 4, v%d' % (d, tmp + 1, tmp))

    def build(self):
        a = self.a
        self.prologue()
        a('s_cmp_eq_u32 s%d, 0' % sSet)
        a('s_cbranch_scc0 L_H0')
        if not os.environ.get('DIRECTA'):
            self.wload_addr(0, 1, 2)
            self.coop_issue(0, 1)
            self.wou_issue(16, 24)
            self.kv_prefill(32)
            a('s_waitcnt vmcnt(12)')
            self.tr(5)
            self.coop_store(2)
            a('s_waitcnt vmcnt(2)')
            self.wou_store(16, 24)
            self.get_nonce(8)
            self.coop_flag(12)
            self.wou_flag(8)
            a('s_mov_b32 s%d, 1' % (sT + 7))
            self.set_flag(F_XH, sT + 7, 12)
            self.tr(6)
            a('s_mov_b32 s%d, 0' % sP)
            self.stage_input_issue()
            self.stage_input_finish()
            if not os.environ.get('PROG'):
                self.coop_load(0)
                self.colsum(8, progressive=True)
            else:
                self.coop_load_prog(0)
                a('s_waitcnt vmcnt(0)')
                self.colsum(8)
        else:
            self.wload_addr(99, 100, 92)
            self.kv_prefill(80)
            self.wou_issue(72, 92)
            self.stage_input_issue()
            self.wload_issue(range(0, 18), 99, 100)
            self.tr(5)
            self.stage_input_finish(extra_after=49, last_extra=63)
            self.wou_store(72, 92)
            self.ones_mask(2, 3)
            self.get_nonce(8)
            self.wou_flag(8)
            self.tr(6)
            self.wload_perm(range(18), 2, 4)
            self.colsum(8)
        a('s_mov_b32 s%d, 2' % (sT + 7))
        self.set_flag(F_XH, sT + 7, 12)
        self.tr(2)
        if os.environ.get('ENDT'):
            a('s_memrealtime s[%d:%d]' % (sTm, sTm + 1))
            a('s_waitcnt lgkmcnt(0)')
            a('s_sub_u32 s%d, s%d, s%d' % (sTm, sTm, sNon))
            a('v_mov_b32 v0, s%d' % sTm)
            a('v_mov_b32 v1, 12')
            a('s_mov_b64 exec, 1')
            a('buffer_atomic_umax v0, v1, %s, 0 offen' % srd(sDBG))
            a('s_mov_b64 exec, -1')
        a('s_branch L_M_ROLE')
        a.label('L_H0')
        Ln, Lp = a.uid('Lnn'), a.uid('Lpf0')
        a('s_cmp_lg_u32 s2, 0')
        a('s_cbranch_scc1 %s' % Ln)
        a('s_cmp_lg_u32 s%d, 0' % sWv)
        a('s_cbranch_scc1 %s' % Ln)
        a('s_memrealtime s[%d:%d]' % (sNon, sNon + 1))
        a('s_waitcnt lgkmcnt(0)')
        a('s_or_b32 s%d, s%d, 1' % (sNon, sNon))
        a('s_or_b32 s%d, s%d, 1' % (sNon + 1, sNon + 1))
        a('v_mov_b32 v72, s%d' % sNon)
        a('v_mov_b32 v73, s%d' % (sNon + 1))
        a('v_mov_b32 v74, 0')
        a('buffer_store_dwordx2 v[72:73], v74, %s, 0 offen sc1' % srd(sDBG))
        a.label(Ln)
        self.wload_addr(99, 100, 92)
        self.coop_issue(99, 100)
        self.wou_issue(72, 92)
        self.kv_prefill(80)
        a('s_waitcnt vmcnt(4)')
        self.tr(5)
        self.coop_store(vCS)
        self.wou_store(72, 92)
        self.get_nonce(72)
        a('s_mov_b32 s%d, 1' % (sT + 7))
        self.set_flag(F_XH + 16, sT + 7, 72)
        Lf = a.uid('Lif')
        a('s_cmp_lg_u32 s%d, 3' % sWv)
        a('s_cbranch_scc1 %s' % Lf)
        self.wait_flag(F_XH, sT + 7, 72, 18)
        self.wait_flag(F_XH + 16, sT + 7, 72, 19)
        a('s_lshl_b32 s%d, s%d, 4' % (sT, sTG))
        a('s_add_u32 s%d, s%d, s%d' % (sT, sT, sHG))
        a('s_lshl_b32 s%d, s%d, 4' % (sT, sT))
        a('s_add_u32 s%d, s%d, %d' % (sT, sT, WS_INI))
        a('v_mov_b32 v72, s%d' % sNon)
        a('v_mov_b32 v73, s%d' % (sNon + 1))
        a('v_mov_b32 v74, s%d' % sXcc)
        a('v_mov_b32 v75, s%d' % sNon)
        a('v_mov_b32 v76, 0')
        a('s_mov_b64 exec, 1')
        a('buffer_store_dwordx4 v[72:75], v76, %s, s%d offen sc1' % (srd(sWS), sT))
        a('s_mov_b64 exec, -1')
        a.label(Lf)
        self.coop_flag(78)
        self.wou_flag(92)
        self.tr(6)
        self.build_tables()
        a('s_mov_b32 s%d, 2' % (sT + 7))
        self.set_flag(F_XH + 16, sT + 7, 72)
        self.wait_flag(F_XH, sT + 7, 72, 20, sleep=4)
        a('s_mov_b32 s%d, 1' % sP)
        self.stage_input_issue()
        self.wo_stage()
        self.init_check(72)
        self.coop_load(72)
        self.stage_input_finish(extra_after=36, last_extra=36)
        self.tr(3)
        a('s_mov_b32 s%d, 0' % sP)
        a('s_branch L_BPHASE')
        self.m_role()
        a.label('L_BPHASE')
        self.bphase()
        a('s_add_u32 s%d, s%d, 1' % (sLayer, sLayer))
        a('s_cmp_ge_u32 s%d, %d' % (sLayer, self.nlayers))
        a('s_cbranch_scc1 L_END')
        a.label('L_STAGE')
        self.stage_generic()
        a('s_cmp_eq_u32 s%d, 0' % sP)
        a('s_cbranch_scc1 L_M_ROLE')
        a('s_mov_b32 s%d, 0' % sP)
        a('s_branch L_BPHASE')
        a.label('L_ABORT')
        a('s_mov_b64 exec, -1')
        a('s_lshl_b32 s%d, s%d, 2' % (sT, sT + 9))
        a('s_add_u32 s%d, s%d, 64' % (sT, sT))
        a('v_mov_b32 v0, s2')
        a('v_add_u32 v0, 0x1000, v0')
        a('v_mov_b32 v1, s%d' % sT)
        a('buffer_store_dword v0, v1, %s, 0 offen sc1' % srd(sDBG))
        a.label('L_END')
        if os.environ.get('WBL2'):
            a('s_cmp_ge_u32 s2, 256')
            a('s_cbranch_scc1 L_END4')
            a('s_or_b32 s%d, s%d, s%d' % (sT, sHG, sWave))
            a('s_cmp_lg_u32 s%d, 0' % sT)
            a('s_cbranch_scc1 L_END4')
            a.raw('    buffer_wbl2 sc1')
            a('s_waitcnt vmcnt(0)')
            a.label('L_END4')
        if os.environ.get('ENDT'):
            a('s_cmp_ge_u32 s2, 256')
            a('s_cbranch_scc1 L_END3')
            a('s_memrealtime s[%d:%d]' % (sTm, sTm + 1))
            a('s_waitcnt lgkmcnt(0)')
            a('s_sub_u32 s%d, s%d, s%d' % (sTm, sTm, sNon))
            a('v_mov_b32 v0, s%d' % sTm)
            a('v_mov_b32 v1, 8')
            a('s_mov_b64 exec, 1')
            a('buffer_atomic_umax v0, v1, %s, 0 offen' % srd(sDBG))
            a.label('L_END3')
        if self.debug:
            a('s_cmp_ge_u32 s2, 256')
            a('s_cbranch_scc1 L_END2')
            self.tr(63)
            a('s_lshl_b32 s%d, s2, 3' % sT)
            a('s_add_u32 s%d, s%d, s%d' % (sT, sT, sWave))
            a('s_lshl_b32 s%d, s%d, 8' % (sT, sT))
            a('s_add_u32 s%d, s%d, %d' % (sT, sT, WS_TRC))
            a('v_lshlrev_b32 v0, 2, v%d' % vLane)
            a('buffer_store_dword v%d, v0, %s, s%d offen' % (vTr, srd(sWS), sT))
            a.label('L_END2')
        a('s_endpgm')

    def text(self):
        hdr = open(os.path.join(os.path.dirname(os.path.abspath(__file__)), '..', 'cdna_kernels', NAME + '.s.ref')).read()
        out = hdr.split('; Override launch geometry')[0]
        out += '; @launch grid=(256,1,1) block=(512,1,1) lds=%d\n' % LDS_BYTES
        out += '.amdgcn_target "amdgcn-amd-amdhsa--gfx950"\n.text\n'
        out += '.globl %s_kernel\n.p2align 8\n.type %s_kernel,@function\n%s_kernel:\n' % (NAME, NAME, NAME)
        out += self.a.render()
        out += '''.section .rodata,"a"
.p2align 6
.amdhsa_kernel %s_kernel
  .amdhsa_next_free_vgpr 256
  .amdhsa_next_free_sgpr 96
  .amdhsa_accum_offset 256
  .amdhsa_group_segment_fixed_size 0
  .amdhsa_kernarg_size 72
  .amdhsa_user_sgpr_count 2
  .amdhsa_user_sgpr_kernarg_segment_ptr 1
  .amdhsa_system_sgpr_workgroup_id_x 1
.end_amdhsa_kernel
''' % NAME
        return out


if __name__ == '__main__':
    nl = int(sys.argv[2]) if len(sys.argv) > 2 else 4
    g = Gen(nlayers=nl, debug=(len(sys.argv) > 3 and sys.argv[3] == 'trace'))
    g.build()
    path = sys.argv[1] if len(sys.argv) > 1 else os.path.join(os.path.dirname(os.path.abspath(__file__)), '..', 'cdna_kernels', NAME + '.s')
    open(path, 'w').write(g.text())
    print('wrote', path)
```
